```python
import torch

def _softmax(x, axis=-1):
    return torch.softmax(x, dim=axis)
def _gelu(x):
    return torch.nn.functional.gelu(x, approximate="tanh")
def _silu(x):
    return torch.nn.functional.silu(x)
def _sigmoid(x):
    return torch.sigmoid(x)
def _layernorm(x, axis=-1, eps=1e-5):
    m = x.mean(dim=axis, keepdim=True)
    v = x.var(dim=axis, keepdim=True, unbiased=False)
    return (x - m) / torch.sqrt(v + eps)
def _scatter_add(tgt, idx, src, axis=0):
    return tgt.clone().index_add_(axis, idx, src)
def _segment_sum(src, seg, n):
    out = torch.zeros((n,) + src.shape[1:], dtype=src.dtype)
    return out.index_add_(0, seg, src)
def _pad(x, pw):
    flat = tuple(v for pair in reversed(pw) for v in pair)
    return torch.nn.functional.pad(x, flat)

kernel_name = 'recurrent_scan__gqa_block_cached__swiglu_ffn__decode'

def setup_inputs():

    _w = (lambda a: (lambda t: t.to(torch.bfloat16) if t.is_floating_point() else t)(torch.as_tensor(a)))
    def _A_setup():
        B, Sq, D = 2, 1, 1024
        Hq, Hkv, Sk, Dh = 32, 4, 32768, 128
        assert Hq % Hkv == 0, (Hq, Hkv)
        return {
            "x": _w((lambda *s: torch.randn(*s, dtype=torch.bfloat16) * 0.05)(B, Sq, D)),
            "k_cache": _w((lambda *s: torch.randn(*s, dtype=torch.bfloat16) * 1.6)(B, Hkv, Sk, Dh)),
            "v_cache": _w((lambda *s: torch.randn(*s, dtype=torch.bfloat16) * 0.2)(B, Hkv, Sk, Dh)),
            "wq": _w((lambda *s: torch.randn(*s, dtype=torch.bfloat16) * 1.6)(D, Hq * Dh) * (D ** -0.5)),
            "wo": _w((lambda *s: torch.randn(*s, dtype=torch.bfloat16) * 0.2)(Hq * Dh, D) * ((Hq * Dh) ** -0.5)),
        }
    _A_in = _A_setup()

    def _B_setup():
        B, S, D, F = 2, 1, 1024, 3584
        return {
            "x": _w((lambda *s: torch.randn(*s, dtype=torch.bfloat16) * 0.05)(B, S, D)),
            "w_gate": _w((lambda *s: torch.randn(*s, dtype=torch.bfloat16) * 0.1)(D, F)),
            "w_up": _w((lambda *s: torch.randn(*s, dtype=torch.bfloat16) * 0.1)(D, F)),
            "w_down": _w((lambda *s: torch.randn(*s, dtype=torch.bfloat16) * 0.1)(F, D)),
        }
    _B_in = _B_setup()

    return {
        "A_x": _A_in["x"],
        "A_k_cache": _A_in["k_cache"],
        "A_v_cache": _A_in["v_cache"],
        "A_wq": _A_in["wq"],
        "A_wo": _A_in["wo"],
        "B_x": _B_in["x"],
        "B_w_gate": _B_in["w_gate"],
        "B_w_up": _B_in["w_up"],
        "B_w_down": _B_in["w_down"],
    }

def reference(A_x, A_k_cache, A_v_cache, A_wq, A_wo, B_x, B_w_gate, B_w_up, B_w_down):
    def _A_ref(x, k_cache, v_cache, wq, wo):
        B, Sq, D = x.shape
        Hq, Dh = 32, 128
        Hkv = k_cache.shape[1]
        rep = Hq // Hkv
        q = (lambda x, *d: x.permute(*d))((x @ wq).reshape(B, Sq, Hq, Dh), 0, 2, 1, 3)
        k = (lambda x, n, axis: torch.repeat_interleave(x, n, dim=axis))(k_cache, rep, axis=1)
        v = (lambda x, n, axis: torch.repeat_interleave(x, n, dim=axis))(v_cache, rep, axis=1)
        scores = torch.einsum("bhqd,bhkd->bhqk", q, k) * (Dh ** -0.5)
        p = _softmax(scores, axis=-1)
        o = torch.einsum("bhqk,bhkd->bhqd", p, v)
        return (lambda x, *d: x.permute(*d))(o, 0, 2, 1, 3).reshape(B, Sq, Hq * Dh) @ wo

    def _B_ref(x, w_gate, w_up, w_down):
        g = _silu(x @ w_gate)
        u = x @ w_up
        return (g * u) @ w_down

    x = A_x
    xn = _layernorm(x, axis=-1)
    s = _A_ref(xn, A_k_cache, A_v_cache, A_wq, A_wo)
    g = _silu(_B_ref(xn, B_w_gate, B_w_up, B_w_down))
    return x + s * g
```

```python
import struct, sys, argparse

def f32hex(x):
    return '0x%08x' % struct.unpack('<I', struct.pack('<f', x))[0]

KN = 'recurrent_scan__gqa_block_cached__swiglu_ffn__decode_kernel'
NWG = 256
REC = 16384
R_Q, R_G, R_U, R_S, R_F, R_O, R_ML = 0, 1024, 2048, 3072, 5120, 6144, 10240
L_XN = 0x0000
L_Q = 0x1000
L_ST = 0x1800
L_ML = 0x1A00
L_CT = 0x1A40
C_Q, C_ST, C_ML, C_O, C_OG, C_H = [L_CT + 4 * i for i in range(6)]
L_OB = 0x1B00
L_H = 0x1D00
L_OP = 0x2000
LDS_BYTES = 0xA000
SCALE = f32hex(128 ** -0.5)
LOG2E = f32hex(1.4426950408889634)
EPS = f32hex(1e-5)
SPIN_LDS = 4000000
SPIN_GLB = 40000

class Gen:
    def __init__(self):
        self.L = []
        self.n = 0
    def __call__(self, s):
        for line in s.strip('\n').split('\n'):
            self.L.append('    ' + line.strip())
    def label(self, name):
        self.L.append(name + ':')
    def uniq(self, p):
        self.n += 1
        return f'{p}_{self.n}'

class VM:
    def __init__(self, g):
        self.g = g
        self.ops = []
    def issue(self, tag):
        self.ops.append(tag)
    def wait(self, tag):
        idx = max(i for i, t in enumerate(self.ops) if t == tag)
        n = len(self.ops) - 1 - idx
        assert n <= 63
        self.g(f's_waitcnt vmcnt({n})')
    def reset(self):
        self.ops = []

def srd(g, d, base, nbytes):
    g(f's_mov_b32 s{d}, s{base}\ns_mov_b32 s{d+1}, s{base+1}\ns_mov_b32 s{d+2}, {nbytes}\ns_mov_b32 s{d+3}, 0x20000')

def lds_wait(g, addr, target, vt='v7', va='v6', st='s50', sc='s51'):
    l = g.uniq('LW'); d = g.uniq('LWD')
    g(f'v_mov_b32 {va}, {addr}\ns_mov_b32 {sc}, {SPIN_LDS}')
    g.label(l)
    g(f'''ds_read_b32 {vt}, {va}
    s_waitcnt lgkmcnt(0)
    v_readfirstlane_b32 {st}, {vt}
    s_cmp_ge_u32 {st}, {target}
    s_cbranch_scc1 {d}
    s_sleep 1
    s_sub_u32 {sc}, {sc}, 1
    s_cmp_lg_u32 {sc}, 0
    s_cbranch_scc1 {l}''')
    g.label(d)

def lds_signal(g, addr, add=False, vt='v7', va='v6'):
    g(f'''s_waitcnt lgkmcnt(0)
    v_mov_b32 {va}, {addr}
    v_mov_b32 {vt}, 1
    s_mov_b64 exec, 1''')
    g(f'ds_add_u32 {va}, {vt}' if add else f'ds_write_b32 {va}, {vt}')
    g('s_mov_b64 exec, -1')

def bf16r_pair(g, a, b, t):
    g(f'''v_cvt_pk_bf16_f32 {t}, {a}, {b}
    v_lshlrev_b32 {a}, 16, {t}
    v_and_b32 {b}, 0xffff0000, {t}''')

def bf16r(g, a):
    g(f'''v_cvt_pk_bf16_f32 {a}, {a}, {a}
    v_lshlrev_b32 {a}, 16, {a}''')

def allred_row16(g, op, v, t):
    for r in (1, 2, 4, 8):
        g(f's_nop 1\n{op}_dpp {t}, {v}, {v} row_ror:{r} row_mask:0xf bank_mask:0xf\nv_mov_b32 {v}, {t}')

def allred_x16(g, op, v, t):
    g(f'v_mov_b32 {t}, {v}\ns_nop 1\nv_permlane16_swap_b32 {v}, {t}\ns_nop 1\n{op} {v}, {v}, {t}')

def allred_x32(g, op, v, t):
    g(f'v_mov_b32 {t}, {v}\ns_nop 1\nv_permlane32_swap_b32 {v}, {t}\ns_nop 1\n{op} {v}, {v}, {t}')

def precise_div(g, d, num, den, t1, t2):
    g(f'''v_rcp_f32 {t1}, {den}
    s_nop 0
    v_mul_f32 {t2}, {num}, {t1}
    v_fma_f32 {d}, -{t2}, {den}, {num}
    v_fma_f32 {d}, {d}, {t1}, {t2}''')

def silu(g, x, t1, t2, t3):
    g(f'''v_mul_f32 {t1}, s60, {x}
    v_exp_f32 {t1}, -{t1}
    s_nop 0
    v_add_f32 {t1}, 1.0, {t1}''')
    g(f'''v_rcp_f32 {t2}, {t1}
    s_nop 0
    v_mul_f32 {t3}, {x}, {t2}
    v_fma_f32 {t1}, -{t3}, {t1}, {x}
    v_fma_f32 {t1}, {t1}, {t2}, {t3}
    v_cmp_eq_f32 vcc, 0, {t2}
    s_nop 1
    v_cndmask_b32 {x}, {t1}, {t3}, vcc''')

A_T = 8
A_B = 24
A_ACC = 40
A_POOL = 72

def tile_loads(g, vm, srdreg, sbase, rowbytes, kk, slot, tag, voff='v1', stmp='s46'):
    for i in range(8):
        r = A_POOL + 32 * slot + 4 * i
        g(f's_add_u32 {stmp}, {sbase}, {(32 * kk + i) * rowbytes}')
        g(f'buffer_load_dwordx4 v[{r}:{r+3}], {voff}, s[{srdreg}:{srdreg+3}], {stmp} offen nt')
        vm.issue(tag)

def tile_block_mfma(g, slot, kk, first, breg):
    base = A_POOL + 32 * slot
    for half in range(2):
        for tt in range(4):
            t = 4 * half + tt
            d = t >> 1
            sel = 's58' if (t & 1) == 0 else 's59'
            o = A_T + 4 * tt
            for p in range(4):
                g(f'v_perm_b32 v{o+p}, v{base + 4*(2*p+1) + d}, v{base + 4*(2*p) + d}, {sel}')
        g('s_nop 1')
        for tt in range(4):
            t = 4 * half + tt
            o = A_T + 4 * tt
            acc = A_ACC + 4 * t
            c = '0' if first else f'v[{acc}:{acc+3}]'
            g(f'v_mfma_f32_16x16x32_bf16 v[{acc}:{acc+3}], v[{o}:{o+3}], v[{breg}:{breg+3}], {c}')

def gemv_tile(g, vm, srdreg, sbase, rowbytes, ldsaddr_v, pre_issued, tagp, wait_fn=None):
    if wait_fn:
        wait_fn()
    for kk in range(4):
        g(f'ds_read_b128 v[{A_B+4*kk}:{A_B+4*kk+3}], {ldsaddr_v} offset:{64*kk}')
    g('s_waitcnt lgkmcnt(0)')
    for kk in range(4):
        vm.wait(f'{tagp}{kk}')
        tile_block_mfma(g, kk % 3, kk, kk == 0, A_B + 4 * kk)
        if kk == 0:
            tile_loads(g, vm, srdreg, sbase, rowbytes, 3, 0, f'{tagp}3')

def publish_acc(g, vm, soff, voff='v2'):
    g('s_nop 7\ns_nop 1')
    g('s_mov_b32 exec_lo, 0x00030003\ns_mov_b32 exec_hi, 0x00030003')
    for t in range(8):
        acc = A_ACC + 4 * t
        g(f'buffer_store_dwordx4 v[{acc}:{acc+3}], {voff}, s[36:39], {soff} offen offset:{16*t} sc1')
        vm.issue('st')
    g('s_mov_b64 exec, -1')

def sentinel_check(g, regs, vmx):
    regs = list(regs)
    g(f'v_max_u32 {vmx}, v{regs[0]}, v{regs[1]}')
    i = 2
    while i < len(regs):
        if i + 1 < len(regs):
            g(f'v_max3_u32 {vmx}, {vmx}, v{regs[i]}, v{regs[i+1]}')
            i += 2
        else:
            g(f'v_max_u32 {vmx}, {vmx}, v{regs[i]}')
            i += 1
    g(f'v_cmp_eq_u32 vcc, -1, {vmx}')

def poll_loop(g, issue_fn, regs, vmx='v7', sc='s51'):
    l = g.uniq('PL'); d = g.uniq('PLD')
    g(f's_mov_b32 {sc}, {SPIN_GLB}')
    g.label(l)
    issue_fn()
    g('s_waitcnt vmcnt(0)')
    sentinel_check(g, regs, vmx)
    g(f'''s_cbranch_vccz {d}
    s_sleep 2
    s_sub_u32 {sc}, {sc}, 1
    s_cmp_lg_u32 {sc}, 0
    s_cbranch_scc1 {l}''')
    g.label(d)

def gen(args):
    g = Gen()
    H = []
    H.append(f'; @launch grid=({NWG},1,1) block=(768,1,1) lds={LDS_BYTES}')
    H.append('.amdgcn_target "amdgcn-amd-amdhsa--gfx950"\n.text')
    H.append(f'.globl {KN}\n.p2align 8\n.type {KN},@function\n{KN}:')
    g(f'''s_cmp_ge_u32 s2, {NWG}
    s_cbranch_scc1 L_END
    s_load_dwordx16 s[4:19], s[0:1], 0
    s_load_dwordx8 s[20:27], s[0:1], 64
    v_lshrrev_b32 v1, 6, v0
    v_and_b32 v0, 63, v0
    s_mov_b32 s58, 0x05040100
    s_mov_b32 s59, 0x07060302
    v_readfirstlane_b32 s3, v1
    s_mov_b32 s60, {LOG2E}
    s_mov_b32 s61, {SCALE}
    s_lshl_b32 s47, s2, 14
    s_waitcnt lgkmcnt(0)''')
    srd(g, 36, 26, 0x10000000)
    g('''s_cmp_ge_u32 s3, 4
    s_cbranch_scc1 L_BULK
    s_cmp_eq_u32 s3, 0
    s_cbranch_scc1 L_A0
    s_cmp_eq_u32 s3, 3
    s_cbranch_scc1 L_A3
    s_branch L_A12''')

    g.label('L_A3')
    srd(g, 28, 4, 4096)
    g('''v_lshlrev_b32 v1, 6, v0
    buffer_load_dwordx4 v[8:11], v1, s[28:31], 0 offen
    buffer_load_dwordx4 v[12:15], v1, s[28:31], 0 offen offset:16
    buffer_load_dwordx4 v[16:19], v1, s[28:31], 0 offen offset:32
    buffer_load_dwordx4 v[20:23], v1, s[28:31], 0 offen offset:48''')
    g(f'''v_mov_b32 v2, 0
    v_lshlrev_b32 v3, 2, v0
    v_add_u32 v3, {L_CT}, v3
    s_mov_b64 exec, 0xffff
    ds_write_b32 v3, v2
    s_mov_b64 exec, -1
    s_waitcnt vmcnt(0)''')
    for i in range(16):
        g(f'v_lshlrev_b32 v{24+2*i}, 16, v{8+i}\nv_and_b32 v{25+2*i}, 0xffff0000, v{8+i}')
    g('v_add_f32 v56, v24, v25')
    for i in range(26, 56):
        g(f'v_add_f32 v56, v56, v{i}')
    allred_row16(g, 'v_add_f32', 'v56', 'v57')
    allred_x16(g, 'v_add_f32', 'v56', 'v57')
    g('v_mul_f32 v56, 0x3a800000, v56')
    g('v_sub_f32 v58, v24, v56\nv_mul_f32 v59, v58, v58')
    for i in range(25, 56):
        g(f'v_sub_f32 v58, v{i}, v56\nv_fma_f32 v59, v58, v58, v59')
    allred_row16(g, 'v_add_f32', 'v59', 'v57')
    allred_x16(g, 'v_add_f32', 'v59', 'v57')
    g('v_mul_f32 v59, 0x3a800000, v59')
    bf16r(g, 'v56')
    bf16r(g, 'v59')
    g(f'v_add_f32 v59, {EPS}, v59')
    bf16r(g, 'v59')
    g('''v_sqrt_f32 v60, v59
    s_nop 0
    v_rcp_f32 v61, v60
    v_fma_f32 v62, -v60, v60, v59
    v_mul_f32 v61, 0.5, v61
    v_fma_f32 v60, v62, v61, v60''')
    bf16r(g, 'v60')
    g('v_rcp_f32 v61, v60')
    for i in range(16):
        a, b = f'v{24+2*i}', f'v{25+2*i}'
        g(f'v_sub_f32 {a}, {a}, v56\nv_sub_f32 {b}, {b}, v56')
        bf16r_pair(g, a, b, 'v62')
        for r in (a, b):
            g(f'''v_mul_f32 v62, {r}, v61
            v_fma_f32 v63, -v62, v60, {r}
            v_fma_f32 {r}, v63, v61, v62''')
        g(f'v_cvt_pk_bf16_f32 v{8+i}, {a}, {b}')
    g(f'''ds_write_b128 v1, v[8:11] offset:{L_XN}
    ds_write_b128 v1, v[12:15] offset:{L_XN+16}
    ds_write_b128 v1, v[16:19] offset:{L_XN+32}
    ds_write_b128 v1, v[20:23] offset:{L_XN+48}
    s_waitcnt lgkmcnt(0)
    s_barrier''')
    lds_wait(g, C_Q, 1)
    g('s_cmp_lt_u32 s2, 32\ns_cbranch_scc1 L_A3_ML')
    g(f'''s_sub_u32 s44, s2, 32
    s_lshr_b32 s44, s44, 3
    s_lshl_b32 s44, s44, 17
    v_lshlrev_b32 v1, 4, v0''')
    def issue_h():
        for ks in range(8):
            g(f's_add_u32 s46, s44, {ks*REC}')
            g(f'buffer_load_dwordx4 v[{72+4*ks}:{75+4*ks}], v1, s[36:39], s46 offen offset:{R_G} sc1')
            g(f'buffer_load_dwordx4 v[{104+4*ks}:{107+4*ks}], v1, s[36:39], s46 offen offset:{R_U} sc1')
    poll_loop(g, issue_h, range(72, 136))
    for r in range(4):
        g(f'v_add_f32 v{8+r}, v{72+r}, v{76+r}\nv_add_f32 v{12+r}, v{104+r}, v{108+r}')
        for ks in range(2, 8):
            g(f'v_add_f32 v{8+r}, v{8+r}, v{72+4*ks+r}\nv_add_f32 v{12+r}, v{12+r}, v{104+4*ks+r}')
    bf16r_pair(g, 'v8', 'v9', 'v16'); bf16r_pair(g, 'v10', 'v11', 'v16')
    bf16r_pair(g, 'v12', 'v13', 'v16'); bf16r_pair(g, 'v14', 'v15', 'v16')
    for r in range(4):
        silu(g, f'v{8+r}', 'v16', 'v17', 'v18')
    bf16r_pair(g, 'v8', 'v9', 'v16'); bf16r_pair(g, 'v10', 'v11', 'v16')
    for r in range(4):
        g(f'v_mul_f32 v{8+r}, v{8+r}, v{12+r}')
    g('v_cvt_pk_bf16_f32 v8, v8, v9\nv_cvt_pk_bf16_f32 v10, v10, v11')
    g(f'''v_lshrrev_b32 v2, 5, v0
    v_lshlrev_b32 v2, 8, v2
    v_bfe_u32 v3, v0, 3, 2
    v_lshlrev_b32 v3, 6, v3
    v_and_b32 v4, 7, v0
    v_lshlrev_b32 v4, 1, v4
    v_add3_u32 v5, v2, v3, v4
    ds_write_b16 v5, v8 offset:{L_H}
    ds_write_b16_d16_hi v5, v8 offset:{L_H+16}
    ds_write_b16 v5, v10 offset:{L_H+32}
    ds_write_b16_d16_hi v5, v10 offset:{L_H+48}''')
    lds_signal(g, C_H)
    g.label('L_A3_ML')
    lds_wait(g, C_ST, 8)
    g(f'''v_and_b32 v1, 7, v0
    v_lshlrev_b32 v1, 2, v1''')
    for w in range(8):
        g(f'ds_read_b32 v{8+w}, v1 offset:{L_ST + 64*w}\nds_read_b32 v{16+w}, v1 offset:{L_ST + 64*w + 32}')
    g('s_waitcnt lgkmcnt(0)')
    g('v_max3_f32 v24, v8, v9, v10\nv_max3_f32 v24, v24, v11, v12\nv_max3_f32 v24, v24, v13, v14\nv_max_f32 v24, v24, v15')
    g('v_mov_b32 v25, 0')
    for w in range(8):
        g(f'''v_sub_f32 v26, v{8+w}, v24
        v_mul_f32 v26, s60, v26
        v_exp_f32 v26, v26
        s_nop 0
        v_fma_f32 v25, v26, v{16+w}, v25''')
    g(f'''s_add_u32 s46, s47, {R_ML}
    s_mov_b64 exec, 0xff
    buffer_store_dword v24, v1, s[36:39], s46 offen sc1
    buffer_store_dword v25, v1, s[36:39], s46 offen offset:32 sc1
    s_mov_b64 exec, -1''')
    g(f'''s_andn2_b32 s44, s2, 31
    s_lshl_b32 s44, s44, 14
    s_add_u32 s44, s44, {R_ML}
    v_and_b32 v1, 31, v0
    v_lshlrev_b32 v1, 14, v1
    v_lshrrev_b32 v2, 5, v0
    v_lshl_add_u32 v1, v2, 4, v1''')
    def issue_ml():
        g('buffer_load_dwordx4 v[8:11], v1, s[36:39], s44 offen sc1')
        g('buffer_load_dwordx4 v[12:15], v1, s[36:39], s44 offen offset:32 sc1')
    poll_loop(g, issue_ml, range(8, 16))
    for r in range(4):
        g(f'v_mov_b32 v{16+r}, v{8+r}')
        allred_row16(g, 'v_max_f32', f'v{16+r}', 'v24')
        allred_x16(g, 'v_max_f32', f'v{16+r}', 'v24')
        g(f'''v_sub_f32 v24, v{8+r}, v{16+r}
        v_mul_f32 v24, s60, v24
        v_exp_f32 v24, v24
        s_nop 0
        v_mul_f32 v{12+r}, v{12+r}, v24''')
        allred_row16(g, 'v_add_f32', f'v{12+r}', 'v24')
        allred_x16(g, 'v_add_f32', f'v{12+r}', 'v24')
        g('v_mov_b32 v26, 1.0')
        precise_div(g, f'v{20+r}', 'v26', f'v{12+r}', 'v24', 'v25')
    g(f'''v_lshrrev_b32 v2, 5, v0
    v_lshlrev_b32 v2, 4, v2
    s_mov_b32 exec_lo, 1
    s_mov_b32 exec_hi, 1
    ds_write_b128 v2, v[16:19] offset:{L_ML}
    ds_write_b128 v2, v[20:23] offset:{L_ML+32}
    s_mov_b64 exec, -1''')
    lds_signal(g, C_ML)
    g(f'''s_lshr_b32 s44, s2, 6
    s_lshl_b32 s44, s44, 20
    s_bfe_u32 s45, s2, 0x30003
    s_lshl_b32 s45, s45, 9
    s_add_u32 s44, s44, s45
    s_add_u32 s44, s44, {R_O}
    v_lshrrev_b32 v2, 5, v0
    v_lshlrev_b32 v2, 19, v2
    v_and_b32 v1, 31, v0
    v_lshl_add_u32 v1, v1, 4, v2''')
    def issue_o():
        for sp in range(32):
            g(f's_add_u32 s46, s44, {sp*REC}')
            g(f'buffer_load_dwordx4 v[{40+4*sp}:{43+4*sp}], v1, s[36:39], s46 offen sc1')
    poll_loop(g, issue_o, range(40, 168))
    for r in range(4):
        g(f'v_add_f32 v{8+r}, v{40+r}, v{44+r}')
        for sp in range(2, 32):
            g(f'v_add_f32 v{8+r}, v{8+r}, v{40+4*sp+r}')
    g('v_cvt_pk_bf16_f32 v8, v8, v9\nv_cvt_pk_bf16_f32 v10, v10, v11')
    g(f'''v_lshrrev_b32 v2, 5, v0
    v_lshlrev_b32 v2, 8, v2
    v_bfe_u32 v3, v0, 3, 2
    v_lshlrev_b32 v3, 6, v3
    v_and_b32 v4, 7, v0
    v_lshlrev_b32 v4, 1, v4
    v_add3_u32 v5, v2, v3, v4
    ds_write_b16 v5, v8 offset:{L_OB}
    ds_write_b16_d16_hi v5, v8 offset:{L_OB+16}
    ds_write_b16 v5, v10 offset:{L_OB+32}
    ds_write_b16_d16_hi v5, v10 offset:{L_OB+48}''')
    lds_signal(g, C_OG)
    g('s_endpgm')

    g.label('L_A0')
    vm = VM(g)
    g('''v_mov_b32 v8, -1
    v_mov_b32 v9, -1
    v_mov_b32 v10, -1
    v_mov_b32 v11, -1
    v_lshlrev_b32 v3, 4, v0''')
    for i in range(10):
        g(f's_add_u32 s46, s47, {1024 + 1024*i}')
        g('buffer_store_dwordx4 v[8:11], v3, s[36:39], s46 offen sc1')
        vm.issue('clr')
    srd(g, 28, 10, 8 * 1024 * 1024)
    g('''s_and_b32 s44, s2, 7
    s_lshl_b32 s45, s44, 20
    s_lshr_b32 s46, s2, 3
    s_lshl_b32 s46, s46, 8
    s_add_u32 s45, s45, s46
    v_lshrrev_b32 v4, 4, v0
    v_and_b32 v5, 15, v0
    v_lshlrev_b32 v1, 16, v4
    v_lshl_add_u32 v1, v5, 4, v1''')
    for kk in range(3):
        tile_loads(g, vm, 28, 's45', 8192, kk, kk, f'wq{kk}')
    g(f'''v_and_b32 v2, 1, v0
    v_lshlrev_b32 v3, 11, v2
    v_lshl_add_u32 v3, v4, 4, v3
    s_lshl_b32 s46, s44, 8
    v_add_u32 v3, s46, v3
    v_lshlrev_b32 v2, 9, v2
    v_lshl_add_u32 v2, v4, 7, v2
    s_barrier''')
    gemv_tile(g, vm, 28, 's45', 8192, 'v3', True, 'wq')
    publish_acc(g, vm, 's47')
    srd(g, 32, 20, 3584 * 1024 * 2)
    g('''s_sub_u32 s48, s2, 32
    s_lshr_b32 s49, s48, 3
    s_lshl_b32 s49, s49, 18
    s_and_b32 s48, s48, 7
    s_lshl_b32 s48, s48, 8
    s_add_u32 s48, s48, s49
    v_lshlrev_b32 v1, 14, v4
    v_lshl_add_u32 v1, v5, 4, v1''')
    g('s_waitcnt vmcnt(0)')
    vm.reset()
    srd(g, 40, 24, 256)
    g('''v_mov_b32 v6, s2
    v_mov_b32 v7, 1
    s_mov_b64 exec, 1
    buffer_store_byte v7, v6, s[40:43], 0 offen sc1
    s_mov_b64 exec, -1''')
    l = 'L_A0_FP'; d = 'L_A0_FPD'
    g(f'v_lshlrev_b32 v6, 2, v0\ns_mov_b32 s51, {SPIN_GLB}\ns_mov_b32 s52, 0x01010101')
    g.label(l)
    g(f'''buffer_load_dword v7, v6, s[40:43], 0 offen sc1
    s_waitcnt vmcnt(0)
    v_cmp_ne_u32 vcc, s52, v7
    s_cbranch_vccz {d}
    s_sleep 2
    s_sub_u32 s51, s51, 1
    s_cmp_lg_u32 s51, 0
    s_cbranch_scc1 {l}''')
    g.label(d)
    g(f'''s_lshr_b32 s44, s2, 6
    s_lshl_b32 s44, s44, 20
    s_bfe_u32 s45, s2, 0x10005
    s_lshl_b32 s45, s45, 9
    s_add_u32 s44, s44, s45
    v_lshrrev_b32 v6, 5, v0
    v_lshlrev_b32 v6, 17, v6
    v_and_b32 v7, 31, v0
    v_lshl_add_u32 v6, v7, 4, v6''')
    for hp in range(4):
        for ks in range(8):
            r = 40 + 32 * hp + 4 * ks
            g(f's_add_u32 s46, s44, {(16*hp + ks)*REC}')
            g(f'buffer_load_dwordx4 v[{r}:{r+3}], v6, s[36:39], s46 offen sc1')
    g(f'''v_lshrrev_b32 v8, 5, v0
    v_lshlrev_b32 v8, 8, v8
    v_bfe_u32 v9, v0, 3, 2
    v_lshlrev_b32 v9, 6, v9
    v_and_b32 v10, 7, v0
    v_lshlrev_b32 v10, 1, v10
    v_add3_u32 v8, v8, v9, v10''')
    for hp in range(4):
        g(f's_waitcnt vmcnt({24 - 8*hp})')
        b0 = 40 + 32 * hp
        for r in range(4):
            g(f'v_add_f32 v{12+r}, v{b0+r}, v{b0+4+r}')
            for ks in range(2, 8):
                g(f'v_add_f32 v{12+r}, v{12+r}, v{b0+4*ks+r}')
        g(f'''v_cvt_pk_bf16_f32 v12, v12, v13
        v_cvt_pk_bf16_f32 v14, v14, v15
        ds_write_b16 v8, v12 offset:{L_Q + 512*hp}
        ds_write_b16_d16_hi v8, v12 offset:{L_Q + 512*hp + 16}
        ds_write_b16 v8, v14 offset:{L_Q + 512*hp + 32}
        ds_write_b16_d16_hi v8, v14 offset:{L_Q + 512*hp + 48}''')
    lds_signal(g, C_Q)
    g('s_cmp_lt_u32 s2, 32\ns_cbranch_scc1 L_A0_FIN')
    for kk in range(3):
        tile_loads(g, vm, 32, 's48', 2048, kk, kk, f'wd{kk}')
    g(f'''v_and_b32 v3, 1, v0
    v_lshlrev_b32 v3, 8, v3
    v_lshl_add_u32 v3, v4, 4, v3
    v_add_u32 v3, {L_H}, v3''')
    gemv_tile(g, vm, 32, 's48', 2048, 'v3', True, 'wd', wait_fn=lambda: lds_wait(g, C_H, 1))
    g(f's_add_u32 s46, s47, {R_F}')
    publish_acc(g, vm, 's46')
    g.label('L_A0_FIN')
    srd(g, 28, 4, 4096)
    srd(g, 32, 22, 4096)
    g(f'''s_lshr_b32 s44, s2, 5
    s_bfe_u32 s45, s2, 0x10004
    s_and_b32 s46, s2, 15
    s_lshl_b32 s48, s44, 14
    s_lshl_b32 s49, s45, 9
    s_add_u32 s48, s48, s49
    s_lshl_b32 s49, s46, 5
    s_add_u32 s48, s48, s49
    s_add_u32 s49, s48, {32*REC + R_F}
    s_add_u32 s48, s48, {R_S}
    v_lshrrev_b32 v2, 1, v0
    v_and_b32 v3, 1, v0
    v_lshlrev_b32 v1, 17, v2
    v_lshl_add_u32 v1, v3, 4, v1
    v_min_u32 v2, 27, v2
    v_lshlrev_b32 v2, 17, v2
    v_lshl_add_u32 v2, v3, 4, v2
    s_lshl_b32 s52, s45, 10
    s_lshl_b32 s53, s44, 7
    s_add_u32 s52, s52, s53
    s_lshr_b32 s53, s46, 2
    s_lshl_b32 s53, s53, 5
    s_add_u32 s52, s52, s53
    s_and_b32 s53, s46, 3
    s_lshl_b32 s53, s53, 1
    s_add_u32 s52, s52, s53
    v_add_u32 v4, s52, v3
    v_lshlrev_b32 v4, 1, v4
    buffer_load_ushort v24, v4, s[28:31], 0 offen
    buffer_load_ushort v25, v4, s[28:31], 0 offen offset:16
    buffer_load_ushort v26, v4, s[28:31], 0 offen offset:32
    buffer_load_ushort v27, v4, s[28:31], 0 offen offset:48''')
    def issue_fin():
        g('buffer_load_dwordx4 v[8:11], v1, s[36:39], s48 offen sc1')
        g('buffer_load_dwordx4 v[12:15], v1, s[36:39], s48 offen offset:1024 sc1')
        g('buffer_load_dwordx4 v[16:19], v2, s[36:39], s49 offen sc1')
    poll_loop(g, issue_fin, range(8, 20))
    g('v_cmp_gt_u32 vcc, 56, v0\ns_nop 1')
    for r in range(4):
        g(f'v_add_f32 v{8+r}, v{8+r}, v{12+r}')
        g(f'v_cndmask_b32 v{16+r}, 0, v{16+r}, vcc')
    for r in list(range(8, 12)) + list(range(16, 20)):
        for rr in (2, 4, 8):
            g(f's_nop 1\nv_add_f32_dpp v20, v{r}, v{r} row_ror:{rr} row_mask:0xf bank_mask:0xf\nv_mov_b32 v{r}, v20')
        allred_x16(g, 'v_add_f32', f'v{r}', 'v20')
        allred_x32(g, 'v_add_f32', f'v{r}', 'v20')
    bf16r_pair(g, 'v8', 'v9', 'v20'); bf16r_pair(g, 'v10', 'v11', 'v20')
    bf16r_pair(g, 'v16', 'v17', 'v20'); bf16r_pair(g, 'v18', 'v19', 'v20')
    for r in range(4):
        silu(g, f'v{16+r}', 'v20', 'v21', 'v22')
    bf16r_pair(g, 'v16', 'v17', 'v20'); bf16r_pair(g, 'v18', 'v19', 'v20')
    for r in range(4):
        g(f'v_mul_f32 v{8+r}, v{8+r}, v{16+r}')
    bf16r_pair(g, 'v8', 'v9', 'v20'); bf16r_pair(g, 'v10', 'v11', 'v20')
    for r in range(4):
        g(f'v_lshlrev_b32 v{24+r}, 16, v{24+r}\nv_add_f32 v{8+r}, v{8+r}, v{24+r}\nv_cvt_pk_bf16_f32 v{8+r}, v{8+r}, v{8+r}')
    g('''s_mov_b64 exec, 3
    buffer_store_short v8, v4, s[32:35], 0 offen
    buffer_store_short v9, v4, s[32:35], 0 offen offset:16
    buffer_store_short v10, v4, s[32:35], 0 offen offset:32
    buffer_store_short v11, v4, s[32:35], 0 offen offset:48
    s_endpgm''')

    g.label('L_A12')
    vm = VM(g)
    g('''s_cmp_eq_u32 s3, 1
    s_cselect_b32 s28, s16, s18
    s_cselect_b32 s29, s17, s19
    s_mov_b32 s30, 7340032
    s_mov_b32 s31, 0x20000
    v_lshrrev_b32 v4, 4, v0
    v_and_b32 v5, 15, v0
    s_and_b32 s44, s2, 7
    s_mul_i32 s45, s44, 917504
    s_lshr_b32 s46, s2, 3
    s_lshl_b32 s46, s46, 8
    s_add_u32 s45, s45, s46
    v_mul_u32_u24 v1, 57344, v4
    v_lshl_add_u32 v1, v5, 4, v1
    v_and_b32 v2, 1, v0
    v_lshlrev_b32 v3, 11, v2
    v_lshl_add_u32 v3, v4, 4, v3
    s_lshl_b32 s46, s44, 8
    v_add_u32 v3, s46, v3
    v_lshlrev_b32 v2, 9, v2
    v_lshl_add_u32 v2, v4, 7, v2
    s_cmp_ge_u32 s2, 224
    s_cbranch_scc1 L_A12_SKIP''')
    for kk in range(3):
        tile_loads(g, vm, 28, 's45', 7168, kk, kk, f'gu{kk}')
    g('s_barrier')
    gemv_tile(g, vm, 28, 's45', 7168, 'v3', True, 'gu')
    lds_wait(g, C_Q, 1)
    g(f's_lshl_b32 s46, s3, 10\ns_add_u32 s46, s46, s47')
    publish_acc(g, vm, 's46')
    g('s_branch L_A12_WO')
    g.label('L_A12_SKIP')
    g('s_barrier')
    lds_wait(g, C_Q, 1)
    g.label('L_A12_WO')
    vm.reset()
    srd(g, 28, 12, 8 * 1024 * 1024)
    g('''s_lshr_b32 s45, s2, 3
    s_lshl_b32 s45, s45, 18
    s_sub_u32 s46, s3, 1
    s_lshl_b32 s48, s46, 17
    s_add_u32 s45, s45, s48
    s_lshl_b32 s48, s44, 8
    s_add_u32 s45, s45, s48
    v_lshlrev_b32 v1, 14, v4
    v_lshl_add_u32 v1, v5, 4, v1''')
    for kk in range(2):
        tile_loads(g, vm, 28, 's45', 2048, kk, kk, f'wo{kk}', stmp='s48')
    outs = [136, 8]
    for kk in range(2):
        vm.wait(f'wo{kk}')
        base = A_POOL + 32 * kk
        for t in range(8):
            d = t >> 1
            sel = 's58' if (t & 1) == 0 else 's59'
            for p in range(4):
                g(f'v_perm_b32 v{outs[kk] + 4*t + p}, v{base + 4*(2*p+1) + d}, v{base + 4*(2*p) + d}, {sel}')
    g(f'''v_and_b32 v3, 1, v0
    v_lshlrev_b32 v3, 8, v3
    v_lshl_add_u32 v3, v4, 4, v3
    s_lshl_b32 s48, s46, 7
    s_add_u32 s48, s48, {L_OB}
    v_add_u32 v3, s48, v3
    s_lshl_b32 s46, s46, 10
    s_add_u32 s46, s46, s47
    s_add_u32 s46, s46, {R_S}''')
    lds_wait(g, C_OG, 1)
    g('''ds_read_b128 v[72:75], v3
    ds_read_b128 v[76:79], v3 offset:64
    s_waitcnt lgkmcnt(0)''')
    for kk in range(2):
        for t in range(8):
            acc = A_ACC + 4 * t
            o = outs[kk] + 4 * t
            c = '0' if kk == 0 else f'v[{acc}:{acc+3}]'
            g(f'v_mfma_f32_16x16x32_bf16 v[{acc}:{acc+3}], v[{o}:{o+3}], v[{72+4*kk}:{75+4*kk}], {c}')
    publish_acc(g, vm, 's46')
    g('s_endpgm')

    g.label('L_BULK')
    vm = VM(g)
    BQ, BS, BO, BP = 8, 24, 40, 72
    NS = 6
    srd(g, 28, 6, 64 * 1024 * 1024)
    srd(g, 32, 8, 64 * 1024 * 1024)
    g('''s_sub_u32 s44, s3, 4
    s_lshr_b32 s45, s2, 6
    s_bfe_u32 s46, s2, 0x10005
    s_lshl_b32 s46, s46, 2
    s_add_u32 s45, s45, s46
    s_lshl_b32 s45, s45, 23
    s_and_b32 s46, s2, 31
    s_lshl_b32 s46, s46, 18
    s_add_u32 s45, s45, s46
    s_lshl_b32 s46, s44, 15
    s_add_u32 s45, s45, s46
    v_and_b32 v4, 15, v0
    v_lshrrev_b32 v5, 4, v0
    v_lshlrev_b32 v1, 8, v4
    v_lshl_add_u32 v1, v5, 4, v1
    v_lshlrev_b32 v2, 10, v5
    v_lshl_add_u32 v2, v4, 4, v2''')
    def tload(idx):
        slot = idx % NS
        r0 = BP + 16 * slot
        T = idx & 7
        g(f's_add_u32 s46, s45, {4096*T}')
        for j in range(4):
            r = r0 + 4 * j
            if idx < 8:
                g(f'buffer_load_dwordx4 v[{r}:{r+3}], v1, s[28:31], s46 offen offset:{64*j} nt')
            else:
                g(f'buffer_load_dwordx4 v[{r}:{r+3}], v2, s[32:35], s46 offen offset:{256*j} nt')
            vm.issue(f't{idx}')
    for idx in range(NS):
        tload(idx)
    g('s_barrier')
    lds_wait(g, C_Q, 1)
    g(f'''v_and_b32 v3, 7, v0
    v_lshlrev_b32 v3, 8, v3
    v_lshl_add_u32 v3, v5, 4, v3''')
    for j in range(4):
        g(f'ds_read_b128 v[{BQ+4*j}:{BQ+4*j+3}], v3 offset:{L_Q + 64*j}')
    g('s_waitcnt lgkmcnt(0)')
    for T in range(8):
        vm.wait(f't{T}')
        r0 = BP + 16 * (T % NS)
        s = BS + 4 * T
        for j in range(4):
            c = '0' if j == 0 else f'v[{s}:{s+3}]'
            g(f'v_mfma_f32_16x16x32_bf16 v[{s}:{s+3}], v[{r0+4*j}:{r0+4*j+3}], v[{BQ+4*j}:{BQ+4*j+3}], {c}')
        tload(T + NS)
    g('s_nop 7')
    for i in range(16):
        a, b = f'v{BS+2*i}', f'v{BS+2*i+1}'
        bf16r_pair(g, a, b, 'v8')
        g(f'v_mul_f32 {a}, s61, {a}\nv_mul_f32 {b}, s61, {b}')
        bf16r_pair(g, a, b, 'v8')
    g(f'v_max_f32 v9, v{BS}, v{BS+1}')
    for i in range(1, 16):
        g(f'v_max3_f32 v9, v9, v{BS+2*i}, v{BS+2*i+1}')
    allred_x16(g, 'v_max_f32', 'v9', 'v10')
    allred_x32(g, 'v_max_f32', 'v9', 'v10')
    g('v_mov_b32 v11, 0')
    for i in range(32):
        t = 12 + (i & 3)
        g(f'v_sub_f32 v{t}, v{BS+i}, v9\nv_mul_f32 v{t}, s60, v{t}\nv_exp_f32 v{t}, v{t}\ns_nop 0\nv_add_f32 v11, v11, v{t}')
    allred_x16(g, 'v_add_f32', 'v11', 'v10')
    allred_x32(g, 'v_add_f32', 'v11', 'v10')
    g(f'''s_lshl_b32 s46, s44, 6
    v_lshlrev_b32 v3, 2, v0
    v_add_u32 v3, s46, v3
    s_mov_b64 exec, 0xff
    ds_write_b32 v3, v9 offset:{L_ST}
    ds_write_b32 v3, v11 offset:{L_ST+32}
    s_mov_b64 exec, -1''')
    lds_signal(g, C_ST, add=True)
    lds_wait(g, C_ML, 1)
    g(f'''v_and_b32 v3, 7, v0
    v_lshlrev_b32 v3, 2, v3
    ds_read_b32 v9, v3 offset:{L_ML}
    ds_read_b32 v10, v3 offset:{L_ML+32}
    s_waitcnt lgkmcnt(0)''')
    for i in range(16):
        a, b = BS + 2 * i, BS + 2 * i + 1
        g(f'''v_sub_f32 v12, v{a}, v9
        v_sub_f32 v13, v{b}, v9
        v_mul_f32 v12, s60, v12
        v_mul_f32 v13, s60, v13
        v_exp_f32 v12, v12
        v_exp_f32 v13, v13
        s_nop 0
        v_mul_f32 v12, v12, v10
        v_mul_f32 v13, v13, v10
        v_cvt_pk_bf16_f32 v{BS+i}, v12, v13''')
    for T in range(8):
        idx = 8 + T
        vm.wait(f't{idx}')
        r0 = BP + 16 * (idx % NS)
        for t in range(8):
            d = t >> 1
            sel = 's58' if (t & 1) == 0 else 's59'
            o = BQ + 2 * t
            g(f'v_perm_b32 v{o}, v{r0+4+d}, v{r0+d}, {sel}')
            g(f'v_perm_b32 v{o+1}, v{r0+12+d}, v{r0+8+d}, {sel}')
        g('s_nop 1')
        for t in range(8):
            o = BQ + 2 * t
            acc = BO + 4 * t
            c = '0' if T == 0 else f'v[{acc}:{acc+3}]'
            g(f'v_mfma_f32_16x16x16_bf16 v[{acc}:{acc+3}], v[{o}:{o+1}], v[{BS+2*T}:{BS+2*T+1}], {c}')
        if idx + NS < 16:
            tload(idx + NS)
    g(f'''s_lshl_b32 s46, s44, 12
    v_lshlrev_b32 v3, 9, v4
    v_lshl_add_u32 v3, v5, 7, v3
    v_add_u32 v3, s46, v3
    s_nop 7
    s_mov_b32 exec_lo, 0x00ff00ff
    s_mov_b32 exec_hi, 0x00ff00ff''')
    for t in range(8):
        acc = BO + 4 * t
        g(f'ds_write_b128 v3, v[{acc}:{acc+3}] offset:{L_OP + 16*t}')
    g('s_mov_b64 exec, -1')
    lds_signal(g, C_O, add=True)
    lds_wait(g, C_O, 8)
    g(f'''s_lshl_b32 s46, s44, 9
    v_and_b32 v3, 31, v0
    v_lshlrev_b32 v3, 4, v3
    v_add_u32 v3, s46, v3''')
    for w in range(8):
        g(f'ds_read_b128 v[{72+4*w}:{75+4*w}], v3 offset:{L_OP + 4096*w}')
    g('s_waitcnt lgkmcnt(0)')
    for r in range(4):
        g(f'v_add_f32 v{8+r}, v{72+r}, v{76+r}')
        for w in range(2, 8):
            g(f'v_add_f32 v{8+r}, v{8+r}, v{72+4*w+r}')
    g(f'''s_add_u32 s46, s47, {R_O}
    s_mov_b32 exec_hi, 0
    buffer_store_dwordx4 v[8:11], v3, s[36:39], s46 offen sc1
    s_endpgm''')
    g.label('L_END')
    g('s_endpgm')
    T = f'''.section .rodata,"a"
.p2align 6
.amdhsa_kernel {KN}
  .amdhsa_next_free_vgpr 168
  .amdhsa_next_free_sgpr 64
  .amdhsa_accum_offset 168
  .amdhsa_group_segment_fixed_size 0
  .amdhsa_kernarg_size 96
  .amdhsa_user_sgpr_count 2
  .amdhsa_user_sgpr_kernarg_segment_ptr 1
  .amdhsa_system_sgpr_workgroup_id_x 1
  .amdhsa_float_denorm_mode_32 3
.end_amdhsa_kernel
'''
    return '\n'.join(H) + '\n' + '\n'.join(g.L) + '\n' + T

if __name__ == '__main__':
    ap = argparse.ArgumentParser()
    ap.add_argument('-o', default='recurrent_scan__gqa_block_cached__swiglu_ffn__decode.s')
    args = ap.parse_args()
    open(args.o, 'w').write(gen(args))
```

```python
import struct, sys, argparse

def f32hex(x):
    return '0x%08x' % struct.unpack('<I', struct.pack('<f', x))[0]

KN = 'recurrent_scan__gqa_block_cached__swiglu_ffn__decode_kernel'
NWG = 256
W_Q = 0x000000
W_GU = 0x040000
W_S = 0x0C0000
W_F = 0x140000
W_O = 0x180000
W_ML = 0x280000
W_B = 0x300000
W_CT = 0x2E0000
W_FL = 0x2C0000
L_XN = 0x0000
L_Q = 0x1000
L_ST = 0x1800
L_ML = 0x1A00
L_CT = 0x1A40
C_Q, C_ST, C_ML, C_O, C_OG, C_H, C_N, C_K, C_X = [L_CT + 4 * i for i in range(9)]
L_OB = 0x1B00
L_H = 0x1D00
L_OP = 0x2000
L_V = 0x6000
LDS_BYTES = 0x6000 + 4 * 24576
SCALE = f32hex(128 ** -0.5)
LOG2E = f32hex(1.4426950408889634)
EPS = f32hex(1e-5)
SPIN_LDS = 4000000
SPIN_GLB = 40000

NOLDS = False
class Gen:
    def __init__(self):
        self.L = []
        self.n = 0
    def __call__(self, s):
        for line in s.strip('\n').split('\n'):
            self.L.append('    ' + line.strip())
    def label(self, name):
        self.L.append(name + ':')
    def uniq(self, p):
        self.n += 1
        return f'{p}_{self.n}'

class VM:
    def __init__(self, g):
        self.g = g
        self.ops = []
    def issue(self, tag):
        self.ops.append(tag)
    def wait(self, tag):
        idx = max(i for i, t in enumerate(self.ops) if t == tag)
        n = len(self.ops) - 1 - idx
        assert n <= 63
        self.g(f's_waitcnt vmcnt({n})')
    def reset(self):
        self.ops = []

def srd(g, d, base, nbytes):
    g(f's_mov_b32 s{d}, s{base}\ns_mov_b32 s{d+1}, s{base+1}\ns_mov_b32 s{d+2}, {nbytes}\ns_mov_b32 s{d+3}, 0x20000')

def lds_wait(g, addr, target, vt='v7', va='v6', st='s50', sc='s51'):
    l = g.uniq('LW'); d = g.uniq('LWD')
    g(f'v_mov_b32 {va}, {addr}\ns_mov_b32 {sc}, {1 if NOLDS else SPIN_LDS}')
    g.label(l)
    g(f'''ds_read_b32 {vt}, {va}
    s_waitcnt lgkmcnt(0)
    v_readfirstlane_b32 {st}, {vt}
    s_cmp_ge_u32 {st}, {target}
    s_cbranch_scc1 {d}
    s_sleep 1
    s_sub_u32 {sc}, {sc}, 1
    s_cmp_lg_u32 {sc}, 0
    s_cbranch_scc1 {l}''')
    g.label(d)

def lds_signal(g, addr, add=False, vt='v7', va='v6'):
    g(f'''s_waitcnt lgkmcnt(0)
    v_mov_b32 {va}, {addr}
    v_mov_b32 {vt}, 1
    s_mov_b64 exec, 1''')
    g(f'ds_add_u32 {va}, {vt}' if add else f'ds_write_b32 {va}, {vt}')
    g('s_mov_b64 exec, -1')

def bf16r_pair(g, a, b, t):
    g(f'''v_cvt_pk_bf16_f32 {t}, {a}, {b}
    v_lshlrev_b32 {a}, 16, {t}
    v_and_b32 {b}, 0xffff0000, {t}''')

def bf16r(g, a):
    g(f'''v_cvt_pk_bf16_f32 {a}, {a}, {a}
    v_lshlrev_b32 {a}, 16, {a}''')

def allred_row16(g, op, v, t):
    for r in (1, 2, 4, 8):
        g(f's_nop 1\n{op}_dpp {t}, {v}, {v} row_ror:{r} row_mask:0xf bank_mask:0xf\nv_mov_b32 {v}, {t}')

def allred_x16(g, op, v, t):
    g(f'v_mov_b32 {t}, {v}\ns_nop 1\nv_permlane16_swap_b32 {v}, {t}\ns_nop 1\n{op} {v}, {v}, {t}')

def allred_x32(g, op, v, t):
    g(f'v_mov_b32 {t}, {v}\ns_nop 1\nv_permlane32_swap_b32 {v}, {t}\ns_nop 1\n{op} {v}, {v}, {t}')

def precise_div(g, d, num, den, t1, t2):
    g(f'''v_rcp_f32 {t1}, {den}
    s_nop 0
    v_mul_f32 {t2}, {num}, {t1}
    v_fma_f32 {d}, -{t2}, {den}, {num}
    v_fma_f32 {d}, {d}, {t1}, {t2}''')

def silu(g, x, t1, t2, t3):
    g(f'''v_mul_f32 {t1}, s60, {x}
    v_exp_f32 {t1}, -{t1}
    s_nop 0
    v_add_f32 {t1}, 1.0, {t1}''')
    g(f'''v_rcp_f32 {t2}, {t1}
    s_nop 0
    v_mul_f32 {t3}, {x}, {t2}
    v_fma_f32 {t1}, -{t3}, {t1}, {x}
    v_fma_f32 {t1}, {t1}, {t2}, {t3}
    v_cmp_eq_f32 vcc, 0, {t2}
    s_nop 1
    v_cndmask_b32 {x}, {t1}, {t3}, vcc''')

A_T = 8
A_B = 24
A_ACC = 40
A_POOL = 72

def tile_loads(g, vm, srdreg, sbase, rowbytes, kk, slot, tag, voff='v1', stmp='s46'):
    for i in range(8):
        r = A_POOL + 32 * slot + 4 * i
        g(f's_add_u32 {stmp}, {sbase}, {(32 * kk + i) * rowbytes}')
        g(f'buffer_load_dwordx4 v[{r}:{r+3}], {voff}, s[{srdreg}:{srdreg+3}], {stmp} offen nt')
        vm.issue(tag)

def tile_block_mfma(g, slot, kk, first, breg):
    base = A_POOL + 32 * slot
    for half in range(2):
        for tt in range(4):
            t = 4 * half + tt
            d = t >> 1
            sel = 's58' if (t & 1) == 0 else 's59'
            o = A_T + 4 * tt
            for p in range(4):
                g(f'v_perm_b32 v{o+p}, v{base + 4*(2*p+1) + d}, v{base + 4*(2*p) + d}, {sel}')
        g('s_nop 1')
        for tt in range(4):
            t = 4 * half + tt
            o = A_T + 4 * tt
            acc = A_ACC + 4 * t
            c = '0' if first else f'v[{acc}:{acc+3}]'
            g(f'v_mfma_f32_16x16x32_bf16 v[{acc}:{acc+3}], v[{o}:{o+3}], v[{breg}:{breg+3}], {c}')

def gemv_tile(g, vm, srdreg, sbase, rowbytes, ldsaddr_v, pre_issued, tagp, wait_fn=None):
    if wait_fn:
        wait_fn()
    for kk in range(4):
        g(f'ds_read_b128 v[{A_B+4*kk}:{A_B+4*kk+3}], {ldsaddr_v} offset:{64*kk}')
    g('s_waitcnt lgkmcnt(0)')
    for kk in range(4):
        vm.wait(f'{tagp}{kk}')
        tile_block_mfma(g, kk % 3, kk, kk == 0, A_B + 4 * kk)
        if kk == 0:
            tile_loads(g, vm, srdreg, sbase, rowbytes, 3, 0, f'{tagp}3')

def lane_masks(g):
    g('''s_mov_b32 s80, 0xcccccccc
    s_mov_b32 s81, 0xcccccccc
    s_mov_b32 s82, 0xf0f0f0f0
    s_mov_b32 s83, 0xf0f0f0f0
    s_mov_b32 s84, 0xff00ff00
    s_mov_b32 s85, 0xff00ff00''')

def select8(g, accs, levels=3):
    cur = list(accs)
    lv = 0
    while len(cur) > 1:
        nxt = []
        for i in range(0, len(cur), 2):
            a, b = cur[i], cur[i + 1]
            for r in range(4):
                g(f'v_cndmask_b32 v{a+r}, v{a+r}, v{b+r}, s[{80+2*lv}:{81+2*lv}]')
            nxt.append(a)
        cur = nxt
        lv += 1
    return cur[0]

def tagged_store(g, vm, r, soff, voff, x=8, stmp='s57', vtmp='v7'):
    g(f'''v_mov_b32 v{x}, v{r+3}
    v_mov_b32 v{x+1}, s55
    v_mov_b32 v{r+3}, s55
    v_lshrrev_b32 {vtmp}, 1, {voff}
    s_lshr_b32 {stmp}, {soff}, 1
    s_add_u32 {stmp}, {stmp}, {W_B}
    buffer_store_dwordx4 v[{r}:{r+3}], {voff}, s[36:39], {soff} offen sc1
    buffer_store_dwordx2 v[{x}:{x+1}], {vtmp}, s[36:39], {stmp} offen sc1''')
    vm.issue('st'); vm.issue('st')

def publish_acc(g, vm, soff, voff='v2'):
    g('s_nop 7\ns_nop 1')
    r = select8(g, [A_ACC + 4 * t for t in range(8)])
    tagged_store(g, vm, r, soff, voff)

def tag_check(g, tags, acc='v7', tmp='v6'):
    tags = list(tags)
    g(f'v_xor_b32 {acc}, s55, v{tags[0]}')
    for t in tags[1:]:
        g(f'v_xor_b32 {tmp}, s55, v{t}\nv_or_b32 {acc}, {acc}, {tmp}')
    g(f'v_cmp_ne_u32 vcc, 0, {acc}')

NOHOP = False
PLAIN = True
def plain_first(g, issue_fn, check_fn, d):
    n0 = len(g.L)
    issue_fn()
    for i in range(n0, len(g.L)):
        g.L[i] = g.L[i].replace(' sc1', '')
    g('s_waitcnt vmcnt(0)')
    check_fn()
    g(f's_cbranch_vccz {d}')

def tpoll_loop(g, issue_fn, tags, sleep=2, sc='s51', acc='v7', tmp='v6', plain=False):
    l = g.uniq('TP'); d = g.uniq('TPD')
    if plain and PLAIN:
        plain_first(g, issue_fn, lambda: tag_check(g, tags, acc, tmp), d)
    g(f's_mov_b32 {sc}, {1 if NOHOP else SPIN_GLB}')
    g.label(l)
    issue_fn()
    g('s_waitcnt vmcnt(0)')
    tag_check(g, tags, acc, tmp)
    g(f'''s_cbranch_vccz {d}
    s_sleep {sleep}
    s_sub_u32 {sc}, {sc}, 1
    s_cmp_lg_u32 {sc}, 0
    s_cbranch_scc1 {l}''')
    g.label(d)

def read_nonce(g):
    lds_wait(g, C_N, 1)
    g('s_mov_b32 s55, s50')

def sentinel_check(g, regs, vmx):
    regs = list(regs)
    g(f'v_max_u32 {vmx}, v{regs[0]}, v{regs[1]}')
    i = 2
    while i < len(regs):
        if i + 1 < len(regs):
            g(f'v_max3_u32 {vmx}, {vmx}, v{regs[i]}, v{regs[i+1]}')
            i += 2
        else:
            g(f'v_max_u32 {vmx}, {vmx}, v{regs[i]}')
            i += 1
    g(f'v_cmp_eq_u32 vcc, -1, {vmx}')

def poll_loop(g, issue_fn, regs, vmx='v7', sc='s51', sleep=2, plain=False):
    l = g.uniq('PL'); d = g.uniq('PLD')
    if plain and PLAIN:
        plain_first(g, issue_fn, lambda: sentinel_check(g, regs, vmx), d)
    g(f's_mov_b32 {sc}, {1 if NOHOP else SPIN_GLB}')
    g.label(l)
    issue_fn()
    g('s_waitcnt vmcnt(0)')
    sentinel_check(g, regs, vmx)
    g(f'''s_cbranch_vccz {d}
    s_sleep {sleep}
    s_sub_u32 {sc}, {sc}, 1
    s_cmp_lg_u32 {sc}, 0
    s_cbranch_scc1 {l}''')
    g.label(d)

def arrive(g, sidx, n, stmp='s46', sctr=None, ack=True):
    d = g.uniq('ARR')
    if sctr is None:
        g(f's_lshl_b32 {stmp}, {sidx}, 2')
        srdn = 40
    else:
        g(f's_lshl_b32 {stmp}, {sctr}, 7\ns_add_u32 {stmp}, {stmp}, {W_CT}')
        srdn = 36
    g(f'''v_mov_b32 v6, {stmp}
    v_mov_b32 v7, 1
    {'s_waitcnt vmcnt(0)' if ack else 's_nop 0'}
    s_mov_b64 exec, 1
    buffer_atomic_add v7, v6, s[{srdn}:{srdn+3}], 0 offen sc0
    s_waitcnt vmcnt(0)
    v_readfirstlane_b32 {stmp}, v7
    s_cmp_eq_u32 {stmp}, {n-1}
    s_cbranch_scc0 {d}
    s_lshl_b32 {stmp}, {sidx}, 7
    s_add_u32 {stmp}, {stmp}, {W_FL}
    v_mov_b32 v6, 0
    v_mov_b32 v7, s55
    buffer_store_dword v7, v6, s[36:39], {stmp} offen sc1''')
    g.label(d)
    g('s_mov_b64 exec, -1')

def flag_wait(g, sidx, sleep, stmp='s46'):
    l = g.uniq('FW'); d = g.uniq('FWD')
    g(f'''s_lshl_b32 {stmp}, {sidx}, 7
    s_add_u32 {stmp}, {stmp}, {W_FL}
    v_mov_b32 v6, 0
    s_mov_b32 s51, {1 if NOHOP else SPIN_GLB}
    s_mov_b64 exec, 1''')
    g.label(l)
    g(f'''buffer_load_dword v7, v6, s[36:39], {stmp} offen sc1
    s_waitcnt vmcnt(0)
    v_readfirstlane_b32 s50, v7
    s_cmp_eq_u32 s50, s55
    s_cbranch_scc1 {d}
    s_sleep {sleep}
    s_sub_u32 s51, s51, 1
    s_cmp_lg_u32 s51, 0
    s_cbranch_scc1 {l}''')
    g.label(d)
    g('s_mov_b64 exec, -1')

def q_gather(g, args, rnd, tsa=None):
    g(f'''s_lshr_b32 s44, s86, 5
    s_lshl_b32 s44, s44, 15
    s_add_u32 s44, s44, {W_Q + rnd*16384}
    s_lshr_b32 s45, s44, 1
    s_add_u32 s45, s45, {W_B}
    s_lshr_b32 s48, s86, 6
    s_add_u32 s48, s48, 1''')
    flag_wait(g, 's48', args.fsleep)
    if tsa is not None:
        ts(g, tsa)
    g('''v_lshrrev_b32 v2, 5, v0
    v_lshlrev_b32 v2, 12, v2
    v_and_b32 v3, 31, v0
    v_lshl_add_u32 v2, v3, 4, v2
    v_lshrrev_b32 v3, 1, v2
    v_lshrrev_b32 v8, 5, v0
    v_lshlrev_b32 v8, 8, v8
    v_bfe_u32 v9, v0, 3, 2
    v_lshlrev_b32 v9, 6, v9
    v_and_b32 v10, 7, v0
    v_lshlrev_b32 v10, 1, v10
    v_add3_u32 v8, v8, v9, v10''')
    def issue_q2():
        for hh in range(2):
            g(f's_add_u32 s46, s44, {hh*8192}\ns_add_u32 s48, s45, {hh*4096}')
            for ks in range(8):
                r = 40 + 32 * hh + 4 * ks
                rb = 104 + 16 * hh + 2 * ks
                g(f'buffer_load_dwordx4 v[{r}:{r+3}], v2, s[36:39], s46 offen offset:{ks*512} sc1')
                g(f'buffer_load_dwordx2 v[{rb}:{rb+1}], v3, s[36:39], s48 offen offset:{ks*256} sc1')
    tags = [43 + 4 * i for i in range(16)] + [105 + 2 * i for i in range(16)]
    if 'q2' not in args.skip:
        tpoll_loop(g, issue_q2, tags, sleep=4, plain=True)
    for hh in range(2):
        hp = 2 * rnd + hh
        for r in range(4):
            src = (lambda ks: 40 + 32 * hh + 4 * ks + r) if r < 3 else (lambda ks: 104 + 16 * hh + 2 * ks)
            g(f'v_add_f32 v{12+r}, v{src(0)}, v{src(1)}')
            for ks in range(2, 8):
                g(f'v_add_f32 v{12+r}, v{12+r}, v{src(ks)}')
        g(f'''v_cvt_pk_bf16_f32 v12, v12, v13
        v_cvt_pk_bf16_f32 v14, v14, v15
        ds_write_b16 v8, v12 offset:{L_Q + 512*hp}
        ds_write_b16_d16_hi v8, v12 offset:{L_Q + 512*hp + 16}
        ds_write_b16 v8, v14 offset:{L_Q + 512*hp + 32}
        ds_write_b16_d16_hi v8, v14 offset:{L_Q + 512*hp + 48}''')
    lds_signal(g, C_Q, add=True)

PROF = False
def ts(g, i):
    if PROF:
        g(f's_memrealtime s[96:97]\ns_waitcnt lgkmcnt(0)\ns_mov_b32 s{64+i}, s96')
def ts_dump(g, n):
    if not PROF:
        return
    g(f'''s_mul_i32 s62, s2, 12
    s_add_u32 s62, s62, s3
    s_lshl_b32 s62, s62, 6
    s_add_u32 s62, s62, 0x8000000
    s_mov_b64 exec, 1
    v_mov_b32 v6, 0''')
    for i in range(16):
        g(f'v_mov_b32 v7, s{64+i}\nbuffer_store_dword v7, v6, s[36:39], s62 offen offset:{4*i}')

def gen(args):
    global PROF, NOHOP, NOLDS, PLAIN
    PLAIN = bool(args.plain)
    NOLDS = args.nolds
    PROF = args.prof
    NOHOP = args.nohop
    g = Gen()
    H = []
    H.append(f'; @launch grid=({NWG},1,1) block=(512,1,1) lds={LDS_BYTES}')
    H.append('.amdgcn_target "amdgcn-amd-amdhsa--gfx950"\n.text')
    H.append(f'.globl {KN}\n.p2align 8\n.type {KN},@function\n{KN}:')
    g(f'''s_cmp_ge_u32 s2, {NWG}
    s_cbranch_scc1 L_END
    s_load_dwordx16 s[4:19], s[0:1], 0
    s_load_dwordx8 s[20:27], s[0:1], 64
    v_lshrrev_b32 v1, 6, v0
    v_and_b32 v0, 63, v0
    s_mov_b32 s58, 0x05040100
    s_mov_b32 s59, 0x07060302
    v_readfirstlane_b32 s3, v1
    s_mov_b32 s60, {LOG2E}
    s_mov_b32 s61, {SCALE}
    s_waitcnt lgkmcnt(0)''')
    srd(g, 36, 26, 0x10000000)
    lane_masks(g)
    srd(g, 40, 24, 256)
    if args.remap:
        g('''s_and_b32 s90, s2, 7
        s_lshr_b32 s91, s2, 3
        s_lshl_b32 s86, s90, 5
        s_add_u32 s86, s86, s91
        s_lshr_b32 s92, s90, 1
        s_lshl_b32 s92, s92, 6
        s_and_b32 s93, s90, 1
        s_lshl_b32 s87, s91, 1
        s_add_u32 s87, s87, s93
        s_add_u32 s87, s87, s92
        s_lshl_b32 s88, s93, 2
        s_and_b32 s94, s91, 3
        s_add_u32 s88, s88, s94
        s_lshl_b32 s88, s88, 3
        s_lshr_b32 s94, s91, 2
        s_add_u32 s88, s88, s94
        s_add_u32 s88, s88, s92
        s_lshr_b32 s89, s91, 3
        s_lshl_b32 s89, s89, 3
        s_add_u32 s89, s89, s90
        s_cmp_lt_u32 s89, 28
        s_cselect_b32 s95, 1, 0
        s_lshl_b32 s89, s89, 3
        s_and_b32 s94, s91, 7
        s_add_u32 s89, s89, s94
        s_add_u32 s89, s89, 32
        s_mul_i32 s89, s89, s95''')
    else:
        g('s_mov_b32 s86, s2\ns_mov_b32 s87, s2\ns_mov_b32 s88, s2\ns_mov_b32 s89, s2')
    ts(g, 0)
    if args.noaux:
        g('s_cmp_ge_u32 s3, 4\ns_cbranch_scc1 L_BULK\ns_barrier\ns_endpgm')
    g('''s_cmp_ge_u32 s3, 4
    s_cbranch_scc1 L_BULK
    s_cmp_eq_u32 s3, 0
    s_cbranch_scc1 L_A0
    s_cmp_eq_u32 s3, 3
    s_cbranch_scc1 L_A3
    s_branch L_A12''')

    g.label('L_A3')
    srd(g, 28, 4, 4096)
    g('''v_lshlrev_b32 v1, 6, v0
    buffer_load_dwordx4 v[8:11], v1, s[28:31], 0 offen
    buffer_load_dwordx4 v[12:15], v1, s[28:31], 0 offen offset:16
    buffer_load_dwordx4 v[16:19], v1, s[28:31], 0 offen offset:32
    buffer_load_dwordx4 v[20:23], v1, s[28:31], 0 offen offset:48''')
    g(f'''v_mov_b32 v2, 0
    v_lshlrev_b32 v3, 2, v0
    v_add_u32 v3, {L_CT}, v3
    s_mov_b64 exec, 0xffff
    ds_write_b32 v3, v2
    s_mov_b64 exec, -1
    s_waitcnt lgkmcnt(0)
    s_barrier
    s_waitcnt vmcnt(0)''')
    for i in range(16):
        g(f'v_lshlrev_b32 v{24+2*i}, 16, v{8+i}\nv_and_b32 v{25+2*i}, 0xffff0000, v{8+i}')
    g('v_add_f32 v56, v24, v25')
    for i in range(26, 56):
        g(f'v_add_f32 v56, v56, v{i}')
    allred_row16(g, 'v_add_f32', 'v56', 'v57')
    allred_x16(g, 'v_add_f32', 'v56', 'v57')
    g('v_mul_f32 v56, 0x3a800000, v56')
    g('v_sub_f32 v58, v24, v56\nv_mul_f32 v59, v58, v58')
    for i in range(25, 56):
        g(f'v_sub_f32 v58, v{i}, v56\nv_fma_f32 v59, v58, v58, v59')
    allred_row16(g, 'v_add_f32', 'v59', 'v57')
    allred_x16(g, 'v_add_f32', 'v59', 'v57')
    g('v_mul_f32 v59, 0x3a800000, v59')
    bf16r(g, 'v56')
    bf16r(g, 'v59')
    g(f'v_add_f32 v59, {EPS}, v59')
    bf16r(g, 'v59')
    g('''v_sqrt_f32 v60, v59
    s_nop 0
    v_rcp_f32 v61, v60
    v_fma_f32 v62, -v60, v60, v59
    v_mul_f32 v61, 0.5, v61
    v_fma_f32 v60, v62, v61, v60''')
    bf16r(g, 'v60')
    g('v_rcp_f32 v61, v60')
    for i in range(16):
        a, b = f'v{24+2*i}', f'v{25+2*i}'
        g(f'v_sub_f32 {a}, {a}, v56\nv_sub_f32 {b}, {b}, v56')
        bf16r_pair(g, a, b, 'v62')
        for r in (a, b):
            g(f'''v_mul_f32 v62, {r}, v61
            v_fma_f32 v63, -v62, v60, {r}
            v_fma_f32 {r}, v63, v61, v62''')
        g(f'v_cvt_pk_bf16_f32 v{8+i}, {a}, {b}')
    g(f'''ds_write_b128 v1, v[8:11] offset:{L_XN}
    ds_write_b128 v1, v[12:15] offset:{L_XN+16}
    ds_write_b128 v1, v[16:19] offset:{L_XN+32}
    ds_write_b128 v1, v[20:23] offset:{L_XN+48}''')
    lds_signal(g, C_X)
    ts(g, 1)
    read_nonce(g)
    q_gather(g, args, 1)
    lds_wait(g, C_Q, 2)
    ts(g, 2)
    ts(g, 3)
    lds_wait(g, C_ST, 4)
    ts(g, 4)
    g(f'''v_and_b32 v1, 7, v0
    v_lshlrev_b32 v1, 2, v1''')
    for w in range(4):
        g(f'ds_read_b32 v{8+w}, v1 offset:{L_ST + 64*w}\nds_read_b32 v{16+w}, v1 offset:{L_ST + 64*w + 32}')
    g('s_waitcnt lgkmcnt(0)')
    g('v_max3_f32 v24, v8, v9, v10\nv_max_f32 v24, v24, v11')
    g('v_mov_b32 v25, 0')
    for w in range(4):
        g(f'''v_sub_f32 v26, v{8+w}, v24
        v_mul_f32 v26, s60, v26
        v_exp_f32 v26, v26
        s_nop 0
        v_fma_f32 v25, v26, v{16+w}, v25''')
    g(f'''s_lshl_b32 s46, s86, 6
    s_add_u32 s46, s46, {W_ML}
    v_cndmask_b32 v24, v24, v25, s[84:85]
    v_lshlrev_b32 v1, 2, v0
    s_mov_b64 exec, 0xffff
    buffer_store_dword v24, v1, s[36:39], s46 offen sc1
    s_mov_b64 exec, -1
    s_lshr_b32 s48, s86, 5
    s_add_u32 s48, s48, 8''')
    g('s_andn2_b32 s49, s86, 31\ns_add_u32 s49, s49, 256')
    arrive(g, 's48', 32, sctr='s49', ack=False)
    flag_wait(g, 's48', 8)
    g(f'''s_andn2_b32 s44, s86, 31
    s_lshl_b32 s44, s44, 6
    s_add_u32 s44, s44, {W_ML}
    v_and_b32 v1, 31, v0
    v_lshlrev_b32 v1, 6, v1
    v_lshrrev_b32 v2, 5, v0
    v_lshl_add_u32 v1, v2, 4, v1''')
    def issue_ml():
        g('buffer_load_dwordx4 v[8:11], v1, s[36:39], s44 offen sc1')
        g('buffer_load_dwordx4 v[12:15], v1, s[36:39], s44 offen offset:32 sc1')
    poll_loop(g, issue_ml, range(8, 16), sleep=8)
    ts(g, 5)
    for r in range(4):
        g(f'v_mov_b32 v{16+r}, v{8+r}')
        allred_row16(g, 'v_max_f32', f'v{16+r}', 'v24')
        allred_x16(g, 'v_max_f32', f'v{16+r}', 'v24')
        g(f'''v_sub_f32 v24, v{8+r}, v{16+r}
        v_mul_f32 v24, s60, v24
        v_exp_f32 v24, v24
        s_nop 0
        v_mul_f32 v{12+r}, v{12+r}, v24''')
        allred_row16(g, 'v_add_f32', f'v{12+r}', 'v24')
        allred_x16(g, 'v_add_f32', f'v{12+r}', 'v24')
        g('v_mov_b32 v26, 1.0')
        precise_div(g, f'v{20+r}', 'v26', f'v{12+r}', 'v24', 'v25')
    g(f'''v_lshrrev_b32 v2, 5, v0
    v_lshlrev_b32 v2, 4, v2
    s_mov_b32 exec_lo, 1
    s_mov_b32 exec_hi, 1
    ds_write_b128 v2, v[16:19] offset:{L_ML}
    ds_write_b128 v2, v[20:23] offset:{L_ML+32}
    s_mov_b64 exec, -1''')
    lds_signal(g, C_ML)
    g('s_cmp_lt_u32 s89, 32\ns_cbranch_scc1 L_A3_OG')
    g(f'''s_sub_u32 s44, s89, 32
    s_lshr_b32 s44, s44, 3
    s_lshl_b32 s44, s44, 14
    s_add_u32 s44, s44, {W_GU}
    s_lshr_b32 s45, s44, 1
    s_add_u32 s45, s45, {W_B}
    v_lshlrev_b32 v1, 4, v0
    v_lshlrev_b32 v2, 3, v0''')
    g('s_sub_u32 s48, s89, 32\ns_lshr_b32 s48, s48, 3\ns_add_u32 s48, s48, 16')
    flag_wait(g, 's48', 32)
    def issue_h():
        for ks in range(8):
            g(f's_add_u32 s46, s44, {ks*2048}\ns_add_u32 s48, s45, {ks*1024}')
            g(f'buffer_load_dwordx4 v[{72+4*ks}:{75+4*ks}], v1, s[36:39], s46 offen sc1')
            g(f'buffer_load_dwordx4 v[{104+4*ks}:{107+4*ks}], v1, s[36:39], s46 offen offset:1024 sc1')
            g(f'buffer_load_dwordx2 v[{136+2*ks}:{137+2*ks}], v2, s[36:39], s48 offen sc1')
            g(f'buffer_load_dwordx2 v[{152+2*ks}:{153+2*ks}], v2, s[36:39], s48 offen offset:512 sc1')
    tags = [75 + 4 * k for k in range(8)] + [107 + 4 * k for k in range(8)] + [137 + 2 * k for k in range(8)] + [153 + 2 * k for k in range(8)]
    tpoll_loop(g, issue_h, tags, sleep=16, plain=True)
    for r in range(4):
        ga = (lambda ks: 72 + 4 * ks + r) if r < 3 else (lambda ks: 136 + 2 * ks)
        ua = (lambda ks: 104 + 4 * ks + r) if r < 3 else (lambda ks: 152 + 2 * ks)
        g(f'v_add_f32 v{8+r}, v{ga(0)}, v{ga(1)}\nv_add_f32 v{12+r}, v{ua(0)}, v{ua(1)}')
        for ks in range(2, 8):
            g(f'v_add_f32 v{8+r}, v{8+r}, v{ga(ks)}\nv_add_f32 v{12+r}, v{12+r}, v{ua(ks)}')
    bf16r_pair(g, 'v8', 'v9', 'v16'); bf16r_pair(g, 'v10', 'v11', 'v16')
    bf16r_pair(g, 'v12', 'v13', 'v16'); bf16r_pair(g, 'v14', 'v15', 'v16')
    for r in range(4):
        silu(g, f'v{8+r}', 'v16', 'v17', 'v18')
    bf16r_pair(g, 'v8', 'v9', 'v16'); bf16r_pair(g, 'v10', 'v11', 'v16')
    for r in range(4):
        g(f'v_mul_f32 v{8+r}, v{8+r}, v{12+r}')
    g('v_cvt_pk_bf16_f32 v8, v8, v9\nv_cvt_pk_bf16_f32 v10, v10, v11')
    g(f'''v_lshrrev_b32 v2, 5, v0
    v_lshlrev_b32 v2, 8, v2
    v_bfe_u32 v3, v0, 3, 2
    v_lshlrev_b32 v3, 6, v3
    v_and_b32 v4, 7, v0
    v_lshlrev_b32 v4, 1, v4
    v_add3_u32 v5, v2, v3, v4
    ds_write_b16 v5, v8 offset:{L_H}
    ds_write_b16_d16_hi v5, v8 offset:{L_H+16}
    ds_write_b16 v5, v10 offset:{L_H+32}
    ds_write_b16_d16_hi v5, v10 offset:{L_H+48}''')
    lds_signal(g, C_H)
    g.label('L_A3_OG')
    g(f'''s_lshr_b32 s44, s88, 3
    s_lshl_b32 s44, s44, 15
    s_bfe_u32 s45, s88, 0x10002
    s_lshl_b32 s45, s45, 8
    s_add_u32 s44, s44, s45
    s_add_u32 s44, s44, {W_O}
    v_bfe_u32 v2, v0, 4, 1
    v_lshlrev_b32 v2, 14, v2
    v_lshrrev_b32 v3, 5, v0
    v_lshl_add_u32 v2, v3, 13, v2
    v_and_b32 v1, 15, v0
    v_lshl_add_u32 v1, v1, 4, v2''')
    def issue_o():
        for sp in range(16):
            if sp % 8 == 0:
                g(f's_add_u32 s46, s44, {sp*512}')
            g(f'buffer_load_dwordx4 v[{40+4*sp}:{43+4*sp}], v1, s[36:39], s46 offen offset:{(sp%8)*512} sc1')
    lds_wait(g, C_O, 4)
    poll_loop(g, issue_o, range(40, 104), sleep=1)
    ts(g, 6)
    for r in range(4):
        g(f'v_add_f32 v{8+r}, v{40+r}, v{44+r}\nv_add_f32 v{12+r}, v{48+r}, v{52+r}')
        for sp in range(4, 16, 2):
            g(f'v_add_f32 v{8+r}, v{8+r}, v{40+4*sp+r}\nv_add_f32 v{12+r}, v{12+r}, v{44+4*sp+r}')
        g(f'v_add_f32 v{8+r}, v{8+r}, v{12+r}')
    for r in range(4):
        allred_x32(g, 'v_add_f32', f'v{8+r}', 'v12')
    g('v_cvt_pk_bf16_f32 v8, v8, v9\nv_cvt_pk_bf16_f32 v10, v10, v11')
    g(f'''v_bfe_u32 v2, v0, 4, 1
    v_lshlrev_b32 v2, 7, v2
    v_bfe_u32 v3, v0, 3, 1
    v_lshlrev_b32 v3, 6, v3
    v_and_b32 v4, 7, v0
    v_lshlrev_b32 v4, 1, v4
    v_add3_u32 v5, v2, v3, v4
    s_mov_b32 exec_hi, 0
    ds_write_b16 v5, v8 offset:{L_OB}
    ds_write_b16_d16_hi v5, v8 offset:{L_OB+16}
    ds_write_b16 v5, v10 offset:{L_OB+32}
    ds_write_b16_d16_hi v5, v10 offset:{L_OB+48}
    s_mov_b64 exec, -1''')
    lds_signal(g, C_OG)
    ts(g, 7)
    ts_dump(g, 8)
    g('s_endpgm')

    g.label('L_A0')
    vm = VM(g)
    srd(g, 40, 24, 256)
    g('''s_memrealtime s[54:55]
    v_mov_b32 v8, -1
    v_mov_b32 v9, -1
    v_mov_b32 v10, -1
    v_mov_b32 v11, -1
    v_lshlrev_b32 v3, 4, v0
    v_lshrrev_b32 v4, 5, v0
    v_and_b32 v5, 31, v0
    v_lshlrev_b32 v5, 4, v5
    v_mov_b32 v13, 0
    v_mov_b32 v14, 0
    s_waitcnt lgkmcnt(0)
    s_or_b32 s54, s54, 1
    v_mov_b32 v12, s54
    s_mov_b64 exec, 1
    buffer_atomic_cmpswap v[12:13], v14, s[40:43], 0 offen sc0
    s_mov_b64 exec, -1''')
    vm.issue('nonce')
    def clr(voff, off=0):
        g(f'buffer_store_dwordx4 v[8:11], {voff}, s[36:39], s46 offen offset:{off} sc1')
        vm.issue('clr')
    g(f'''s_sub_u32 s48, s89, 32
    s_and_b32 s48, s48, 255
    s_and_b32 s46, s48, 7
    s_lshl_b32 s46, s46, 15
    s_lshr_b32 s48, s48, 3
    s_lshl_b32 s48, s48, 9
    s_add_u32 s46, s46, s48
    s_add_u32 s56, s46, {W_F}''')
    g(f'''s_lshr_b32 s46, s86, 6
    s_lshl_b32 s46, s46, 18
    s_bfe_u32 s48, s86, 0x10005
    s_lshl_b32 s48, s48, 14
    s_add_u32 s46, s46, s48
    s_and_b32 s48, s86, 31
    s_lshl_b32 s48, s48, 9
    s_add_u32 s46, s46, s48
    s_add_u32 s46, s46, {W_O}
    v_lshl_add_u32 v6, v4, 15, v5''')
    for i in range(4):
        clr('v6')
        if i < 3:
            g('s_add_u32 s46, s46, 65536')
    g(f'''s_lshl_b32 s46, s86, 6
    s_add_u32 s46, s46, {W_ML}
    s_mov_b64 exec, 15''')
    clr('v3')
    g(f'''s_mov_b64 exec, 1
    s_lshl_b32 s46, s2, 7
    s_add_u32 s46, s46, {W_CT}
    buffer_store_dword v14, v14, s[36:39], s46 offen sc1
    s_lshl_b32 s46, s86, 7
    s_add_u32 s46, s46, {W_CT + 256*128}
    buffer_store_dword v14, v14, s[36:39], s46 offen sc1''')
    vm.issue('clr'); vm.issue('clr')
    g('s_mov_b64 exec, -1')
    g(f'''s_lshr_b32 s47, s87, 6
    s_lshl_b32 s47, s47, 16
    s_and_b32 s48, s87, 63
    s_lshl_b32 s48, s48, 9
    s_add_u32 s47, s47, s48
    s_add_u32 s47, s47, {W_Q}''')
    srd(g, 28, 10, 8 * 1024 * 1024)
    g('''s_and_b32 s44, s87, 7
    s_lshl_b32 s45, s44, 20
    s_lshr_b32 s46, s87, 3
    s_lshl_b32 s46, s46, 8
    s_add_u32 s45, s45, s46
    v_lshrrev_b32 v4, 4, v0
    v_and_b32 v5, 15, v0
    v_lshlrev_b32 v1, 16, v4
    v_lshl_add_u32 v1, v5, 4, v1''')
    for kk in range(4):
        for i in range(8):
            r = 40 + 32 * kk + 4 * i
            g(f's_add_u32 s46, s45, {(32 * kk + i) * 8192}')
            g(f'buffer_load_dwordx4 v[{r}:{r+3}], v1, s[28:31], s46 offen nt')
            vm.issue(f'wq{kk}')
    g(f'''v_and_b32 v2, 1, v0
    v_lshlrev_b32 v3, 11, v2
    v_lshl_add_u32 v3, v4, 4, v3
    s_lshl_b32 s46, s44, 8
    v_add_u32 v3, s46, v3
    v_lshlrev_b32 v2, 15, v2
    v_lshl_add_u32 v2, v4, 7, v2
    v_bfe_u32 v6, v0, 1, 3
    v_lshl_add_u32 v2, v6, 4, v2
    s_barrier''')
    lds_wait(g, C_X, 1)
    ts(g, 1)
    vm.wait('clr')
    g(f'''v_readfirstlane_b32 s55, v12
    s_cmp_eq_u32 s55, 0
    s_cselect_b32 s55, s54, s55
    v_mov_b32 v6, {C_N}
    v_mov_b32 v7, s55
    s_mov_b64 exec, 1
    ds_write_b32 v6, v7
    s_mov_b64 exec, -1''')
    for half in range(2):
        for kk in range(4):
            b = 8 + 4 * (kk & 1)
            g(f'ds_read_b128 v[{b}:{b+3}], v3 offset:{64*kk}')
            if half == 0:
                vm.wait(f'wq{kk}')
            base = 40 + 32 * kk
            for tt in range(4):
                t = 4 * half + tt
                d = t >> 1
                sel = 's58' if (t & 1) == 0 else 's59'
                o = 16 + 4 * (tt & 1)
                for p in range(4):
                    g(f'v_perm_b32 v{o+p}, v{base + 4*(2*p+1) + d}, v{base + 4*(2*p) + d}, {sel}')
                acc = 24 + 4 * tt
                c = '0' if kk == 0 else f'v[{acc}:{acc+3}]'
                g('s_waitcnt lgkmcnt(0)\ns_nop 0' if tt == 0 else 's_nop 1')
                g(f'v_mfma_f32_16x16x32_bf16 v[{acc}:{acc+3}], v[{o}:{o+3}], v[{b}:{b+3}], {c}')
        g('s_nop 7\ns_nop 1')
        r = select8(g, [24 + 4 * tt for tt in range(4)])
        g('s_mov_b64 exec, s[84:85]' if half == 1 else 's_not_b64 exec, s[84:85]')
        tagged_store(g, vm, r, 's47', 'v2', x=16)
        g('s_mov_b64 exec, -1\ns_nop 1')
    srd(g, 32, 20, 3584 * 1024 * 2)
    g('s_lshr_b32 s48, s87, 6\ns_add_u32 s48, s48, 1')
    arrive(g, 's48', 64)
    ts(g, 2)
    q_gather(g, args, 0, 3)
    vm.reset()
    ts(g, 4)
    g('s_cmp_lt_u32 s89, 32\ns_cbranch_scc1 L_A0_FIN')
    g('''s_sub_u32 s48, s89, 32
    s_lshr_b32 s49, s48, 3
    s_lshl_b32 s49, s49, 18
    s_and_b32 s48, s48, 7
    s_lshl_b32 s48, s48, 8
    s_add_u32 s48, s48, s49
    v_lshlrev_b32 v1, 14, v4
    v_lshl_add_u32 v1, v5, 4, v1''')
    if args.kfirst:
        lds_wait(g, C_K, 4)
    for kk in range(3):
        if kk >= args.ainfl:
            vm.wait(f'wd{kk-args.ainfl}')
        tile_loads(g, vm, 32, 's48', 2048, kk, kk, f'wd{kk}')
    g(f'''v_and_b32 v3, 1, v0
    v_lshlrev_b32 v3, 8, v3
    v_lshl_add_u32 v3, v4, 4, v3
    v_add_u32 v3, {L_H}, v3''')
    gemv_tile(g, vm, 32, 's48', 2048, 'v3', True, 'wd', wait_fn=lambda: lds_wait(g, C_H, 1))
    g('v_and_b32 v2, 1, v0\nv_lshlrev_b32 v2, 14, v2\nv_lshl_add_u32 v2, v4, 7, v2\nv_bfe_u32 v6, v0, 1, 3\nv_lshl_add_u32 v2, v6, 4, v2')
    publish_acc(g, vm, 's56')
    g.label('L_A0_FIN')
    ts(g, 5)
    srd(g, 28, 4, 4096)
    srd(g, 32, 22, 4096)
    g(f'''s_lshr_b32 s44, s2, 5
    s_bfe_u32 s45, s2, 0x10004
    s_and_b32 s46, s2, 15
    ; S gather: W_S + ((c*2+b)*64 + hh*2 + half)*512 + o8*32 + q2*16
    s_lshr_b32 s48, s2, 4
    s_lshl_b32 s49, s48, 14
    s_lshl_b32 s48, s48, 15
    s_lshl_b32 s53, s46, 5
    s_add_u32 s48, s48, s53
    s_add_u32 s49, s49, s53
    s_add_u32 s48, s48, {W_S}
    s_add_u32 s49, s49, {W_F}
    v_lshrrev_b32 v2, 1, v0
    v_and_b32 v3, 1, v0
    v_lshlrev_b32 v1, 10, v2
    v_lshl_add_u32 v1, v3, 4, v1
    v_min_u32 v2, 27, v2
    v_lshlrev_b32 v2, 9, v2
    v_lshl_add_u32 v2, v3, 4, v2
    ; x / out element offset: (b*1024 + 128c + 32g + t)*2 , g=o8>>2, t=2*(o8&3)+q2 ; +16 bytes per r
    s_lshl_b32 s52, s45, 10
    s_lshl_b32 s53, s44, 7
    s_add_u32 s52, s52, s53
    s_lshr_b32 s53, s46, 2
    s_lshl_b32 s53, s53, 5
    s_add_u32 s52, s52, s53
    s_and_b32 s53, s46, 3
    s_lshl_b32 s53, s53, 1
    s_add_u32 s52, s52, s53
    v_add_u32 v4, s52, v3
    v_lshlrev_b32 v4, 1, v4
    buffer_load_ushort v24, v4, s[28:31], 0 offen
    buffer_load_ushort v25, v4, s[28:31], 0 offen offset:16
    buffer_load_ushort v26, v4, s[28:31], 0 offen offset:32
    buffer_load_ushort v27, v4, s[28:31], 0 offen offset:48''')
    g(f'''v_lshrrev_b32 v5, 1, v1
    v_lshrrev_b32 v3, 1, v2
    s_lshr_b32 s52, s48, 1
    s_add_u32 s52, s52, {W_B}
    s_lshr_b32 s53, s49, 1
    s_add_u32 s53, s53, {W_B}''')
    lds_wait(g, C_OG, 1)
    def issue_fin():
        g('buffer_load_dwordx4 v[8:11], v1, s[36:39], s48 offen sc1')
        g('buffer_load_dwordx4 v[12:15], v1, s[36:39], s48 offen offset:512 sc1')
        g('buffer_load_dwordx4 v[16:19], v2, s[36:39], s49 offen sc1')
        g('buffer_load_dwordx2 v[28:29], v5, s[36:39], s52 offen sc1')
        g('buffer_load_dwordx2 v[30:31], v5, s[36:39], s52 offen offset:256 sc1')
        g('buffer_load_dwordx2 v[32:33], v3, s[36:39], s53 offen sc1')
    tpoll_loop(g, issue_fin, [11, 15, 19, 29, 31, 33], sleep=1)
    ts(g, 6)
    g('v_mov_b32 v11, v28\nv_mov_b32 v15, v30\nv_mov_b32 v19, v32')
    g('v_cmp_gt_u32 vcc, 56, v0\ns_nop 1')
    for r in range(4):
        g(f'v_add_f32 v{8+r}, v{8+r}, v{12+r}')
        g(f'v_cndmask_b32 v{16+r}, 0, v{16+r}, vcc')
    for r in list(range(8, 12)) + list(range(16, 20)):
        for rr in (2, 4, 8):
            g(f's_nop 1\nv_add_f32_dpp v20, v{r}, v{r} row_ror:{rr} row_mask:0xf bank_mask:0xf\nv_mov_b32 v{r}, v20')
        allred_x16(g, 'v_add_f32', f'v{r}', 'v20')
        allred_x32(g, 'v_add_f32', f'v{r}', 'v20')
    bf16r_pair(g, 'v8', 'v9', 'v20'); bf16r_pair(g, 'v10', 'v11', 'v20')
    bf16r_pair(g, 'v16', 'v17', 'v20'); bf16r_pair(g, 'v18', 'v19', 'v20')
    for r in range(4):
        silu(g, f'v{16+r}', 'v20', 'v21', 'v22')
    bf16r_pair(g, 'v16', 'v17', 'v20'); bf16r_pair(g, 'v18', 'v19', 'v20')
    for r in range(4):
        g(f'v_mul_f32 v{8+r}, v{8+r}, v{16+r}')
    bf16r_pair(g, 'v8', 'v9', 'v20'); bf16r_pair(g, 'v10', 'v11', 'v20')
    for r in range(4):
        g(f'v_lshlrev_b32 v{24+r}, 16, v{24+r}\nv_add_f32 v{8+r}, v{8+r}, v{24+r}\nv_cvt_pk_bf16_f32 v{8+r}, v{8+r}, v{8+r}')
    g('''s_mov_b64 exec, 3
    buffer_store_short v8, v4, s[32:35], 0 offen
    buffer_store_short v9, v4, s[32:35], 0 offen offset:16
    buffer_store_short v10, v4, s[32:35], 0 offen offset:32
    buffer_store_short v11, v4, s[32:35], 0 offen offset:48''')
    ts(g, 7)
    ts_dump(g, 8)
    g('s_endpgm')

    g.label('L_A12')
    vm = VM(g)
    g('''s_cmp_eq_u32 s3, 1
    s_cselect_b32 s28, s16, s18
    s_cselect_b32 s29, s17, s19
    s_mov_b32 s30, 7340032
    s_mov_b32 s31, 0x20000
    v_lshrrev_b32 v4, 4, v0
    v_and_b32 v5, 15, v0
    s_and_b32 s44, s2, 7
    s_mul_i32 s45, s44, 917504
    s_lshr_b32 s46, s2, 3
    s_lshl_b32 s46, s46, 8
    s_add_u32 s45, s45, s46
    v_mul_u32_u24 v1, 57344, v4
    v_lshl_add_u32 v1, v5, 4, v1
    v_and_b32 v2, 1, v0
    v_lshlrev_b32 v3, 11, v2
    v_lshl_add_u32 v3, v4, 4, v3
    s_lshl_b32 s46, s44, 8
    v_add_u32 v3, s46, v3
    v_lshlrev_b32 v2, 9, v2
    v_lshl_add_u32 v2, v4, 7, v2
    v_bfe_u32 v6, v0, 1, 3
    v_lshl_add_u32 v2, v6, 4, v2
    s_cmp_ge_u32 s2, 224
    s_cbranch_scc1 L_A12_SKIP''')
    g('s_barrier')
    if args.kfirst:
        lds_wait(g, C_K, 4)
    AI = args.ainfl
    for kk in range(AI):
        tile_loads(g, vm, 28, 's45', 7168, kk, kk, f'gu{kk}')
    lds_wait(g, C_X, 1)
    for kk in range(4):
        g(f'ds_read_b128 v[{A_B+4*kk}:{A_B+4*kk+3}], v3 offset:{64*kk}')
    g('s_waitcnt lgkmcnt(0)')
    for kk in range(4):
        vm.wait(f'gu{kk}')
        if kk + AI < 4:
            tile_loads(g, vm, 28, 's45', 7168, kk + AI, (kk + AI) % 3, f'gu{kk+AI}')
        tile_block_mfma(g, kk % 3, kk, kk == 0, A_B + 4 * kk)
    read_nonce(g)
    g(f'v_lshlrev_b32 v3, 7, v0\ns_mov_b32 s46, {W_FL + 128}\ns_mov_b64 exec, 15')
    def issue_f4():
        g('buffer_load_dword v9, v3, s[36:39], s46 offen sc1')
    tpoll_loop(g, issue_f4, [9], sleep=16)
    g('s_mov_b64 exec, -1')
    g(f's_lshl_b32 s46, s3, 10\ns_lshl_b32 s47, s2, 11\ns_add_u32 s46, s46, s47\ns_add_u32 s46, s46, {W_GU - 1024}')
    publish_acc(g, vm, 's46')
    g('s_lshr_b32 s48, s2, 3\ns_add_u32 s48, s48, 16')
    arrive(g, 's48', 16, sctr='s48', ack=False)
    g('s_branch L_A12_WO')
    g.label('L_A12_SKIP')
    g('s_barrier')
    if args.kfirst:
        lds_wait(g, C_K, 4)
    read_nonce(g)
    g.label('L_A12_WO')
    ts(g, 1)
    vm.reset()
    srd(g, 28, 12, 8 * 1024 * 1024)
    g('''s_and_b32 s44, s88, 3
    s_lshl_b32 s44, s44, 1
    s_add_u32 s44, s44, s3
    s_sub_u32 s44, s44, 1
    s_lshr_b32 s45, s88, 2
    s_lshl_b32 s45, s45, 17
    s_lshl_b32 s48, s44, 8
    s_add_u32 s45, s45, s48
    v_lshlrev_b32 v1, 14, v4
    v_lshl_add_u32 v1, v5, 4, v1''')
    for kk in range(2):
        if kk == 1 and args.ainfl == 1:
            vm.wait('wo0')
        tile_loads(g, vm, 28, 's45', 2048, kk, kk, f'wo{kk}', stmp='s48')
    outs = [136, 8]
    for kk in range(2):
        vm.wait(f'wo{kk}')
        base = A_POOL + 32 * kk
        for t in range(8):
            d = t >> 1
            sel = 's58' if (t & 1) == 0 else 's59'
            for p in range(4):
                g(f'v_perm_b32 v{outs[kk] + 4*t + p}, v{base + 4*(2*p+1) + d}, v{base + 4*(2*p) + d}, {sel}')
    g(f'''v_and_b32 v3, 1, v0
    v_lshlrev_b32 v3, 7, v3
    v_lshl_add_u32 v3, v4, 4, v3
    v_add_u32 v3, {L_OB}, v3
    s_lshl_b32 s46, s44, 16
    s_lshr_b32 s48, s88, 2
    s_lshl_b32 s48, s48, 9
    s_add_u32 s46, s46, s48
    s_add_u32 s46, s46, {W_S}
    v_and_b32 v2, 1, v0
    v_lshlrev_b32 v2, 15, v2
    v_lshl_add_u32 v2, v4, 7, v2
    v_bfe_u32 v6, v0, 1, 3
    v_lshl_add_u32 v2, v6, 4, v2''')
    ts(g, 2)
    lds_wait(g, C_OG, 1)
    ts(g, 3)
    g('''ds_read_b128 v[72:75], v3
    ds_read_b128 v[76:79], v3 offset:64
    s_waitcnt lgkmcnt(0)''')
    for kk in range(2):
        for t in range(8):
            acc = A_ACC + 4 * t
            o = outs[kk] + 4 * t
            c = '0' if kk == 0 else f'v[{acc}:{acc+3}]'
            g(f'v_mfma_f32_16x16x32_bf16 v[{acc}:{acc+3}], v[{o}:{o+3}], v[{72+4*kk}:{75+4*kk}], {c}')
    publish_acc(g, vm, 's46')
    ts(g, 4)
    ts_dump(g, 5)
    g('s_endpgm')

    g.label('L_BULK')
    vm = VM(g)
    BQ, BS, BO, BP = 8, 24, 56, 88
    NT, NS, NL = 16, 10, 6
    srd(g, 28, 6, 64 * 1024 * 1024)
    srd(g, 32, 8, 64 * 1024 * 1024)
    g(f'''s_sub_u32 s44, s3, 4
    s_lshr_b32 s45, s86, 6
    s_bfe_u32 s46, s86, 0x10005
    s_lshl_b32 s46, s46, 2
    s_add_u32 s45, s45, s46
    s_lshl_b32 s45, s45, 23
    s_and_b32 s46, s86, 31
    s_lshl_b32 s46, s46, 18
    s_add_u32 s45, s45, s46
    s_lshl_b32 s46, s44, 16
    s_add_u32 s45, s45, s46
    v_and_b32 v4, 15, v0
    v_lshrrev_b32 v5, 4, v0
    v_lshlrev_b32 v1, 8, v4
    v_lshl_add_u32 v1, v5, 4, v1
    v_lshlrev_b32 v2, 10, v5
    v_lshl_add_u32 v2, v4, 4, v2
    s_mul_i32 s48, s44, 24576
    s_add_u32 s48, s48, {L_V}''')
    g('s_barrier')
    INFL = args.infl
    order = []
    def ldsload(isK, T, k):
        for j in range(4):
            st = 64 if isK else 256
            g(f's_add_u32 s49, s48, {4096*k + 1024*j}\ns_mov_b32 m0, s49\ns_add_u32 s46, s45, {4096*T + st*j}')
            g('buffer_load_dwordx4 v1, s[28:31], s46 offen nt lds' if isK else 'buffer_load_dwordx4 v2, s[32:35], s46 offen nt lds')
            vm.issue(f'{"K" if isK else "V"}{T}')
    def rload(isK, T, slot):
        r0 = BP + 16 * slot
        g(f's_add_u32 s46, s45, {4096*T}')
        for j in range(4):
            r = r0 + 4 * j
            if isK:
                g(f'buffer_load_dwordx4 v[{r}:{r+3}], v1, s[28:31], s46 offen offset:{64*j} nt')
            else:
                g(f'buffer_load_dwordx4 v[{r}:{r+3}], v2, s[32:35], s46 offen offset:{256*j} nt')
            vm.issue(f'{"K" if isK else "V"}{T}')
    def ldsread(k, slot):
        r0 = BP + 16 * slot
        for j in range(4):
            g(f'ds_read_b128 v[{r0+4*j}:{r0+4*j+3}], v3 offset:{4096*k + 1024*j}')
    def pace(tag):
        order.append(tag)
        if len(order) - 1 - INFL >= 0:
            vm.wait(order[len(order) - 1 - INFL])
    def stream(isK):
        c = 'K' if isK else 'V'
        order.clear()
        for T in range(NT):
            if isK and T == args.pre:
                lds_wait(g, C_X, 1)
            pace(f'{c}{T}')
            if T in (4, 8, 12, 15):
                ts(g, (7 if isK else 11) + (T // 4 if T < 15 else 4) - 0)
            if T < NS:
                rload(isK, T, T)
            else:
                ldsload(isK, T, T - NS)
    stream(True)
    lds_signal(g, C_K, add=True)
    lds_wait(g, C_Q, 2)
    ts(g, 1)
    g(f'''v_and_b32 v3, 7, v0
    v_lshlrev_b32 v3, 8, v3
    v_lshl_add_u32 v3, v5, 4, v3''')
    for j in range(4):
        g(f'ds_read_b128 v[{BQ+4*j}:{BQ+4*j+3}], v3 offset:{L_Q + 64*j}')
    g('s_waitcnt lgkmcnt(0)')
    g('v_lshlrev_b32 v3, 4, v0\nv_add_u32 v3, s48, v3')
    for T in range(NT):
        if T < NS:
            vm.wait(f'K{T}')
        else:
            g(f's_waitcnt lgkmcnt({min(8, 4 * (NT - 1 - T))})')
        r0 = BP + 16 * (T % NS)
        s = BS + 4 * T
        for j in range(4):
            c = '0' if j == 0 else f'v[{s}:{s+3}]'
            g(f'v_mfma_f32_16x16x32_bf16 v[{s}:{s+3}], v[{r0+4*j}:{r0+4*j+3}], v[{BQ+4*j}:{BQ+4*j+3}], {c}')
        k = T - (NS - 3)
        if 0 <= k < NL:
            vm.wait(f'K{NS+k}')
            ldsread(k, k)
    g('s_nop 7')
    ts(g, 2)
    for i in range(2 * NT):
        a, b = f'v{BS+2*i}', f'v{BS+2*i+1}'
        bf16r_pair(g, a, b, 'v8')
        g(f'v_mul_f32 {a}, s61, {a}\nv_mul_f32 {b}, s61, {b}')
        bf16r_pair(g, a, b, 'v8')
    g(f'v_max_f32 v9, v{BS}, v{BS+1}')
    for i in range(1, 2 * NT):
        g(f'v_max3_f32 v9, v9, v{BS+2*i}, v{BS+2*i+1}')
    allred_x16(g, 'v_max_f32', 'v9', 'v10')
    allred_x32(g, 'v_max_f32', 'v9', 'v10')
    g('v_mov_b32 v11, 0\nv_mov_b32 v16, 0')
    for i in range(0, 4 * NT, 2):
        g(f'''v_sub_f32 v{BS+i}, v{BS+i}, v9
        v_sub_f32 v{BS+i+1}, v{BS+i+1}, v9
        v_mul_f32 v{BS+i}, s60, v{BS+i}
        v_mul_f32 v{BS+i+1}, s60, v{BS+i+1}
        v_exp_f32 v{BS+i}, v{BS+i}
        v_exp_f32 v{BS+i+1}, v{BS+i+1}
        s_nop 0
        v_add_f32 v11, v11, v{BS+i}
        v_add_f32 v16, v16, v{BS+i+1}''')
    g('v_mov_b32 v248, v9')
    g('v_add_f32 v11, v11, v16')
    allred_x16(g, 'v_add_f32', 'v11', 'v10')
    allred_x32(g, 'v_add_f32', 'v11', 'v10')
    g(f'''s_lshl_b32 s46, s44, 6
    v_lshlrev_b32 v3, 2, v0
    v_add_u32 v3, s46, v3
    s_mov_b64 exec, 0xff
    ds_write_b32 v3, v9 offset:{L_ST}
    ds_write_b32 v3, v11 offset:{L_ST+32}
    s_mov_b64 exec, -1''')
    lds_signal(g, C_ST, add=True)
    ts(g, 3)
    stream(False)
    lds_wait(g, C_ML, 1)
    ts(g, 4)
    g(f'''v_and_b32 v3, 7, v0
    v_lshlrev_b32 v3, 2, v3
    ds_read_b32 v9, v3 offset:{L_ML}
    ds_read_b32 v10, v3 offset:{L_ML+32}
    s_waitcnt lgkmcnt(0)''')
    g('''v_sub_f32 v9, v248, v9
    v_mul_f32 v9, s60, v9
    v_exp_f32 v9, v9
    s_nop 0
    v_mul_f32 v10, v10, v9''')
    for i in range(2 * NT):
        a, b = BS + 2 * i, BS + 2 * i + 1
        g(f'''v_mul_f32 v12, v{a}, v10
        v_mul_f32 v13, v{b}, v10
        v_cvt_pk_bf16_f32 v{BS+i}, v12, v13''')
    g('v_lshlrev_b32 v3, 4, v0\nv_add_u32 v3, s48, v3')
    for U in range(NT // 2):
        T0, T1 = 2 * U, 2 * U + 1
        if T1 < NS:
            vm.wait(f'V{T1}')
        else:
            g(f's_waitcnt lgkmcnt({min(8, 4 * (NT - 1 - T1))})')
        ra = BP + 16 * (T0 % NS)
        rb = BP + 16 * (T1 % NS)
        for half in range(2):
            for tt in range(4):
                t = 4 * half + tt
                d = t >> 1
                sel = 's58' if (t & 1) == 0 else 's59'
                o = BQ + 4 * tt
                g(f'v_perm_b32 v{o}, v{ra+4+d}, v{ra+d}, {sel}')
                g(f'v_perm_b32 v{o+1}, v{ra+12+d}, v{ra+8+d}, {sel}')
                g(f'v_perm_b32 v{o+2}, v{rb+4+d}, v{rb+d}, {sel}')
                g(f'v_perm_b32 v{o+3}, v{rb+12+d}, v{rb+8+d}, {sel}')
            g('s_nop 1')
            for tt in range(4):
                t = 4 * half + tt
                o = BQ + 4 * tt
                acc = BO + 4 * t
                c = '0' if U == 0 else f'v[{acc}:{acc+3}]'
                g(f'v_mfma_f32_16x16x32_bf16 v[{acc}:{acc+3}], v[{o}:{o+3}], v[{BS+4*U}:{BS+4*U+3}], {c}')
        k = 2 * (U - 3)
        if 0 <= k < NL:
            vm.wait(f'V{NS+k+1}')
            ldsread(k, k); ldsread(k + 1, k + 1)
    ts(g, 5)
    g(f'''s_lshl_b32 s46, s44, 12
    v_lshlrev_b32 v3, 9, v4
    v_lshl_add_u32 v3, v5, 7, v3
    v_add_u32 v3, s46, v3
    s_nop 7
    s_mov_b32 exec_lo, 0x00ff00ff
    s_mov_b32 exec_hi, 0x00ff00ff''')
    for t in range(8):
        acc = BO + 4 * t
        g(f'ds_write_b128 v3, v[{acc}:{acc+3}] offset:{L_OP + 16*t}')
    g('s_mov_b64 exec, -1')
    lds_signal(g, C_O, add=True)
    g(f'''s_lshr_b32 s46, s86, 6
    s_lshl_b32 s46, s46, 18
    s_lshl_b32 s49, s44, 16
    s_add_u32 s46, s46, s49
    s_bfe_u32 s49, s86, 0x10005
    s_lshl_b32 s49, s49, 14
    s_add_u32 s46, s46, s49
    s_and_b32 s49, s86, 31
    s_lshl_b32 s49, s49, 9
    s_add_u32 s46, s46, s49
    s_add_u32 s46, s46, {W_O}
    v_and_b32 v2, 31, v0
    v_lshlrev_b32 v2, 4, v2
    v_lshrrev_b32 v1, 5, v0
    v_lshl_add_u32 v2, v1, 15, v2
    s_lshl_b32 s49, s44, 10
    v_lshlrev_b32 v3, 4, v0
    v_add_u32 v3, s49, v3''')
    lds_wait(g, C_O, 4)
    for w in range(4):
        g(f'ds_read_b128 v[{88+4*w}:{91+4*w}], v3 offset:{L_OP + 4096*w}')
    g('s_waitcnt lgkmcnt(0)')
    for r in range(4):
        g(f'v_add_f32 v{8+r}, v{88+r}, v{92+r}\nv_add_f32 v{12+r}, v{96+r}, v{100+r}\nv_add_f32 v{8+r}, v{8+r}, v{12+r}')
    g('buffer_store_dwordx4 v[8:11], v2, s[36:39], s46 offen sc1')
    ts(g, 6)
    ts_dump(g, 7)
    g('s_endpgm')
    g.label('L_END')
    g('s_endpgm')
    T = f'''.section .rodata,"a"
.p2align 6
.amdhsa_kernel {KN}
  .amdhsa_next_free_vgpr 256
  .amdhsa_next_free_sgpr 100
  .amdhsa_accum_offset 256
  .amdhsa_group_segment_fixed_size 0
  .amdhsa_kernarg_size 96
  .amdhsa_user_sgpr_count 2
  .amdhsa_user_sgpr_kernarg_segment_ptr 1
  .amdhsa_system_sgpr_workgroup_id_x 1
  .amdhsa_float_denorm_mode_32 3
.end_amdhsa_kernel
'''
    return '\n'.join(H) + '\n' + '\n'.join(g.L) + '\n' + T

if __name__ == '__main__':
    ap = argparse.ArgumentParser()
    ap.add_argument('--prof', action='store_true')
    ap.add_argument('--ainfl', type=int, default=2)
    ap.add_argument('--skip', default='')
    ap.add_argument('--remap', type=int, default=1)
    ap.add_argument('--plain', type=int, default=1)
    ap.add_argument('--nodma', action='store_true')
    ap.add_argument('--noaux', action='store_true')
    ap.add_argument('--nolds', action='store_true')
    ap.add_argument('--kfirst', type=int, default=1)
    ap.add_argument('--nohop', action='store_true')
    ap.add_argument('--fsleep', type=int, default=16)
    ap.add_argument('--infl', type=int, default=2)
    ap.add_argument('--pre', type=int, default=0)
    ap.add_argument('-o', default='recurrent_scan__gqa_block_cached__swiglu_ffn__decode.s')
    args = ap.parse_args()
    open(args.o, 'w').write(gen(args))
```

```python
import struct, sys, argparse

def f32hex(x):
    return '0x%08x' % struct.unpack('<I', struct.pack('<f', x))[0]

KN = 'recurrent_scan__gqa_block_cached__swiglu_ffn__decode_kernel'
NWG = 256
W_Q = 0x000000
W_GU = 0x040000
W_S = 0x0C0000
W_F = 0x140000
W_O = 0x180000
W_ML = 0x280000
W_B = 0x300000
W_CT = 0x2E0000
W_FL = 0x2C0000
L_XN = 0x0000
L_Q = 0x1000
L_ST = 0x1800
L_ML = 0x1A00
L_CT = 0x1A40
C_Q, C_ST, C_ML, C_O, C_OG, C_H, C_N, C_K, C_X = [L_CT + 4 * i for i in range(9)]
L_OB = 0x1B00
L_H = 0x1D00
L_OP = 0x2000
L_V = 0x6000
LDS_BYTES = 0x6000 + 4 * 24576
SCALE = f32hex(128 ** -0.5)
LOG2E = f32hex(1.4426950408889634)
EPS = f32hex(1e-5)
SPIN_LDS = 4000000
SPIN_GLB = 40000

NOLDS = False
class Gen:
    def __init__(self):
        self.L = []
        self.n = 0
    def __call__(self, s):
        for line in s.strip('\n').split('\n'):
            self.L.append('    ' + line.strip())
    def label(self, name):
        self.L.append(name + ':')
    def uniq(self, p):
        self.n += 1
        return f'{p}_{self.n}'

class VM:
    def __init__(self, g):
        self.g = g
        self.ops = []
    def issue(self, tag):
        self.ops.append(tag)
    def wait(self, tag):
        idx = max(i for i, t in enumerate(self.ops) if t == tag)
        n = len(self.ops) - 1 - idx
        assert n <= 63
        self.g(f's_waitcnt vmcnt({n})')
    def reset(self):
        self.ops = []

def srd(g, d, base, nbytes):
    g(f's_mov_b32 s{d}, s{base}\ns_mov_b32 s{d+1}, s{base+1}\ns_mov_b32 s{d+2}, {nbytes}\ns_mov_b32 s{d+3}, 0x20000')

def lds_wait(g, addr, target, vt='v7', va='v6', st='s50', sc='s51'):
    l = g.uniq('LW'); d = g.uniq('LWD')
    g(f'v_mov_b32 {va}, {addr}\ns_mov_b32 {sc}, {1 if NOLDS else SPIN_LDS}')
    g.label(l)
    g(f'''ds_read_b32 {vt}, {va}
    s_waitcnt lgkmcnt(0)
    v_readfirstlane_b32 {st}, {vt}
    s_cmp_ge_u32 {st}, {target}
    s_cbranch_scc1 {d}
    s_sleep 1
    s_sub_u32 {sc}, {sc}, 1
    s_cmp_lg_u32 {sc}, 0
    s_cbranch_scc1 {l}''')
    g.label(d)

def lds_signal(g, addr, add=False, vt='v7', va='v6'):
    g(f'''s_waitcnt lgkmcnt(0)
    v_mov_b32 {va}, {addr}
    v_mov_b32 {vt}, 1
    s_mov_b64 exec, 1''')
    g(f'ds_add_u32 {va}, {vt}' if add else f'ds_write_b32 {va}, {vt}')
    g('s_mov_b64 exec, -1')

def bf16r_pair(g, a, b, t):
    g(f'''v_cvt_pk_bf16_f32 {t}, {a}, {b}
    v_lshlrev_b32 {a}, 16, {t}
    v_and_b32 {b}, 0xffff0000, {t}''')

def bf16r(g, a):
    g(f'''v_cvt_pk_bf16_f32 {a}, {a}, {a}
    v_lshlrev_b32 {a}, 16, {a}''')

def allred_row16(g, op, v, t):
    for r in (1, 2, 4, 8):
        g(f's_nop 1\n{op}_dpp {t}, {v}, {v} row_ror:{r} row_mask:0xf bank_mask:0xf\nv_mov_b32 {v}, {t}')

def allred_x16(g, op, v, t):
    g(f'v_mov_b32 {t}, {v}\ns_nop 1\nv_permlane16_swap_b32 {v}, {t}\ns_nop 1\n{op} {v}, {v}, {t}')

def allred_x32(g, op, v, t):
    g(f'v_mov_b32 {t}, {v}\ns_nop 1\nv_permlane32_swap_b32 {v}, {t}\ns_nop 1\n{op} {v}, {v}, {t}')

def precise_div(g, d, num, den, t1, t2):
    g(f'''v_rcp_f32 {t1}, {den}
    s_nop 0
    v_mul_f32 {t2}, {num}, {t1}
    v_fma_f32 {d}, -{t2}, {den}, {num}
    v_fma_f32 {d}, {d}, {t1}, {t2}''')

def silu(g, x, t1, t2, t3):
    g(f'''v_mul_f32 {t1}, s60, {x}
    v_exp_f32 {t1}, -{t1}
    s_nop 0
    v_add_f32 {t1}, 1.0, {t1}''')
    g(f'''v_rcp_f32 {t2}, {t1}
    s_nop 0
    v_mul_f32 {t3}, {x}, {t2}
    v_fma_f32 {t1}, -{t3}, {t1}, {x}
    v_fma_f32 {t1}, {t1}, {t2}, {t3}
    v_cmp_eq_f32 vcc, 0, {t2}
    s_nop 1
    v_cndmask_b32 {x}, {t1}, {t3}, vcc''')

A_T = 8
A_B = 24
A_ACC = 40
A_POOL = 72

def tile_loads(g, vm, srdreg, sbase, rowbytes, kk, slot, tag, voff='v1', stmp='s46'):
    for i in range(8):
        r = A_POOL + 32 * slot + 4 * i
        g(f's_add_u32 {stmp}, {sbase}, {(32 * kk + i) * rowbytes}')
        g(f'buffer_load_dwordx4 v[{r}:{r+3}], {voff}, s[{srdreg}:{srdreg+3}], {stmp} offen nt')
        vm.issue(tag)

def tile_block_mfma(g, slot, kk, first, breg):
    base = A_POOL + 32 * slot
    for half in range(2):
        for tt in range(4):
            t = 4 * half + tt
            d = t >> 1
            sel = 's58' if (t & 1) == 0 else 's59'
            o = A_T + 4 * tt
            for p in range(4):
                g(f'v_perm_b32 v{o+p}, v{base + 4*(2*p+1) + d}, v{base + 4*(2*p) + d}, {sel}')
        g('s_nop 1')
        for tt in range(4):
            t = 4 * half + tt
            o = A_T + 4 * tt
            acc = A_ACC + 4 * t
            c = '0' if first else f'v[{acc}:{acc+3}]'
            g(f'v_mfma_f32_16x16x32_bf16 v[{acc}:{acc+3}], v[{o}:{o+3}], v[{breg}:{breg+3}], {c}')

def gemv_tile(g, vm, srdreg, sbase, rowbytes, ldsaddr_v, pre_issued, tagp, wait_fn=None):
    if wait_fn:
        wait_fn()
    for kk in range(4):
        g(f'ds_read_b128 v[{A_B+4*kk}:{A_B+4*kk+3}], {ldsaddr_v} offset:{64*kk}')
    g('s_waitcnt lgkmcnt(0)')
    for kk in range(4):
        vm.wait(f'{tagp}{kk}')
        tile_block_mfma(g, kk % 3, kk, kk == 0, A_B + 4 * kk)
        if kk == 0:
            tile_loads(g, vm, srdreg, sbase, rowbytes, 3, 0, f'{tagp}3')

def lane_masks(g):
    g('''s_mov_b32 s80, 0xcccccccc
    s_mov_b32 s81, 0xcccccccc
    s_mov_b32 s82, 0xf0f0f0f0
    s_mov_b32 s83, 0xf0f0f0f0
    s_mov_b32 s84, 0xff00ff00
    s_mov_b32 s85, 0xff00ff00''')

def select8(g, accs, levels=3):
    cur = list(accs)
    lv = 0
    while len(cur) > 1:
        nxt = []
        for i in range(0, len(cur), 2):
            a, b = cur[i], cur[i + 1]
            for r in range(4):
                g(f'v_cndmask_b32 v{a+r}, v{a+r}, v{b+r}, s[{80+2*lv}:{81+2*lv}]')
            nxt.append(a)
        cur = nxt
        lv += 1
    return cur[0]

def tagged_store(g, vm, r, soff, voff, x=8, stmp='s57', vtmp='v7'):
    g(f'''v_mov_b32 v{x}, v{r+3}
    v_mov_b32 v{x+1}, s55
    v_mov_b32 v{r+3}, s55
    v_lshrrev_b32 {vtmp}, 1, {voff}
    s_lshr_b32 {stmp}, {soff}, 1
    s_add_u32 {stmp}, {stmp}, {W_B}
    buffer_store_dwordx4 v[{r}:{r+3}], {voff}, s[36:39], {soff} offen sc1
    buffer_store_dwordx2 v[{x}:{x+1}], {vtmp}, s[36:39], {stmp} offen sc1''')
    vm.issue('st'); vm.issue('st')

def publish_acc(g, vm, soff, voff='v2'):
    g('s_nop 7\ns_nop 1')
    r = select8(g, [A_ACC + 4 * t for t in range(8)])
    tagged_store(g, vm, r, soff, voff)

def tag_check(g, tags, acc='v7', tmp='v6'):
    tags = list(tags)
    g(f'v_xor_b32 {acc}, s55, v{tags[0]}')
    for t in tags[1:]:
        g(f'v_xor_b32 {tmp}, s55, v{t}\nv_or_b32 {acc}, {acc}, {tmp}')
    g(f'v_cmp_ne_u32 vcc, 0, {acc}')

NOHOP = False
PLAIN = True
def plain_first(g, issue_fn, check_fn, d):
    n0 = len(g.L)
    issue_fn()
    for i in range(n0, len(g.L)):
        g.L[i] = g.L[i].replace(' sc1', '')
    g('s_waitcnt vmcnt(0)')
    check_fn()
    g(f's_cbranch_vccz {d}')

def tpoll_loop(g, issue_fn, tags, sleep=2, sc='s51', acc='v7', tmp='v6', plain=False):
    l = g.uniq('TP'); d = g.uniq('TPD')
    if plain and PLAIN:
        plain_first(g, issue_fn, lambda: tag_check(g, tags, acc, tmp), d)
    g(f's_mov_b32 {sc}, {1 if NOHOP else SPIN_GLB}')
    g.label(l)
    issue_fn()
    g('s_waitcnt vmcnt(0)')
    tag_check(g, tags, acc, tmp)
    g(f'''s_cbranch_vccz {d}
    s_sleep {sleep}
    s_sub_u32 {sc}, {sc}, 1
    s_cmp_lg_u32 {sc}, 0
    s_cbranch_scc1 {l}''')
    g.label(d)

def read_nonce(g):
    lds_wait(g, C_N, 1)
    g('s_mov_b32 s55, s50')

def sentinel_check(g, regs, vmx):
    regs = list(regs)
    g(f'v_max_u32 {vmx}, v{regs[0]}, v{regs[1]}')
    i = 2
    while i < len(regs):
        if i + 1 < len(regs):
            g(f'v_max3_u32 {vmx}, {vmx}, v{regs[i]}, v{regs[i+1]}')
            i += 2
        else:
            g(f'v_max_u32 {vmx}, {vmx}, v{regs[i]}')
            i += 1
    g(f'v_cmp_eq_u32 vcc, -1, {vmx}')

def poll_loop(g, issue_fn, regs, vmx='v7', sc='s51', sleep=2, plain=False):
    l = g.uniq('PL'); d = g.uniq('PLD')
    if plain and PLAIN:
        plain_first(g, issue_fn, lambda: sentinel_check(g, regs, vmx), d)
    g(f's_mov_b32 {sc}, {1 if NOHOP else SPIN_GLB}')
    g.label(l)
    issue_fn()
    g('s_waitcnt vmcnt(0)')
    sentinel_check(g, regs, vmx)
    g(f'''s_cbranch_vccz {d}
    s_sleep {sleep}
    s_sub_u32 {sc}, {sc}, 1
    s_cmp_lg_u32 {sc}, 0
    s_cbranch_scc1 {l}''')
    g.label(d)

def arrive(g, sidx, n, stmp='s46', sctr=None, ack=True):
    d = g.uniq('ARR')
    if sctr is None:
        g(f's_lshl_b32 {stmp}, {sidx}, 2')
        srdn = 40
    else:
        g(f's_lshl_b32 {stmp}, {sctr}, 7\ns_add_u32 {stmp}, {stmp}, {W_CT}')
        srdn = 36
    g(f'''v_mov_b32 v6, {stmp}
    v_mov_b32 v7, 1
    {'s_waitcnt vmcnt(0)' if ack else 's_nop 0'}
    s_mov_b64 exec, 1
    buffer_atomic_add v7, v6, s[{srdn}:{srdn+3}], 0 offen sc0
    s_waitcnt vmcnt(0)
    v_readfirstlane_b32 {stmp}, v7
    s_cmp_eq_u32 {stmp}, {n-1}
    s_cbranch_scc0 {d}
    s_lshl_b32 {stmp}, {sidx}, 7
    s_add_u32 {stmp}, {stmp}, {W_FL}
    v_mov_b32 v6, 0
    v_mov_b32 v7, s55
    buffer_store_dword v7, v6, s[36:39], {stmp} offen sc1''')
    g.label(d)
    g('s_mov_b64 exec, -1')

def flag_wait(g, sidx, sleep, stmp='s46'):
    l = g.uniq('FW'); d = g.uniq('FWD')
    g(f'''s_lshl_b32 {stmp}, {sidx}, 7
    s_add_u32 {stmp}, {stmp}, {W_FL}
    v_mov_b32 v6, 0
    s_mov_b32 s51, {1 if NOHOP else SPIN_GLB}
    s_mov_b64 exec, 1''')
    g.label(l)
    g(f'''buffer_load_dword v7, v6, s[36:39], {stmp} offen sc1
    s_waitcnt vmcnt(0)
    v_readfirstlane_b32 s50, v7
    s_cmp_eq_u32 s50, s55
    s_cbranch_scc1 {d}
    s_sleep {sleep}
    s_sub_u32 s51, s51, 1
    s_cmp_lg_u32 s51, 0
    s_cbranch_scc1 {l}''')
    g.label(d)
    g('s_mov_b64 exec, -1')

def q_gather(g, args, rnd, tsa=None):
    g(f'''s_lshr_b32 s44, s86, 5
    s_lshl_b32 s44, s44, 15
    s_add_u32 s44, s44, {W_Q + rnd*16384}
    s_lshr_b32 s45, s44, 1
    s_add_u32 s45, s45, {W_B}
    s_lshr_b32 s48, s86, 6
    s_add_u32 s48, s48, 1''')
    flag_wait(g, 's48', args.fsleep)
    if tsa is not None:
        ts(g, tsa)
    g('''v_lshrrev_b32 v2, 5, v0
    v_lshlrev_b32 v2, 12, v2
    v_and_b32 v3, 31, v0
    v_lshl_add_u32 v2, v3, 4, v2
    v_lshrrev_b32 v3, 1, v2
    v_lshrrev_b32 v8, 5, v0
    v_lshlrev_b32 v8, 8, v8
    v_bfe_u32 v9, v0, 3, 2
    v_lshlrev_b32 v9, 6, v9
    v_and_b32 v10, 7, v0
    v_lshlrev_b32 v10, 1, v10
    v_add3_u32 v8, v8, v9, v10''')
    def issue_q2():
        for hh in range(2):
            g(f's_add_u32 s46, s44, {hh*8192}\ns_add_u32 s48, s45, {hh*4096}')
            for ks in range(8):
                r = 40 + 32 * hh + 4 * ks
                rb = 104 + 16 * hh + 2 * ks
                g(f'buffer_load_dwordx4 v[{r}:{r+3}], v2, s[36:39], s46 offen offset:{ks*512} sc1')
                g(f'buffer_load_dwordx2 v[{rb}:{rb+1}], v3, s[36:39], s48 offen offset:{ks*256} sc1')
    tags = [43 + 4 * i for i in range(16)] + [105 + 2 * i for i in range(16)]
    if 'q2' not in args.skip:
        tpoll_loop(g, issue_q2, tags, sleep=4, plain=True)
    for hh in range(2):
        hp = 2 * rnd + hh
        for r in range(4):
            src = (lambda ks: 40 + 32 * hh + 4 * ks + r) if r < 3 else (lambda ks: 104 + 16 * hh + 2 * ks)
            g(f'v_add_f32 v{12+r}, v{src(0)}, v{src(1)}')
            for ks in range(2, 8):
                g(f'v_add_f32 v{12+r}, v{12+r}, v{src(ks)}')
        g(f'''v_cvt_pk_bf16_f32 v12, v12, v13
        v_cvt_pk_bf16_f32 v14, v14, v15
        ds_write_b16 v8, v12 offset:{L_Q + 512*hp}
        ds_write_b16_d16_hi v8, v12 offset:{L_Q + 512*hp + 16}
        ds_write_b16 v8, v14 offset:{L_Q + 512*hp + 32}
        ds_write_b16_d16_hi v8, v14 offset:{L_Q + 512*hp + 48}''')
    lds_signal(g, C_Q, add=True)

PROF = False
def ts(g, i):
    if PROF:
        g(f's_memrealtime s[96:97]\ns_waitcnt lgkmcnt(0)\ns_mov_b32 s{64+i}, s96')
def ts_dump(g, n):
    if not PROF:
        return
    g(f'''s_mul_i32 s62, s2, 12
    s_add_u32 s62, s62, s3
    s_lshl_b32 s62, s62, 6
    s_add_u32 s62, s62, 0x8000000
    s_mov_b64 exec, 1
    v_mov_b32 v6, 0''')
    for i in range(16):
        g(f'v_mov_b32 v7, s{64+i}\nbuffer_store_dword v7, v6, s[36:39], s62 offen offset:{4*i}')

def gen(args):
    global PROF, NOHOP, NOLDS, PLAIN
    PLAIN = bool(args.plain)
    NOLDS = args.nolds
    PROF = args.prof
    NOHOP = args.nohop
    g = Gen()
    H = []
    H.append(f'; @launch grid=({NWG},1,1) block=(512,1,1) lds={LDS_BYTES}')
    H.append('.amdgcn_target "amdgcn-amd-amdhsa--gfx950"\n.text')
    H.append(f'.globl {KN}\n.p2align 8\n.type {KN},@function\n{KN}:')
    g(f'''s_cmp_ge_u32 s2, {NWG}
    s_cbranch_scc1 L_END
    s_load_dwordx16 s[4:19], s[0:1], 0
    s_load_dwordx8 s[20:27], s[0:1], 64
    v_lshrrev_b32 v1, 6, v0
    v_and_b32 v0, 63, v0
    s_mov_b32 s58, 0x05040100
    s_mov_b32 s59, 0x07060302
    v_readfirstlane_b32 s3, v1
    s_mov_b32 s60, {LOG2E}
    s_mov_b32 s61, {SCALE}
    s_waitcnt lgkmcnt(0)''')
    srd(g, 36, 26, 0x10000000)
    lane_masks(g)
    srd(g, 40, 24, 256)
    if args.remap:
        g('''s_and_b32 s90, s2, 7
        s_lshr_b32 s91, s2, 3
        s_lshl_b32 s86, s90, 5
        s_add_u32 s86, s86, s91
        s_lshr_b32 s92, s90, 1
        s_lshl_b32 s92, s92, 6
        s_and_b32 s93, s90, 1
        s_lshl_b32 s87, s91, 1
        s_add_u32 s87, s87, s93
        s_add_u32 s87, s87, s92
        s_lshl_b32 s88, s93, 2
        s_and_b32 s94, s91, 3
        s_add_u32 s88, s88, s94
        s_lshl_b32 s88, s88, 3
        s_lshr_b32 s94, s91, 2
        s_add_u32 s88, s88, s94
        s_add_u32 s88, s88, s92
        s_lshr_b32 s89, s91, 3
        s_lshl_b32 s89, s89, 3
        s_add_u32 s89, s89, s90
        s_cmp_lt_u32 s89, 28
        s_cselect_b32 s95, 1, 0
        s_lshl_b32 s89, s89, 3
        s_and_b32 s94, s91, 7
        s_add_u32 s89, s89, s94
        s_add_u32 s89, s89, 32
        s_mul_i32 s89, s89, s95''')
    else:
        g('s_mov_b32 s86, s2\ns_mov_b32 s87, s2\ns_mov_b32 s88, s2\ns_mov_b32 s89, s2')
    ts(g, 0)
    if args.noaux:
        g('s_cmp_ge_u32 s3, 4\ns_cbranch_scc1 L_BULK\ns_barrier\ns_endpgm')
    g('''s_cmp_ge_u32 s3, 4
    s_cbranch_scc1 L_BULK
    s_cmp_eq_u32 s3, 0
    s_cbranch_scc1 L_A0
    s_cmp_eq_u32 s3, 3
    s_cbranch_scc1 L_A3
    s_branch L_A12''')

    g.label('L_A3')
    srd(g, 28, 4, 4096)
    g('''v_lshlrev_b32 v1, 6, v0
    buffer_load_dwordx4 v[8:11], v1, s[28:31], 0 offen
    buffer_load_dwordx4 v[12:15], v1, s[28:31], 0 offen offset:16
    buffer_load_dwordx4 v[16:19], v1, s[28:31], 0 offen offset:32
    buffer_load_dwordx4 v[20:23], v1, s[28:31], 0 offen offset:48''')
    g(f'''v_mov_b32 v2, 0
    v_lshlrev_b32 v3, 2, v0
    v_add_u32 v3, {L_CT}, v3
    s_mov_b64 exec, 0xffff
    ds_write_b32 v3, v2
    s_mov_b64 exec, -1
    s_waitcnt lgkmcnt(0)
    s_barrier
    s_waitcnt vmcnt(0)''')
    for i in range(16):
        g(f'v_lshlrev_b32 v{24+2*i}, 16, v{8+i}\nv_and_b32 v{25+2*i}, 0xffff0000, v{8+i}')
    g('v_add_f32 v56, v24, v25')
    for i in range(26, 56):
        g(f'v_add_f32 v56, v56, v{i}')
    allred_row16(g, 'v_add_f32', 'v56', 'v57')
    allred_x16(g, 'v_add_f32', 'v56', 'v57')
    g('v_mul_f32 v56, 0x3a800000, v56')
    g('v_sub_f32 v58, v24, v56\nv_mul_f32 v59, v58, v58')
    for i in range(25, 56):
        g(f'v_sub_f32 v58, v{i}, v56\nv_fma_f32 v59, v58, v58, v59')
    allred_row16(g, 'v_add_f32', 'v59', 'v57')
    allred_x16(g, 'v_add_f32', 'v59', 'v57')
    g('v_mul_f32 v59, 0x3a800000, v59')
    bf16r(g, 'v56')
    bf16r(g, 'v59')
    g(f'v_add_f32 v59, {EPS}, v59')
    bf16r(g, 'v59')
    g('''v_sqrt_f32 v60, v59
    s_nop 0
    v_rcp_f32 v61, v60
    v_fma_f32 v62, -v60, v60, v59
    v_mul_f32 v61, 0.5, v61
    v_fma_f32 v60, v62, v61, v60''')
    bf16r(g, 'v60')
    g('v_rcp_f32 v61, v60')
    for i in range(16):
        a, b = f'v{24+2*i}', f'v{25+2*i}'
        g(f'v_sub_f32 {a}, {a}, v56\nv_sub_f32 {b}, {b}, v56')
        bf16r_pair(g, a, b, 'v62')
        for r in (a, b):
            g(f'''v_mul_f32 v62, {r}, v61
            v_fma_f32 v63, -v62, v60, {r}
            v_fma_f32 {r}, v63, v61, v62''')
        g(f'v_cvt_pk_bf16_f32 v{8+i}, {a}, {b}')
    g(f'''ds_write_b128 v1, v[8:11] offset:{L_XN}
    ds_write_b128 v1, v[12:15] offset:{L_XN+16}
    ds_write_b128 v1, v[16:19] offset:{L_XN+32}
    ds_write_b128 v1, v[20:23] offset:{L_XN+48}''')
    lds_signal(g, C_X)
    ts(g, 1)
    read_nonce(g)
    q_gather(g, args, 1)
    lds_wait(g, C_Q, 2)
    ts(g, 2)
    ts(g, 3)
    lds_wait(g, C_ST, 4)
    ts(g, 4)
    g(f'''v_and_b32 v1, 7, v0
    v_lshlrev_b32 v1, 2, v1''')
    for w in range(4):
        g(f'ds_read_b32 v{8+w}, v1 offset:{L_ST + 64*w}\nds_read_b32 v{16+w}, v1 offset:{L_ST + 64*w + 32}')
    g('s_waitcnt lgkmcnt(0)')
    g('v_max3_f32 v24, v8, v9, v10\nv_max_f32 v24, v24, v11')
    g('v_mov_b32 v25, 0')
    for w in range(4):
        g(f'''v_sub_f32 v26, v{8+w}, v24
        v_mul_f32 v26, s60, v26
        v_exp_f32 v26, v26
        s_nop 0
        v_fma_f32 v25, v26, v{16+w}, v25''')
    g(f'''s_lshl_b32 s46, s86, 6
    s_add_u32 s46, s46, {W_ML}
    v_cndmask_b32 v24, v24, v25, s[84:85]
    v_lshlrev_b32 v1, 2, v0
    s_mov_b64 exec, 0xffff
    buffer_store_dword v24, v1, s[36:39], s46 offen sc1
    s_mov_b64 exec, -1
    s_lshr_b32 s48, s86, 5
    s_add_u32 s48, s48, 8''')
    g('s_andn2_b32 s49, s86, 31\ns_add_u32 s49, s49, 256')
    arrive(g, 's48', 32, sctr='s49', ack=False)
    flag_wait(g, 's48', 8)
    g(f'''s_andn2_b32 s44, s86, 31
    s_lshl_b32 s44, s44, 6
    s_add_u32 s44, s44, {W_ML}
    v_and_b32 v1, 31, v0
    v_lshlrev_b32 v1, 6, v1
    v_lshrrev_b32 v2, 5, v0
    v_lshl_add_u32 v1, v2, 4, v1''')
    def issue_ml():
        g('buffer_load_dwordx4 v[8:11], v1, s[36:39], s44 offen sc1')
        g('buffer_load_dwordx4 v[12:15], v1, s[36:39], s44 offen offset:32 sc1')
    poll_loop(g, issue_ml, range(8, 16), sleep=8)
    ts(g, 5)
    for r in range(4):
        g(f'v_mov_b32 v{16+r}, v{8+r}')
        allred_row16(g, 'v_max_f32', f'v{16+r}', 'v24')
        allred_x16(g, 'v_max_f32', f'v{16+r}', 'v24')
        g(f'''v_sub_f32 v24, v{8+r}, v{16+r}
        v_mul_f32 v24, s60, v24
        v_exp_f32 v24, v24
        s_nop 0
        v_mul_f32 v{12+r}, v{12+r}, v24''')
        allred_row16(g, 'v_add_f32', f'v{12+r}', 'v24')
        allred_x16(g, 'v_add_f32', f'v{12+r}', 'v24')
        g('v_mov_b32 v26, 1.0')
        precise_div(g, f'v{20+r}', 'v26', f'v{12+r}', 'v24', 'v25')
    g(f'''v_lshrrev_b32 v2, 5, v0
    v_lshlrev_b32 v2, 4, v2
    s_mov_b32 exec_lo, 1
    s_mov_b32 exec_hi, 1
    ds_write_b128 v2, v[16:19] offset:{L_ML}
    ds_write_b128 v2, v[20:23] offset:{L_ML+32}
    s_mov_b64 exec, -1''')
    lds_signal(g, C_ML)
    g('s_cmp_lt_u32 s89, 32\ns_cbranch_scc1 L_A3_OG')
    g(f'''s_sub_u32 s44, s89, 32
    s_lshr_b32 s44, s44, 3
    s_lshl_b32 s44, s44, 14
    s_add_u32 s44, s44, {W_GU}
    s_lshr_b32 s45, s44, 1
    s_add_u32 s45, s45, {W_B}
    v_lshlrev_b32 v1, 4, v0
    v_lshlrev_b32 v2, 3, v0''')
    g('s_sub_u32 s48, s89, 32\ns_lshr_b32 s48, s48, 3\ns_add_u32 s48, s48, 16')
    flag_wait(g, 's48', 32)
    def issue_h():
        for ks in range(8):
            g(f's_add_u32 s46, s44, {ks*2048}\ns_add_u32 s48, s45, {ks*1024}')
            g(f'buffer_load_dwordx4 v[{72+4*ks}:{75+4*ks}], v1, s[36:39], s46 offen sc1')
            g(f'buffer_load_dwordx4 v[{104+4*ks}:{107+4*ks}], v1, s[36:39], s46 offen offset:1024 sc1')
            g(f'buffer_load_dwordx2 v[{136+2*ks}:{137+2*ks}], v2, s[36:39], s48 offen sc1')
            g(f'buffer_load_dwordx2 v[{152+2*ks}:{153+2*ks}], v2, s[36:39], s48 offen offset:512 sc1')
    tags = [75 + 4 * k for k in range(8)] + [107 + 4 * k for k in range(8)] + [137 + 2 * k for k in range(8)] + [153 + 2 * k for k in range(8)]
    tpoll_loop(g, issue_h, tags, sleep=16, plain=True)
    for r in range(4):
        ga = (lambda ks: 72 + 4 * ks + r) if r < 3 else (lambda ks: 136 + 2 * ks)
        ua = (lambda ks: 104 + 4 * ks + r) if r < 3 else (lambda ks: 152 + 2 * ks)
        g(f'v_add_f32 v{8+r}, v{ga(0)}, v{ga(1)}\nv_add_f32 v{12+r}, v{ua(0)}, v{ua(1)}')
        for ks in range(2, 8):
            g(f'v_add_f32 v{8+r}, v{8+r}, v{ga(ks)}\nv_add_f32 v{12+r}, v{12+r}, v{ua(ks)}')
    bf16r_pair(g, 'v8', 'v9', 'v16'); bf16r_pair(g, 'v10', 'v11', 'v16')
    bf16r_pair(g, 'v12', 'v13', 'v16'); bf16r_pair(g, 'v14', 'v15', 'v16')
    for r in range(4):
        silu(g, f'v{8+r}', 'v16', 'v17', 'v18')
    bf16r_pair(g, 'v8', 'v9', 'v16'); bf16r_pair(g, 'v10', 'v11', 'v16')
    for r in range(4):
        g(f'v_mul_f32 v{8+r}, v{8+r}, v{12+r}')
    g('v_cvt_pk_bf16_f32 v8, v8, v9\nv_cvt_pk_bf16_f32 v10, v10, v11')
    g(f'''v_lshrrev_b32 v2, 5, v0
    v_lshlrev_b32 v2, 8, v2
    v_bfe_u32 v3, v0, 3, 2
    v_lshlrev_b32 v3, 6, v3
    v_and_b32 v4, 7, v0
    v_lshlrev_b32 v4, 1, v4
    v_add3_u32 v5, v2, v3, v4
    ds_write_b16 v5, v8 offset:{L_H}
    ds_write_b16_d16_hi v5, v8 offset:{L_H+16}
    ds_write_b16 v5, v10 offset:{L_H+32}
    ds_write_b16_d16_hi v5, v10 offset:{L_H+48}''')
    lds_signal(g, C_H)
    g.label('L_A3_OG')
    g(f'''s_lshr_b32 s44, s88, 3
    s_lshl_b32 s44, s44, 15
    s_bfe_u32 s45, s88, 0x10002
    s_lshl_b32 s45, s45, 8
    s_add_u32 s44, s44, s45
    s_add_u32 s44, s44, {W_O}
    v_bfe_u32 v2, v0, 4, 1
    v_lshlrev_b32 v2, 14, v2
    v_lshrrev_b32 v3, 5, v0
    v_lshl_add_u32 v2, v3, 13, v2
    v_and_b32 v1, 15, v0
    v_lshl_add_u32 v1, v1, 4, v2''')
    def issue_o():
        for sp in range(16):
            if sp % 8 == 0:
                g(f's_add_u32 s46, s44, {sp*512}')
            g(f'buffer_load_dwordx4 v[{40+4*sp}:{43+4*sp}], v1, s[36:39], s46 offen offset:{(sp%8)*512} sc1')
    lds_wait(g, C_O, 4)
    poll_loop(g, issue_o, range(40, 104), sleep=1)
    ts(g, 6)
    for r in range(4):
        g(f'v_add_f32 v{8+r}, v{40+r}, v{44+r}\nv_add_f32 v{12+r}, v{48+r}, v{52+r}')
        for sp in range(4, 16, 2):
            g(f'v_add_f32 v{8+r}, v{8+r}, v{40+4*sp+r}\nv_add_f32 v{12+r}, v{12+r}, v{44+4*sp+r}')
        g(f'v_add_f32 v{8+r}, v{8+r}, v{12+r}')
    for r in range(4):
        allred_x32(g, 'v_add_f32', f'v{8+r}', 'v12')
    g('v_cvt_pk_bf16_f32 v8, v8, v9\nv_cvt_pk_bf16_f32 v10, v10, v11')
    g(f'''v_bfe_u32 v2, v0, 4, 1
    v_lshlrev_b32 v2, 7, v2
    v_bfe_u32 v3, v0, 3, 1
    v_lshlrev_b32 v3, 6, v3
    v_and_b32 v4, 7, v0
    v_lshlrev_b32 v4, 1, v4
    v_add3_u32 v5, v2, v3, v4
    s_mov_b32 exec_hi, 0
    ds_write_b16 v5, v8 offset:{L_OB}
    ds_write_b16_d16_hi v5, v8 offset:{L_OB+16}
    ds_write_b16 v5, v10 offset:{L_OB+32}
    ds_write_b16_d16_hi v5, v10 offset:{L_OB+48}
    s_mov_b64 exec, -1''')
    lds_signal(g, C_OG)
    ts(g, 7)
    ts_dump(g, 8)
    g('s_endpgm')

    g.label('L_A0')
    vm = VM(g)
    srd(g, 40, 24, 256)
    g('''s_memrealtime s[54:55]
    v_mov_b32 v8, -1
    v_mov_b32 v9, -1
    v_mov_b32 v10, -1
    v_mov_b32 v11, -1
    v_lshlrev_b32 v3, 4, v0
    v_lshrrev_b32 v4, 5, v0
    v_and_b32 v5, 31, v0
    v_lshlrev_b32 v5, 4, v5
    v_mov_b32 v13, 0
    v_mov_b32 v14, 0
    s_waitcnt lgkmcnt(0)
    s_or_b32 s54, s54, 1
    v_mov_b32 v12, s54
    s_mov_b64 exec, 1
    buffer_atomic_cmpswap v[12:13], v14, s[40:43], 0 offen sc0
    s_mov_b64 exec, -1''')
    vm.issue('nonce')
    def clr(voff, off=0):
        g(f'buffer_store_dwordx4 v[8:11], {voff}, s[36:39], s46 offen offset:{off} sc1')
        vm.issue('clr')
    g(f'''s_sub_u32 s48, s89, 32
    s_and_b32 s48, s48, 255
    s_and_b32 s46, s48, 7
    s_lshl_b32 s46, s46, 15
    s_lshr_b32 s48, s48, 3
    s_lshl_b32 s48, s48, 9
    s_add_u32 s46, s46, s48
    s_add_u32 s56, s46, {W_F}''')
    g(f'''s_lshr_b32 s46, s86, 6
    s_lshl_b32 s46, s46, 18
    s_bfe_u32 s48, s86, 0x10005
    s_lshl_b32 s48, s48, 14
    s_add_u32 s46, s46, s48
    s_and_b32 s48, s86, 31
    s_lshl_b32 s48, s48, 9
    s_add_u32 s46, s46, s48
    s_add_u32 s46, s46, {W_O}
    v_lshl_add_u32 v6, v4, 15, v5''')
    for i in range(4):
        clr('v6')
        if i < 3:
            g('s_add_u32 s46, s46, 65536')
    g(f'''s_lshl_b32 s46, s86, 6
    s_add_u32 s46, s46, {W_ML}
    s_mov_b64 exec, 15''')
    clr('v3')
    g(f'''s_mov_b64 exec, 1
    s_lshl_b32 s46, s2, 7
    s_add_u32 s46, s46, {W_CT}
    buffer_store_dword v14, v14, s[36:39], s46 offen sc1
    s_lshl_b32 s46, s86, 7
    s_add_u32 s46, s46, {W_CT + 256*128}
    buffer_store_dword v14, v14, s[36:39], s46 offen sc1''')
    vm.issue('clr'); vm.issue('clr')
    g('s_mov_b64 exec, -1')
    g(f'''s_lshr_b32 s47, s87, 6
    s_lshl_b32 s47, s47, 16
    s_and_b32 s48, s87, 63
    s_lshl_b32 s48, s48, 9
    s_add_u32 s47, s47, s48
    s_add_u32 s47, s47, {W_Q}''')
    srd(g, 28, 10, 8 * 1024 * 1024)
    g('''s_and_b32 s44, s87, 7
    s_lshl_b32 s45, s44, 20
    s_lshr_b32 s46, s87, 3
    s_lshl_b32 s46, s46, 8
    s_add_u32 s45, s45, s46
    v_lshrrev_b32 v4, 4, v0
    v_and_b32 v5, 15, v0
    v_lshlrev_b32 v1, 16, v4
    v_lshl_add_u32 v1, v5, 4, v1''')
    for kk in range(4):
        for i in range(8):
            r = 40 + 32 * kk + 4 * i
            g(f's_add_u32 s46, s45, {(32 * kk + i) * 8192}')
            g(f'buffer_load_dwordx4 v[{r}:{r+3}], v1, s[28:31], s46 offen nt')
            vm.issue(f'wq{kk}')
    g(f'''v_and_b32 v2, 1, v0
    v_lshlrev_b32 v3, 11, v2
    v_lshl_add_u32 v3, v4, 4, v3
    s_lshl_b32 s46, s44, 8
    v_add_u32 v3, s46, v3
    v_lshlrev_b32 v2, 15, v2
    v_lshl_add_u32 v2, v4, 7, v2
    v_bfe_u32 v6, v0, 1, 3
    v_lshl_add_u32 v2, v6, 4, v2
    s_barrier''')
    lds_wait(g, C_X, 1)
    ts(g, 1)
    vm.wait('clr')
    g(f'''v_readfirstlane_b32 s55, v12
    s_cmp_eq_u32 s55, 0
    s_cselect_b32 s55, s54, s55
    v_mov_b32 v6, {C_N}
    v_mov_b32 v7, s55
    s_mov_b64 exec, 1
    ds_write_b32 v6, v7
    s_mov_b64 exec, -1''')
    for half in range(2):
        for kk in range(4):
            b = 8 + 4 * (kk & 1)
            g(f'ds_read_b128 v[{b}:{b+3}], v3 offset:{64*kk}')
            if half == 0:
                vm.wait(f'wq{kk}')
            base = 40 + 32 * kk
            for tt in range(4):
                t = 4 * half + tt
                d = t >> 1
                sel = 's58' if (t & 1) == 0 else 's59'
                o = 16 + 4 * (tt & 1)
                for p in range(4):
                    g(f'v_perm_b32 v{o+p}, v{base + 4*(2*p+1) + d}, v{base + 4*(2*p) + d}, {sel}')
                acc = 24 + 4 * tt
                c = '0' if kk == 0 else f'v[{acc}:{acc+3}]'
                g('s_waitcnt lgkmcnt(0)\ns_nop 0' if tt == 0 else 's_nop 1')
                g(f'v_mfma_f32_16x16x32_bf16 v[{acc}:{acc+3}], v[{o}:{o+3}], v[{b}:{b+3}], {c}')
        g('s_nop 7\ns_nop 1')
        r = select8(g, [24 + 4 * tt for tt in range(4)])
        g('s_mov_b64 exec, s[84:85]' if half == 1 else 's_not_b64 exec, s[84:85]')
        tagged_store(g, vm, r, 's47', 'v2', x=16)
        g('s_mov_b64 exec, -1\ns_nop 1')
    srd(g, 32, 20, 3584 * 1024 * 2)
    g('s_lshr_b32 s48, s87, 6\ns_add_u32 s48, s48, 1')
    arrive(g, 's48', 64)
    ts(g, 2)
    q_gather(g, args, 0, 3)
    vm.reset()
    ts(g, 4)
    g('s_cmp_lt_u32 s89, 32\ns_cbranch_scc1 L_A0_FIN')
    g('''s_sub_u32 s48, s89, 32
    s_lshr_b32 s49, s48, 3
    s_lshl_b32 s49, s49, 18
    s_and_b32 s48, s48, 7
    s_lshl_b32 s48, s48, 8
    s_add_u32 s48, s48, s49
    v_lshlrev_b32 v1, 14, v4
    v_lshl_add_u32 v1, v5, 4, v1''')
    if args.kfirst:
        lds_wait(g, C_K, 4)
    for kk in range(3):
        if kk >= args.ainfl:
            vm.wait(f'wd{kk-args.ainfl}')
        tile_loads(g, vm, 32, 's48', 2048, kk, kk, f'wd{kk}')
    g(f'''v_and_b32 v3, 1, v0
    v_lshlrev_b32 v3, 8, v3
    v_lshl_add_u32 v3, v4, 4, v3
    v_add_u32 v3, {L_H}, v3''')
    gemv_tile(g, vm, 32, 's48', 2048, 'v3', True, 'wd', wait_fn=lambda: lds_wait(g, C_H, 1))
    g('v_and_b32 v2, 1, v0\nv_lshlrev_b32 v2, 14, v2\nv_lshl_add_u32 v2, v4, 7, v2\nv_bfe_u32 v6, v0, 1, 3\nv_lshl_add_u32 v2, v6, 4, v2')
    publish_acc(g, vm, 's56')
    g.label('L_A0_FIN')
    ts(g, 5)
    srd(g, 28, 4, 4096)
    srd(g, 32, 22, 4096)
    g(f'''s_lshr_b32 s44, s2, 5
    s_bfe_u32 s45, s2, 0x10004
    s_and_b32 s46, s2, 15
    ; S gather: W_S + ((c*2+b)*64 + hh*2 + half)*512 + o8*32 + q2*16
    s_lshr_b32 s48, s2, 4
    s_lshl_b32 s49, s48, 14
    s_lshl_b32 s48, s48, 15
    s_lshl_b32 s53, s46, 5
    s_add_u32 s48, s48, s53
    s_add_u32 s49, s49, s53
    s_add_u32 s48, s48, {W_S}
    s_add_u32 s49, s49, {W_F}
    v_lshrrev_b32 v2, 1, v0
    v_and_b32 v3, 1, v0
    v_lshlrev_b32 v1, 10, v2
    v_lshl_add_u32 v1, v3, 4, v1
    v_min_u32 v2, 27, v2
    v_lshlrev_b32 v2, 9, v2
    v_lshl_add_u32 v2, v3, 4, v2
    ; x / out element offset: (b*1024 + 128c + 32g + t)*2 , g=o8>>2, t=2*(o8&3)+q2 ; +16 bytes per r
    s_lshl_b32 s52, s45, 10
    s_lshl_b32 s53, s44, 7
    s_add_u32 s52, s52, s53
    s_lshr_b32 s53, s46, 2
    s_lshl_b32 s53, s53, 5
    s_add_u32 s52, s52, s53
    s_and_b32 s53, s46, 3
    s_lshl_b32 s53, s53, 1
    s_add_u32 s52, s52, s53
    v_add_u32 v4, s52, v3
    v_lshlrev_b32 v4, 1, v4
    buffer_load_ushort v24, v4, s[28:31], 0 offen
    buffer_load_ushort v25, v4, s[28:31], 0 offen offset:16
    buffer_load_ushort v26, v4, s[28:31], 0 offen offset:32
    buffer_load_ushort v27, v4, s[28:31], 0 offen offset:48''')
    g(f'''v_lshrrev_b32 v5, 1, v1
    v_lshrrev_b32 v3, 1, v2
    s_lshr_b32 s52, s48, 1
    s_add_u32 s52, s52, {W_B}
    s_lshr_b32 s53, s49, 1
    s_add_u32 s53, s53, {W_B}''')
    lds_wait(g, C_OG, 1)
    def issue_fin():
        g('buffer_load_dwordx4 v[8:11], v1, s[36:39], s48 offen sc1')
        g('buffer_load_dwordx4 v[12:15], v1, s[36:39], s48 offen offset:512 sc1')
        g('buffer_load_dwordx4 v[16:19], v2, s[36:39], s49 offen sc1')
        g('buffer_load_dwordx2 v[28:29], v5, s[36:39], s52 offen sc1')
        g('buffer_load_dwordx2 v[30:31], v5, s[36:39], s52 offen offset:256 sc1')
        g('buffer_load_dwordx2 v[32:33], v3, s[36:39], s53 offen sc1')
    tpoll_loop(g, issue_fin, [11, 15, 19, 29, 31, 33], sleep=1)
    ts(g, 6)
    g('v_mov_b32 v11, v28\nv_mov_b32 v15, v30\nv_mov_b32 v19, v32')
    g('v_cmp_gt_u32 vcc, 56, v0\ns_nop 1')
    for r in range(4):
        g(f'v_add_f32 v{8+r}, v{8+r}, v{12+r}')
        g(f'v_cndmask_b32 v{16+r}, 0, v{16+r}, vcc')
    for r in list(range(8, 12)) + list(range(16, 20)):
        for rr in (2, 4, 8):
            g(f's_nop 1\nv_add_f32_dpp v20, v{r}, v{r} row_ror:{rr} row_mask:0xf bank_mask:0xf\nv_mov_b32 v{r}, v20')
        allred_x16(g, 'v_add_f32', f'v{r}', 'v20')
        allred_x32(g, 'v_add_f32', f'v{r}', 'v20')
    bf16r_pair(g, 'v8', 'v9', 'v20'); bf16r_pair(g, 'v10', 'v11', 'v20')
    bf16r_pair(g, 'v16', 'v17', 'v20'); bf16r_pair(g, 'v18', 'v19', 'v20')
    for r in range(4):
        silu(g, f'v{16+r}', 'v20', 'v21', 'v22')
    bf16r_pair(g, 'v16', 'v17', 'v20'); bf16r_pair(g, 'v18', 'v19', 'v20')
    for r in range(4):
        g(f'v_mul_f32 v{8+r}, v{8+r}, v{16+r}')
    bf16r_pair(g, 'v8', 'v9', 'v20'); bf16r_pair(g, 'v10', 'v11', 'v20')
    for r in range(4):
        g(f'v_lshlrev_b32 v{24+r}, 16, v{24+r}\nv_add_f32 v{8+r}, v{8+r}, v{24+r}\nv_cvt_pk_bf16_f32 v{8+r}, v{8+r}, v{8+r}')
    g('''s_mov_b64 exec, 3
    buffer_store_short v8, v4, s[32:35], 0 offen
    buffer_store_short v9, v4, s[32:35], 0 offen offset:16
    buffer_store_short v10, v4, s[32:35], 0 offen offset:32
    buffer_store_short v11, v4, s[32:35], 0 offen offset:48''')
    ts(g, 7)
    ts_dump(g, 8)
    g('s_endpgm')

    g.label('L_A12')
    vm = VM(g)
    g('''s_cmp_eq_u32 s3, 1
    s_cselect_b32 s28, s16, s18
    s_cselect_b32 s29, s17, s19
    s_mov_b32 s30, 7340032
    s_mov_b32 s31, 0x20000
    v_lshrrev_b32 v4, 4, v0
    v_and_b32 v5, 15, v0
    s_and_b32 s44, s2, 7
    s_mul_i32 s45, s44, 917504
    s_lshr_b32 s46, s2, 3
    s_lshl_b32 s46, s46, 8
    s_add_u32 s45, s45, s46
    v_mul_u32_u24 v1, 57344, v4
    v_lshl_add_u32 v1, v5, 4, v1
    v_and_b32 v2, 1, v0
    v_lshlrev_b32 v3, 11, v2
    v_lshl_add_u32 v3, v4, 4, v3
    s_lshl_b32 s46, s44, 8
    v_add_u32 v3, s46, v3
    v_lshlrev_b32 v2, 9, v2
    v_lshl_add_u32 v2, v4, 7, v2
    v_bfe_u32 v6, v0, 1, 3
    v_lshl_add_u32 v2, v6, 4, v2
    s_cmp_ge_u32 s2, 224
    s_cbranch_scc1 L_A12_SKIP''')
    g('s_barrier')
    if args.kfirst:
        lds_wait(g, C_K, 4)
    AI = args.ainfl
    for kk in range(AI):
        tile_loads(g, vm, 28, 's45', 7168, kk, kk, f'gu{kk}')
    lds_wait(g, C_X, 1)
    for kk in range(4):
        g(f'ds_read_b128 v[{A_B+4*kk}:{A_B+4*kk+3}], v3 offset:{64*kk}')
    g('s_waitcnt lgkmcnt(0)')
    for kk in range(4):
        vm.wait(f'gu{kk}')
        if kk + AI < 4:
            tile_loads(g, vm, 28, 's45', 7168, kk + AI, (kk + AI) % 3, f'gu{kk+AI}')
        tile_block_mfma(g, kk % 3, kk, kk == 0, A_B + 4 * kk)
    read_nonce(g)
    g(f'v_lshlrev_b32 v3, 7, v0\ns_mov_b32 s46, {W_FL + 128}\ns_mov_b64 exec, 15')
    def issue_f4():
        g('buffer_load_dword v9, v3, s[36:39], s46 offen sc1')
    tpoll_loop(g, issue_f4, [9], sleep=16)
    g('s_mov_b64 exec, -1')
    g(f's_lshl_b32 s46, s3, 10\ns_lshl_b32 s47, s2, 11\ns_add_u32 s46, s46, s47\ns_add_u32 s46, s46, {W_GU - 1024}')
    publish_acc(g, vm, 's46')
    g('s_lshr_b32 s48, s2, 3\ns_add_u32 s48, s48, 16')
    arrive(g, 's48', 16, sctr='s48', ack=False)
    g('s_branch L_A12_WO')
    g.label('L_A12_SKIP')
    g('s_barrier')
    if args.kfirst:
        lds_wait(g, C_K, 4)
    read_nonce(g)
    g.label('L_A12_WO')
    ts(g, 1)
    vm.reset()
    srd(g, 28, 12, 8 * 1024 * 1024)
    g('''s_and_b32 s44, s88, 3
    s_lshl_b32 s44, s44, 1
    s_add_u32 s44, s44, s3
    s_sub_u32 s44, s44, 1
    s_lshr_b32 s45, s88, 2
    s_lshl_b32 s45, s45, 17
    s_lshl_b32 s48, s44, 8
    s_add_u32 s45, s45, s48
    v_lshlrev_b32 v1, 14, v4
    v_lshl_add_u32 v1, v5, 4, v1''')
    for kk in range(2):
        if kk == 1 and args.ainfl == 1:
            vm.wait('wo0')
        tile_loads(g, vm, 28, 's45', 2048, kk, kk, f'wo{kk}', stmp='s48')
    outs = [136, 8]
    for kk in range(2):
        vm.wait(f'wo{kk}')
        base = A_POOL + 32 * kk
        for t in range(8):
            d = t >> 1
            sel = 's58' if (t & 1) == 0 else 's59'
            for p in range(4):
                g(f'v_perm_b32 v{outs[kk] + 4*t + p}, v{base + 4*(2*p+1) + d}, v{base + 4*(2*p) + d}, {sel}')
    g(f'''v_and_b32 v3, 1, v0
    v_lshlrev_b32 v3, 7, v3
    v_lshl_add_u32 v3, v4, 4, v3
    v_add_u32 v3, {L_OB}, v3
    s_lshl_b32 s46, s44, 16
    s_lshr_b32 s48, s88, 2
    s_lshl_b32 s48, s48, 9
    s_add_u32 s46, s46, s48
    s_add_u32 s46, s46, {W_S}
    v_and_b32 v2, 1, v0
    v_lshlrev_b32 v2, 15, v2
    v_lshl_add_u32 v2, v4, 7, v2
    v_bfe_u32 v6, v0, 1, 3
    v_lshl_add_u32 v2, v6, 4, v2''')
    ts(g, 2)
    lds_wait(g, C_OG, 1)
    ts(g, 3)
    g('''ds_read_b128 v[72:75], v3
    ds_read_b128 v[76:79], v3 offset:64
    s_waitcnt lgkmcnt(0)''')
    for kk in range(2):
        for t in range(8):
            acc = A_ACC + 4 * t
            o = outs[kk] + 4 * t
            c = '0' if kk == 0 else f'v[{acc}:{acc+3}]'
            g(f'v_mfma_f32_16x16x32_bf16 v[{acc}:{acc+3}], v[{o}:{o+3}], v[{72+4*kk}:{75+4*kk}], {c}')
    publish_acc(g, vm, 's46')
    ts(g, 4)
    ts_dump(g, 5)
    g('s_endpgm')

    g.label('L_BULK')
    vm = VM(g)
    BQ, BS, BO, BP = 8, 24, 56, 88
    NT, NS, NL = 16, 10, 6
    srd(g, 28, 6, 64 * 1024 * 1024)
    srd(g, 32, 8, 64 * 1024 * 1024)
    g(f'''s_sub_u32 s44, s3, 4
    s_lshr_b32 s45, s86, 6
    s_bfe_u32 s46, s86, 0x10005
    s_lshl_b32 s46, s46, 2
    s_add_u32 s45, s45, s46
    s_lshl_b32 s45, s45, 23
    s_and_b32 s46, s86, 31
    s_lshl_b32 s46, s46, 18
    s_add_u32 s45, s45, s46
    s_lshl_b32 s46, s44, 16
    s_add_u32 s45, s45, s46
    v_and_b32 v4, 15, v0
    v_lshrrev_b32 v5, 4, v0
    v_lshlrev_b32 v1, 8, v4
    v_lshl_add_u32 v1, v5, 4, v1
    v_lshlrev_b32 v2, 10, v5
    v_lshl_add_u32 v2, v4, 4, v2
    s_mul_i32 s48, s44, 24576
    s_add_u32 s48, s48, {L_V}''')
    g('s_barrier')
    INFL = args.infl
    order = []
    def ldsload(isK, T, k):
        for j in range(4):
            st = 64 if isK else 256
            g(f's_add_u32 s49, s48, {4096*k + 1024*j}\ns_mov_b32 m0, s49\ns_add_u32 s46, s45, {4096*T + st*j}')
            g('buffer_load_dwordx4 v1, s[28:31], s46 offen nt lds' if isK else 'buffer_load_dwordx4 v2, s[32:35], s46 offen nt lds')
            vm.issue(f'{"K" if isK else "V"}{T}')
    def rload(isK, T, slot):
        r0 = BP + 16 * slot
        g(f's_add_u32 s46, s45, {4096*T}')
        for j in range(4):
            r = r0 + 4 * j
            if isK:
                g(f'buffer_load_dwordx4 v[{r}:{r+3}], v1, s[28:31], s46 offen offset:{64*j} nt')
            else:
                g(f'buffer_load_dwordx4 v[{r}:{r+3}], v2, s[32:35], s46 offen offset:{256*j} nt')
            vm.issue(f'{"K" if isK else "V"}{T}')
    def ldsread(k, slot):
        r0 = BP + 16 * slot
        for j in range(4):
            g(f'ds_read_b128 v[{r0+4*j}:{r0+4*j+3}], v3 offset:{4096*k + 1024*j}')
    def pace(tag):
        order.append(tag)
        if len(order) - 1 - INFL >= 0:
            vm.wait(order[len(order) - 1 - INFL])
    vslot = lambda T: (T + 6) % NS
    def stream(isK, t0=0):
        c = 'K' if isK else 'V'
        if isK:
            order.clear()
        for T in range(t0, NT):
            if isK and T == args.pre:
                lds_wait(g, C_X, 1)
            pace(f'{c}{T}')
            if T in (4, 8, 12, 15):
                ts(g, (7 if isK else 11) + (T // 4 if T < 15 else 4) - 0)
            if T == args.ksig and isK:
                lds_signal(g, C_K, add=True)
            if T < NS:
                rload(isK, T, T if isK else vslot(T))
            else:
                ldsload(isK, T, T - NS)
    stream(True)
    if args.ksig >= NT:
        lds_signal(g, C_K, add=True)
    lds_wait(g, C_Q, 2)
    ts(g, 1)
    g(f'''v_and_b32 v3, 7, v0
    v_lshlrev_b32 v3, 8, v3
    v_lshl_add_u32 v3, v5, 4, v3''')
    for j in range(4):
        g(f'ds_read_b128 v[{BQ+4*j}:{BQ+4*j+3}], v3 offset:{L_Q + 64*j}')
    g('s_waitcnt lgkmcnt(0)')
    g('v_lshlrev_b32 v3, 4, v0\nv_add_u32 v3, s48, v3')
    for T in range(NT):
        if T < NS:
            vm.wait(f'K{T}')
        else:
            g(f's_waitcnt lgkmcnt({min(8, 4 * (NT - 1 - T))})')
        r0 = BP + 16 * (T % NS)
        s = BS + 4 * T
        for j in range(4):
            c = '0' if j == 0 else f'v[{s}:{s+3}]'
            g(f'v_mfma_f32_16x16x32_bf16 v[{s}:{s+3}], v[{r0+4*j}:{r0+4*j+3}], v[{BQ+4*j}:{BQ+4*j+3}], {c}')
        k = T - (NS - 3)
        if 0 <= k < NL:
            vm.wait(f'K{NS+k}')
            ldsread(k, k)
        if T == NT - 1 - 0:
            pass
        if 12 <= T < 12 + args.vearly:
            if T == 12:
                order.clear()
            order.append(f'V{T-12}')
            rload(False, T - 12, vslot(T - 12))
    g('s_nop 7')
    ts(g, 2)
    for i in range(2 * NT):
        a, b = f'v{BS+2*i}', f'v{BS+2*i+1}'
        bf16r_pair(g, a, b, 'v8')
        g(f'v_mul_f32 {a}, s61, {a}\nv_mul_f32 {b}, s61, {b}')
        bf16r_pair(g, a, b, 'v8')
    g(f'v_max_f32 v9, v{BS}, v{BS+1}')
    for i in range(1, 2 * NT):
        g(f'v_max3_f32 v9, v9, v{BS+2*i}, v{BS+2*i+1}')
    allred_x16(g, 'v_max_f32', 'v9', 'v10')
    allred_x32(g, 'v_max_f32', 'v9', 'v10')
    g('v_mov_b32 v11, 0\nv_mov_b32 v16, 0')
    for i in range(0, 4 * NT, 2):
        g(f'''v_sub_f32 v{BS+i}, v{BS+i}, v9
        v_sub_f32 v{BS+i+1}, v{BS+i+1}, v9
        v_mul_f32 v{BS+i}, s60, v{BS+i}
        v_mul_f32 v{BS+i+1}, s60, v{BS+i+1}
        v_exp_f32 v{BS+i}, v{BS+i}
        v_exp_f32 v{BS+i+1}, v{BS+i+1}
        s_nop 0
        v_add_f32 v11, v11, v{BS+i}
        v_add_f32 v16, v16, v{BS+i+1}''')
    g('v_mov_b32 v248, v9')
    g('v_add_f32 v11, v11, v16')
    allred_x16(g, 'v_add_f32', 'v11', 'v10')
    allred_x32(g, 'v_add_f32', 'v11', 'v10')
    g(f'''s_lshl_b32 s46, s44, 6
    v_lshlrev_b32 v3, 2, v0
    v_add_u32 v3, s46, v3
    s_mov_b64 exec, 0xff
    ds_write_b32 v3, v9 offset:{L_ST}
    ds_write_b32 v3, v11 offset:{L_ST+32}
    s_mov_b64 exec, -1''')
    lds_signal(g, C_ST, add=True)
    ts(g, 3)
    if args.latec:
        for i in range(2 * NT):
            g(f'v_cvt_pk_bf16_f32 v{BS+i}, v{BS+2*i}, v{BS+2*i+1}')
    if args.vearly == 0:
        order.clear()
    stream(False, args.vearly)
    def get_c():
        lds_wait(g, C_ML, 1)
        g(f'''v_and_b32 v3, 7, v0
        v_lshlrev_b32 v3, 2, v3
        ds_read_b32 v9, v3 offset:{L_ML}
        ds_read_b32 v10, v3 offset:{L_ML+32}
        s_waitcnt lgkmcnt(0)
        v_sub_f32 v9, v248, v9
        v_mul_f32 v9, s60, v9
        v_exp_f32 v9, v9
        s_nop 0
        v_mul_f32 v10, v10, v9''')
    if not args.latec:
        get_c()
        ts(g, 4)
        for i in range(2 * NT):
            a, b = BS + 2 * i, BS + 2 * i + 1
            g(f'''v_mul_f32 v12, v{a}, v10
            v_mul_f32 v13, v{b}, v10
            v_cvt_pk_bf16_f32 v{BS+i}, v12, v13''')
    else:
        ts(g, 4)
    g('v_lshlrev_b32 v3, 4, v0\nv_add_u32 v3, s48, v3')
    for U in range(NT // 2):
        T0, T1 = 2 * U, 2 * U + 1
        if T1 < NS:
            vm.wait(f'V{T1}')
        else:
            g(f's_waitcnt lgkmcnt({min(8, 4 * (NT - 1 - T1))})')
        ra = BP + 16 * vslot(T0 % NS)
        rb = BP + 16 * vslot(T1 % NS)
        for half in range(2):
            for tt in range(4):
                t = 4 * half + tt
                d = t >> 1
                sel = 's58' if (t & 1) == 0 else 's59'
                o = BQ + 4 * tt
                g(f'v_perm_b32 v{o}, v{ra+4+d}, v{ra+d}, {sel}')
                g(f'v_perm_b32 v{o+1}, v{ra+12+d}, v{ra+8+d}, {sel}')
                g(f'v_perm_b32 v{o+2}, v{rb+4+d}, v{rb+d}, {sel}')
                g(f'v_perm_b32 v{o+3}, v{rb+12+d}, v{rb+8+d}, {sel}')
            g('s_nop 1')
            for tt in range(4):
                t = 4 * half + tt
                o = BQ + 4 * tt
                acc = BO + 4 * t
                c = '0' if U == 0 else f'v[{acc}:{acc+3}]'
                g(f'v_mfma_f32_16x16x32_bf16 v[{acc}:{acc+3}], v[{o}:{o+3}], v[{BS+4*U}:{BS+4*U+3}], {c}')
        k = 2 * (U - 3)
        if 0 <= k < NL:
            vm.wait(f'V{NS+k+1}')
            ldsread(k, vslot(k)); ldsread(k + 1, vslot(k + 1))
    ts(g, 5)
    if args.latec:
        get_c()
        for i in range(32):
            g(f'v_mul_f32 v{BO+i}, v{BO+i}, v10')
    g(f'''s_lshl_b32 s46, s44, 12
    v_lshlrev_b32 v3, 9, v4
    v_lshl_add_u32 v3, v5, 7, v3
    v_add_u32 v3, s46, v3
    s_nop 7
    s_mov_b32 exec_lo, 0x00ff00ff
    s_mov_b32 exec_hi, 0x00ff00ff''')
    for t in range(8):
        acc = BO + 4 * t
        g(f'ds_write_b128 v3, v[{acc}:{acc+3}] offset:{L_OP + 16*t}')
    g('s_mov_b64 exec, -1')
    lds_signal(g, C_O, add=True)
    g(f'''s_lshr_b32 s46, s86, 6
    s_lshl_b32 s46, s46, 18
    s_lshl_b32 s49, s44, 16
    s_add_u32 s46, s46, s49
    s_bfe_u32 s49, s86, 0x10005
    s_lshl_b32 s49, s49, 14
    s_add_u32 s46, s46, s49
    s_and_b32 s49, s86, 31
    s_lshl_b32 s49, s49, 9
    s_add_u32 s46, s46, s49
    s_add_u32 s46, s46, {W_O}
    v_and_b32 v2, 31, v0
    v_lshlrev_b32 v2, 4, v2
    v_lshrrev_b32 v1, 5, v0
    v_lshl_add_u32 v2, v1, 15, v2
    s_lshl_b32 s49, s44, 10
    v_lshlrev_b32 v3, 4, v0
    v_add_u32 v3, s49, v3''')
    lds_wait(g, C_O, 4)
    for w in range(4):
        g(f'ds_read_b128 v[{88+4*w}:{91+4*w}], v3 offset:{L_OP + 4096*w}')
    g('s_waitcnt lgkmcnt(0)')
    for r in range(4):
        g(f'v_add_f32 v{8+r}, v{88+r}, v{92+r}\nv_add_f32 v{12+r}, v{96+r}, v{100+r}\nv_add_f32 v{8+r}, v{8+r}, v{12+r}')
    g('buffer_store_dwordx4 v[8:11], v2, s[36:39], s46 offen sc1')
    ts(g, 6)
    ts_dump(g, 7)
    g('s_endpgm')
    g.label('L_END')
    g('s_endpgm')
    T = f'''.section .rodata,"a"
.p2align 6
.amdhsa_kernel {KN}
  .amdhsa_next_free_vgpr 256
  .amdhsa_next_free_sgpr 100
  .amdhsa_accum_offset 256
  .amdhsa_group_segment_fixed_size 0
  .amdhsa_kernarg_size 96
  .amdhsa_user_sgpr_count 2
  .amdhsa_user_sgpr_kernarg_segment_ptr 1
  .amdhsa_system_sgpr_workgroup_id_x 1
  .amdhsa_float_denorm_mode_32 3
.end_amdhsa_kernel
'''
    return '\n'.join(H) + '\n' + '\n'.join(g.L) + '\n' + T

if __name__ == '__main__':
    ap = argparse.ArgumentParser()
    ap.add_argument('--prof', action='store_true')
    ap.add_argument('--latec', type=int, default=0)
    ap.add_argument('--vearly', type=int, default=4)
    ap.add_argument('--ksig', type=int, default=16)
    ap.add_argument('--ainfl', type=int, default=2)
    ap.add_argument('--skip', default='')
    ap.add_argument('--remap', type=int, default=1)
    ap.add_argument('--plain', type=int, default=1)
    ap.add_argument('--nodma', action='store_true')
    ap.add_argument('--noaux', action='store_true')
    ap.add_argument('--nolds', action='store_true')
    ap.add_argument('--kfirst', type=int, default=1)
    ap.add_argument('--nohop', action='store_true')
    ap.add_argument('--fsleep', type=int, default=16)
    ap.add_argument('--infl', type=int, default=2)
    ap.add_argument('--pre', type=int, default=0)
    ap.add_argument('-o', default='recurrent_scan__gqa_block_cached__swiglu_ffn__decode.s')
    args = ap.parse_args()
    open(args.o, 'w').write(gen(args))
```

```python
import struct, sys, argparse

def f32hex(x):
    return '0x%08x' % struct.unpack('<I', struct.pack('<f', x))[0]

KN = 'recurrent_scan__gqa_block_cached__swiglu_ffn__decode_kernel'
NWG = 256
W_Q = 0x000000
W_GU = 0x040000
W_S = 0x0C0000
W_F = 0x140000
W_O = 0x180000
W_ML = 0x280000
W_B = 0x300000
W_CT = 0x2E0000
W_FL = 0x2C0000
L_XN = 0x0000
L_Q = 0x1000
L_ST = 0x1800
L_ML = 0x1A00
L_CT = 0x1A40
C_Q, C_ST, C_ML, C_O, C_OG, C_H, C_N, C_K, C_X, C_V, C_S = [L_CT + 4 * i for i in range(11)]
L_W = 0x1F00
L_OB = 0x1B00
L_H = 0x1D00
L_OP = 0x2000
L_V = 0x6000
LDS_BYTES = 0x6000 + 4 * 24576
SCALE = f32hex(128 ** -0.5)
LOG2E = f32hex(1.4426950408889634)
EPS = f32hex(1e-5)
SPIN_LDS = 4000000
SPIN_GLB = 40000

NOLDS = False
class Gen:
    def __init__(self):
        self.L = []
        self.n = 0
    def __call__(self, s):
        for line in s.strip('\n').split('\n'):
            self.L.append('    ' + line.strip())
    def label(self, name):
        self.L.append(name + ':')
    def uniq(self, p):
        self.n += 1
        return f'{p}_{self.n}'

class VM:
    def __init__(self, g):
        self.g = g
        self.ops = []
    def issue(self, tag):
        self.ops.append(tag)
    def wait(self, tag):
        idx = max(i for i, t in enumerate(self.ops) if t == tag)
        n = len(self.ops) - 1 - idx
        assert n <= 63
        self.g(f's_waitcnt vmcnt({n})')
    def reset(self):
        self.ops = []

def srd(g, d, base, nbytes):
    g(f's_mov_b32 s{d}, s{base}\ns_mov_b32 s{d+1}, s{base+1}\ns_mov_b32 s{d+2}, {nbytes}\ns_mov_b32 s{d+3}, 0x20000')

def lds_wait(g, addr, target, vt='v7', va='v6', st='s50', sc='s51'):
    l = g.uniq('LW'); d = g.uniq('LWD')
    g(f'v_mov_b32 {va}, {addr}\ns_mov_b32 {sc}, {1 if NOLDS else SPIN_LDS}')
    g.label(l)
    g(f'''ds_read_b32 {vt}, {va}
    s_waitcnt lgkmcnt(0)
    v_readfirstlane_b32 {st}, {vt}
    s_cmp_ge_u32 {st}, {target}
    s_cbranch_scc1 {d}
    s_sleep 1
    s_sub_u32 {sc}, {sc}, 1
    s_cmp_lg_u32 {sc}, 0
    s_cbranch_scc1 {l}''')
    g.label(d)

def lds_signal(g, addr, add=False, vt='v7', va='v6'):
    g(f'''s_waitcnt lgkmcnt(0)
    v_mov_b32 {va}, {addr}
    v_mov_b32 {vt}, 1
    s_mov_b64 exec, 1''')
    g(f'ds_add_u32 {va}, {vt}' if add else f'ds_write_b32 {va}, {vt}')
    g('s_mov_b64 exec, -1')

def bf16r_pair(g, a, b, t):
    g(f'''v_cvt_pk_bf16_f32 {t}, {a}, {b}
    v_lshlrev_b32 {a}, 16, {t}
    v_and_b32 {b}, 0xffff0000, {t}''')

def bf16r(g, a):
    g(f'''v_cvt_pk_bf16_f32 {a}, {a}, {a}
    v_lshlrev_b32 {a}, 16, {a}''')

def allred_row16(g, op, v, t):
    for r in (1, 2, 4, 8):
        g(f's_nop 1\n{op}_dpp {t}, {v}, {v} row_ror:{r} row_mask:0xf bank_mask:0xf\nv_mov_b32 {v}, {t}')

def allred_x16(g, op, v, t):
    g(f'v_mov_b32 {t}, {v}\ns_nop 1\nv_permlane16_swap_b32 {v}, {t}\ns_nop 1\n{op} {v}, {v}, {t}')

def allred_x32(g, op, v, t):
    g(f'v_mov_b32 {t}, {v}\ns_nop 1\nv_permlane32_swap_b32 {v}, {t}\ns_nop 1\n{op} {v}, {v}, {t}')

def precise_div(g, d, num, den, t1, t2):
    g(f'''v_rcp_f32 {t1}, {den}
    s_nop 0
    v_mul_f32 {t2}, {num}, {t1}
    v_fma_f32 {d}, -{t2}, {den}, {num}
    v_fma_f32 {d}, {d}, {t1}, {t2}''')

def silu(g, x, t1, t2, t3):
    g(f'''v_mul_f32 {t1}, s60, {x}
    v_exp_f32 {t1}, -{t1}
    s_nop 0
    v_add_f32 {t1}, 1.0, {t1}''')
    g(f'''v_rcp_f32 {t2}, {t1}
    s_nop 0
    v_mul_f32 {t3}, {x}, {t2}
    v_fma_f32 {t1}, -{t3}, {t1}, {x}
    v_fma_f32 {t1}, {t1}, {t2}, {t3}
    v_cmp_eq_f32 vcc, 0, {t2}
    s_nop 1
    v_cndmask_b32 {x}, {t1}, {t3}, vcc''')

A_T = 8
A_B = 24
A_ACC = 40
A_POOL = 72

def tile_loads(g, vm, srdreg, sbase, rowbytes, kk, slot, tag, voff='v1', stmp='s46'):
    for i in range(8):
        r = A_POOL + 32 * slot + 4 * i
        g(f's_add_u32 {stmp}, {sbase}, {(32 * kk + i) * rowbytes}')
        g(f'buffer_load_dwordx4 v[{r}:{r+3}], {voff}, s[{srdreg}:{srdreg+3}], {stmp} offen nt')
        vm.issue(tag)

def tile_block_mfma(g, slot, kk, first, breg):
    base = A_POOL + 32 * slot
    for half in range(2):
        for tt in range(4):
            t = 4 * half + tt
            d = t >> 1
            sel = 's58' if (t & 1) == 0 else 's59'
            o = A_T + 4 * tt
            for p in range(4):
                g(f'v_perm_b32 v{o+p}, v{base + 4*(2*p+1) + d}, v{base + 4*(2*p) + d}, {sel}')
        g('s_nop 1')
        for tt in range(4):
            t = 4 * half + tt
            o = A_T + 4 * tt
            acc = A_ACC + 4 * t
            c = '0' if first else f'v[{acc}:{acc+3}]'
            g(f'v_mfma_f32_16x16x32_bf16 v[{acc}:{acc+3}], v[{o}:{o+3}], v[{breg}:{breg+3}], {c}')

def gemv_tile(g, vm, srdreg, sbase, rowbytes, ldsaddr_v, pre_issued, tagp, wait_fn=None):
    if wait_fn:
        wait_fn()
    for kk in range(4):
        g(f'ds_read_b128 v[{A_B+4*kk}:{A_B+4*kk+3}], {ldsaddr_v} offset:{64*kk}')
    g('s_waitcnt lgkmcnt(0)')
    for kk in range(4):
        vm.wait(f'{tagp}{kk}')
        tile_block_mfma(g, kk % 3, kk, kk == 0, A_B + 4 * kk)
        if kk == 0:
            tile_loads(g, vm, srdreg, sbase, rowbytes, 3, 0, f'{tagp}3')

def lane_masks(g):
    g('''s_mov_b32 s80, 0xcccccccc
    s_mov_b32 s81, 0xcccccccc
    s_mov_b32 s82, 0xf0f0f0f0
    s_mov_b32 s83, 0xf0f0f0f0
    s_mov_b32 s84, 0xff00ff00
    s_mov_b32 s85, 0xff00ff00''')

def select8(g, accs, levels=3):
    cur = list(accs)
    lv = 0
    while len(cur) > 1:
        nxt = []
        for i in range(0, len(cur), 2):
            a, b = cur[i], cur[i + 1]
            for r in range(4):
                g(f'v_cndmask_b32 v{a+r}, v{a+r}, v{b+r}, s[{80+2*lv}:{81+2*lv}]')
            nxt.append(a)
        cur = nxt
        lv += 1
    return cur[0]

def tagged_store(g, vm, r, soff, voff, x=8, stmp='s57', vtmp='v7'):
    g(f'''v_mov_b32 v{x}, v{r+3}
    v_mov_b32 v{x+1}, s55
    v_mov_b32 v{r+3}, s55
    v_lshrrev_b32 {vtmp}, 1, {voff}
    s_lshr_b32 {stmp}, {soff}, 1
    s_add_u32 {stmp}, {stmp}, {W_B}
    buffer_store_dwordx4 v[{r}:{r+3}], {voff}, s[36:39], {soff} offen sc1
    buffer_store_dwordx2 v[{x}:{x+1}], {vtmp}, s[36:39], {stmp} offen sc1''')
    vm.issue('st'); vm.issue('st')

def publish_acc(g, vm, soff, voff='v2', tagged=True):
    g('s_nop 7\ns_nop 1')
    r = select8(g, [A_ACC + 4 * t for t in range(8)])
    if tagged:
        tagged_store(g, vm, r, soff, voff)
    else:
        g(f'buffer_store_dwordx4 v[{r}:{r+3}], {voff}, s[36:39], {soff} offen sc1')
        vm.issue('st')

def tag_check(g, tags, acc='v7', tmp='v6'):
    tags = list(tags)
    g(f'v_xor_b32 {acc}, s55, v{tags[0]}')
    for t in tags[1:]:
        g(f'v_xor_b32 {tmp}, s55, v{t}\nv_or_b32 {acc}, {acc}, {tmp}')
    g(f'v_cmp_ne_u32 vcc, 0, {acc}')

NOHOP = False
PLAIN = True
def plain_first(g, issue_fn, check_fn, d):
    n0 = len(g.L)
    issue_fn()
    for i in range(n0, len(g.L)):
        g.L[i] = g.L[i].replace(' sc1', '')
    g('s_waitcnt vmcnt(0)')
    check_fn()
    g(f's_cbranch_vccz {d}')

def tpoll_loop(g, issue_fn, tags, sleep=2, sc='s51', acc='v7', tmp='v6', plain=False):
    l = g.uniq('TP'); d = g.uniq('TPD')
    if plain and PLAIN:
        plain_first(g, issue_fn, lambda: tag_check(g, tags, acc, tmp), d)
    g(f's_mov_b32 {sc}, {1 if NOHOP else SPIN_GLB}')
    g.label(l)
    issue_fn()
    g('s_waitcnt vmcnt(0)')
    tag_check(g, tags, acc, tmp)
    g(f'''s_cbranch_vccz {d}
    s_sleep {sleep}
    s_sub_u32 {sc}, {sc}, 1
    s_cmp_lg_u32 {sc}, 0
    s_cbranch_scc1 {l}''')
    g.label(d)

def read_nonce(g):
    lds_wait(g, C_N, 1)
    g('s_mov_b32 s55, s50')

def sentinel_check(g, regs, vmx):
    regs = list(regs)
    g(f'v_max_u32 {vmx}, v{regs[0]}, v{regs[1]}')
    i = 2
    while i < len(regs):
        if i + 1 < len(regs):
            g(f'v_max3_u32 {vmx}, {vmx}, v{regs[i]}, v{regs[i+1]}')
            i += 2
        else:
            g(f'v_max_u32 {vmx}, {vmx}, v{regs[i]}')
            i += 1
    g(f'v_cmp_eq_u32 vcc, -1, {vmx}')

def poll_loop(g, issue_fn, regs, vmx='v7', sc='s51', sleep=2, plain=False):
    l = g.uniq('PL'); d = g.uniq('PLD')
    if plain and PLAIN:
        plain_first(g, issue_fn, lambda: sentinel_check(g, regs, vmx), d)
    g(f's_mov_b32 {sc}, {1 if NOHOP else SPIN_GLB}')
    g.label(l)
    issue_fn()
    g('s_waitcnt vmcnt(0)')
    sentinel_check(g, regs, vmx)
    g(f'''s_cbranch_vccz {d}
    s_sleep {sleep}
    s_sub_u32 {sc}, {sc}, 1
    s_cmp_lg_u32 {sc}, 0
    s_cbranch_scc1 {l}''')
    g.label(d)

def arrive(g, sidx, n, stmp='s46', sctr=None, ack=True):
    d = g.uniq('ARR')
    if sctr is None:
        g(f's_lshl_b32 {stmp}, {sidx}, 2')
        srdn = 40
    else:
        g(f's_lshl_b32 {stmp}, {sctr}, 7\ns_add_u32 {stmp}, {stmp}, {W_CT}')
        srdn = 36
    g(f'''v_mov_b32 v6, {stmp}
    v_mov_b32 v7, 1
    {'s_waitcnt vmcnt(0)' if ack else 's_nop 0'}
    s_mov_b64 exec, 1
    buffer_atomic_add v7, v6, s[{srdn}:{srdn+3}], 0 offen sc0
    s_waitcnt vmcnt(0)
    v_readfirstlane_b32 {stmp}, v7
    s_cmp_eq_u32 {stmp}, {n-1}
    s_cbranch_scc0 {d}
    s_lshl_b32 {stmp}, {sidx}, 7
    s_add_u32 {stmp}, {stmp}, {W_FL}
    v_mov_b32 v6, 0
    v_mov_b32 v7, s55
    buffer_store_dword v7, v6, s[36:39], {stmp} offen sc1''')
    g.label(d)
    g('s_mov_b64 exec, -1')

def flag_wait(g, sidx, sleep, stmp='s46'):
    l = g.uniq('FW'); d = g.uniq('FWD')
    g(f'''s_lshl_b32 {stmp}, {sidx}, 7
    s_add_u32 {stmp}, {stmp}, {W_FL}
    v_mov_b32 v6, 0
    s_mov_b32 s51, {1 if NOHOP else SPIN_GLB}
    s_mov_b64 exec, 1''')
    g.label(l)
    g(f'''buffer_load_dword v7, v6, s[36:39], {stmp} offen sc1
    s_waitcnt vmcnt(0)
    v_readfirstlane_b32 s50, v7
    s_cmp_eq_u32 s50, s55
    s_cbranch_scc1 {d}
    s_sleep {sleep}
    s_sub_u32 s51, s51, 1
    s_cmp_lg_u32 s51, 0
    s_cbranch_scc1 {l}''')
    g.label(d)
    g('s_mov_b64 exec, -1')

def q_gather(g, args, rnd, tsa=None):
    g(f'''s_lshr_b32 s44, s86, 5
    s_lshl_b32 s44, s44, 15
    s_add_u32 s44, s44, {W_Q + rnd*16384}
    s_lshr_b32 s45, s44, 1
    s_add_u32 s45, s45, {W_B}
    s_lshr_b32 s48, s86, 6
    s_add_u32 s48, s48, 1''')
    flag_wait(g, 's48', args.fsleep)
    if tsa is not None:
        ts(g, tsa)
    g('''v_lshrrev_b32 v2, 5, v0
    v_lshlrev_b32 v2, 12, v2
    v_and_b32 v3, 31, v0
    v_lshl_add_u32 v2, v3, 4, v2
    v_lshrrev_b32 v3, 1, v2
    v_lshrrev_b32 v8, 5, v0
    v_lshlrev_b32 v8, 8, v8
    v_bfe_u32 v9, v0, 3, 2
    v_lshlrev_b32 v9, 6, v9
    v_and_b32 v10, 7, v0
    v_lshlrev_b32 v10, 1, v10
    v_add3_u32 v8, v8, v9, v10''')
    def issue_q2():
        for hh in range(2):
            g(f's_add_u32 s46, s44, {hh*8192}\ns_add_u32 s48, s45, {hh*4096}')
            for ks in range(8):
                r = 40 + 32 * hh + 4 * ks
                rb = 104 + 16 * hh + 2 * ks
                g(f'buffer_load_dwordx4 v[{r}:{r+3}], v2, s[36:39], s46 offen offset:{ks*512} sc1')
                g(f'buffer_load_dwordx2 v[{rb}:{rb+1}], v3, s[36:39], s48 offen offset:{ks*256} sc1')
    tags = [43 + 4 * i for i in range(16)] + [105 + 2 * i for i in range(16)]
    if 'q2' not in args.skip:
        tpoll_loop(g, issue_q2, tags, sleep=4, plain=True)
    for hh in range(2):
        hp = 2 * rnd + hh
        for r in range(4):
            src = (lambda ks: 40 + 32 * hh + 4 * ks + r) if r < 3 else (lambda ks: 104 + 16 * hh + 2 * ks)
            g(f'v_add_f32 v{12+r}, v{src(0)}, v{src(1)}')
            for ks in range(2, 8):
                g(f'v_add_f32 v{12+r}, v{12+r}, v{src(ks)}')
        g(f'''v_cvt_pk_bf16_f32 v12, v12, v13
        v_cvt_pk_bf16_f32 v14, v14, v15
        ds_write_b16 v8, v12 offset:{L_Q + 512*hp}
        ds_write_b16_d16_hi v8, v12 offset:{L_Q + 512*hp + 16}
        ds_write_b16 v8, v14 offset:{L_Q + 512*hp + 32}
        ds_write_b16_d16_hi v8, v14 offset:{L_Q + 512*hp + 48}''')
    lds_signal(g, C_Q, add=True)

PROF = False
def ts(g, i):
    if PROF:
        g(f's_memrealtime s[96:97]\ns_waitcnt lgkmcnt(0)\ns_mov_b32 s{64+i}, s96')
def ts_dump(g, n):
    if not PROF:
        return
    g(f'''s_mul_i32 s62, s2, 12
    s_add_u32 s62, s62, s3
    s_lshl_b32 s62, s62, 6
    s_add_u32 s62, s62, 0x8000000
    s_mov_b64 exec, 1
    v_mov_b32 v6, 0''')
    for i in range(16):
        g(f'v_mov_b32 v7, s{64+i}\nbuffer_store_dword v7, v6, s[36:39], s62 offen offset:{4*i}')

def gen(args):
    global PROF, NOHOP, NOLDS, PLAIN
    PLAIN = bool(args.plain)
    NOLDS = args.nolds
    PROF = args.prof
    NOHOP = args.nohop
    g = Gen()
    H = []
    H.append(f'; @launch grid=({NWG},1,1) block=(512,1,1) lds={LDS_BYTES}')
    H.append('.amdgcn_target "amdgcn-amd-amdhsa--gfx950"\n.text')
    H.append(f'.globl {KN}\n.p2align 8\n.type {KN},@function\n{KN}:')
    g(f'''s_cmp_ge_u32 s2, {NWG}
    s_cbranch_scc1 L_END
    s_load_dwordx16 s[4:19], s[0:1], 0
    s_load_dwordx8 s[20:27], s[0:1], 64
    v_lshrrev_b32 v1, 6, v0
    v_and_b32 v0, 63, v0
    s_mov_b32 s58, 0x05040100
    s_mov_b32 s59, 0x07060302
    v_readfirstlane_b32 s3, v1
    s_mov_b32 s60, {LOG2E}
    s_mov_b32 s61, {SCALE}
    s_waitcnt lgkmcnt(0)''')
    srd(g, 36, 26, 0x10000000)
    lane_masks(g)
    srd(g, 40, 24, 256)
    if args.remap:
        g('''s_and_b32 s90, s2, 7
        s_lshr_b32 s91, s2, 3
        s_lshl_b32 s86, s90, 5
        s_add_u32 s86, s86, s91
        s_lshr_b32 s92, s90, 1
        s_lshl_b32 s92, s92, 6
        s_and_b32 s93, s90, 1
        s_lshl_b32 s87, s91, 1
        s_add_u32 s87, s87, s93
        s_add_u32 s87, s87, s92
        s_lshl_b32 s88, s93, 2
        s_and_b32 s94, s91, 3
        s_add_u32 s88, s88, s94
        s_lshl_b32 s88, s88, 3
        s_lshr_b32 s94, s91, 2
        s_add_u32 s88, s88, s94
        s_add_u32 s88, s88, s92
        s_lshr_b32 s89, s91, 3
        s_lshl_b32 s89, s89, 3
        s_add_u32 s89, s89, s90
        s_cmp_lt_u32 s89, 28
        s_cselect_b32 s95, 1, 0
        s_lshl_b32 s89, s89, 3
        s_and_b32 s94, s91, 7
        s_add_u32 s89, s89, s94
        s_add_u32 s89, s89, 32
        s_mul_i32 s89, s89, s95''')
    else:
        g('s_mov_b32 s86, s2\ns_mov_b32 s87, s2\ns_mov_b32 s88, s2\ns_mov_b32 s89, s2')
    ts(g, 0)
    if args.noaux:
        g('s_cmp_ge_u32 s3, 4\ns_cbranch_scc1 L_BULK\ns_barrier\ns_endpgm')
    g('''s_cmp_ge_u32 s3, 4
    s_cbranch_scc1 L_BULK
    s_cmp_eq_u32 s3, 0
    s_cbranch_scc1 L_A0
    s_cmp_eq_u32 s3, 3
    s_cbranch_scc1 L_A3
    s_branch L_A12''')

    g.label('L_A3')
    srd(g, 28, 4, 4096)
    g('''v_lshlrev_b32 v1, 6, v0
    buffer_load_dwordx4 v[8:11], v1, s[28:31], 0 offen
    buffer_load_dwordx4 v[12:15], v1, s[28:31], 0 offen offset:16
    buffer_load_dwordx4 v[16:19], v1, s[28:31], 0 offen offset:32
    buffer_load_dwordx4 v[20:23], v1, s[28:31], 0 offen offset:48''')
    g(f'''v_mov_b32 v2, 0
    v_lshlrev_b32 v3, 2, v0
    v_add_u32 v3, {L_CT}, v3
    s_mov_b64 exec, 0xffff
    ds_write_b32 v3, v2
    s_mov_b64 exec, -1
    s_waitcnt lgkmcnt(0)
    s_barrier
    s_waitcnt vmcnt(0)''')
    for i in range(16):
        g(f'v_lshlrev_b32 v{24+2*i}, 16, v{8+i}\nv_and_b32 v{25+2*i}, 0xffff0000, v{8+i}')
    g('v_add_f32 v56, v24, v25')
    for i in range(26, 56):
        g(f'v_add_f32 v56, v56, v{i}')
    allred_row16(g, 'v_add_f32', 'v56', 'v57')
    allred_x16(g, 'v_add_f32', 'v56', 'v57')
    g('v_mul_f32 v56, 0x3a800000, v56')
    g('v_sub_f32 v58, v24, v56\nv_mul_f32 v59, v58, v58')
    for i in range(25, 56):
        g(f'v_sub_f32 v58, v{i}, v56\nv_fma_f32 v59, v58, v58, v59')
    allred_row16(g, 'v_add_f32', 'v59', 'v57')
    allred_x16(g, 'v_add_f32', 'v59', 'v57')
    g('v_mul_f32 v59, 0x3a800000, v59')
    bf16r(g, 'v56')
    bf16r(g, 'v59')
    g(f'v_add_f32 v59, {EPS}, v59')
    bf16r(g, 'v59')
    g('''v_sqrt_f32 v60, v59
    s_nop 0
    v_rcp_f32 v61, v60
    v_fma_f32 v62, -v60, v60, v59
    v_mul_f32 v61, 0.5, v61
    v_fma_f32 v60, v62, v61, v60''')
    bf16r(g, 'v60')
    g('v_rcp_f32 v61, v60')
    for i in range(16):
        a, b = f'v{24+2*i}', f'v{25+2*i}'
        g(f'v_sub_f32 {a}, {a}, v56\nv_sub_f32 {b}, {b}, v56')
        bf16r_pair(g, a, b, 'v62')
        for r in (a, b):
            g(f'''v_mul_f32 v62, {r}, v61
            v_fma_f32 v63, -v62, v60, {r}
            v_fma_f32 {r}, v63, v61, v62''')
        g(f'v_cvt_pk_bf16_f32 v{8+i}, {a}, {b}')
    g(f'''ds_write_b128 v1, v[8:11] offset:{L_XN}
    ds_write_b128 v1, v[12:15] offset:{L_XN+16}
    ds_write_b128 v1, v[16:19] offset:{L_XN+32}
    ds_write_b128 v1, v[20:23] offset:{L_XN+48}''')
    lds_signal(g, C_X)
    ts(g, 1)
    read_nonce(g)
    q_gather(g, args, 1)
    lds_wait(g, C_Q, 2)
    ts(g, 2)
    ts(g, 3)
    lds_wait(g, C_ST, 4)
    ts(g, 4)
    g(f'''v_and_b32 v1, 7, v0
    v_lshlrev_b32 v1, 2, v1''')
    for w in range(4):
        g(f'ds_read_b32 v{8+w}, v1 offset:{L_ST + 64*w}\nds_read_b32 v{16+w}, v1 offset:{L_ST + 64*w + 32}')
    g('s_waitcnt lgkmcnt(0)')
    g('v_max3_f32 v24, v8, v9, v10\nv_max_f32 v24, v24, v11')
    g('v_mov_b32 v25, 0')
    for w in range(4):
        g(f'''v_sub_f32 v26, v{8+w}, v24
        v_mul_f32 v26, s60, v26
        v_exp_f32 v26, v26
        s_nop 0
        v_fma_f32 v25, v26, v{16+w}, v25''')
    if args.noml:
        g(f'''v_and_b32 v2, 7, v0
        v_lshlrev_b32 v2, 2, v2
        v_mov_b32 v26, 1.0
        s_mov_b64 exec, 0xff
        ds_write_b32 v2, v24 offset:{L_ML}
        ds_write_b32 v2, v26 offset:{L_ML+32}
        s_mov_b64 exec, -1
        s_lshl_b32 s46, s86, 6
        s_add_u32 s46, s46, {W_ML}
        v_cndmask_b32 v24, v24, v25, s[84:85]
        v_lshlrev_b32 v1, 2, v0
        s_mov_b64 exec, 0xffff
        buffer_store_dword v24, v1, s[36:39], s46 offen sc1
        s_mov_b64 exec, -1''')
        ts(g, 5)
    else:
        g(f'''s_lshl_b32 s46, s86, 6
        s_add_u32 s46, s46, {W_ML}
        v_cndmask_b32 v24, v24, v25, s[84:85]
        v_lshlrev_b32 v1, 2, v0
        s_mov_b64 exec, 0xffff
        buffer_store_dword v24, v1, s[36:39], s46 offen sc1
        s_mov_b64 exec, -1
        s_lshr_b32 s48, s86, 5
        s_add_u32 s48, s48, 8''')
        g('s_andn2_b32 s49, s86, 31\ns_add_u32 s49, s49, 256')
        arrive(g, 's48', 32, sctr='s49', ack=False)
        flag_wait(g, 's48', 8)
        g(f'''s_andn2_b32 s44, s86, 31
        s_lshl_b32 s44, s44, 6
        s_add_u32 s44, s44, {W_ML}
        v_and_b32 v1, 31, v0
        v_lshlrev_b32 v1, 6, v1
        v_lshrrev_b32 v2, 5, v0
        v_lshl_add_u32 v1, v2, 4, v1''')
        def issue_ml():
            g('buffer_load_dwordx4 v[8:11], v1, s[36:39], s44 offen sc1')
            g('buffer_load_dwordx4 v[12:15], v1, s[36:39], s44 offen offset:32 sc1')
        poll_loop(g, issue_ml, range(8, 16), sleep=8)
        ts(g, 5)
        for r in range(4):
            g(f'v_mov_b32 v{16+r}, v{8+r}')
            allred_row16(g, 'v_max_f32', f'v{16+r}', 'v24')
            allred_x16(g, 'v_max_f32', f'v{16+r}', 'v24')
            g(f'''v_sub_f32 v24, v{8+r}, v{16+r}
            v_mul_f32 v24, s60, v24
            v_exp_f32 v24, v24
            s_nop 0
            v_mul_f32 v{12+r}, v{12+r}, v24''')
            allred_row16(g, 'v_add_f32', f'v{12+r}', 'v24')
            allred_x16(g, 'v_add_f32', f'v{12+r}', 'v24')
            g('v_mov_b32 v26, 1.0')
            precise_div(g, f'v{20+r}', 'v26', f'v{12+r}', 'v24', 'v25')
        g(f'''v_lshrrev_b32 v2, 5, v0
        v_lshlrev_b32 v2, 4, v2
        s_mov_b32 exec_lo, 1
        s_mov_b32 exec_hi, 1
        ds_write_b128 v2, v[16:19] offset:{L_ML}
        ds_write_b128 v2, v[20:23] offset:{L_ML+32}
        s_mov_b64 exec, -1''')
    lds_signal(g, C_ML)
    g('s_cmp_lt_u32 s89, 32\ns_cbranch_scc1 L_A3_OG')
    g(f'''s_sub_u32 s44, s89, 32
    s_lshr_b32 s44, s44, 3
    s_lshl_b32 s44, s44, 14
    s_add_u32 s44, s44, {W_GU}
    s_lshr_b32 s45, s44, 1
    s_add_u32 s45, s45, {W_B}
    v_lshlrev_b32 v1, 4, v0
    v_lshlrev_b32 v2, 3, v0''')
    g('s_sub_u32 s48, s89, 32\ns_lshr_b32 s48, s48, 3\ns_add_u32 s48, s48, 16')
    flag_wait(g, 's48', 32)
    def issue_h():
        for ks in range(8):
            g(f's_add_u32 s46, s44, {ks*2048}\ns_add_u32 s48, s45, {ks*1024}')
            g(f'buffer_load_dwordx4 v[{72+4*ks}:{75+4*ks}], v1, s[36:39], s46 offen sc1')
            g(f'buffer_load_dwordx4 v[{104+4*ks}:{107+4*ks}], v1, s[36:39], s46 offen offset:1024 sc1')
            g(f'buffer_load_dwordx2 v[{136+2*ks}:{137+2*ks}], v2, s[36:39], s48 offen sc1')
            g(f'buffer_load_dwordx2 v[{152+2*ks}:{153+2*ks}], v2, s[36:39], s48 offen offset:512 sc1')
    tags = [75 + 4 * k for k in range(8)] + [107 + 4 * k for k in range(8)] + [137 + 2 * k for k in range(8)] + [153 + 2 * k for k in range(8)]
    if 'h2' not in args.skip:
        tpoll_loop(g, issue_h, tags, sleep=16, plain=True)
    for r in range(4):
        ga = (lambda ks: 72 + 4 * ks + r) if r < 3 else (lambda ks: 136 + 2 * ks)
        ua = (lambda ks: 104 + 4 * ks + r) if r < 3 else (lambda ks: 152 + 2 * ks)
        g(f'v_add_f32 v{8+r}, v{ga(0)}, v{ga(1)}\nv_add_f32 v{12+r}, v{ua(0)}, v{ua(1)}')
        for ks in range(2, 8):
            g(f'v_add_f32 v{8+r}, v{8+r}, v{ga(ks)}\nv_add_f32 v{12+r}, v{12+r}, v{ua(ks)}')
    bf16r_pair(g, 'v8', 'v9', 'v16'); bf16r_pair(g, 'v10', 'v11', 'v16')
    bf16r_pair(g, 'v12', 'v13', 'v16'); bf16r_pair(g, 'v14', 'v15', 'v16')
    for r in range(4):
        silu(g, f'v{8+r}', 'v16', 'v17', 'v18')
    bf16r_pair(g, 'v8', 'v9', 'v16'); bf16r_pair(g, 'v10', 'v11', 'v16')
    for r in range(4):
        g(f'v_mul_f32 v{8+r}, v{8+r}, v{12+r}')
    g('v_cvt_pk_bf16_f32 v8, v8, v9\nv_cvt_pk_bf16_f32 v10, v10, v11')
    g(f'''v_lshrrev_b32 v2, 5, v0
    v_lshlrev_b32 v2, 8, v2
    v_bfe_u32 v3, v0, 3, 2
    v_lshlrev_b32 v3, 6, v3
    v_and_b32 v4, 7, v0
    v_lshlrev_b32 v4, 1, v4
    v_add3_u32 v5, v2, v3, v4
    ds_write_b16 v5, v8 offset:{L_H}
    ds_write_b16_d16_hi v5, v8 offset:{L_H+16}
    ds_write_b16 v5, v10 offset:{L_H+32}
    ds_write_b16_d16_hi v5, v10 offset:{L_H+48}''')
    lds_signal(g, C_H)
    g.label('L_A3_OG')
    g(f'''s_lshr_b32 s44, s88, 3
    s_lshl_b32 s44, s44, 15
    s_bfe_u32 s45, s88, 0x10002
    s_lshl_b32 s45, s45, 8
    s_add_u32 s44, s44, s45
    s_add_u32 s44, s44, {W_O}
    v_bfe_u32 v2, v0, 4, 1
    v_lshlrev_b32 v2, 14, v2
    v_lshrrev_b32 v3, 5, v0
    v_lshl_add_u32 v2, v3, 13, v2
    v_and_b32 v1, 15, v0
    v_lshl_add_u32 v1, v1, 4, v2''')
    def issue_o():
        for sp in range(16):
            if sp % 8 == 0:
                g(f's_add_u32 s46, s44, {sp*512}')
            g(f'buffer_load_dwordx4 v[{40+4*sp}:{43+4*sp}], v1, s[36:39], s46 offen offset:{(sp%8)*512} sc1')
    if args.noml:
        lds_wait(g, C_V, 1)
        g(f'''s_lshr_b32 s48, s88, 6
        s_lshl_b32 s48, s48, 12
        s_bfe_u32 s49, s88, 0x30003
        s_lshl_b32 s49, s49, 2
        s_add_u32 s48, s48, s49
        s_add_u32 s48, s48, {W_ML}
        v_lshlrev_b32 v2, 6, v0''')
        def issue_w():
            g('buffer_load_dword v8, v2, s[36:39], s48 offen sc1')
            g('buffer_load_dword v9, v2, s[36:39], s48 offen offset:32 sc1')
        poll_loop(g, issue_w, [8, 9], sleep=8)
        g('v_mov_b32 v10, v8')
        allred_row16(g, 'v_max_f32', 'v10', 'v11')
        allred_x16(g, 'v_max_f32', 'v10', 'v11')
        g('''v_sub_f32 v8, v8, v10
        v_mul_f32 v8, s60, v8
        v_exp_f32 v8, v8
        s_nop 0
        v_mul_f32 v9, v9, v8''')
        allred_row16(g, 'v_add_f32', 'v9', 'v11')
        allred_x16(g, 'v_add_f32', 'v9', 'v11')
        precise_div(g, 'v10', 'v8', 'v9', 'v11', 'v12')
        g(f'''v_lshlrev_b32 v2, 2, v0
        ds_write_b32 v2, v10 offset:{L_W}
        v_bfe_u32 v2, v0, 4, 1
        v_lshlrev_b32 v2, 7, v2
        v_lshrrev_b32 v3, 5, v0
        v_lshl_add_u32 v2, v3, 6, v2
        s_waitcnt lgkmcnt(0)
        ds_read_b128 v[24:27], v2 offset:{L_W}
        ds_read_b128 v[28:31], v2 offset:{L_W+16}
        ds_read_b128 v[32:35], v2 offset:{L_W+32}
        ds_read_b128 v[36:39], v2 offset:{L_W+48}''')
    lds_wait(g, C_O, 4)
    if 'o2' not in args.skip:
        poll_loop(g, issue_o, range(40, 104), sleep=1)
    ts(g, 6)
    for r in range(4):
        if args.noml:
            g(f'v_mul_f32 v{8+r}, v{40+r}, v24\nv_mul_f32 v{12+r}, v{44+r}, v25')
            for sp in range(2, 16, 2):
                g(f'v_fma_f32 v{8+r}, v{40+4*sp+r}, v{24+sp}, v{8+r}\nv_fma_f32 v{12+r}, v{44+4*sp+r}, v{25+sp}, v{12+r}')
        else:
            g(f'v_add_f32 v{8+r}, v{40+r}, v{44+r}\nv_add_f32 v{12+r}, v{48+r}, v{52+r}')
            for sp in range(4, 16, 2):
                g(f'v_add_f32 v{8+r}, v{8+r}, v{40+4*sp+r}\nv_add_f32 v{12+r}, v{12+r}, v{44+4*sp+r}')
        g(f'v_add_f32 v{8+r}, v{8+r}, v{12+r}')
    for r in range(4):
        allred_x32(g, 'v_add_f32', f'v{8+r}', 'v12')
    g('v_cvt_pk_bf16_f32 v8, v8, v9\nv_cvt_pk_bf16_f32 v10, v10, v11')
    g(f'''v_bfe_u32 v2, v0, 4, 1
    v_lshlrev_b32 v2, 7, v2
    v_bfe_u32 v3, v0, 3, 1
    v_lshlrev_b32 v3, 6, v3
    v_and_b32 v4, 7, v0
    v_lshlrev_b32 v4, 1, v4
    v_add3_u32 v5, v2, v3, v4
    s_mov_b32 exec_hi, 0
    ds_write_b16 v5, v8 offset:{L_OB}
    ds_write_b16_d16_hi v5, v8 offset:{L_OB+16}
    ds_write_b16 v5, v10 offset:{L_OB+32}
    ds_write_b16_d16_hi v5, v10 offset:{L_OB+48}
    s_mov_b64 exec, -1''')
    lds_signal(g, C_OG)
    ts(g, 7)
    ts_dump(g, 8)
    g('s_endpgm')

    g.label('L_A0')
    vm = VM(g)
    srd(g, 40, 24, 256)
    g('''s_memrealtime s[54:55]
    v_mov_b32 v8, -1
    v_mov_b32 v9, -1
    v_mov_b32 v10, -1
    v_mov_b32 v11, -1
    v_lshlrev_b32 v3, 4, v0
    v_lshrrev_b32 v4, 5, v0
    v_and_b32 v5, 31, v0
    v_lshlrev_b32 v5, 4, v5
    v_mov_b32 v13, 0
    v_mov_b32 v14, 0
    s_waitcnt lgkmcnt(0)
    s_or_b32 s54, s54, 1
    v_mov_b32 v12, s54
    s_mov_b64 exec, 1
    buffer_atomic_cmpswap v[12:13], v14, s[40:43], 0 offen sc0
    s_mov_b64 exec, -1''')
    vm.issue('nonce')
    def clr(voff, off=0):
        g(f'buffer_store_dwordx4 v[8:11], {voff}, s[36:39], s46 offen offset:{off} sc1')
        vm.issue('clr')
    g(f'''s_sub_u32 s48, s89, 32
    s_and_b32 s48, s48, 255
    s_and_b32 s46, s48, 7
    s_lshl_b32 s46, s46, 15
    s_lshr_b32 s48, s48, 3
    s_lshl_b32 s48, s48, 9
    s_add_u32 s46, s46, s48
    s_add_u32 s56, s46, {W_F}
    s_mov_b32 s46, s56
    v_lshl_add_u32 v6, v4, 14, v5''')
    clr('v6')
    g(f'''s_and_b32 s46, s88, 3
    s_lshl_b32 s46, s46, 17
    s_lshr_b32 s48, s88, 2
    s_lshl_b32 s48, s48, 9
    s_add_u32 s46, s46, s48
    s_add_u32 s46, s46, {W_S}
    v_lshl_add_u32 v6, v4, 15, v5''')
    clr('v6')
    g('s_add_u32 s46, s46, 65536')
    clr('v6')
    g(f'''s_lshr_b32 s46, s86, 6
    s_lshl_b32 s46, s46, 18
    s_bfe_u32 s48, s86, 0x10005
    s_lshl_b32 s48, s48, 14
    s_add_u32 s46, s46, s48
    s_and_b32 s48, s86, 31
    s_lshl_b32 s48, s48, 9
    s_add_u32 s46, s46, s48
    s_add_u32 s46, s46, {W_O}
    v_lshl_add_u32 v6, v4, 15, v5''')
    for i in range(4):
        clr('v6')
        if i < 3:
            g('s_add_u32 s46, s46, 65536')
    g(f'''s_lshl_b32 s46, s86, 6
    s_add_u32 s46, s46, {W_ML}
    s_mov_b64 exec, 15''')
    clr('v3')
    g(f'''s_mov_b64 exec, 1
    s_lshl_b32 s46, s2, 7
    s_add_u32 s46, s46, {W_CT}
    buffer_store_dword v14, v14, s[36:39], s46 offen sc1
    s_lshl_b32 s46, s86, 7
    s_add_u32 s46, s46, {W_CT + 256*128}
    buffer_store_dword v14, v14, s[36:39], s46 offen sc1''')
    vm.issue('clr'); vm.issue('clr')
    g('s_mov_b64 exec, -1')
    g(f'''s_lshr_b32 s47, s87, 6
    s_lshl_b32 s47, s47, 16
    s_and_b32 s48, s87, 63
    s_lshl_b32 s48, s48, 9
    s_add_u32 s47, s47, s48
    s_add_u32 s47, s47, {W_Q}''')
    srd(g, 28, 10, 8 * 1024 * 1024)
    g('''s_and_b32 s44, s87, 7
    s_lshl_b32 s45, s44, 20
    s_lshr_b32 s46, s87, 3
    s_lshl_b32 s46, s46, 8
    s_add_u32 s45, s45, s46
    v_lshrrev_b32 v4, 4, v0
    v_and_b32 v5, 15, v0
    v_lshlrev_b32 v1, 16, v4
    v_lshl_add_u32 v1, v5, 4, v1''')
    for kk in range(4):
        for i in range(8):
            r = 40 + 32 * kk + 4 * i
            g(f's_add_u32 s46, s45, {(32 * kk + i) * 8192}')
            g(f'buffer_load_dwordx4 v[{r}:{r+3}], v1, s[28:31], s46 offen nt')
            vm.issue(f'wq{kk}')
    g(f'''v_and_b32 v2, 1, v0
    v_lshlrev_b32 v3, 11, v2
    v_lshl_add_u32 v3, v4, 4, v3
    s_lshl_b32 s46, s44, 8
    v_add_u32 v3, s46, v3
    v_lshlrev_b32 v2, 15, v2
    v_lshl_add_u32 v2, v4, 7, v2
    v_bfe_u32 v6, v0, 1, 3
    v_lshl_add_u32 v2, v6, 4, v2
    s_barrier''')
    lds_wait(g, C_X, 1)
    ts(g, 1)
    vm.wait('clr')
    g(f'''v_readfirstlane_b32 s55, v12
    s_cmp_eq_u32 s55, 0
    s_cselect_b32 s55, s54, s55
    v_mov_b32 v6, {C_N}
    v_mov_b32 v7, s55
    s_mov_b64 exec, 1
    ds_write_b32 v6, v7
    s_mov_b64 exec, -1''')
    for half in range(2):
        for kk in range(4):
            b = 8 + 4 * (kk & 1)
            g(f'ds_read_b128 v[{b}:{b+3}], v3 offset:{64*kk}')
            if half == 0:
                vm.wait(f'wq{kk}')
            base = 40 + 32 * kk
            for tt in range(4):
                t = 4 * half + tt
                d = t >> 1
                sel = 's58' if (t & 1) == 0 else 's59'
                o = 16 + 4 * (tt & 1)
                for p in range(4):
                    g(f'v_perm_b32 v{o+p}, v{base + 4*(2*p+1) + d}, v{base + 4*(2*p) + d}, {sel}')
                acc = 24 + 4 * tt
                c = '0' if kk == 0 else f'v[{acc}:{acc+3}]'
                g('s_waitcnt lgkmcnt(0)\ns_nop 0' if tt == 0 else 's_nop 1')
                g(f'v_mfma_f32_16x16x32_bf16 v[{acc}:{acc+3}], v[{o}:{o+3}], v[{b}:{b+3}], {c}')
        g('s_nop 7\ns_nop 1')
        r = select8(g, [24 + 4 * tt for tt in range(4)])
        g('s_mov_b64 exec, s[84:85]' if half == 1 else 's_not_b64 exec, s[84:85]')
        tagged_store(g, vm, r, 's47', 'v2', x=16)
        g('s_mov_b64 exec, -1\ns_nop 1')
    srd(g, 32, 20, 3584 * 1024 * 2)
    g('s_lshr_b32 s48, s87, 6\ns_add_u32 s48, s48, 1')
    arrive(g, 's48', 64, ack=bool(args.qack))
    ts(g, 2)
    q_gather(g, args, 0, 3)
    vm.reset()
    ts(g, 4)
    g('s_cmp_lt_u32 s89, 32\ns_cbranch_scc1 L_A0_FIN')
    g('''s_sub_u32 s48, s89, 32
    s_lshr_b32 s49, s48, 3
    s_lshl_b32 s49, s49, 18
    s_and_b32 s48, s48, 7
    s_lshl_b32 s48, s48, 8
    s_add_u32 s48, s48, s49
    v_lshlrev_b32 v1, 14, v4
    v_lshl_add_u32 v1, v5, 4, v1''')
    if args.kfirst:
        lds_wait(g, C_K, 4)
    for kk in range(3):
        if kk >= args.ainfl:
            vm.wait(f'wd{kk-args.ainfl}')
        tile_loads(g, vm, 32, 's48', 2048, kk, kk, f'wd{kk}')
    g(f'''v_and_b32 v3, 1, v0
    v_lshlrev_b32 v3, 8, v3
    v_lshl_add_u32 v3, v4, 4, v3
    v_add_u32 v3, {L_H}, v3''')
    gemv_tile(g, vm, 32, 's48', 2048, 'v3', True, 'wd', wait_fn=lambda: lds_wait(g, C_H, 1))
    g('v_and_b32 v2, 1, v0\nv_lshlrev_b32 v2, 14, v2\nv_lshl_add_u32 v2, v4, 7, v2\nv_bfe_u32 v6, v0, 1, 3\nv_lshl_add_u32 v2, v6, 4, v2')
    publish_acc(g, vm, 's56', tagged=False)
    g.label('L_A0_FIN')
    ts(g, 5)
    srd(g, 28, 4, 4096)
    srd(g, 32, 22, 4096)
    g(f'''s_lshr_b32 s44, s2, 5
    s_bfe_u32 s45, s2, 0x10004
    s_and_b32 s46, s2, 15
    ; S gather: W_S + ((c*2+b)*64 + hh*2 + half)*512 + o8*32 + q2*16
    s_lshr_b32 s48, s2, 4
    s_lshl_b32 s49, s48, 14
    s_lshl_b32 s48, s48, 15
    s_lshl_b32 s53, s46, 5
    s_add_u32 s48, s48, s53
    s_add_u32 s49, s49, s53
    s_add_u32 s48, s48, {W_S}
    s_add_u32 s49, s49, {W_F}
    v_lshrrev_b32 v2, 1, v0
    v_and_b32 v3, 1, v0
    v_lshlrev_b32 v1, 10, v2
    v_lshl_add_u32 v1, v3, 4, v1
    v_min_u32 v2, 27, v2
    v_lshlrev_b32 v2, 9, v2
    v_lshl_add_u32 v2, v3, 4, v2
    ; x / out element offset: (b*1024 + 128c + 32g + t)*2 , g=o8>>2, t=2*(o8&3)+q2 ; +16 bytes per r
    s_lshl_b32 s52, s45, 10
    s_lshl_b32 s53, s44, 7
    s_add_u32 s52, s52, s53
    s_lshr_b32 s53, s46, 2
    s_lshl_b32 s53, s53, 5
    s_add_u32 s52, s52, s53
    s_and_b32 s53, s46, 3
    s_lshl_b32 s53, s53, 1
    s_add_u32 s52, s52, s53
    v_add_u32 v4, s52, v3
    v_lshlrev_b32 v4, 1, v4
    buffer_load_ushort v24, v4, s[28:31], 0 offen
    buffer_load_ushort v25, v4, s[28:31], 0 offen offset:16
    buffer_load_ushort v26, v4, s[28:31], 0 offen offset:32
    buffer_load_ushort v27, v4, s[28:31], 0 offen offset:48''')
    g(f'v_lshlrev_b32 v3, 7, v0\ns_mov_b32 s46, {W_FL + 128}\ns_mov_b64 exec, 15')
    def issue_f4b():
        g('buffer_load_dword v9, v3, s[36:39], s46 offen sc1')
    tpoll_loop(g, issue_f4b, [9], sleep=16)
    g('s_mov_b64 exec, -1')
    lds_wait(g, C_S, 2)
    def issue_fin():
        g('buffer_load_dwordx4 v[8:11], v1, s[36:39], s48 offen sc1')
        g('buffer_load_dwordx4 v[12:15], v1, s[36:39], s48 offen offset:512 sc1')
        g('buffer_load_dwordx4 v[16:19], v2, s[36:39], s49 offen sc1')
    poll_loop(g, issue_fin, range(8, 20), sleep=args.finsleep)
    ts(g, 6)
    g('v_cmp_gt_u32 vcc, 56, v0\ns_nop 1')
    for r in range(4):
        g(f'v_add_f32 v{8+r}, v{8+r}, v{12+r}')
        g(f'v_cndmask_b32 v{16+r}, 0, v{16+r}, vcc')
    for r in list(range(8, 12)) + list(range(16, 20)):
        for rr in (2, 4, 8):
            g(f's_nop 1\nv_add_f32_dpp v20, v{r}, v{r} row_ror:{rr} row_mask:0xf bank_mask:0xf\nv_mov_b32 v{r}, v20')
        allred_x16(g, 'v_add_f32', f'v{r}', 'v20')
        allred_x32(g, 'v_add_f32', f'v{r}', 'v20')
    bf16r_pair(g, 'v8', 'v9', 'v20'); bf16r_pair(g, 'v10', 'v11', 'v20')
    bf16r_pair(g, 'v16', 'v17', 'v20'); bf16r_pair(g, 'v18', 'v19', 'v20')
    for r in range(4):
        silu(g, f'v{16+r}', 'v20', 'v21', 'v22')
    bf16r_pair(g, 'v16', 'v17', 'v20'); bf16r_pair(g, 'v18', 'v19', 'v20')
    for r in range(4):
        g(f'v_mul_f32 v{8+r}, v{8+r}, v{16+r}')
    bf16r_pair(g, 'v8', 'v9', 'v20'); bf16r_pair(g, 'v10', 'v11', 'v20')
    for r in range(4):
        g(f'v_lshlrev_b32 v{24+r}, 16, v{24+r}\nv_add_f32 v{8+r}, v{8+r}, v{24+r}\nv_cvt_pk_bf16_f32 v{8+r}, v{8+r}, v{8+r}')
    g('''s_mov_b64 exec, 3
    buffer_store_short v8, v4, s[32:35], 0 offen
    buffer_store_short v9, v4, s[32:35], 0 offen offset:16
    buffer_store_short v10, v4, s[32:35], 0 offen offset:32
    buffer_store_short v11, v4, s[32:35], 0 offen offset:48''')
    ts(g, 7)
    ts_dump(g, 8)
    g('s_endpgm')

    g.label('L_A12')
    vm = VM(g)
    g('''s_cmp_eq_u32 s3, 1
    s_cselect_b32 s28, s16, s18
    s_cselect_b32 s29, s17, s19
    s_mov_b32 s30, 7340032
    s_mov_b32 s31, 0x20000
    v_lshrrev_b32 v4, 4, v0
    v_and_b32 v5, 15, v0
    s_and_b32 s44, s2, 7
    s_mul_i32 s45, s44, 917504
    s_lshr_b32 s46, s2, 3
    s_lshl_b32 s46, s46, 8
    s_add_u32 s45, s45, s46
    v_mul_u32_u24 v1, 57344, v4
    v_lshl_add_u32 v1, v5, 4, v1
    v_and_b32 v2, 1, v0
    v_lshlrev_b32 v3, 11, v2
    v_lshl_add_u32 v3, v4, 4, v3
    s_lshl_b32 s46, s44, 8
    v_add_u32 v3, s46, v3
    v_lshlrev_b32 v2, 9, v2
    v_lshl_add_u32 v2, v4, 7, v2
    v_bfe_u32 v6, v0, 1, 3
    v_lshl_add_u32 v2, v6, 4, v2
    s_cmp_ge_u32 s2, 224
    s_cbranch_scc1 L_A12_SKIP''')
    g('s_barrier')
    if args.kfirst:
        lds_wait(g, C_K, 4)
    AI = args.ainfl
    for kk in range(AI):
        tile_loads(g, vm, 28, 's45', 7168, kk, kk, f'gu{kk}')
    lds_wait(g, C_X, 1)
    for kk in range(4):
        g(f'ds_read_b128 v[{A_B+4*kk}:{A_B+4*kk+3}], v3 offset:{64*kk}')
    g('s_waitcnt lgkmcnt(0)')
    for kk in range(4):
        vm.wait(f'gu{kk}')
        if kk + AI < 4:
            tile_loads(g, vm, 28, 's45', 7168, kk + AI, (kk + AI) % 3, f'gu{kk+AI}')
        tile_block_mfma(g, kk % 3, kk, kk == 0, A_B + 4 * kk)
    read_nonce(g)
    g(f'v_lshlrev_b32 v3, 7, v0\ns_mov_b32 s46, {W_FL + 128}\ns_mov_b64 exec, 15')
    def issue_f4():
        g('buffer_load_dword v9, v3, s[36:39], s46 offen sc1')
    tpoll_loop(g, issue_f4, [9], sleep=16)
    g('s_mov_b64 exec, -1')
    g(f's_lshl_b32 s46, s3, 10\ns_lshl_b32 s47, s2, 11\ns_add_u32 s46, s46, s47\ns_add_u32 s46, s46, {W_GU - 1024}')
    publish_acc(g, vm, 's46')
    g('s_lshr_b32 s48, s2, 3\ns_add_u32 s48, s48, 16')
    arrive(g, 's48', 16, sctr='s48', ack=False)
    g('s_branch L_A12_WO')
    g.label('L_A12_SKIP')
    g('s_barrier')
    if args.kfirst:
        lds_wait(g, C_K, 4)
    read_nonce(g)
    g.label('L_A12_WO')
    ts(g, 1)
    vm.reset()
    srd(g, 28, 12, 8 * 1024 * 1024)
    g('''s_and_b32 s44, s88, 3
    s_lshl_b32 s44, s44, 1
    s_add_u32 s44, s44, s3
    s_sub_u32 s44, s44, 1
    s_lshr_b32 s45, s88, 2
    s_lshl_b32 s45, s45, 17
    s_lshl_b32 s48, s44, 8
    s_add_u32 s45, s45, s48
    v_lshlrev_b32 v1, 14, v4
    v_lshl_add_u32 v1, v5, 4, v1''')
    for kk in range(2):
        if kk == 1 and args.ainfl == 1:
            vm.wait('wo0')
        tile_loads(g, vm, 28, 's45', 2048, kk, kk, f'wo{kk}', stmp='s48')
    outs = [136, 8]
    for kk in range(2):
        vm.wait(f'wo{kk}')
        base = A_POOL + 32 * kk
        for t in range(8):
            d = t >> 1
            sel = 's58' if (t & 1) == 0 else 's59'
            for p in range(4):
                g(f'v_perm_b32 v{outs[kk] + 4*t + p}, v{base + 4*(2*p+1) + d}, v{base + 4*(2*p) + d}, {sel}')
    g(f'''v_and_b32 v3, 1, v0
    v_lshlrev_b32 v3, 7, v3
    v_lshl_add_u32 v3, v4, 4, v3
    v_add_u32 v3, {L_OB}, v3
    s_lshl_b32 s46, s44, 16
    s_lshr_b32 s48, s88, 2
    s_lshl_b32 s48, s48, 9
    s_add_u32 s46, s46, s48
    s_add_u32 s46, s46, {W_S}
    v_and_b32 v2, 1, v0
    v_lshlrev_b32 v2, 15, v2
    v_lshl_add_u32 v2, v4, 7, v2
    v_bfe_u32 v6, v0, 1, 3
    v_lshl_add_u32 v2, v6, 4, v2''')
    ts(g, 2)
    lds_wait(g, C_OG, 1)
    ts(g, 3)
    g('''ds_read_b128 v[72:75], v3
    ds_read_b128 v[76:79], v3 offset:64
    s_waitcnt lgkmcnt(0)''')
    for kk in range(2):
        for t in range(8):
            acc = A_ACC + 4 * t
            o = outs[kk] + 4 * t
            c = '0' if kk == 0 else f'v[{acc}:{acc+3}]'
            g(f'v_mfma_f32_16x16x32_bf16 v[{acc}:{acc+3}], v[{o}:{o+3}], v[{72+4*kk}:{75+4*kk}], {c}')
    publish_acc(g, vm, 's46', tagged=False)
    lds_signal(g, C_S, add=True)
    ts(g, 4)
    ts_dump(g, 5)
    g('s_endpgm')

    g.label('L_BULK')
    vm = VM(g)
    BQ, BS, BO, BP = 8, 24, 56, 88
    NT, NS, NL = 16, 10, 6
    TS = 16384 if args.inter else 4096
    srd(g, 28, 6, 64 * 1024 * 1024)
    srd(g, 32, 8, 64 * 1024 * 1024)
    g(f'''s_sub_u32 s44, s3, 4
    s_lshr_b32 s45, s86, 6
    s_bfe_u32 s46, s86, 0x10005
    s_lshl_b32 s46, s46, 2
    s_add_u32 s45, s45, s46
    s_lshl_b32 s45, s45, 23
    s_and_b32 s46, s86, 31
    s_lshl_b32 s46, s46, 18
    s_add_u32 s45, s45, s46
    s_lshl_b32 s46, s44, {12 if args.inter else 16}
    s_add_u32 s45, s45, s46
    v_and_b32 v4, 15, v0
    v_lshrrev_b32 v5, 4, v0
    v_lshlrev_b32 v2, 4, v0
    s_mul_i32 s48, s44, 24576
    s_add_u32 s48, s48, {L_V}
    v_xor_b32 v6, v4, v5
    v_lshlrev_b32 v7, 8, v5
    v_lshl_add_u32 v1, v6, 4, v7
    v_xor_b32 v249, 64, v1
    v_add_u32 v249, 1024, v249
    v_xor_b32 v250, 128, v1
    v_add_u32 v250, 2048, v250
    v_xor_b32 v251, 192, v1
    v_add_u32 v251, 3072, v251
    v_and_b32 v6, 3, v4
    v_lshlrev_b32 v6, 2, v6
    v_lshrrev_b32 v7, 2, v4
    v_add_u32 v6, v6, v7
    v_xor_b32 v7, v6, v5
    v_lshlrev_b32 v6, 8, v6
    v_lshl_add_u32 v252, v7, 4, v6
    v_xor_b32 v253, 64, v252
    v_xor_b32 v254, 128, v252
    v_xor_b32 v255, 192, v252
    v_add_u32 v252, s48, v252
    v_add_u32 v253, s48, v253
    v_add_u32 v254, s48, v254
    v_add_u32 v255, s48, v255''')
    g('s_barrier')
    INFL = args.infl
    order = []
    KV_ = ['v1', 'v249', 'v250', 'v251']
    def ldsload(isK, T, k):
        for j in range(4):
            if isK:
                g(f's_add_u32 s49, s48, {4096*k + 1024*j}\ns_mov_b32 m0, s49\ns_add_u32 s46, s45, {TS*T}')
                g(f'buffer_load_dwordx4 {KV_[j]}, s[28:31], s46 offen nt lds')
            else:
                g(f's_add_u32 s49, s48, {4096*k + 1024*j}\ns_mov_b32 m0, s49\ns_add_u32 s46, s45, {TS*T + 1024*j}')
                g('buffer_load_dwordx4 v2, s[32:35], s46 offen nt lds')
            vm.issue(f'{"K" if isK else "V"}{T}')
    def rload(isK, T, slot):
        assert not isK
        r0 = BP + 16 * slot
        g(f's_add_u32 s46, s45, {TS*T}')
        for j in range(4):
            r = r0 + 4 * j
            g(f'buffer_load_dwordx4 v[{r}:{r+3}], v2, s[32:35], s46 offen offset:{1024*j} nt')
            vm.issue(f'V{T}')
    def ldsread(k, slot):
        r0 = BP + 16 * slot
        for j in range(4):
            g(f'ds_read_b128 v[{r0+4*j}:{r0+4*j+3}], v3 offset:{4096*k + 1024*j}')
    def kread(k, slot):
        r0 = BP + 16 * slot
        for j in range(4):
            g(f'ds_read_b128 v[{r0+4*j}:{r0+4*j+3}], v{252+j} offset:{4096*k}')
    def pace(tag):
        order.append(tag)
        n = args.vinfl if (tag[0] == 'V' and args.vinfl) else INFL
        if len(order) - 1 - n >= 0:
            vm.wait(order[len(order) - 1 - n])
    vslot = lambda T: (T + 6) % NS
    def stream(isK, t0=0):
        c = 'K' if isK else 'V'
        if isK:
            order.clear()
            assert INFL <= 4
        for T in range(t0, NT):
            if isK and T == args.pre:
                lds_wait(g, C_X, 1)
            pace(f'{c}{T}')
            if T in (4, 8, 12, 15):
                ts(g, (7 if isK else 11) + (T // 4 if T < 15 else 4) - 0)
            if T == args.ksig and isK:
                lds_signal(g, C_K, add=True)
            if isK:
                Tc = T - INFL
                if 0 <= Tc < NS:
                    kread(Tc % NL, Tc)
                if T >= NL:
                    later = [t for t in range(T - NL + 1, Tc + 1) if 0 <= t < NS]
                    g(f"s_waitcnt lgkmcnt({min(8, 4 * len(later))})")
                ldsload(True, T, T % NL)
            elif T < NS:
                rload(False, T, vslot(T))
            else:
                ldsload(False, T, T - NS)
    stream(True)
    if args.ksig >= NT:
        lds_signal(g, C_K, add=True)
    lds_wait(g, C_Q, 2)
    ts(g, 1)
    g(f'''v_and_b32 v3, 7, v0
    v_lshlrev_b32 v3, 8, v3
    v_lshl_add_u32 v3, v5, 4, v3''')
    for j in range(4):
        g(f'ds_read_b128 v[{BQ+4*j}:{BQ+4*j+3}], v3 offset:{L_Q + 64*j}')
    g('s_waitcnt lgkmcnt(0)')
    for T in range(NT):
        if T >= NS:
            g(f's_waitcnt lgkmcnt({min(8, 4 * (NT - 1 - T))})')
        r0 = BP + 16 * (T % NS)
        s = BS + 4 * T
        for j in range(4):
            c = '0' if j == 0 else f'v[{s}:{s+3}]'
            g(f'v_mfma_f32_16x16x32_bf16 v[{s}:{s+3}], v[{r0+4*j}:{r0+4*j+3}], v[{BQ+4*j}:{BQ+4*j+3}], {c}')
        k = T - (NS - 3)
        if 0 <= k < NL:
            vm.wait(f'K{NS+k}')
            kread((NS + k) % NL, k)
        if 6 <= T < 6 + args.vearly:
            if T == 6:
                order.clear()
            order.append(f'V{T-6}')
            rload(False, T - 6, vslot(T - 6))
    g('s_nop 7')
    ts(g, 2)
    for i in range(2 * NT):
        a, b = f'v{BS+2*i}', f'v{BS+2*i+1}'
        bf16r_pair(g, a, b, 'v8')
        g(f'v_mul_f32 {a}, s61, {a}\nv_mul_f32 {b}, s61, {b}')
        bf16r_pair(g, a, b, 'v8')
    g(f'v_max_f32 v9, v{BS}, v{BS+1}')
    for i in range(1, 2 * NT):
        g(f'v_max3_f32 v9, v9, v{BS+2*i}, v{BS+2*i+1}')
    allred_x16(g, 'v_max_f32', 'v9', 'v10')
    allred_x32(g, 'v_max_f32', 'v9', 'v10')
    g('v_mov_b32 v11, 0\nv_mov_b32 v16, 0')
    for i in range(0, 4 * NT, 2):
        g(f'''v_sub_f32 v{BS+i}, v{BS+i}, v9
        v_sub_f32 v{BS+i+1}, v{BS+i+1}, v9
        v_mul_f32 v{BS+i}, s60, v{BS+i}
        v_mul_f32 v{BS+i+1}, s60, v{BS+i+1}
        v_exp_f32 v{BS+i}, v{BS+i}
        v_exp_f32 v{BS+i+1}, v{BS+i+1}
        s_nop 0
        v_add_f32 v11, v11, v{BS+i}
        v_add_f32 v16, v16, v{BS+i+1}''')
    g('v_mov_b32 v248, v9')
    g('v_add_f32 v11, v11, v16')
    allred_x16(g, 'v_add_f32', 'v11', 'v10')
    allred_x32(g, 'v_add_f32', 'v11', 'v10')
    g(f'''s_lshl_b32 s46, s44, 6
    v_lshlrev_b32 v3, 2, v0
    v_add_u32 v3, s46, v3
    s_mov_b64 exec, 0xff
    ds_write_b32 v3, v9 offset:{L_ST}
    ds_write_b32 v3, v11 offset:{L_ST+32}
    s_mov_b64 exec, -1''')
    lds_signal(g, C_ST, add=True)
    ts(g, 3)
    if args.latec:
        for i in range(2 * NT):
            g(f'v_cvt_pk_bf16_f32 v{BS+i}, v{BS+2*i}, v{BS+2*i+1}')
    if args.vearly == 0:
        order.clear()
    stream(False, args.vearly)
    if args.noml:
        lds_signal(g, C_V)
    def get_c():
        lds_wait(g, C_ML, 1)
        g(f'''v_and_b32 v3, 7, v0
        v_lshlrev_b32 v3, 2, v3
        ds_read_b32 v9, v3 offset:{L_ML}
        ds_read_b32 v10, v3 offset:{L_ML+32}
        s_waitcnt lgkmcnt(0)
        v_sub_f32 v9, v248, v9
        v_mul_f32 v9, s60, v9
        v_exp_f32 v9, v9
        s_nop 0
        v_mul_f32 v10, v10, v9''')
    if not args.latec:
        get_c()
        ts(g, 4)
        for i in range(2 * NT):
            a, b = BS + 2 * i, BS + 2 * i + 1
            g(f'''v_mul_f32 v12, v{a}, v10
            v_mul_f32 v13, v{b}, v10
            v_cvt_pk_bf16_f32 v{BS+i}, v12, v13''')
    else:
        ts(g, 4)
    g('v_lshlrev_b32 v3, 4, v0\nv_add_u32 v3, s48, v3')
    for U in range(NT // 2):
        T0, T1 = 2 * U, 2 * U + 1
        if T1 < NS:
            vm.wait(f'V{T1}')
        else:
            g(f's_waitcnt lgkmcnt({min(8, 4 * (NT - 1 - T1))})')
        ra = BP + 16 * vslot(T0 % NS)
        rb = BP + 16 * vslot(T1 % NS)
        for half in range(2):
            for tt in range(4):
                t = 4 * half + tt
                d = t >> 1
                sel = 's58' if (t & 1) == 0 else 's59'
                o = BQ + 4 * tt
                g(f'v_perm_b32 v{o}, v{ra+4+d}, v{ra+d}, {sel}')
                g(f'v_perm_b32 v{o+1}, v{ra+12+d}, v{ra+8+d}, {sel}')
                g(f'v_perm_b32 v{o+2}, v{rb+4+d}, v{rb+d}, {sel}')
                g(f'v_perm_b32 v{o+3}, v{rb+12+d}, v{rb+8+d}, {sel}')
            g('s_nop 1')
            for tt in range(4):
                t = 4 * half + tt
                o = BQ + 4 * tt
                acc = BO + 4 * t
                c = '0' if U == 0 else f'v[{acc}:{acc+3}]'
                g(f'v_mfma_f32_16x16x32_bf16 v[{acc}:{acc+3}], v[{o}:{o+3}], v[{BS+4*U}:{BS+4*U+3}], {c}')
        k = 2 * (U - 3)
        if 0 <= k < NL:
            vm.wait(f'V{NS+k+1}')
            ldsread(k, vslot(k)); ldsread(k + 1, vslot(k + 1))
    ts(g, 5)
    if args.latec:
        get_c()
        for i in range(32):
            g(f'v_mul_f32 v{BO+i}, v{BO+i}, v10')
    g(f'''s_lshl_b32 s46, s44, 12
    v_lshlrev_b32 v3, 9, v4
    v_lshl_add_u32 v3, v5, 7, v3
    v_add_u32 v3, s46, v3
    s_nop 7
    s_mov_b32 exec_lo, 0x00ff00ff
    s_mov_b32 exec_hi, 0x00ff00ff''')
    for t in range(8):
        acc = BO + 4 * t
        g(f'ds_write_b128 v3, v[{acc}:{acc+3}] offset:{L_OP + 16*t}')
    g('s_mov_b64 exec, -1')
    lds_signal(g, C_O, add=True)
    g(f'''s_lshr_b32 s46, s86, 6
    s_lshl_b32 s46, s46, 18
    s_lshl_b32 s49, s44, 16
    s_add_u32 s46, s46, s49
    s_bfe_u32 s49, s86, 0x10005
    s_lshl_b32 s49, s49, 14
    s_add_u32 s46, s46, s49
    s_and_b32 s49, s86, 31
    s_lshl_b32 s49, s49, 9
    s_add_u32 s46, s46, s49
    s_add_u32 s46, s46, {W_O}
    v_and_b32 v2, 31, v0
    v_lshlrev_b32 v2, 4, v2
    v_lshrrev_b32 v1, 5, v0
    v_lshl_add_u32 v2, v1, 15, v2
    s_lshl_b32 s49, s44, 10
    v_lshlrev_b32 v3, 4, v0
    v_add_u32 v3, s49, v3''')
    lds_wait(g, C_O, 4)
    for w in range(4):
        g(f'ds_read_b128 v[{88+4*w}:{91+4*w}], v3 offset:{L_OP + 4096*w}')
    g('s_waitcnt lgkmcnt(0)')
    for r in range(4):
        g(f'v_add_f32 v{8+r}, v{88+r}, v{92+r}\nv_add_f32 v{12+r}, v{96+r}, v{100+r}\nv_add_f32 v{8+r}, v{8+r}, v{12+r}')
    g('buffer_store_dwordx4 v[8:11], v2, s[36:39], s46 offen sc1')
    ts(g, 6)
    ts_dump(g, 7)
    g('s_endpgm')
    g.label('L_END')
    g('s_endpgm')
    T = f'''.section .rodata,"a"
.p2align 6
.amdhsa_kernel {KN}
  .amdhsa_next_free_vgpr 256
  .amdhsa_next_free_sgpr 100
  .amdhsa_accum_offset 256
  .amdhsa_group_segment_fixed_size 0
  .amdhsa_kernarg_size 96
  .amdhsa_user_sgpr_count 2
  .amdhsa_user_sgpr_kernarg_segment_ptr 1
  .amdhsa_system_sgpr_workgroup_id_x 1
  .amdhsa_float_denorm_mode_32 3
.end_amdhsa_kernel
'''
    return '\n'.join(H) + '\n' + '\n'.join(g.L) + '\n' + T

if __name__ == '__main__':
    ap = argparse.ArgumentParser()
    ap.add_argument('--prof', action='store_true')
    ap.add_argument('--finsleep', type=int, default=1)
    ap.add_argument('--vinfl', type=int, default=0)
    ap.add_argument('--inter', type=int, default=1)
    ap.add_argument('--noml', type=int, default=0)
    ap.add_argument('--qack', type=int, default=1)
    ap.add_argument('--latec', type=int, default=0)
    ap.add_argument('--vearly', type=int, default=4)
    ap.add_argument('--ksig', type=int, default=16)
    ap.add_argument('--ainfl', type=int, default=2)
    ap.add_argument('--skip', default='')
    ap.add_argument('--remap', type=int, default=1)
    ap.add_argument('--plain', type=int, default=1)
    ap.add_argument('--nodma', action='store_true')
    ap.add_argument('--noaux', action='store_true')
    ap.add_argument('--nolds', action='store_true')
    ap.add_argument('--kfirst', type=int, default=1)
    ap.add_argument('--nohop', action='store_true')
    ap.add_argument('--fsleep', type=int, default=16)
    ap.add_argument('--infl', type=int, default=2)
    ap.add_argument('--pre', type=int, default=0)
    ap.add_argument('-o', default='recurrent_scan__gqa_block_cached__swiglu_ffn__decode.s')
    args = ap.parse_args()
    open(args.o, 'w').write(gen(args))
```

```python
import struct, sys, argparse

def f32hex(x):
    return '0x%08x' % struct.unpack('<I', struct.pack('<f', x))[0]

KN = 'recurrent_scan__gqa_block_cached__swiglu_ffn__decode_kernel'
NWG = 256
W_Q = 0x000000
W_GU = 0x040000
W_S = 0x0C0000
W_F = 0x140000
W_O = 0x180000
W_ML = 0x280000
W_B = 0x300000
W_CT = 0x2E0000
W_FL = 0x2C0000
L_XN = 0x0000
L_Q = 0x1000
L_ST = 0x1800
L_ML = 0x1A00
L_CT = 0x1A40
C_Q, C_ST, C_ML, C_O, C_OG, C_H, C_N, C_K, C_X, C_V, C_S = [L_CT + 4 * i for i in range(11)]
L_W = 0x1F00
L_OB = 0x1B00
L_H = 0x1D00
L_OP = 0x2000
L_V = 0x6000
LDS_BYTES = 0x6000 + 4 * 24576
SCALE = f32hex(128 ** -0.5)
LOG2E = f32hex(1.4426950408889634)
EPS = f32hex(1e-5)
SPIN_LDS = 4000000
SPIN_GLB = 40000

NOLDS = False
class Gen:
    def __init__(self):
        self.L = []
        self.n = 0
    def __call__(self, s):
        for line in s.strip('\n').split('\n'):
            self.L.append('    ' + line.strip())
    def label(self, name):
        self.L.append(name + ':')
    def uniq(self, p):
        self.n += 1
        return f'{p}_{self.n}'

class VM:
    def __init__(self, g):
        self.g = g
        self.ops = []
    def issue(self, tag):
        self.ops.append(tag)
    def wait(self, tag):
        idx = max(i for i, t in enumerate(self.ops) if t == tag)
        n = len(self.ops) - 1 - idx
        assert n <= 63
        self.g(f's_waitcnt vmcnt({n})')
    def reset(self):
        self.ops = []

def srd(g, d, base, nbytes):
    g(f's_mov_b32 s{d}, s{base}\ns_mov_b32 s{d+1}, s{base+1}\ns_mov_b32 s{d+2}, {nbytes}\ns_mov_b32 s{d+3}, 0x20000')

def lds_wait(g, addr, target, vt='v7', va='v6', st='s50', sc='s51'):
    l = g.uniq('LW'); d = g.uniq('LWD')
    g(f'v_mov_b32 {va}, {addr}\ns_mov_b32 {sc}, {1 if NOLDS else SPIN_LDS}')
    g.label(l)
    g(f'''ds_read_b32 {vt}, {va}
    s_waitcnt lgkmcnt(0)
    v_readfirstlane_b32 {st}, {vt}
    s_cmp_ge_u32 {st}, {target}
    s_cbranch_scc1 {d}
    s_sleep 1
    s_sub_u32 {sc}, {sc}, 1
    s_cmp_lg_u32 {sc}, 0
    s_cbranch_scc1 {l}''')
    g.label(d)

def lds_signal(g, addr, add=False, vt='v7', va='v6'):
    g(f'''s_waitcnt lgkmcnt(0)
    v_mov_b32 {va}, {addr}
    v_mov_b32 {vt}, 1
    s_mov_b64 exec, 1''')
    g(f'ds_add_u32 {va}, {vt}' if add else f'ds_write_b32 {va}, {vt}')
    g('s_mov_b64 exec, -1')

def bf16r_pair(g, a, b, t):
    g(f'''v_cvt_pk_bf16_f32 {t}, {a}, {b}
    v_lshlrev_b32 {a}, 16, {t}
    v_and_b32 {b}, 0xffff0000, {t}''')

def bf16r(g, a):
    g(f'''v_cvt_pk_bf16_f32 {a}, {a}, {a}
    v_lshlrev_b32 {a}, 16, {a}''')

def allred_row16(g, op, v, t):
    for r in (1, 2, 4, 8):
        g(f's_nop 1\n{op}_dpp {t}, {v}, {v} row_ror:{r} row_mask:0xf bank_mask:0xf\nv_mov_b32 {v}, {t}')

def allred_x16(g, op, v, t):
    g(f'v_mov_b32 {t}, {v}\ns_nop 1\nv_permlane16_swap_b32 {v}, {t}\ns_nop 1\n{op} {v}, {v}, {t}')

def allred_x32(g, op, v, t):
    g(f'v_mov_b32 {t}, {v}\ns_nop 1\nv_permlane32_swap_b32 {v}, {t}\ns_nop 1\n{op} {v}, {v}, {t}')

def precise_div(g, d, num, den, t1, t2):
    g(f'''v_rcp_f32 {t1}, {den}
    s_nop 0
    v_mul_f32 {t2}, {num}, {t1}
    v_fma_f32 {d}, -{t2}, {den}, {num}
    v_fma_f32 {d}, {d}, {t1}, {t2}''')

def silu(g, x, t1, t2, t3):
    g(f'''v_mul_f32 {t1}, s60, {x}
    v_exp_f32 {t1}, -{t1}
    s_nop 0
    v_add_f32 {t1}, 1.0, {t1}''')
    g(f'''v_rcp_f32 {t2}, {t1}
    s_nop 0
    v_mul_f32 {t3}, {x}, {t2}
    v_fma_f32 {t1}, -{t3}, {t1}, {x}
    v_fma_f32 {t1}, {t1}, {t2}, {t3}
    v_cmp_eq_f32 vcc, 0, {t2}
    s_nop 1
    v_cndmask_b32 {x}, {t1}, {t3}, vcc''')

A_T = 8
A_B = 24
A_ACC = 40
A_POOL = 72

def tile_loads(g, vm, srdreg, sbase, rowbytes, kk, slot, tag, voff='v1', stmp='s46'):
    for i in range(8):
        r = A_POOL + 32 * slot + 4 * i
        g(f's_add_u32 {stmp}, {sbase}, {(32 * kk + i) * rowbytes}')
        g(f'buffer_load_dwordx4 v[{r}:{r+3}], {voff}, s[{srdreg}:{srdreg+3}], {stmp} offen nt')
        vm.issue(tag)

def tile_block_mfma(g, slot, kk, first, breg):
    base = A_POOL + 32 * slot
    for half in range(2):
        for tt in range(4):
            t = 4 * half + tt
            d = t >> 1
            sel = 's58' if (t & 1) == 0 else 's59'
            o = A_T + 4 * tt
            for p in range(4):
                g(f'v_perm_b32 v{o+p}, v{base + 4*(2*p+1) + d}, v{base + 4*(2*p) + d}, {sel}')
        g('s_nop 1')
        for tt in range(4):
            t = 4 * half + tt
            o = A_T + 4 * tt
            acc = A_ACC + 4 * t
            c = '0' if first else f'v[{acc}:{acc+3}]'
            g(f'v_mfma_f32_16x16x32_bf16 v[{acc}:{acc+3}], v[{o}:{o+3}], v[{breg}:{breg+3}], {c}')

def gemv_tile(g, vm, srdreg, sbase, rowbytes, ldsaddr_v, pre_issued, tagp, wait_fn=None):
    if wait_fn:
        wait_fn()
    for kk in range(4):
        g(f'ds_read_b128 v[{A_B+4*kk}:{A_B+4*kk+3}], {ldsaddr_v} offset:{64*kk}')
    g('s_waitcnt lgkmcnt(0)')
    for kk in range(4):
        vm.wait(f'{tagp}{kk}')
        tile_block_mfma(g, kk % 3, kk, kk == 0, A_B + 4 * kk)
        if kk == 0:
            tile_loads(g, vm, srdreg, sbase, rowbytes, 3, 0, f'{tagp}3')

def lane_masks(g):
    g('''s_mov_b32 s80, 0xcccccccc
    s_mov_b32 s81, 0xcccccccc
    s_mov_b32 s82, 0xf0f0f0f0
    s_mov_b32 s83, 0xf0f0f0f0
    s_mov_b32 s84, 0xff00ff00
    s_mov_b32 s85, 0xff00ff00''')

def select8(g, accs, levels=3):
    cur = list(accs)
    lv = 0
    while len(cur) > 1:
        nxt = []
        for i in range(0, len(cur), 2):
            a, b = cur[i], cur[i + 1]
            for r in range(4):
                g(f'v_cndmask_b32 v{a+r}, v{a+r}, v{b+r}, s[{80+2*lv}:{81+2*lv}]')
            nxt.append(a)
        cur = nxt
        lv += 1
    return cur[0]

def tagged_store(g, vm, r, soff, voff, x=8, stmp='s57', vtmp='v7'):
    g(f'''v_mov_b32 v{x}, v{r+3}
    v_mov_b32 v{x+1}, s55
    v_mov_b32 v{r+3}, s55
    v_lshrrev_b32 {vtmp}, 1, {voff}
    s_lshr_b32 {stmp}, {soff}, 1
    s_add_u32 {stmp}, {stmp}, {W_B}
    buffer_store_dwordx4 v[{r}:{r+3}], {voff}, s[36:39], {soff} offen sc1
    buffer_store_dwordx2 v[{x}:{x+1}], {vtmp}, s[36:39], {stmp} offen sc1''')
    vm.issue('st'); vm.issue('st')

def publish_acc(g, vm, soff, voff='v2', tagged=True):
    g('s_nop 7\ns_nop 1')
    r = select8(g, [A_ACC + 4 * t for t in range(8)])
    if tagged:
        tagged_store(g, vm, r, soff, voff)
    else:
        g(f'buffer_store_dwordx4 v[{r}:{r+3}], {voff}, s[36:39], {soff} offen sc1')
        vm.issue('st')

def tag_check(g, tags, acc='v7', tmp='v6'):
    tags = list(tags)
    g(f'v_xor_b32 {acc}, s55, v{tags[0]}')
    for t in tags[1:]:
        g(f'v_xor_b32 {tmp}, s55, v{t}\nv_or_b32 {acc}, {acc}, {tmp}')
    g(f'v_cmp_ne_u32 vcc, 0, {acc}')

NOHOP = False
PLAIN = True
def plain_first(g, issue_fn, check_fn, d):
    n0 = len(g.L)
    issue_fn()
    for i in range(n0, len(g.L)):
        g.L[i] = g.L[i].replace(' sc1', '')
    g('s_waitcnt vmcnt(0)')
    check_fn()
    g(f's_cbranch_vccz {d}')

def tpoll_loop(g, issue_fn, tags, sleep=2, sc='s51', acc='v7', tmp='v6', plain=False):
    l = g.uniq('TP'); d = g.uniq('TPD')
    if plain and PLAIN:
        plain_first(g, issue_fn, lambda: tag_check(g, tags, acc, tmp), d)
    g(f's_mov_b32 {sc}, {1 if NOHOP else SPIN_GLB}')
    g.label(l)
    issue_fn()
    g('s_waitcnt vmcnt(0)')
    tag_check(g, tags, acc, tmp)
    g(f'''s_cbranch_vccz {d}
    s_sleep {sleep}
    s_sub_u32 {sc}, {sc}, 1
    s_cmp_lg_u32 {sc}, 0
    s_cbranch_scc1 {l}''')
    g.label(d)

def read_nonce(g):
    lds_wait(g, C_N, 1)
    g('s_mov_b32 s55, s50')

def sentinel_check(g, regs, vmx):
    regs = list(regs)
    g(f'v_max_u32 {vmx}, v{regs[0]}, v{regs[1]}')
    i = 2
    while i < len(regs):
        if i + 1 < len(regs):
            g(f'v_max3_u32 {vmx}, {vmx}, v{regs[i]}, v{regs[i+1]}')
            i += 2
        else:
            g(f'v_max_u32 {vmx}, {vmx}, v{regs[i]}')
            i += 1
    g(f'v_cmp_eq_u32 vcc, -1, {vmx}')

def poll_loop(g, issue_fn, regs, vmx='v7', sc='s51', sleep=2, plain=False):
    l = g.uniq('PL'); d = g.uniq('PLD')
    if plain and PLAIN:
        plain_first(g, issue_fn, lambda: sentinel_check(g, regs, vmx), d)
    g(f's_mov_b32 {sc}, {1 if NOHOP else SPIN_GLB}')
    g.label(l)
    issue_fn()
    g('s_waitcnt vmcnt(0)')
    sentinel_check(g, regs, vmx)
    g(f'''s_cbranch_vccz {d}
    s_sleep {sleep}
    s_sub_u32 {sc}, {sc}, 1
    s_cmp_lg_u32 {sc}, 0
    s_cbranch_scc1 {l}''')
    g.label(d)

def arrive(g, sidx, n, stmp='s46', sctr=None, ack=True):
    d = g.uniq('ARR')
    if sctr is None:
        g(f's_lshl_b32 {stmp}, {sidx}, 2')
        srdn = 40
    else:
        g(f's_lshl_b32 {stmp}, {sctr}, 7\ns_add_u32 {stmp}, {stmp}, {W_CT}')
        srdn = 36
    g(f'''v_mov_b32 v6, {stmp}
    v_mov_b32 v7, 1
    {'s_waitcnt vmcnt(0)' if ack else 's_nop 0'}
    s_mov_b64 exec, 1
    buffer_atomic_add v7, v6, s[{srdn}:{srdn+3}], 0 offen sc0
    s_waitcnt vmcnt(0)
    v_readfirstlane_b32 {stmp}, v7
    s_cmp_eq_u32 {stmp}, {n-1}
    s_cbranch_scc0 {d}
    s_lshl_b32 {stmp}, {sidx}, 7
    s_add_u32 {stmp}, {stmp}, {W_FL}
    v_mov_b32 v6, 0
    v_mov_b32 v7, s55
    buffer_store_dword v7, v6, s[36:39], {stmp} offen sc1''')
    g.label(d)
    g('s_mov_b64 exec, -1')

def flag_wait(g, sidx, sleep, stmp='s46'):
    l = g.uniq('FW'); d = g.uniq('FWD')
    g(f'''s_lshl_b32 {stmp}, {sidx}, 7
    s_add_u32 {stmp}, {stmp}, {W_FL}
    v_mov_b32 v6, 0
    s_mov_b32 s51, {1 if NOHOP else SPIN_GLB}
    s_mov_b64 exec, 1''')
    g.label(l)
    g(f'''buffer_load_dword v7, v6, s[36:39], {stmp} offen sc1
    s_waitcnt vmcnt(0)
    v_readfirstlane_b32 s50, v7
    s_cmp_eq_u32 s50, s55
    s_cbranch_scc1 {d}
    s_sleep {sleep}
    s_sub_u32 s51, s51, 1
    s_cmp_lg_u32 s51, 0
    s_cbranch_scc1 {l}''')
    g.label(d)
    g('s_mov_b64 exec, -1')

def q_gather(g, args, rnd, tsa=None):
    g(f'''s_lshr_b32 s44, s86, 5
    s_lshl_b32 s44, s44, 15
    s_add_u32 s44, s44, {W_Q + rnd*16384}
    s_lshr_b32 s45, s44, 1
    s_add_u32 s45, s45, {W_B}
    s_lshr_b32 s48, s86, 6
    s_add_u32 s48, s48, 1''')
    flag_wait(g, 's48', args.fsleep)
    if tsa is not None:
        ts(g, tsa)
    g('''v_lshrrev_b32 v2, 5, v0
    v_lshlrev_b32 v2, 12, v2
    v_and_b32 v3, 31, v0
    v_lshl_add_u32 v2, v3, 4, v2
    v_lshrrev_b32 v3, 1, v2
    v_lshrrev_b32 v8, 5, v0
    v_lshlrev_b32 v8, 8, v8
    v_bfe_u32 v9, v0, 3, 2
    v_lshlrev_b32 v9, 6, v9
    v_and_b32 v10, 7, v0
    v_lshlrev_b32 v10, 1, v10
    v_add3_u32 v8, v8, v9, v10''')
    def issue_q2():
        for hh in range(2):
            g(f's_add_u32 s46, s44, {hh*8192}\ns_add_u32 s48, s45, {hh*4096}')
            for ks in range(8):
                r = 40 + 32 * hh + 4 * ks
                rb = 104 + 16 * hh + 2 * ks
                g(f'buffer_load_dwordx4 v[{r}:{r+3}], v2, s[36:39], s46 offen offset:{ks*512} sc1')
                g(f'buffer_load_dwordx2 v[{rb}:{rb+1}], v3, s[36:39], s48 offen offset:{ks*256} sc1')
    tags = [43 + 4 * i for i in range(16)] + [105 + 2 * i for i in range(16)]
    if 'q2' not in args.skip:
        tpoll_loop(g, issue_q2, tags, sleep=4, plain=True)
    for hh in range(2):
        hp = 2 * rnd + hh
        for r in range(4):
            src = (lambda ks: 40 + 32 * hh + 4 * ks + r) if r < 3 else (lambda ks: 104 + 16 * hh + 2 * ks)
            g(f'v_add_f32 v{12+r}, v{src(0)}, v{src(1)}')
            for ks in range(2, 8):
                g(f'v_add_f32 v{12+r}, v{12+r}, v{src(ks)}')
        g(f'''v_cvt_pk_bf16_f32 v12, v12, v13
        v_cvt_pk_bf16_f32 v14, v14, v15
        ds_write_b16 v8, v12 offset:{L_Q + 512*hp}
        ds_write_b16_d16_hi v8, v12 offset:{L_Q + 512*hp + 16}
        ds_write_b16 v8, v14 offset:{L_Q + 512*hp + 32}
        ds_write_b16_d16_hi v8, v14 offset:{L_Q + 512*hp + 48}''')
    lds_signal(g, C_Q, add=True)

PROF = False
def ts(g, i):
    if PROF:
        g(f's_memrealtime s[96:97]\ns_waitcnt lgkmcnt(0)\ns_mov_b32 s{64+i}, s96')
def ts_dump(g, n):
    if not PROF:
        return
    g(f'''s_mul_i32 s62, s2, 12
    s_add_u32 s62, s62, s3
    s_lshl_b32 s62, s62, 6
    s_add_u32 s62, s62, 0x8000000
    s_mov_b64 exec, 1
    v_mov_b32 v6, 0''')
    for i in range(16):
        g(f'v_mov_b32 v7, s{64+i}\nbuffer_store_dword v7, v6, s[36:39], s62 offen offset:{4*i}')

def gen(args):
    global PROF, NOHOP, NOLDS, PLAIN
    PLAIN = bool(args.plain)
    NOLDS = args.nolds
    PROF = args.prof
    NOHOP = args.nohop
    g = Gen()
    H = []
    H.append(f'; @launch grid=({NWG},1,1) block=(512,1,1) lds={LDS_BYTES}')
    H.append('.amdgcn_target "amdgcn-amd-amdhsa--gfx950"\n.text')
    H.append(f'.globl {KN}\n.p2align 8\n.type {KN},@function\n{KN}:')
    g(f'''s_cmp_ge_u32 s2, {NWG}
    s_cbranch_scc1 L_END
    s_load_dwordx16 s[4:19], s[0:1], 0
    s_load_dwordx8 s[20:27], s[0:1], 64
    v_lshrrev_b32 v1, 6, v0
    v_and_b32 v0, 63, v0
    s_mov_b32 s58, 0x05040100
    s_mov_b32 s59, 0x07060302
    v_readfirstlane_b32 s3, v1
    s_mov_b32 s60, {LOG2E}
    s_mov_b32 s61, {SCALE}
    s_waitcnt lgkmcnt(0)''')
    srd(g, 36, 26, 0x10000000)
    lane_masks(g)
    srd(g, 40, 24, 256)
    if args.remap:
        g('''s_and_b32 s90, s2, 7
        s_lshr_b32 s91, s2, 3
        s_lshl_b32 s86, s90, 5
        s_add_u32 s86, s86, s91
        s_lshr_b32 s92, s90, 1
        s_lshl_b32 s92, s92, 6
        s_and_b32 s93, s90, 1
        s_lshl_b32 s87, s91, 1
        s_add_u32 s87, s87, s93
        s_add_u32 s87, s87, s92
        s_lshl_b32 s88, s93, 2
        s_and_b32 s94, s91, 3
        s_add_u32 s88, s88, s94
        s_lshl_b32 s88, s88, 3
        s_lshr_b32 s94, s91, 2
        s_add_u32 s88, s88, s94
        s_add_u32 s88, s88, s92
        s_lshr_b32 s89, s91, 3
        s_lshl_b32 s89, s89, 3
        s_add_u32 s89, s89, s90
        s_cmp_lt_u32 s89, 28
        s_cselect_b32 s95, 1, 0
        s_lshl_b32 s89, s89, 3
        s_and_b32 s94, s91, 7
        s_add_u32 s89, s89, s94
        s_add_u32 s89, s89, 32
        s_mul_i32 s89, s89, s95''')
    else:
        g('s_mov_b32 s86, s2\ns_mov_b32 s87, s2\ns_mov_b32 s88, s2\ns_mov_b32 s89, s2')
    ts(g, 0)
    if args.noaux:
        g('s_cmp_ge_u32 s3, 4\ns_cbranch_scc1 L_BULK\ns_barrier\ns_endpgm')
    g('''s_cmp_ge_u32 s3, 4
    s_cbranch_scc1 L_BULK
    s_cmp_eq_u32 s3, 0
    s_cbranch_scc1 L_A0
    s_cmp_eq_u32 s3, 3
    s_cbranch_scc1 L_A3
    s_branch L_A12''')

    g.label('L_A3')
    srd(g, 28, 4, 4096)
    g('''v_lshlrev_b32 v1, 6, v0
    buffer_load_dwordx4 v[8:11], v1, s[28:31], 0 offen
    buffer_load_dwordx4 v[12:15], v1, s[28:31], 0 offen offset:16
    buffer_load_dwordx4 v[16:19], v1, s[28:31], 0 offen offset:32
    buffer_load_dwordx4 v[20:23], v1, s[28:31], 0 offen offset:48''')
    g(f'''v_mov_b32 v2, 0
    v_lshlrev_b32 v3, 2, v0
    v_add_u32 v3, {L_CT}, v3
    s_mov_b64 exec, 0xffff
    ds_write_b32 v3, v2
    s_mov_b64 exec, -1
    s_waitcnt lgkmcnt(0)
    s_barrier
    s_waitcnt vmcnt(0)''')
    for i in range(16):
        g(f'v_lshlrev_b32 v{24+2*i}, 16, v{8+i}\nv_and_b32 v{25+2*i}, 0xffff0000, v{8+i}')
    g('v_add_f32 v56, v24, v25')
    for i in range(26, 56):
        g(f'v_add_f32 v56, v56, v{i}')
    allred_row16(g, 'v_add_f32', 'v56', 'v57')
    allred_x16(g, 'v_add_f32', 'v56', 'v57')
    g('v_mul_f32 v56, 0x3a800000, v56')
    g('v_sub_f32 v58, v24, v56\nv_mul_f32 v59, v58, v58')
    for i in range(25, 56):
        g(f'v_sub_f32 v58, v{i}, v56\nv_fma_f32 v59, v58, v58, v59')
    allred_row16(g, 'v_add_f32', 'v59', 'v57')
    allred_x16(g, 'v_add_f32', 'v59', 'v57')
    g('v_mul_f32 v59, 0x3a800000, v59')
    bf16r(g, 'v56')
    bf16r(g, 'v59')
    g(f'v_add_f32 v59, {EPS}, v59')
    bf16r(g, 'v59')
    g('''v_sqrt_f32 v60, v59
    s_nop 0
    v_rcp_f32 v61, v60
    v_fma_f32 v62, -v60, v60, v59
    v_mul_f32 v61, 0.5, v61
    v_fma_f32 v60, v62, v61, v60''')
    bf16r(g, 'v60')
    g('v_rcp_f32 v61, v60')
    for i in range(16):
        a, b = f'v{24+2*i}', f'v{25+2*i}'
        g(f'v_sub_f32 {a}, {a}, v56\nv_sub_f32 {b}, {b}, v56')
        bf16r_pair(g, a, b, 'v62')
        for r in (a, b):
            g(f'''v_mul_f32 v62, {r}, v61
            v_fma_f32 v63, -v62, v60, {r}
            v_fma_f32 {r}, v63, v61, v62''')
        g(f'v_cvt_pk_bf16_f32 v{8+i}, {a}, {b}')
    g(f'''ds_write_b128 v1, v[8:11] offset:{L_XN}
    ds_write_b128 v1, v[12:15] offset:{L_XN+16}
    ds_write_b128 v1, v[16:19] offset:{L_XN+32}
    ds_write_b128 v1, v[20:23] offset:{L_XN+48}''')
    lds_signal(g, C_X)
    ts(g, 1)
    read_nonce(g)
    q_gather(g, args, 1)
    lds_wait(g, C_Q, 2)
    ts(g, 2)
    ts(g, 3)
    lds_wait(g, C_ST, 4)
    ts(g, 4)
    g(f'''v_and_b32 v1, 7, v0
    v_lshlrev_b32 v1, 2, v1''')
    for w in range(4):
        g(f'ds_read_b32 v{8+w}, v1 offset:{L_ST + 64*w}\nds_read_b32 v{16+w}, v1 offset:{L_ST + 64*w + 32}')
    g('s_waitcnt lgkmcnt(0)')
    g('v_max3_f32 v24, v8, v9, v10\nv_max_f32 v24, v24, v11')
    g('v_mov_b32 v25, 0')
    for w in range(4):
        g(f'''v_sub_f32 v26, v{8+w}, v24
        v_mul_f32 v26, s60, v26
        v_exp_f32 v26, v26
        s_nop 0
        v_fma_f32 v25, v26, v{16+w}, v25''')
    if args.noml:
        g(f'''v_and_b32 v2, 7, v0
        v_lshlrev_b32 v2, 2, v2
        v_mov_b32 v26, 1.0
        s_mov_b64 exec, 0xff
        ds_write_b32 v2, v24 offset:{L_ML}
        ds_write_b32 v2, v26 offset:{L_ML+32}
        s_mov_b64 exec, -1
        s_lshl_b32 s46, s86, 6
        s_add_u32 s46, s46, {W_ML}
        v_cndmask_b32 v24, v24, v25, s[84:85]
        v_lshlrev_b32 v1, 2, v0
        s_mov_b64 exec, 0xffff
        buffer_store_dword v24, v1, s[36:39], s46 offen sc1
        s_mov_b64 exec, -1''')
        ts(g, 5)
    else:
        g(f'''s_lshl_b32 s46, s86, 6
        s_add_u32 s46, s46, {W_ML}
        v_cndmask_b32 v24, v24, v25, s[84:85]
        v_lshlrev_b32 v1, 2, v0
        s_mov_b64 exec, 0xffff
        buffer_store_dword v24, v1, s[36:39], s46 offen sc1
        s_mov_b64 exec, -1
        s_lshr_b32 s48, s86, 5
        s_add_u32 s48, s48, 8''')
        g('s_andn2_b32 s49, s86, 31\ns_add_u32 s49, s49, 256')
        arrive(g, 's48', 32, sctr='s49', ack=False)
        flag_wait(g, 's48', 8)
        g(f'''s_andn2_b32 s44, s86, 31
        s_lshl_b32 s44, s44, 6
        s_add_u32 s44, s44, {W_ML}
        v_and_b32 v1, 31, v0
        v_lshlrev_b32 v1, 6, v1
        v_lshrrev_b32 v2, 5, v0
        v_lshl_add_u32 v1, v2, 4, v1''')
        def issue_ml():
            g('buffer_load_dwordx4 v[8:11], v1, s[36:39], s44 offen sc1')
            g('buffer_load_dwordx4 v[12:15], v1, s[36:39], s44 offen offset:32 sc1')
        poll_loop(g, issue_ml, range(8, 16), sleep=8)
        ts(g, 5)
        for r in range(4):
            g(f'v_mov_b32 v{16+r}, v{8+r}')
            allred_row16(g, 'v_max_f32', f'v{16+r}', 'v24')
            allred_x16(g, 'v_max_f32', f'v{16+r}', 'v24')
            g(f'''v_sub_f32 v24, v{8+r}, v{16+r}
            v_mul_f32 v24, s60, v24
            v_exp_f32 v24, v24
            s_nop 0
            v_mul_f32 v{12+r}, v{12+r}, v24''')
            allred_row16(g, 'v_add_f32', f'v{12+r}', 'v24')
            allred_x16(g, 'v_add_f32', f'v{12+r}', 'v24')
            g('v_mov_b32 v26, 1.0')
            precise_div(g, f'v{20+r}', 'v26', f'v{12+r}', 'v24', 'v25')
        g(f'''v_lshrrev_b32 v2, 5, v0
        v_lshlrev_b32 v2, 4, v2
        s_mov_b32 exec_lo, 1
        s_mov_b32 exec_hi, 1
        ds_write_b128 v2, v[16:19] offset:{L_ML}
        ds_write_b128 v2, v[20:23] offset:{L_ML+32}
        s_mov_b64 exec, -1''')
    lds_signal(g, C_ML)
    g('s_cmp_lt_u32 s89, 32\ns_cbranch_scc1 L_A3_OG')
    g(f'''s_sub_u32 s44, s89, 32
    s_lshr_b32 s44, s44, 3
    s_lshl_b32 s44, s44, 14
    s_add_u32 s44, s44, {W_GU}
    s_lshr_b32 s45, s44, 1
    s_add_u32 s45, s45, {W_B}
    v_lshlrev_b32 v1, 4, v0
    v_lshlrev_b32 v2, 3, v0''')
    g('s_sub_u32 s48, s89, 32\ns_lshr_b32 s48, s48, 3\ns_add_u32 s48, s48, 16')
    flag_wait(g, 's48', 32)
    def issue_h():
        for ks in range(8):
            g(f's_add_u32 s46, s44, {ks*2048}\ns_add_u32 s48, s45, {ks*1024}')
            g(f'buffer_load_dwordx4 v[{72+4*ks}:{75+4*ks}], v1, s[36:39], s46 offen sc1')
            g(f'buffer_load_dwordx4 v[{104+4*ks}:{107+4*ks}], v1, s[36:39], s46 offen offset:1024 sc1')
            g(f'buffer_load_dwordx2 v[{136+2*ks}:{137+2*ks}], v2, s[36:39], s48 offen sc1')
            g(f'buffer_load_dwordx2 v[{152+2*ks}:{153+2*ks}], v2, s[36:39], s48 offen offset:512 sc1')
    tags = [75 + 4 * k for k in range(8)] + [107 + 4 * k for k in range(8)] + [137 + 2 * k for k in range(8)] + [153 + 2 * k for k in range(8)]
    if 'h2' not in args.skip:
        tpoll_loop(g, issue_h, tags, sleep=16, plain=True)
    for r in range(4):
        ga = (lambda ks: 72 + 4 * ks + r) if r < 3 else (lambda ks: 136 + 2 * ks)
        ua = (lambda ks: 104 + 4 * ks + r) if r < 3 else (lambda ks: 152 + 2 * ks)
        g(f'v_add_f32 v{8+r}, v{ga(0)}, v{ga(1)}\nv_add_f32 v{12+r}, v{ua(0)}, v{ua(1)}')
        for ks in range(2, 8):
            g(f'v_add_f32 v{8+r}, v{8+r}, v{ga(ks)}\nv_add_f32 v{12+r}, v{12+r}, v{ua(ks)}')
    bf16r_pair(g, 'v8', 'v9', 'v16'); bf16r_pair(g, 'v10', 'v11', 'v16')
    bf16r_pair(g, 'v12', 'v13', 'v16'); bf16r_pair(g, 'v14', 'v15', 'v16')
    for r in range(4):
        silu(g, f'v{8+r}', 'v16', 'v17', 'v18')
    bf16r_pair(g, 'v8', 'v9', 'v16'); bf16r_pair(g, 'v10', 'v11', 'v16')
    for r in range(4):
        g(f'v_mul_f32 v{8+r}, v{8+r}, v{12+r}')
    g('v_cvt_pk_bf16_f32 v8, v8, v9\nv_cvt_pk_bf16_f32 v10, v10, v11')
    g(f'''v_lshrrev_b32 v2, 5, v0
    v_lshlrev_b32 v2, 8, v2
    v_bfe_u32 v3, v0, 3, 2
    v_lshlrev_b32 v3, 6, v3
    v_and_b32 v4, 7, v0
    v_lshlrev_b32 v4, 1, v4
    v_add3_u32 v5, v2, v3, v4
    ds_write_b16 v5, v8 offset:{L_H}
    ds_write_b16_d16_hi v5, v8 offset:{L_H+16}
    ds_write_b16 v5, v10 offset:{L_H+32}
    ds_write_b16_d16_hi v5, v10 offset:{L_H+48}''')
    lds_signal(g, C_H)
    g.label('L_A3_OG')
    g(f'''s_lshr_b32 s44, s88, 3
    s_lshl_b32 s44, s44, 15
    s_bfe_u32 s45, s88, 0x10002
    s_lshl_b32 s45, s45, 8
    s_add_u32 s44, s44, s45
    s_add_u32 s44, s44, {W_O}
    v_bfe_u32 v2, v0, 4, 1
    v_lshlrev_b32 v2, 14, v2
    v_lshrrev_b32 v3, 5, v0
    v_lshl_add_u32 v2, v3, 13, v2
    v_and_b32 v1, 15, v0
    v_lshl_add_u32 v1, v1, 4, v2''')
    def issue_o():
        for sp in range(16):
            if sp % 8 == 0:
                g(f's_add_u32 s46, s44, {sp*512}')
            g(f'buffer_load_dwordx4 v[{40+4*sp}:{43+4*sp}], v1, s[36:39], s46 offen offset:{(sp%8)*512} sc1')
    if args.noml:
        lds_wait(g, C_V, 1)
        g(f'''s_lshr_b32 s48, s88, 6
        s_lshl_b32 s48, s48, 12
        s_bfe_u32 s49, s88, 0x30003
        s_lshl_b32 s49, s49, 2
        s_add_u32 s48, s48, s49
        s_add_u32 s48, s48, {W_ML}
        v_lshlrev_b32 v2, 6, v0''')
        def issue_w():
            g('buffer_load_dword v8, v2, s[36:39], s48 offen sc1')
            g('buffer_load_dword v9, v2, s[36:39], s48 offen offset:32 sc1')
        poll_loop(g, issue_w, [8, 9], sleep=8)
        g('v_mov_b32 v10, v8')
        allred_row16(g, 'v_max_f32', 'v10', 'v11')
        allred_x16(g, 'v_max_f32', 'v10', 'v11')
        g('''v_sub_f32 v8, v8, v10
        v_mul_f32 v8, s60, v8
        v_exp_f32 v8, v8
        s_nop 0
        v_mul_f32 v9, v9, v8''')
        allred_row16(g, 'v_add_f32', 'v9', 'v11')
        allred_x16(g, 'v_add_f32', 'v9', 'v11')
        precise_div(g, 'v10', 'v8', 'v9', 'v11', 'v12')
        g(f'''v_lshlrev_b32 v2, 2, v0
        ds_write_b32 v2, v10 offset:{L_W}
        v_bfe_u32 v2, v0, 4, 1
        v_lshlrev_b32 v2, 7, v2
        v_lshrrev_b32 v3, 5, v0
        v_lshl_add_u32 v2, v3, 6, v2
        s_waitcnt lgkmcnt(0)
        ds_read_b128 v[24:27], v2 offset:{L_W}
        ds_read_b128 v[28:31], v2 offset:{L_W+16}
        ds_read_b128 v[32:35], v2 offset:{L_W+32}
        ds_read_b128 v[36:39], v2 offset:{L_W+48}''')
    lds_wait(g, C_O, 4)
    if 'o2' not in args.skip:
        poll_loop(g, issue_o, range(40, 104), sleep=1)
    ts(g, 6)
    for r in range(4):
        if args.noml:
            g(f'v_mul_f32 v{8+r}, v{40+r}, v24\nv_mul_f32 v{12+r}, v{44+r}, v25')
            for sp in range(2, 16, 2):
                g(f'v_fma_f32 v{8+r}, v{40+4*sp+r}, v{24+sp}, v{8+r}\nv_fma_f32 v{12+r}, v{44+4*sp+r}, v{25+sp}, v{12+r}')
        else:
            g(f'v_add_f32 v{8+r}, v{40+r}, v{44+r}\nv_add_f32 v{12+r}, v{48+r}, v{52+r}')
            for sp in range(4, 16, 2):
                g(f'v_add_f32 v{8+r}, v{8+r}, v{40+4*sp+r}\nv_add_f32 v{12+r}, v{12+r}, v{44+4*sp+r}')
        g(f'v_add_f32 v{8+r}, v{8+r}, v{12+r}')
    for r in range(4):
        allred_x32(g, 'v_add_f32', f'v{8+r}', 'v12')
    g('v_cvt_pk_bf16_f32 v8, v8, v9\nv_cvt_pk_bf16_f32 v10, v10, v11')
    g(f'''v_bfe_u32 v2, v0, 4, 1
    v_lshlrev_b32 v2, 7, v2
    v_bfe_u32 v3, v0, 3, 1
    v_lshlrev_b32 v3, 6, v3
    v_and_b32 v4, 7, v0
    v_lshlrev_b32 v4, 1, v4
    v_add3_u32 v5, v2, v3, v4
    s_mov_b32 exec_hi, 0
    ds_write_b16 v5, v8 offset:{L_OB}
    ds_write_b16_d16_hi v5, v8 offset:{L_OB+16}
    ds_write_b16 v5, v10 offset:{L_OB+32}
    ds_write_b16_d16_hi v5, v10 offset:{L_OB+48}
    s_mov_b64 exec, -1''')
    lds_signal(g, C_OG)
    ts(g, 7)
    ts_dump(g, 8)
    g('s_endpgm')

    g.label('L_A0')
    vm = VM(g)
    srd(g, 40, 24, 256)
    g('''s_memrealtime s[54:55]
    v_mov_b32 v8, -1
    v_mov_b32 v9, -1
    v_mov_b32 v10, -1
    v_mov_b32 v11, -1
    v_lshlrev_b32 v3, 4, v0
    v_lshrrev_b32 v4, 5, v0
    v_and_b32 v5, 31, v0
    v_lshlrev_b32 v5, 4, v5
    v_mov_b32 v13, 0
    v_mov_b32 v14, 0
    s_waitcnt lgkmcnt(0)
    s_or_b32 s54, s54, 1
    v_mov_b32 v12, s54
    s_mov_b64 exec, 1
    buffer_atomic_cmpswap v[12:13], v14, s[40:43], 0 offen sc0
    s_mov_b64 exec, -1''')
    vm.issue('nonce')
    def clr(voff, off=0):
        g(f'buffer_store_dwordx4 v[8:11], {voff}, s[36:39], s46 offen offset:{off} sc1')
        vm.issue('clr')
    g(f'''s_sub_u32 s48, s89, 32
    s_and_b32 s48, s48, 255
    s_and_b32 s46, s48, 7
    s_lshl_b32 s46, s46, 15
    s_lshr_b32 s48, s48, 3
    s_lshl_b32 s48, s48, 9
    s_add_u32 s46, s46, s48
    s_add_u32 s56, s46, {W_F}
    s_mov_b32 s46, s56
    v_lshl_add_u32 v6, v4, 14, v5''')
    clr('v6')
    g(f'''s_and_b32 s46, s88, 3
    s_lshl_b32 s46, s46, 17
    s_lshr_b32 s48, s88, 2
    s_lshl_b32 s48, s48, 9
    s_add_u32 s46, s46, s48
    s_add_u32 s46, s46, {W_S}
    v_lshl_add_u32 v6, v4, 15, v5''')
    clr('v6')
    g('s_add_u32 s46, s46, 65536')
    clr('v6')
    g(f'''s_lshr_b32 s46, s86, 6
    s_lshl_b32 s46, s46, 18
    s_bfe_u32 s48, s86, 0x10005
    s_lshl_b32 s48, s48, 14
    s_add_u32 s46, s46, s48
    s_and_b32 s48, s86, 31
    s_lshl_b32 s48, s48, 9
    s_add_u32 s46, s46, s48
    s_add_u32 s46, s46, {W_O}
    v_lshl_add_u32 v6, v4, 15, v5''')
    for i in range(4):
        clr('v6')
        if i < 3:
            g('s_add_u32 s46, s46, 65536')
    g(f'''s_lshl_b32 s46, s86, 6
    s_add_u32 s46, s46, {W_ML}
    s_mov_b64 exec, 15''')
    clr('v3')
    g(f'''s_mov_b64 exec, 1
    s_lshl_b32 s46, s2, 7
    s_add_u32 s46, s46, {W_CT}
    buffer_store_dword v14, v14, s[36:39], s46 offen sc1
    s_lshl_b32 s46, s86, 7
    s_add_u32 s46, s46, {W_CT + 256*128}
    buffer_store_dword v14, v14, s[36:39], s46 offen sc1''')
    vm.issue('clr'); vm.issue('clr')
    g('s_mov_b64 exec, -1')
    g(f'''s_lshr_b32 s47, s87, 6
    s_lshl_b32 s47, s47, 16
    s_and_b32 s48, s87, 63
    s_lshl_b32 s48, s48, 9
    s_add_u32 s47, s47, s48
    s_add_u32 s47, s47, {W_Q}''')
    srd(g, 28, 10, 8 * 1024 * 1024)
    g('''s_and_b32 s44, s87, 7
    s_lshl_b32 s45, s44, 20
    s_lshr_b32 s46, s87, 3
    s_lshl_b32 s46, s46, 8
    s_add_u32 s45, s45, s46
    v_lshrrev_b32 v4, 4, v0
    v_and_b32 v5, 15, v0
    v_lshlrev_b32 v1, 16, v4
    v_lshl_add_u32 v1, v5, 4, v1''')
    for kk in range(4):
        for i in range(8):
            r = 40 + 32 * kk + 4 * i
            g(f's_add_u32 s46, s45, {(32 * kk + i) * 8192}')
            g(f'buffer_load_dwordx4 v[{r}:{r+3}], v1, s[28:31], s46 offen nt')
            vm.issue(f'wq{kk}')
    g(f'''v_and_b32 v2, 1, v0
    v_lshlrev_b32 v3, 11, v2
    v_lshl_add_u32 v3, v4, 4, v3
    s_lshl_b32 s46, s44, 8
    v_add_u32 v3, s46, v3
    v_lshlrev_b32 v2, 15, v2
    v_lshl_add_u32 v2, v4, 7, v2
    v_bfe_u32 v6, v0, 1, 3
    v_lshl_add_u32 v2, v6, 4, v2
    s_barrier''')
    lds_wait(g, C_X, 1)
    ts(g, 1)
    vm.wait('clr')
    g(f'''v_readfirstlane_b32 s55, v12
    s_cmp_eq_u32 s55, 0
    s_cselect_b32 s55, s54, s55
    v_mov_b32 v6, {C_N}
    v_mov_b32 v7, s55
    s_mov_b64 exec, 1
    ds_write_b32 v6, v7
    s_mov_b64 exec, -1''')
    for half in range(2):
        for kk in range(4):
            b = 8 + 4 * (kk & 1)
            g(f'ds_read_b128 v[{b}:{b+3}], v3 offset:{64*kk}')
            if half == 0:
                vm.wait(f'wq{kk}')
            base = 40 + 32 * kk
            for tt in range(4):
                t = 4 * half + tt
                d = t >> 1
                sel = 's58' if (t & 1) == 0 else 's59'
                o = 16 + 4 * (tt & 1)
                for p in range(4):
                    g(f'v_perm_b32 v{o+p}, v{base + 4*(2*p+1) + d}, v{base + 4*(2*p) + d}, {sel}')
                acc = 24 + 4 * tt
                c = '0' if kk == 0 else f'v[{acc}:{acc+3}]'
                g('s_waitcnt lgkmcnt(0)\ns_nop 0' if tt == 0 else 's_nop 1')
                g(f'v_mfma_f32_16x16x32_bf16 v[{acc}:{acc+3}], v[{o}:{o+3}], v[{b}:{b+3}], {c}')
        g('s_nop 7\ns_nop 1')
        r = select8(g, [24 + 4 * tt for tt in range(4)])
        g('s_mov_b64 exec, s[84:85]' if half == 1 else 's_not_b64 exec, s[84:85]')
        tagged_store(g, vm, r, 's47', 'v2', x=16)
        g('s_mov_b64 exec, -1\ns_nop 1')
    srd(g, 32, 20, 3584 * 1024 * 2)
    g('s_lshr_b32 s48, s87, 6\ns_add_u32 s48, s48, 1')
    arrive(g, 's48', 64, ack=bool(args.qack))
    ts(g, 2)
    q_gather(g, args, 0, 3)
    vm.reset()
    ts(g, 4)
    g('s_cmp_lt_u32 s89, 32\ns_cbranch_scc1 L_A0_FIN')
    g('''s_sub_u32 s48, s89, 32
    s_lshr_b32 s49, s48, 3
    s_lshl_b32 s49, s49, 18
    s_and_b32 s48, s48, 7
    s_lshl_b32 s48, s48, 8
    s_add_u32 s48, s48, s49
    v_lshlrev_b32 v1, 14, v4
    v_lshl_add_u32 v1, v5, 4, v1''')
    if args.kfirst:
        lds_wait(g, C_K, 4)
    for kk in range(3):
        if kk >= args.ainfl:
            vm.wait(f'wd{kk-args.ainfl}')
        tile_loads(g, vm, 32, 's48', 2048, kk, kk, f'wd{kk}')
    g(f'''v_and_b32 v3, 1, v0
    v_lshlrev_b32 v3, 8, v3
    v_lshl_add_u32 v3, v4, 4, v3
    v_add_u32 v3, {L_H}, v3''')
    gemv_tile(g, vm, 32, 's48', 2048, 'v3', True, 'wd', wait_fn=lambda: lds_wait(g, C_H, 1))
    g('v_and_b32 v2, 1, v0\nv_lshlrev_b32 v2, 14, v2\nv_lshl_add_u32 v2, v4, 7, v2\nv_bfe_u32 v6, v0, 1, 3\nv_lshl_add_u32 v2, v6, 4, v2')
    publish_acc(g, vm, 's56', tagged=False)
    g.label('L_A0_FIN')
    ts(g, 5)
    srd(g, 28, 4, 4096)
    srd(g, 32, 22, 4096)
    g(f'''s_lshr_b32 s44, s2, 5
    s_bfe_u32 s45, s2, 0x10004
    s_and_b32 s46, s2, 15
    ; S gather: W_S + ((c*2+b)*64 + hh*2 + half)*512 + o8*32 + q2*16
    s_lshr_b32 s48, s2, 4
    s_lshl_b32 s49, s48, 14
    s_lshl_b32 s48, s48, 15
    s_lshl_b32 s53, s46, 5
    s_add_u32 s48, s48, s53
    s_add_u32 s49, s49, s53
    s_add_u32 s48, s48, {W_S}
    s_add_u32 s49, s49, {W_F}
    v_lshrrev_b32 v2, 1, v0
    v_and_b32 v3, 1, v0
    v_lshlrev_b32 v1, 10, v2
    v_lshl_add_u32 v1, v3, 4, v1
    v_min_u32 v2, 27, v2
    v_lshlrev_b32 v2, 9, v2
    v_lshl_add_u32 v2, v3, 4, v2
    ; x / out element offset: (b*1024 + 128c + 32g + t)*2 , g=o8>>2, t=2*(o8&3)+q2 ; +16 bytes per r
    s_lshl_b32 s52, s45, 10
    s_lshl_b32 s53, s44, 7
    s_add_u32 s52, s52, s53
    s_lshr_b32 s53, s46, 2
    s_lshl_b32 s53, s53, 5
    s_add_u32 s52, s52, s53
    s_and_b32 s53, s46, 3
    s_lshl_b32 s53, s53, 1
    s_add_u32 s52, s52, s53
    v_add_u32 v4, s52, v3
    v_lshlrev_b32 v4, 1, v4
    buffer_load_ushort v24, v4, s[28:31], 0 offen
    buffer_load_ushort v25, v4, s[28:31], 0 offen offset:16
    buffer_load_ushort v26, v4, s[28:31], 0 offen offset:32
    buffer_load_ushort v27, v4, s[28:31], 0 offen offset:48''')
    g(f'v_lshlrev_b32 v3, 7, v0\ns_mov_b32 s46, {W_FL + 128}\ns_mov_b64 exec, 15')
    def issue_f4b():
        g('buffer_load_dword v9, v3, s[36:39], s46 offen sc1')
    tpoll_loop(g, issue_f4b, [9], sleep=16)
    g('s_mov_b64 exec, -1')
    lds_wait(g, C_S, 2)
    def issue_fin():
        g('buffer_load_dwordx4 v[8:11], v1, s[36:39], s48 offen sc1')
        g('buffer_load_dwordx4 v[12:15], v1, s[36:39], s48 offen offset:512 sc1')
        g('buffer_load_dwordx4 v[16:19], v2, s[36:39], s49 offen sc1')
    poll_loop(g, issue_fin, range(8, 20), sleep=args.finsleep)
    ts(g, 6)
    g('v_cmp_gt_u32 vcc, 56, v0\ns_nop 1')
    for r in range(4):
        g(f'v_add_f32 v{8+r}, v{8+r}, v{12+r}')
        g(f'v_cndmask_b32 v{16+r}, 0, v{16+r}, vcc')
    for r in list(range(8, 12)) + list(range(16, 20)):
        for rr in (2, 4, 8):
            g(f's_nop 1\nv_add_f32_dpp v20, v{r}, v{r} row_ror:{rr} row_mask:0xf bank_mask:0xf\nv_mov_b32 v{r}, v20')
        allred_x16(g, 'v_add_f32', f'v{r}', 'v20')
        allred_x32(g, 'v_add_f32', f'v{r}', 'v20')
    bf16r_pair(g, 'v8', 'v9', 'v20'); bf16r_pair(g, 'v10', 'v11', 'v20')
    bf16r_pair(g, 'v16', 'v17', 'v20'); bf16r_pair(g, 'v18', 'v19', 'v20')
    for r in range(4):
        silu(g, f'v{16+r}', 'v20', 'v21', 'v22')
    bf16r_pair(g, 'v16', 'v17', 'v20'); bf16r_pair(g, 'v18', 'v19', 'v20')
    for r in range(4):
        g(f'v_mul_f32 v{8+r}, v{8+r}, v{16+r}')
    bf16r_pair(g, 'v8', 'v9', 'v20'); bf16r_pair(g, 'v10', 'v11', 'v20')
    for r in range(4):
        g(f'v_lshlrev_b32 v{24+r}, 16, v{24+r}\nv_add_f32 v{8+r}, v{8+r}, v{24+r}\nv_cvt_pk_bf16_f32 v{8+r}, v{8+r}, v{8+r}')
    g('''s_mov_b64 exec, 3
    buffer_store_short v8, v4, s[32:35], 0 offen
    buffer_store_short v9, v4, s[32:35], 0 offen offset:16
    buffer_store_short v10, v4, s[32:35], 0 offen offset:32
    buffer_store_short v11, v4, s[32:35], 0 offen offset:48''')
    ts(g, 7)
    ts_dump(g, 8)
    g('s_endpgm')

    g.label('L_A12')
    vm = VM(g)
    g('''s_cmp_eq_u32 s3, 1
    s_cselect_b32 s28, s16, s18
    s_cselect_b32 s29, s17, s19
    s_mov_b32 s30, 7340032
    s_mov_b32 s31, 0x20000
    v_lshrrev_b32 v4, 4, v0
    v_and_b32 v5, 15, v0
    s_and_b32 s44, s2, 7
    s_mul_i32 s45, s44, 917504
    s_lshr_b32 s46, s2, 3
    s_lshl_b32 s46, s46, 8
    s_add_u32 s45, s45, s46
    v_mul_u32_u24 v1, 57344, v4
    v_lshl_add_u32 v1, v5, 4, v1
    v_and_b32 v2, 1, v0
    v_lshlrev_b32 v3, 11, v2
    v_lshl_add_u32 v3, v4, 4, v3
    s_lshl_b32 s46, s44, 8
    v_add_u32 v3, s46, v3
    v_lshlrev_b32 v2, 9, v2
    v_lshl_add_u32 v2, v4, 7, v2
    v_bfe_u32 v6, v0, 1, 3
    v_lshl_add_u32 v2, v6, 4, v2
    s_cmp_ge_u32 s2, 224
    s_cbranch_scc1 L_A12_SKIP''')
    g('s_barrier')
    if args.kfirst:
        lds_wait(g, C_K, 4)
    AI = args.ainfl
    for kk in range(AI):
        tile_loads(g, vm, 28, 's45', 7168, kk, kk, f'gu{kk}')
    lds_wait(g, C_X, 1)
    for kk in range(4):
        g(f'ds_read_b128 v[{A_B+4*kk}:{A_B+4*kk+3}], v3 offset:{64*kk}')
    g('s_waitcnt lgkmcnt(0)')
    for kk in range(4):
        vm.wait(f'gu{kk}')
        if kk + AI < 4:
            tile_loads(g, vm, 28, 's45', 7168, kk + AI, (kk + AI) % 3, f'gu{kk+AI}')
        tile_block_mfma(g, kk % 3, kk, kk == 0, A_B + 4 * kk)
    read_nonce(g)
    g(f'v_lshlrev_b32 v3, 7, v0\ns_mov_b32 s46, {W_FL + 128}\ns_mov_b64 exec, 15')
    def issue_f4():
        g('buffer_load_dword v9, v3, s[36:39], s46 offen sc1')
    tpoll_loop(g, issue_f4, [9], sleep=16)
    g('s_mov_b64 exec, -1')
    g(f's_lshl_b32 s46, s3, 10\ns_lshl_b32 s47, s2, 11\ns_add_u32 s46, s46, s47\ns_add_u32 s46, s46, {W_GU - 1024}')
    publish_acc(g, vm, 's46')
    g('s_lshr_b32 s48, s2, 3\ns_add_u32 s48, s48, 16')
    arrive(g, 's48', 16, sctr='s48', ack=False)
    g('s_branch L_A12_WO')
    g.label('L_A12_SKIP')
    g('s_barrier')
    if args.kfirst:
        lds_wait(g, C_K, 4)
    read_nonce(g)
    g.label('L_A12_WO')
    ts(g, 1)
    vm.reset()
    srd(g, 28, 12, 8 * 1024 * 1024)
    g('''s_and_b32 s44, s88, 3
    s_lshl_b32 s44, s44, 1
    s_add_u32 s44, s44, s3
    s_sub_u32 s44, s44, 1
    s_lshr_b32 s45, s88, 2
    s_lshl_b32 s45, s45, 17
    s_lshl_b32 s48, s44, 8
    s_add_u32 s45, s45, s48
    v_lshlrev_b32 v1, 14, v4
    v_lshl_add_u32 v1, v5, 4, v1''')
    for kk in range(2):
        if kk == 1 and args.ainfl == 1:
            vm.wait('wo0')
        tile_loads(g, vm, 28, 's45', 2048, kk, kk, f'wo{kk}', stmp='s48')
    outs = [136, 8]
    for kk in range(2):
        vm.wait(f'wo{kk}')
        base = A_POOL + 32 * kk
        for t in range(8):
            d = t >> 1
            sel = 's58' if (t & 1) == 0 else 's59'
            for p in range(4):
                g(f'v_perm_b32 v{outs[kk] + 4*t + p}, v{base + 4*(2*p+1) + d}, v{base + 4*(2*p) + d}, {sel}')
    g(f'''v_and_b32 v3, 1, v0
    v_lshlrev_b32 v3, 7, v3
    v_lshl_add_u32 v3, v4, 4, v3
    v_add_u32 v3, {L_OB}, v3
    s_lshl_b32 s46, s44, 16
    s_lshr_b32 s48, s88, 2
    s_lshl_b32 s48, s48, 9
    s_add_u32 s46, s46, s48
    s_add_u32 s46, s46, {W_S}
    v_and_b32 v2, 1, v0
    v_lshlrev_b32 v2, 15, v2
    v_lshl_add_u32 v2, v4, 7, v2
    v_bfe_u32 v6, v0, 1, 3
    v_lshl_add_u32 v2, v6, 4, v2''')
    ts(g, 2)
    lds_wait(g, C_OG, 1)
    ts(g, 3)
    g('''ds_read_b128 v[72:75], v3
    ds_read_b128 v[76:79], v3 offset:64
    s_waitcnt lgkmcnt(0)''')
    for kk in range(2):
        for t in range(8):
            acc = A_ACC + 4 * t
            o = outs[kk] + 4 * t
            c = '0' if kk == 0 else f'v[{acc}:{acc+3}]'
            g(f'v_mfma_f32_16x16x32_bf16 v[{acc}:{acc+3}], v[{o}:{o+3}], v[{72+4*kk}:{75+4*kk}], {c}')
    publish_acc(g, vm, 's46', tagged=False)
    lds_signal(g, C_S, add=True)
    ts(g, 4)
    ts_dump(g, 5)
    g('s_endpgm')

    g.label('L_BULK')
    vm = VM(g)
    BQ, BS, BO, BP = 8, 24, 56, 88
    NT, NS, NL = 16, 10, 6
    TS = 16384 if args.inter else 4096
    srd(g, 28, 6, 64 * 1024 * 1024)
    srd(g, 32, 8, 64 * 1024 * 1024)
    g(f'''s_sub_u32 s44, s3, 4
    s_lshr_b32 s45, s86, 6
    s_bfe_u32 s46, s86, 0x10005
    s_lshl_b32 s46, s46, 2
    s_add_u32 s45, s45, s46
    s_lshl_b32 s45, s45, 23
    s_and_b32 s46, s86, 31
    s_lshl_b32 s46, s46, 18
    s_add_u32 s45, s45, s46
    s_lshl_b32 s46, s44, {12 if args.inter else 16}
    s_add_u32 s45, s45, s46
    v_and_b32 v4, 15, v0
    v_lshrrev_b32 v5, 4, v0
    v_lshlrev_b32 v2, 4, v0
    s_mul_i32 s48, s44, 24576
    s_add_u32 s48, s48, {L_V}
    v_xor_b32 v6, v4, v5
    v_lshlrev_b32 v7, 8, v5
    v_lshl_add_u32 v1, v6, 4, v7
    v_xor_b32 v249, 64, v1
    v_add_u32 v249, 1024, v249
    v_xor_b32 v250, 128, v1
    v_add_u32 v250, 2048, v250
    v_xor_b32 v251, 192, v1
    v_add_u32 v251, 3072, v251
    v_and_b32 v6, 3, v4
    v_lshlrev_b32 v6, 2, v6
    v_lshrrev_b32 v7, 2, v4
    v_add_u32 v6, v6, v7
    v_xor_b32 v7, v6, v5
    v_lshlrev_b32 v6, 8, v6
    v_lshl_add_u32 v252, v7, 4, v6
    v_xor_b32 v253, 64, v252
    v_xor_b32 v254, 128, v252
    v_xor_b32 v255, 192, v252
    v_add_u32 v252, s48, v252
    v_add_u32 v253, s48, v253
    v_add_u32 v254, s48, v254
    v_add_u32 v255, s48, v255''')
    g('s_barrier')
    INFL = args.infl
    order = []
    KV_ = ['v1', 'v249', 'v250', 'v251']
    def ldsload(isK, T, k):
        for j in range(4):
            if isK:
                g(f's_add_u32 s49, s48, {4096*k + 1024*j}\ns_mov_b32 m0, s49\ns_add_u32 s46, s45, {TS*T}')
                g(f'buffer_load_dwordx4 {KV_[j]}, s[28:31], s46 offen nt lds')
            else:
                g(f's_add_u32 s49, s48, {4096*k + 1024*j}\ns_mov_b32 m0, s49\ns_add_u32 s46, s45, {TS*T + 1024*j}')
                g('buffer_load_dwordx4 v2, s[32:35], s46 offen nt lds')
            vm.issue(f'{"K" if isK else "V"}{T}')
    def rload(isK, T, slot):
        assert not isK
        r0 = BP + 16 * slot
        g(f's_add_u32 s46, s45, {TS*T}')
        for j in range(4):
            r = r0 + 4 * j
            g(f'buffer_load_dwordx4 v[{r}:{r+3}], v2, s[32:35], s46 offen offset:{1024*j} nt')
            vm.issue(f'V{T}')
    def ldsread(k, slot):
        r0 = BP + 16 * slot
        for j in range(4):
            g(f'ds_read_b128 v[{r0+4*j}:{r0+4*j+3}], v3 offset:{4096*k + 1024*j}')
    def kread(k, slot):
        r0 = BP + 16 * slot
        for j in range(4):
            g(f'ds_read_b128 v[{r0+4*j}:{r0+4*j+3}], v{252+j} offset:{4096*k}')
    def pace(tag):
        order.append(tag)
        n = args.vinfl if (tag[0] == 'V' and args.vinfl) else INFL
        if len(order) - 1 - n >= 0:
            vm.wait(order[len(order) - 1 - n])
    vslot = lambda T: (T + 6) % NS
    def stream(isK, t0=0):
        c = 'K' if isK else 'V'
        if isK:
            order.clear()
            assert INFL <= 4
        for T in range(t0, NT):
            if isK and T == args.pre:
                lds_wait(g, C_X, 1)
            pace(f'{c}{T}')
            if T in (4, 8, 12, 15):
                ts(g, (7 if isK else 11) + (T // 4 if T < 15 else 4) - 0)
            if T == args.ksig and isK:
                lds_signal(g, C_K, add=True)
            if isK:
                Tc = T - INFL
                if 0 <= Tc < NS:
                    kread(Tc % NL, Tc)
                if T >= NL:
                    later = [t for t in range(T - NL + 1, Tc + 1) if 0 <= t < NS]
                    g(f"s_waitcnt lgkmcnt({min(8, 4 * len(later))})")
                ldsload(True, T, T % NL)
            elif T < NS:
                rload(False, T, vslot(T))
            else:
                ldsload(False, T, T - NS)
    stream(True)
    if args.ksig >= NT:
        lds_signal(g, C_K, add=True)
    lds_wait(g, C_Q, 2)
    ts(g, 1)
    g(f'''v_and_b32 v3, 7, v0
    v_lshlrev_b32 v3, 8, v3
    v_lshl_add_u32 v3, v5, 4, v3''')
    for j in range(4):
        g(f'ds_read_b128 v[{BQ+4*j}:{BQ+4*j+3}], v3 offset:{L_Q + 64*j}')
    g('s_waitcnt lgkmcnt(0)')
    for T in range(NT):
        if T >= NS:
            g(f's_waitcnt lgkmcnt({min(8, 4 * (NT - 1 - T))})')
        r0 = BP + 16 * (T % NS)
        s = BS + 4 * T
        for j in range(4):
            c = '0' if j == 0 else f'v[{s}:{s+3}]'
            g(f'v_mfma_f32_16x16x32_bf16 v[{s}:{s+3}], v[{r0+4*j}:{r0+4*j+3}], v[{BQ+4*j}:{BQ+4*j+3}], {c}')
        k = T - (NS - 3)
        if 0 <= k < NL:
            vm.wait(f'K{NS+k}')
            kread((NS + k) % NL, k)
        if 6 <= T < 6 + args.vearly:
            if T == 6:
                order.clear()
            order.append(f'V{T-6}')
            rload(False, T - 6, vslot(T - 6))
    g('s_nop 7')
    ts(g, 2)
    for i in range(2 * NT):
        a, b = f'v{BS+2*i}', f'v{BS+2*i+1}'
        if 'sc1' not in args.skip:
            bf16r_pair(g, a, b, 'v8')
        g(f'v_mul_f32 {a}, s61, {a}\nv_mul_f32 {b}, s61, {b}')
        if 'sc2' not in args.skip:
            bf16r_pair(g, a, b, 'v8')
    g(f'v_max_f32 v9, v{BS}, v{BS+1}')
    for i in range(1, 2 * NT):
        g(f'v_max3_f32 v9, v9, v{BS+2*i}, v{BS+2*i+1}')
    allred_x16(g, 'v_max_f32', 'v9', 'v10')
    allred_x32(g, 'v_max_f32', 'v9', 'v10')
    g('v_mov_b32 v11, 0\nv_mov_b32 v16, 0')
    for i in range(0, 4 * NT, 2):
        g(f'''v_sub_f32 v{BS+i}, v{BS+i}, v9
        v_sub_f32 v{BS+i+1}, v{BS+i+1}, v9
        v_mul_f32 v{BS+i}, s60, v{BS+i}
        v_mul_f32 v{BS+i+1}, s60, v{BS+i+1}
        v_exp_f32 v{BS+i}, v{BS+i}
        v_exp_f32 v{BS+i+1}, v{BS+i+1}
        s_nop 0
        v_add_f32 v11, v11, v{BS+i}
        v_add_f32 v16, v16, v{BS+i+1}''')
    g('v_mov_b32 v248, v9')
    g('v_add_f32 v11, v11, v16')
    allred_x16(g, 'v_add_f32', 'v11', 'v10')
    allred_x32(g, 'v_add_f32', 'v11', 'v10')
    g(f'''s_lshl_b32 s46, s44, 6
    v_lshlrev_b32 v3, 2, v0
    v_add_u32 v3, s46, v3
    s_mov_b64 exec, 0xff
    ds_write_b32 v3, v9 offset:{L_ST}
    ds_write_b32 v3, v11 offset:{L_ST+32}
    s_mov_b64 exec, -1''')
    lds_signal(g, C_ST, add=True)
    ts(g, 3)
    if args.latec:
        for i in range(2 * NT):
            g(f'v_cvt_pk_bf16_f32 v{BS+i}, v{BS+2*i}, v{BS+2*i+1}')
    if args.vearly == 0:
        order.clear()
    stream(False, args.vearly)
    if args.noml:
        lds_signal(g, C_V)
    def get_c():
        lds_wait(g, C_ML, 1)
        g(f'''v_and_b32 v3, 7, v0
        v_lshlrev_b32 v3, 2, v3
        ds_read_b32 v9, v3 offset:{L_ML}
        ds_read_b32 v10, v3 offset:{L_ML+32}
        s_waitcnt lgkmcnt(0)
        v_sub_f32 v9, v248, v9
        v_mul_f32 v9, s60, v9
        v_exp_f32 v9, v9
        s_nop 0
        v_mul_f32 v10, v10, v9''')
    if not args.latec:
        get_c()
        ts(g, 4)
        for i in range(2 * NT):
            a, b = BS + 2 * i, BS + 2 * i + 1
            g(f'''v_mul_f32 v12, v{a}, v10
            v_mul_f32 v13, v{b}, v10
            v_cvt_pk_bf16_f32 v{BS+i}, v12, v13''')
    else:
        ts(g, 4)
    g('v_lshlrev_b32 v3, 4, v0\nv_add_u32 v3, s48, v3')
    for U in range(NT // 2):
        T0, T1 = 2 * U, 2 * U + 1
        if T1 < NS:
            vm.wait(f'V{T1}')
        else:
            g(f's_waitcnt lgkmcnt({min(8, 4 * (NT - 1 - T1))})')
        ra = BP + 16 * vslot(T0 % NS)
        rb = BP + 16 * vslot(T1 % NS)
        for half in range(2):
            for tt in range(4):
                t = 4 * half + tt
                d = t >> 1
                sel = 's58' if (t & 1) == 0 else 's59'
                o = BQ + 4 * tt
                g(f'v_perm_b32 v{o}, v{ra+4+d}, v{ra+d}, {sel}')
                g(f'v_perm_b32 v{o+1}, v{ra+12+d}, v{ra+8+d}, {sel}')
                g(f'v_perm_b32 v{o+2}, v{rb+4+d}, v{rb+d}, {sel}')
                g(f'v_perm_b32 v{o+3}, v{rb+12+d}, v{rb+8+d}, {sel}')
            g('s_nop 1')
            for tt in range(4):
                t = 4 * half + tt
                o = BQ + 4 * tt
                acc = BO + 4 * t
                c = '0' if U == 0 else f'v[{acc}:{acc+3}]'
                g(f'v_mfma_f32_16x16x32_bf16 v[{acc}:{acc+3}], v[{o}:{o+3}], v[{BS+4*U}:{BS+4*U+3}], {c}')
        k = 2 * (U - 3)
        if 0 <= k < NL:
            vm.wait(f'V{NS+k+1}')
            ldsread(k, vslot(k)); ldsread(k + 1, vslot(k + 1))
    ts(g, 5)
    if args.latec:
        get_c()
        for i in range(32):
            g(f'v_mul_f32 v{BO+i}, v{BO+i}, v10')
    g(f'''s_lshl_b32 s46, s44, 12
    v_lshlrev_b32 v3, 9, v4
    v_lshl_add_u32 v3, v5, 7, v3
    v_add_u32 v3, s46, v3
    s_nop 7
    s_mov_b32 exec_lo, 0x00ff00ff
    s_mov_b32 exec_hi, 0x00ff00ff''')
    for t in range(8):
        acc = BO + 4 * t
        g(f'ds_write_b128 v3, v[{acc}:{acc+3}] offset:{L_OP + 16*t}')
    g('s_mov_b64 exec, -1')
    lds_signal(g, C_O, add=True)
    g(f'''s_lshr_b32 s46, s86, 6
    s_lshl_b32 s46, s46, 18
    s_lshl_b32 s49, s44, 16
    s_add_u32 s46, s46, s49
    s_bfe_u32 s49, s86, 0x10005
    s_lshl_b32 s49, s49, 14
    s_add_u32 s46, s46, s49
    s_and_b32 s49, s86, 31
    s_lshl_b32 s49, s49, 9
    s_add_u32 s46, s46, s49
    s_add_u32 s46, s46, {W_O}
    v_and_b32 v2, 31, v0
    v_lshlrev_b32 v2, 4, v2
    v_lshrrev_b32 v1, 5, v0
    v_lshl_add_u32 v2, v1, 15, v2
    s_lshl_b32 s49, s44, 10
    v_lshlrev_b32 v3, 4, v0
    v_add_u32 v3, s49, v3''')
    lds_wait(g, C_O, 4)
    for w in range(4):
        g(f'ds_read_b128 v[{88+4*w}:{91+4*w}], v3 offset:{L_OP + 4096*w}')
    g('s_waitcnt lgkmcnt(0)')
    for r in range(4):
        g(f'v_add_f32 v{8+r}, v{88+r}, v{92+r}\nv_add_f32 v{12+r}, v{96+r}, v{100+r}\nv_add_f32 v{8+r}, v{8+r}, v{12+r}')
    g('buffer_store_dwordx4 v[8:11], v2, s[36:39], s46 offen sc1')
    ts(g, 6)
    ts_dump(g, 7)
    g('s_endpgm')
    g.label('L_END')
    g('s_endpgm')
    T = f'''.section .rodata,"a"
.p2align 6
.amdhsa_kernel {KN}
  .amdhsa_next_free_vgpr 256
  .amdhsa_next_free_sgpr 100
  .amdhsa_accum_offset 256
  .amdhsa_group_segment_fixed_size 0
  .amdhsa_kernarg_size 96
  .amdhsa_user_sgpr_count 2
  .amdhsa_user_sgpr_kernarg_segment_ptr 1
  .amdhsa_system_sgpr_workgroup_id_x 1
  .amdhsa_float_denorm_mode_32 3
.end_amdhsa_kernel
'''
    return '\n'.join(H) + '\n' + '\n'.join(g.L) + '\n' + T

if __name__ == '__main__':
    ap = argparse.ArgumentParser()
    ap.add_argument('--prof', action='store_true')
    ap.add_argument('--finsleep', type=int, default=1)
    ap.add_argument('--vinfl', type=int, default=0)
    ap.add_argument('--inter', type=int, default=1)
    ap.add_argument('--noml', type=int, default=0)
    ap.add_argument('--qack', type=int, default=1)
    ap.add_argument('--latec', type=int, default=0)
    ap.add_argument('--vearly', type=int, default=4)
    ap.add_argument('--ksig', type=int, default=16)
    ap.add_argument('--ainfl', type=int, default=2)
    ap.add_argument('--skip', default='')
    ap.add_argument('--remap', type=int, default=1)
    ap.add_argument('--plain', type=int, default=1)
    ap.add_argument('--nodma', action='store_true')
    ap.add_argument('--noaux', action='store_true')
    ap.add_argument('--nolds', action='store_true')
    ap.add_argument('--kfirst', type=int, default=1)
    ap.add_argument('--nohop', action='store_true')
    ap.add_argument('--fsleep', type=int, default=16)
    ap.add_argument('--infl', type=int, default=2)
    ap.add_argument('--pre', type=int, default=0)
    ap.add_argument('-o', default='recurrent_scan__gqa_block_cached__swiglu_ffn__decode.s')
    args = ap.parse_args()
    open(args.o, 'w').write(gen(args))
```

```python
import struct, sys, argparse

def f32hex(x):
    return '0x%08x' % struct.unpack('<I', struct.pack('<f', x))[0]

KN = 'recurrent_scan__gqa_block_cached__swiglu_ffn__decode_kernel'
NWG = 256
W_Q = 0x000000
W_GU = 0x040000
W_S = 0x0C0000
W_F = 0x140000
W_O = 0x180000
W_ML = 0x280000
W_B = 0x300000
W_CT = 0x2E0000
W_FL = 0x2C0000
L_XN = 0x0000
L_Q = 0x1000
L_ST = 0x1800
L_ML = 0x1A00
L_CT = 0x1A40
C_Q, C_ST, C_ML, C_O, C_OG, C_H, C_N, C_K, C_X, C_V, C_S = [L_CT + 4 * i for i in range(11)]
L_W = 0x1F00
L_OB = 0x1B00
L_H = 0x1D00
L_OP = 0x2000
L_V = 0x6000
LDS_BYTES = 0x6000 + 4 * 24576
SCALE = f32hex(128 ** -0.5)
LOG2E = f32hex(1.4426950408889634)
EPS = f32hex(1e-5)
SPIN_LDS = 4000000
SPIN_GLB = 40000

NOLDS = False
class Gen:
    def __init__(self):
        self.L = []
        self.n = 0
    def __call__(self, s):
        for line in s.strip('\n').split('\n'):
            self.L.append('    ' + line.strip())
    def label(self, name):
        self.L.append(name + ':')
    def uniq(self, p):
        self.n += 1
        return f'{p}_{self.n}'

class VM:
    def __init__(self, g):
        self.g = g
        self.ops = []
    def issue(self, tag):
        self.ops.append(tag)
    def wait(self, tag):
        idx = max(i for i, t in enumerate(self.ops) if t == tag)
        n = len(self.ops) - 1 - idx
        assert n <= 63
        self.g(f's_waitcnt vmcnt({n})')
    def reset(self):
        self.ops = []

def srd(g, d, base, nbytes):
    g(f's_mov_b32 s{d}, s{base}\ns_mov_b32 s{d+1}, s{base+1}\ns_mov_b32 s{d+2}, {nbytes}\ns_mov_b32 s{d+3}, 0x20000')

def lds_wait(g, addr, target, vt='v7', va='v6', st='s50', sc='s51'):
    l = g.uniq('LW'); d = g.uniq('LWD')
    g(f'v_mov_b32 {va}, {addr}\ns_mov_b32 {sc}, {1 if NOLDS else SPIN_LDS}')
    g.label(l)
    g(f'''ds_read_b32 {vt}, {va}
    s_waitcnt lgkmcnt(0)
    v_readfirstlane_b32 {st}, {vt}
    s_cmp_ge_u32 {st}, {target}
    s_cbranch_scc1 {d}
    s_sleep 1
    s_sub_u32 {sc}, {sc}, 1
    s_cmp_lg_u32 {sc}, 0
    s_cbranch_scc1 {l}''')
    g.label(d)

def lds_signal(g, addr, add=False, vt='v7', va='v6'):
    g(f'''s_waitcnt lgkmcnt(0)
    v_mov_b32 {va}, {addr}
    v_mov_b32 {vt}, 1
    s_mov_b64 exec, 1''')
    g(f'ds_add_u32 {va}, {vt}' if add else f'ds_write_b32 {va}, {vt}')
    g('s_mov_b64 exec, -1')

def bf16r_pair(g, a, b, t):
    g(f'''v_cvt_pk_bf16_f32 {t}, {a}, {b}
    v_lshlrev_b32 {a}, 16, {t}
    v_and_b32 {b}, 0xffff0000, {t}''')

def bf16r(g, a):
    g(f'''v_cvt_pk_bf16_f32 {a}, {a}, {a}
    v_lshlrev_b32 {a}, 16, {a}''')

def allred_row16(g, op, v, t):
    for r in (1, 2, 4, 8):
        g(f's_nop 1\n{op}_dpp {t}, {v}, {v} row_ror:{r} row_mask:0xf bank_mask:0xf\nv_mov_b32 {v}, {t}')

def allred_x16(g, op, v, t):
    g(f'v_mov_b32 {t}, {v}\ns_nop 1\nv_permlane16_swap_b32 {v}, {t}\ns_nop 1\n{op} {v}, {v}, {t}')

def allred_x32(g, op, v, t):
    g(f'v_mov_b32 {t}, {v}\ns_nop 1\nv_permlane32_swap_b32 {v}, {t}\ns_nop 1\n{op} {v}, {v}, {t}')

def precise_div(g, d, num, den, t1, t2):
    g(f'''v_rcp_f32 {t1}, {den}
    s_nop 0
    v_mul_f32 {t2}, {num}, {t1}
    v_fma_f32 {d}, -{t2}, {den}, {num}
    v_fma_f32 {d}, {d}, {t1}, {t2}''')

def silu(g, x, t1, t2, t3):
    g(f'''v_mul_f32 {t1}, s60, {x}
    v_exp_f32 {t1}, -{t1}
    s_nop 0
    v_add_f32 {t1}, 1.0, {t1}''')
    g(f'''v_rcp_f32 {t2}, {t1}
    s_nop 0
    v_mul_f32 {t3}, {x}, {t2}
    v_fma_f32 {t1}, -{t3}, {t1}, {x}
    v_fma_f32 {t1}, {t1}, {t2}, {t3}
    v_cmp_eq_f32 vcc, 0, {t2}
    s_nop 1
    v_cndmask_b32 {x}, {t1}, {t3}, vcc''')

A_T = 8
A_B = 24
A_ACC = 40
A_POOL = 72

def tile_loads(g, vm, srdreg, sbase, rowbytes, kk, slot, tag, voff='v1', stmp='s46'):
    for i in range(8):
        r = A_POOL + 32 * slot + 4 * i
        g(f's_add_u32 {stmp}, {sbase}, {(32 * kk + i) * rowbytes}')
        g(f'buffer_load_dwordx4 v[{r}:{r+3}], {voff}, s[{srdreg}:{srdreg+3}], {stmp} offen nt')
        vm.issue(tag)

def tile_block_mfma(g, slot, kk, first, breg):
    base = A_POOL + 32 * slot
    for half in range(2):
        for tt in range(4):
            t = 4 * half + tt
            d = t >> 1
            sel = 's58' if (t & 1) == 0 else 's59'
            o = A_T + 4 * tt
            for p in range(4):
                g(f'v_perm_b32 v{o+p}, v{base + 4*(2*p+1) + d}, v{base + 4*(2*p) + d}, {sel}')
        g('s_nop 1')
        for tt in range(4):
            t = 4 * half + tt
            o = A_T + 4 * tt
            acc = A_ACC + 4 * t
            c = '0' if first else f'v[{acc}:{acc+3}]'
            g(f'v_mfma_f32_16x16x32_bf16 v[{acc}:{acc+3}], v[{o}:{o+3}], v[{breg}:{breg+3}], {c}')

def gemv_tile(g, vm, srdreg, sbase, rowbytes, ldsaddr_v, pre_issued, tagp, wait_fn=None):
    if wait_fn:
        wait_fn()
    for kk in range(4):
        g(f'ds_read_b128 v[{A_B+4*kk}:{A_B+4*kk+3}], {ldsaddr_v} offset:{64*kk}')
    g('s_waitcnt lgkmcnt(0)')
    for kk in range(4):
        vm.wait(f'{tagp}{kk}')
        tile_block_mfma(g, kk % 3, kk, kk == 0, A_B + 4 * kk)
        if kk == 0:
            tile_loads(g, vm, srdreg, sbase, rowbytes, 3, 0, f'{tagp}3')

def lane_masks(g):
    g('''s_mov_b32 s80, 0xcccccccc
    s_mov_b32 s81, 0xcccccccc
    s_mov_b32 s82, 0xf0f0f0f0
    s_mov_b32 s83, 0xf0f0f0f0
    s_mov_b32 s84, 0xff00ff00
    s_mov_b32 s85, 0xff00ff00''')

def select8(g, accs, levels=3):
    cur = list(accs)
    lv = 0
    while len(cur) > 1:
        nxt = []
        for i in range(0, len(cur), 2):
            a, b = cur[i], cur[i + 1]
            for r in range(4):
                g(f'v_cndmask_b32 v{a+r}, v{a+r}, v{b+r}, s[{80+2*lv}:{81+2*lv}]')
            nxt.append(a)
        cur = nxt
        lv += 1
    return cur[0]

def tagged_store(g, vm, r, soff, voff, x=8, stmp='s57', vtmp='v7'):
    g(f'''v_perm_b32 v{r}, v{r}, v{r+3}, s90
    v_perm_b32 v{r+1}, v{r+1}, v{r+3}, s91
    v_perm_b32 v{r+2}, v{r+2}, v{r+3}, s92
    v_mov_b32 v{r+3}, s55
    buffer_store_dwordx4 v[{r}:{r+3}], {voff}, s[36:39], {soff} offen sc1''')
    vm.issue('st')

def unpack_d(g, r):
    g(f'v_perm_b32 v{r+3}, v{r}, v{r+1}, s93\nv_perm_b32 v{r+3}, v{r+3}, v{r+2}, s94')

def publish_acc(g, vm, soff, voff='v2', tagged=True):
    g('s_nop 7\ns_nop 1')
    r = select8(g, [A_ACC + 4 * t for t in range(8)])
    if tagged:
        tagged_store(g, vm, r, soff, voff)
    else:
        g(f'buffer_store_dwordx4 v[{r}:{r+3}], {voff}, s[36:39], {soff} offen sc1')
        vm.issue('st')

def tag_check(g, tags, acc='v7', tmp='v6'):
    tags = list(tags)
    g(f'v_xor_b32 {acc}, s55, v{tags[0]}')
    for t in tags[1:]:
        g(f'v_xor_b32 {tmp}, s55, v{t}\nv_or_b32 {acc}, {acc}, {tmp}')
    g(f'v_cmp_ne_u32 vcc, 0, {acc}')

NOHOP = False
PLAIN = True
def plain_first(g, issue_fn, check_fn, d):
    n0 = len(g.L)
    issue_fn()
    for i in range(n0, len(g.L)):
        g.L[i] = g.L[i].replace(' sc1', '')
    g('s_waitcnt vmcnt(0)')
    check_fn()
    g(f's_cbranch_vccz {d}')

def tpoll_loop(g, issue_fn, tags, sleep=2, sc='s51', acc='v7', tmp='v6', plain=False):
    l = g.uniq('TP'); d = g.uniq('TPD')
    if plain and PLAIN:
        plain_first(g, issue_fn, lambda: tag_check(g, tags, acc, tmp), d)
    g(f's_mov_b32 {sc}, {1 if NOHOP else SPIN_GLB}')
    g.label(l)
    issue_fn()
    g('s_waitcnt vmcnt(0)')
    tag_check(g, tags, acc, tmp)
    g(f'''s_cbranch_vccz {d}
    s_sleep {sleep}
    s_sub_u32 {sc}, {sc}, 1
    s_cmp_lg_u32 {sc}, 0
    s_cbranch_scc1 {l}''')
    g.label(d)

def read_nonce(g):
    lds_wait(g, C_N, 1)
    g('s_mov_b32 s55, s50')

def sentinel_check(g, regs, vmx):
    regs = list(regs)
    g(f'v_max_u32 {vmx}, v{regs[0]}, v{regs[1]}')
    i = 2
    while i < len(regs):
        if i + 1 < len(regs):
            g(f'v_max3_u32 {vmx}, {vmx}, v{regs[i]}, v{regs[i+1]}')
            i += 2
        else:
            g(f'v_max_u32 {vmx}, {vmx}, v{regs[i]}')
            i += 1
    g(f'v_cmp_eq_u32 vcc, -1, {vmx}')

def poll_loop(g, issue_fn, regs, vmx='v7', sc='s51', sleep=2, plain=False):
    l = g.uniq('PL'); d = g.uniq('PLD')
    if plain and PLAIN:
        plain_first(g, issue_fn, lambda: sentinel_check(g, regs, vmx), d)
    g(f's_mov_b32 {sc}, {1 if NOHOP else SPIN_GLB}')
    g.label(l)
    issue_fn()
    g('s_waitcnt vmcnt(0)')
    sentinel_check(g, regs, vmx)
    g(f'''s_cbranch_vccz {d}
    s_sleep {sleep}
    s_sub_u32 {sc}, {sc}, 1
    s_cmp_lg_u32 {sc}, 0
    s_cbranch_scc1 {l}''')
    g.label(d)

def arrive(g, sidx, n, stmp='s46', sctr=None, ack=True):
    d = g.uniq('ARR')
    if sctr is None:
        g(f's_lshl_b32 {stmp}, {sidx}, 2')
        srdn = 40
    else:
        g(f's_lshl_b32 {stmp}, {sctr}, 7\ns_add_u32 {stmp}, {stmp}, {W_CT}')
        srdn = 36
    g(f'''v_mov_b32 v6, {stmp}
    v_mov_b32 v7, 1
    {'s_waitcnt vmcnt(0)' if ack else 's_nop 0'}
    s_mov_b64 exec, 1
    buffer_atomic_add v7, v6, s[{srdn}:{srdn+3}], 0 offen sc0
    s_waitcnt vmcnt(0)
    v_readfirstlane_b32 {stmp}, v7
    s_cmp_eq_u32 {stmp}, {n-1}
    s_cbranch_scc0 {d}
    s_lshl_b32 {stmp}, {sidx}, 7
    s_add_u32 {stmp}, {stmp}, {W_FL}
    v_mov_b32 v6, 0
    v_mov_b32 v7, s55
    buffer_store_dword v7, v6, s[36:39], {stmp} offen sc1''')
    g.label(d)
    g('s_mov_b64 exec, -1')

def flag_wait(g, sidx, sleep, stmp='s46'):
    l = g.uniq('FW'); d = g.uniq('FWD')
    g(f'''s_lshl_b32 {stmp}, {sidx}, 7
    s_add_u32 {stmp}, {stmp}, {W_FL}
    v_mov_b32 v6, 0
    s_mov_b32 s51, {1 if NOHOP else SPIN_GLB}
    s_mov_b64 exec, 1''')
    g.label(l)
    g(f'''buffer_load_dword v7, v6, s[36:39], {stmp} offen sc1
    s_waitcnt vmcnt(0)
    v_readfirstlane_b32 s50, v7
    s_cmp_eq_u32 s50, s55
    s_cbranch_scc1 {d}
    s_sleep {sleep}
    s_sub_u32 s51, s51, 1
    s_cmp_lg_u32 s51, 0
    s_cbranch_scc1 {l}''')
    g.label(d)
    g('s_mov_b64 exec, -1')

def q_gather(g, args, rnd, tsa=None):
    g(f'''s_lshr_b32 s44, s86, 5
    s_lshl_b32 s44, s44, 15
    s_add_u32 s44, s44, {W_Q + rnd*16384}
    s_lshr_b32 s45, s44, 1
    s_add_u32 s45, s45, {W_B}
    s_lshr_b32 s48, s86, 6
    s_add_u32 s48, s48, 1''')
    flag_wait(g, 's48', args.fsleep)
    if tsa is not None:
        ts(g, tsa)
    g('''v_lshrrev_b32 v2, 5, v0
    v_lshlrev_b32 v2, 12, v2
    v_and_b32 v3, 31, v0
    v_lshl_add_u32 v2, v3, 4, v2
    v_lshrrev_b32 v3, 1, v2
    v_lshrrev_b32 v8, 5, v0
    v_lshlrev_b32 v8, 8, v8
    v_bfe_u32 v9, v0, 3, 2
    v_lshlrev_b32 v9, 6, v9
    v_and_b32 v10, 7, v0
    v_lshlrev_b32 v10, 1, v10
    v_add3_u32 v8, v8, v9, v10''')
    def issue_q2():
        for hh in range(2):
            g(f's_add_u32 s46, s44, {hh*8192}')
            for ks in range(8):
                r = 40 + 32 * hh + 4 * ks
                g(f'buffer_load_dwordx4 v[{r}:{r+3}], v2, s[36:39], s46 offen offset:{ks*512} sc1')
    tags = [43 + 4 * i for i in range(16)]
    if 'q2' not in args.skip:
        tpoll_loop(g, issue_q2, tags, sleep=4, plain=True)
    for i in range(16):
        unpack_d(g, 40 + 4 * i)
    for hh in range(2):
        hp = 2 * rnd + hh
        for r in range(4):
            src = (lambda ks: 40 + 32 * hh + 4 * ks + r)
            g(f'v_add_f32 v{12+r}, v{src(0)}, v{src(1)}')
            for ks in range(2, 8):
                g(f'v_add_f32 v{12+r}, v{12+r}, v{src(ks)}')
        g(f'''v_cvt_pk_bf16_f32 v12, v12, v13
        v_cvt_pk_bf16_f32 v14, v14, v15
        ds_write_b16 v8, v12 offset:{L_Q + 512*hp}
        ds_write_b16_d16_hi v8, v12 offset:{L_Q + 512*hp + 16}
        ds_write_b16 v8, v14 offset:{L_Q + 512*hp + 32}
        ds_write_b16_d16_hi v8, v14 offset:{L_Q + 512*hp + 48}''')
    lds_signal(g, C_Q, add=True)

PROF = False
def ts(g, i):
    if PROF:
        g(f's_memrealtime s[96:97]\ns_waitcnt lgkmcnt(0)\ns_mov_b32 s{64+i}, s96')
def ts_dump(g, n):
    if not PROF:
        return
    g(f'''s_mul_i32 s62, s2, 12
    s_add_u32 s62, s62, s3
    s_lshl_b32 s62, s62, 6
    s_add_u32 s62, s62, 0x8000000
    s_mov_b64 exec, 1
    v_mov_b32 v6, 0''')
    for i in range(16):
        g(f'v_mov_b32 v7, s{64+i}\nbuffer_store_dword v7, v6, s[36:39], s62 offen offset:{4*i}')

def gen(args):
    global PROF, NOHOP, NOLDS, PLAIN
    PLAIN = bool(args.plain)
    NOLDS = args.nolds
    PROF = args.prof
    NOHOP = args.nohop
    g = Gen()
    H = []
    H.append(f'; @launch grid=({NWG},1,1) block=(512,1,1) lds={LDS_BYTES}')
    H.append('.amdgcn_target "amdgcn-amd-amdhsa--gfx950"\n.text')
    H.append(f'.globl {KN}\n.p2align 8\n.type {KN},@function\n{KN}:')
    g(f'''s_cmp_ge_u32 s2, {NWG}
    s_cbranch_scc1 L_END
    s_load_dwordx16 s[4:19], s[0:1], 0
    s_load_dwordx8 s[20:27], s[0:1], 64
    v_lshrrev_b32 v1, 6, v0
    v_and_b32 v0, 63, v0
    s_mov_b32 s58, 0x05040100
    s_mov_b32 s59, 0x07060302
    v_readfirstlane_b32 s3, v1
    s_mov_b32 s60, {LOG2E}
    s_mov_b32 s61, {SCALE}
    s_waitcnt lgkmcnt(0)''')
    srd(g, 36, 26, 0x10000000)
    lane_masks(g)
    srd(g, 40, 24, 256)
    if args.remap:
        g('''s_and_b32 s90, s2, 7
        s_lshr_b32 s91, s2, 3
        s_lshl_b32 s86, s90, 5
        s_add_u32 s86, s86, s91
        s_lshr_b32 s92, s90, 1
        s_lshl_b32 s92, s92, 6
        s_and_b32 s93, s90, 1
        s_lshl_b32 s87, s91, 1
        s_add_u32 s87, s87, s93
        s_add_u32 s87, s87, s92
        s_lshl_b32 s88, s93, 2
        s_and_b32 s94, s91, 3
        s_add_u32 s88, s88, s94
        s_lshl_b32 s88, s88, 3
        s_lshr_b32 s94, s91, 2
        s_add_u32 s88, s88, s94
        s_add_u32 s88, s88, s92
        s_lshr_b32 s89, s91, 3
        s_lshl_b32 s89, s89, 3
        s_add_u32 s89, s89, s90
        s_cmp_lt_u32 s89, 28
        s_cselect_b32 s95, 1, 0
        s_lshl_b32 s89, s89, 3
        s_and_b32 s94, s91, 7
        s_add_u32 s89, s89, s94
        s_add_u32 s89, s89, 32
        s_mul_i32 s89, s89, s95''')
    else:
        g('s_mov_b32 s86, s2\ns_mov_b32 s87, s2\ns_mov_b32 s88, s2\ns_mov_b32 s89, s2')
    g('''s_mov_b32 s90, 0x07060503
    s_mov_b32 s91, 0x07060502
    s_mov_b32 s92, 0x07060501
    s_mov_b32 s93, 0x04000c0c
    s_mov_b32 s94, 0x0706000c''')
    ts(g, 0)
    if args.noaux:
        g('s_cmp_ge_u32 s3, 4\ns_cbranch_scc1 L_BULK\ns_barrier\ns_endpgm')
    g('''s_cmp_ge_u32 s3, 4
    s_cbranch_scc1 L_BULK
    s_cmp_eq_u32 s3, 0
    s_cbranch_scc1 L_A0
    s_cmp_eq_u32 s3, 3
    s_cbranch_scc1 L_A3
    s_branch L_A12''')

    g.label('L_A3')
    srd(g, 28, 4, 4096)
    g('''v_lshlrev_b32 v1, 6, v0
    buffer_load_dwordx4 v[8:11], v1, s[28:31], 0 offen
    buffer_load_dwordx4 v[12:15], v1, s[28:31], 0 offen offset:16
    buffer_load_dwordx4 v[16:19], v1, s[28:31], 0 offen offset:32
    buffer_load_dwordx4 v[20:23], v1, s[28:31], 0 offen offset:48''')
    g(f'''v_mov_b32 v2, 0
    v_lshlrev_b32 v3, 2, v0
    v_add_u32 v3, {L_CT}, v3
    s_mov_b64 exec, 0xffff
    ds_write_b32 v3, v2
    s_mov_b64 exec, -1
    s_waitcnt lgkmcnt(0)
    s_barrier
    s_waitcnt vmcnt(0)''')
    for i in range(16):
        g(f'v_lshlrev_b32 v{24+2*i}, 16, v{8+i}\nv_and_b32 v{25+2*i}, 0xffff0000, v{8+i}')
    g('v_add_f32 v56, v24, v25')
    for i in range(26, 56):
        g(f'v_add_f32 v56, v56, v{i}')
    allred_row16(g, 'v_add_f32', 'v56', 'v57')
    allred_x16(g, 'v_add_f32', 'v56', 'v57')
    g('v_mul_f32 v56, 0x3a800000, v56')
    g('v_sub_f32 v58, v24, v56\nv_mul_f32 v59, v58, v58')
    for i in range(25, 56):
        g(f'v_sub_f32 v58, v{i}, v56\nv_fma_f32 v59, v58, v58, v59')
    allred_row16(g, 'v_add_f32', 'v59', 'v57')
    allred_x16(g, 'v_add_f32', 'v59', 'v57')
    g('v_mul_f32 v59, 0x3a800000, v59')
    bf16r(g, 'v56')
    bf16r(g, 'v59')
    g(f'v_add_f32 v59, {EPS}, v59')
    bf16r(g, 'v59')
    g('''v_sqrt_f32 v60, v59
    s_nop 0
    v_rcp_f32 v61, v60
    v_fma_f32 v62, -v60, v60, v59
    v_mul_f32 v61, 0.5, v61
    v_fma_f32 v60, v62, v61, v60''')
    bf16r(g, 'v60')
    g('v_rcp_f32 v61, v60')
    for i in range(16):
        a, b = f'v{24+2*i}', f'v{25+2*i}'
        g(f'v_sub_f32 {a}, {a}, v56\nv_sub_f32 {b}, {b}, v56')
        bf16r_pair(g, a, b, 'v62')
        for r in (a, b):
            g(f'''v_mul_f32 v62, {r}, v61
            v_fma_f32 v63, -v62, v60, {r}
            v_fma_f32 {r}, v63, v61, v62''')
        g(f'v_cvt_pk_bf16_f32 v{8+i}, {a}, {b}')
    g(f'''ds_write_b128 v1, v[8:11] offset:{L_XN}
    ds_write_b128 v1, v[12:15] offset:{L_XN+16}
    ds_write_b128 v1, v[16:19] offset:{L_XN+32}
    ds_write_b128 v1, v[20:23] offset:{L_XN+48}''')
    lds_signal(g, C_X)
    ts(g, 1)
    read_nonce(g)
    q_gather(g, args, 1)
    lds_wait(g, C_Q, 2)
    ts(g, 2)
    ts(g, 3)
    lds_wait(g, C_ST, 4)
    ts(g, 4)
    g(f'''v_and_b32 v1, 7, v0
    v_lshlrev_b32 v1, 2, v1''')
    for w in range(4):
        g(f'ds_read_b32 v{8+w}, v1 offset:{L_ST + 64*w}\nds_read_b32 v{16+w}, v1 offset:{L_ST + 64*w + 32}')
    g('s_waitcnt lgkmcnt(0)')
    g('v_max3_f32 v24, v8, v9, v10\nv_max_f32 v24, v24, v11')
    g('v_mov_b32 v25, 0')
    for w in range(4):
        g(f'''v_sub_f32 v26, v{8+w}, v24
        v_mul_f32 v26, s60, v26
        v_exp_f32 v26, v26
        s_nop 0
        v_fma_f32 v25, v26, v{16+w}, v25''')
    if args.noml:
        g(f'''v_and_b32 v2, 7, v0
        v_lshlrev_b32 v2, 2, v2
        v_mov_b32 v26, 1.0
        s_mov_b64 exec, 0xff
        ds_write_b32 v2, v24 offset:{L_ML}
        ds_write_b32 v2, v26 offset:{L_ML+32}
        s_mov_b64 exec, -1
        s_lshl_b32 s46, s86, 6
        s_add_u32 s46, s46, {W_ML}
        v_cndmask_b32 v24, v24, v25, s[84:85]
        v_lshlrev_b32 v1, 2, v0
        s_mov_b64 exec, 0xffff
        buffer_store_dword v24, v1, s[36:39], s46 offen sc1
        s_mov_b64 exec, -1''')
        ts(g, 5)
    else:
        g(f'''s_lshl_b32 s46, s86, 6
        s_add_u32 s46, s46, {W_ML}
        v_cndmask_b32 v24, v24, v25, s[84:85]
        v_lshlrev_b32 v1, 2, v0
        s_mov_b64 exec, 0xffff
        buffer_store_dword v24, v1, s[36:39], s46 offen sc1
        s_mov_b64 exec, -1
        s_lshr_b32 s48, s86, 5
        s_add_u32 s48, s48, 8''')
        g('s_andn2_b32 s49, s86, 31\ns_add_u32 s49, s49, 256')
        arrive(g, 's48', 32, sctr='s49', ack=False)
        flag_wait(g, 's48', 8)
        g(f'''s_andn2_b32 s44, s86, 31
        s_lshl_b32 s44, s44, 6
        s_add_u32 s44, s44, {W_ML}
        v_and_b32 v1, 31, v0
        v_lshlrev_b32 v1, 6, v1
        v_lshrrev_b32 v2, 5, v0
        v_lshl_add_u32 v1, v2, 4, v1''')
        def issue_ml():
            g('buffer_load_dwordx4 v[8:11], v1, s[36:39], s44 offen sc1')
            g('buffer_load_dwordx4 v[12:15], v1, s[36:39], s44 offen offset:32 sc1')
        poll_loop(g, issue_ml, range(8, 16), sleep=8)
        ts(g, 5)
        for r in range(4):
            g(f'v_mov_b32 v{16+r}, v{8+r}')
            allred_row16(g, 'v_max_f32', f'v{16+r}', 'v24')
            allred_x16(g, 'v_max_f32', f'v{16+r}', 'v24')
            g(f'''v_sub_f32 v24, v{8+r}, v{16+r}
            v_mul_f32 v24, s60, v24
            v_exp_f32 v24, v24
            s_nop 0
            v_mul_f32 v{12+r}, v{12+r}, v24''')
            allred_row16(g, 'v_add_f32', f'v{12+r}', 'v24')
            allred_x16(g, 'v_add_f32', f'v{12+r}', 'v24')
            g('v_mov_b32 v26, 1.0')
            precise_div(g, f'v{20+r}', 'v26', f'v{12+r}', 'v24', 'v25')
        g(f'''v_lshrrev_b32 v2, 5, v0
        v_lshlrev_b32 v2, 4, v2
        s_mov_b32 exec_lo, 1
        s_mov_b32 exec_hi, 1
        ds_write_b128 v2, v[16:19] offset:{L_ML}
        ds_write_b128 v2, v[20:23] offset:{L_ML+32}
        s_mov_b64 exec, -1''')
    lds_signal(g, C_ML)
    g('s_cmp_lt_u32 s89, 32\ns_cbranch_scc1 L_A3_OG')
    g(f'''s_sub_u32 s44, s89, 32
    s_lshr_b32 s44, s44, 3
    s_lshl_b32 s44, s44, 14
    s_add_u32 s44, s44, {W_GU}
    s_lshr_b32 s45, s44, 1
    s_add_u32 s45, s45, {W_B}
    v_lshlrev_b32 v1, 4, v0
    v_lshlrev_b32 v2, 3, v0''')
    g('s_sub_u32 s48, s89, 32\ns_lshr_b32 s48, s48, 3\ns_add_u32 s48, s48, 16')
    flag_wait(g, 's48', 32)
    def issue_h():
        for ks in range(8):
            g(f's_add_u32 s46, s44, {ks*2048}')
            g(f'buffer_load_dwordx4 v[{72+4*ks}:{75+4*ks}], v1, s[36:39], s46 offen sc1')
            g(f'buffer_load_dwordx4 v[{104+4*ks}:{107+4*ks}], v1, s[36:39], s46 offen offset:1024 sc1')
    tags = [75 + 4 * k for k in range(16)]
    if 'h2' not in args.skip:
        tpoll_loop(g, issue_h, tags, sleep=16, plain=True)
    for k in range(16):
        unpack_d(g, 72 + 4 * k)
    for r in range(4):
        ga = (lambda ks: 72 + 4 * ks + r)
        ua = (lambda ks: 104 + 4 * ks + r)
        g(f'v_add_f32 v{8+r}, v{ga(0)}, v{ga(1)}\nv_add_f32 v{12+r}, v{ua(0)}, v{ua(1)}')
        for ks in range(2, 8):
            g(f'v_add_f32 v{8+r}, v{8+r}, v{ga(ks)}\nv_add_f32 v{12+r}, v{12+r}, v{ua(ks)}')
    bf16r_pair(g, 'v8', 'v9', 'v16'); bf16r_pair(g, 'v10', 'v11', 'v16')
    bf16r_pair(g, 'v12', 'v13', 'v16'); bf16r_pair(g, 'v14', 'v15', 'v16')
    for r in range(4):
        silu(g, f'v{8+r}', 'v16', 'v17', 'v18')
    bf16r_pair(g, 'v8', 'v9', 'v16'); bf16r_pair(g, 'v10', 'v11', 'v16')
    for r in range(4):
        g(f'v_mul_f32 v{8+r}, v{8+r}, v{12+r}')
    g('v_cvt_pk_bf16_f32 v8, v8, v9\nv_cvt_pk_bf16_f32 v10, v10, v11')
    g(f'''v_lshrrev_b32 v2, 5, v0
    v_lshlrev_b32 v2, 8, v2
    v_bfe_u32 v3, v0, 3, 2
    v_lshlrev_b32 v3, 6, v3
    v_and_b32 v4, 7, v0
    v_lshlrev_b32 v4, 1, v4
    v_add3_u32 v5, v2, v3, v4
    ds_write_b16 v5, v8 offset:{L_H}
    ds_write_b16_d16_hi v5, v8 offset:{L_H+16}
    ds_write_b16 v5, v10 offset:{L_H+32}
    ds_write_b16_d16_hi v5, v10 offset:{L_H+48}''')
    lds_signal(g, C_H)
    g.label('L_A3_OG')
    g(f'''s_lshr_b32 s44, s88, 3
    s_lshl_b32 s44, s44, 15
    s_bfe_u32 s45, s88, 0x10002
    s_lshl_b32 s45, s45, 8
    s_add_u32 s44, s44, s45
    s_add_u32 s44, s44, {W_O}
    v_bfe_u32 v2, v0, 4, 1
    v_lshlrev_b32 v2, 14, v2
    v_lshrrev_b32 v3, 5, v0
    v_lshl_add_u32 v2, v3, 13, v2
    v_and_b32 v1, 15, v0
    v_lshl_add_u32 v1, v1, 4, v2''')
    def issue_o():
        for sp in range(16):
            if sp % 8 == 0:
                g(f's_add_u32 s46, s44, {sp*512}')
            g(f'buffer_load_dwordx4 v[{40+4*sp}:{43+4*sp}], v1, s[36:39], s46 offen offset:{(sp%8)*512} sc1')
    if args.noml:
        lds_wait(g, C_V, 1)
        g(f'''s_lshr_b32 s48, s88, 6
        s_lshl_b32 s48, s48, 12
        s_bfe_u32 s49, s88, 0x30003
        s_lshl_b32 s49, s49, 2
        s_add_u32 s48, s48, s49
        s_add_u32 s48, s48, {W_ML}
        v_lshlrev_b32 v2, 6, v0''')
        def issue_w():
            g('buffer_load_dword v8, v2, s[36:39], s48 offen sc1')
            g('buffer_load_dword v9, v2, s[36:39], s48 offen offset:32 sc1')
        poll_loop(g, issue_w, [8, 9], sleep=8)
        g('v_mov_b32 v10, v8')
        allred_row16(g, 'v_max_f32', 'v10', 'v11')
        allred_x16(g, 'v_max_f32', 'v10', 'v11')
        g('''v_sub_f32 v8, v8, v10
        v_mul_f32 v8, s60, v8
        v_exp_f32 v8, v8
        s_nop 0
        v_mul_f32 v9, v9, v8''')
        allred_row16(g, 'v_add_f32', 'v9', 'v11')
        allred_x16(g, 'v_add_f32', 'v9', 'v11')
        precise_div(g, 'v10', 'v8', 'v9', 'v11', 'v12')
        g(f'''v_lshlrev_b32 v2, 2, v0
        ds_write_b32 v2, v10 offset:{L_W}
        v_bfe_u32 v2, v0, 4, 1
        v_lshlrev_b32 v2, 7, v2
        v_lshrrev_b32 v3, 5, v0
        v_lshl_add_u32 v2, v3, 6, v2
        s_waitcnt lgkmcnt(0)
        ds_read_b128 v[24:27], v2 offset:{L_W}
        ds_read_b128 v[28:31], v2 offset:{L_W+16}
        ds_read_b128 v[32:35], v2 offset:{L_W+32}
        ds_read_b128 v[36:39], v2 offset:{L_W+48}''')
    lds_wait(g, C_O, 4)
    if 'o2' not in args.skip:
        poll_loop(g, issue_o, range(40, 104), sleep=1)
    ts(g, 6)
    for r in range(4):
        if args.noml:
            g(f'v_mul_f32 v{8+r}, v{40+r}, v24\nv_mul_f32 v{12+r}, v{44+r}, v25')
            for sp in range(2, 16, 2):
                g(f'v_fma_f32 v{8+r}, v{40+4*sp+r}, v{24+sp}, v{8+r}\nv_fma_f32 v{12+r}, v{44+4*sp+r}, v{25+sp}, v{12+r}')
        else:
            g(f'v_add_f32 v{8+r}, v{40+r}, v{44+r}\nv_add_f32 v{12+r}, v{48+r}, v{52+r}')
            for sp in range(4, 16, 2):
                g(f'v_add_f32 v{8+r}, v{8+r}, v{40+4*sp+r}\nv_add_f32 v{12+r}, v{12+r}, v{44+4*sp+r}')
        g(f'v_add_f32 v{8+r}, v{8+r}, v{12+r}')
    for r in range(4):
        allred_x32(g, 'v_add_f32', f'v{8+r}', 'v12')
    g('v_cvt_pk_bf16_f32 v8, v8, v9\nv_cvt_pk_bf16_f32 v10, v10, v11')
    g(f'''v_bfe_u32 v2, v0, 4, 1
    v_lshlrev_b32 v2, 7, v2
    v_bfe_u32 v3, v0, 3, 1
    v_lshlrev_b32 v3, 6, v3
    v_and_b32 v4, 7, v0
    v_lshlrev_b32 v4, 1, v4
    v_add3_u32 v5, v2, v3, v4
    s_mov_b32 exec_hi, 0
    ds_write_b16 v5, v8 offset:{L_OB}
    ds_write_b16_d16_hi v5, v8 offset:{L_OB+16}
    ds_write_b16 v5, v10 offset:{L_OB+32}
    ds_write_b16_d16_hi v5, v10 offset:{L_OB+48}
    s_mov_b64 exec, -1''')
    lds_signal(g, C_OG)
    ts(g, 7)
    ts_dump(g, 8)
    g('s_endpgm')

    g.label('L_A0')
    vm = VM(g)
    srd(g, 40, 24, 256)
    g('''s_memrealtime s[54:55]
    v_mov_b32 v8, -1
    v_mov_b32 v9, -1
    v_mov_b32 v10, -1
    v_mov_b32 v11, -1
    v_lshlrev_b32 v3, 4, v0
    v_lshrrev_b32 v4, 5, v0
    v_and_b32 v5, 31, v0
    v_lshlrev_b32 v5, 4, v5
    v_mov_b32 v13, 0
    v_mov_b32 v14, 0
    s_waitcnt lgkmcnt(0)
    s_or_b32 s54, s54, 1
    v_mov_b32 v12, s54
    s_mov_b64 exec, 1
    buffer_atomic_cmpswap v[12:13], v14, s[40:43], 0 offen sc0
    s_mov_b64 exec, -1''')
    vm.issue('nonce')
    def clr(voff, off=0):
        g(f'buffer_store_dwordx4 v[8:11], {voff}, s[36:39], s46 offen offset:{off} sc1')
        vm.issue('clr')
    g(f'''s_sub_u32 s48, s89, 32
    s_and_b32 s48, s48, 255
    s_and_b32 s46, s48, 7
    s_lshl_b32 s46, s46, 15
    s_lshr_b32 s48, s48, 3
    s_lshl_b32 s48, s48, 9
    s_add_u32 s46, s46, s48
    s_add_u32 s56, s46, {W_F}
    s_mov_b32 s46, s56
    v_lshl_add_u32 v6, v4, 14, v5''')
    clr('v6')
    g(f'''s_and_b32 s46, s88, 3
    s_lshl_b32 s46, s46, 17
    s_lshr_b32 s48, s88, 2
    s_lshl_b32 s48, s48, 9
    s_add_u32 s46, s46, s48
    s_add_u32 s46, s46, {W_S}
    v_lshl_add_u32 v6, v4, 15, v5''')
    clr('v6')
    g('s_add_u32 s46, s46, 65536')
    clr('v6')
    g(f'''s_lshr_b32 s46, s86, 6
    s_lshl_b32 s46, s46, 18
    s_bfe_u32 s48, s86, 0x10005
    s_lshl_b32 s48, s48, 14
    s_add_u32 s46, s46, s48
    s_and_b32 s48, s86, 31
    s_lshl_b32 s48, s48, 9
    s_add_u32 s46, s46, s48
    s_add_u32 s46, s46, {W_O}
    v_lshl_add_u32 v6, v4, 15, v5''')
    for i in range(4):
        clr('v6')
        if i < 3:
            g('s_add_u32 s46, s46, 65536')
    g(f'''s_lshl_b32 s46, s86, 6
    s_add_u32 s46, s46, {W_ML}
    s_mov_b64 exec, 15''')
    clr('v3')
    g(f'''s_mov_b64 exec, 1
    s_lshl_b32 s46, s2, 7
    s_add_u32 s46, s46, {W_CT}
    buffer_store_dword v14, v14, s[36:39], s46 offen sc1
    s_lshl_b32 s46, s86, 7
    s_add_u32 s46, s46, {W_CT + 256*128}
    buffer_store_dword v14, v14, s[36:39], s46 offen sc1''')
    vm.issue('clr'); vm.issue('clr')
    g('s_mov_b64 exec, -1')
    g(f'''s_lshr_b32 s47, s87, 6
    s_lshl_b32 s47, s47, 16
    s_and_b32 s48, s87, 63
    s_lshl_b32 s48, s48, 9
    s_add_u32 s47, s47, s48
    s_add_u32 s47, s47, {W_Q}''')
    srd(g, 28, 10, 8 * 1024 * 1024)
    g('''s_and_b32 s44, s87, 7
    s_lshl_b32 s45, s44, 20
    s_lshr_b32 s46, s87, 3
    s_lshl_b32 s46, s46, 8
    s_add_u32 s45, s45, s46
    v_lshrrev_b32 v4, 4, v0
    v_and_b32 v5, 15, v0
    v_lshlrev_b32 v1, 16, v4
    v_lshl_add_u32 v1, v5, 4, v1''')
    for kk in range(4):
        for i in range(8):
            r = 40 + 32 * kk + 4 * i
            g(f's_add_u32 s46, s45, {(32 * kk + i) * 8192}')
            g(f'buffer_load_dwordx4 v[{r}:{r+3}], v1, s[28:31], s46 offen nt')
            vm.issue(f'wq{kk}')
    g(f'''v_and_b32 v2, 1, v0
    v_lshlrev_b32 v3, 11, v2
    v_lshl_add_u32 v3, v4, 4, v3
    s_lshl_b32 s46, s44, 8
    v_add_u32 v3, s46, v3
    v_lshlrev_b32 v2, 15, v2
    v_lshl_add_u32 v2, v4, 7, v2
    v_bfe_u32 v6, v0, 1, 3
    v_lshl_add_u32 v2, v6, 4, v2
    s_barrier''')
    lds_wait(g, C_X, 1)
    ts(g, 1)
    vm.wait('clr')
    g(f'''v_readfirstlane_b32 s55, v12
    s_cmp_eq_u32 s55, 0
    s_cselect_b32 s55, s54, s55
    v_mov_b32 v6, {C_N}
    v_mov_b32 v7, s55
    s_mov_b64 exec, 1
    ds_write_b32 v6, v7
    s_mov_b64 exec, -1''')
    for half in range(2):
        for kk in range(4):
            b = 8 + 4 * (kk & 1)
            g(f'ds_read_b128 v[{b}:{b+3}], v3 offset:{64*kk}')
            if half == 0:
                vm.wait(f'wq{kk}')
            base = 40 + 32 * kk
            for tt in range(4):
                t = 4 * half + tt
                d = t >> 1
                sel = 's58' if (t & 1) == 0 else 's59'
                o = 16 + 4 * (tt & 1)
                for p in range(4):
                    g(f'v_perm_b32 v{o+p}, v{base + 4*(2*p+1) + d}, v{base + 4*(2*p) + d}, {sel}')
                acc = 24 + 4 * tt
                c = '0' if kk == 0 else f'v[{acc}:{acc+3}]'
                g('s_waitcnt lgkmcnt(0)\ns_nop 0' if tt == 0 else 's_nop 1')
                g(f'v_mfma_f32_16x16x32_bf16 v[{acc}:{acc+3}], v[{o}:{o+3}], v[{b}:{b+3}], {c}')
        g('s_nop 7\ns_nop 1')
        r = select8(g, [24 + 4 * tt for tt in range(4)])
        g('s_mov_b64 exec, s[84:85]' if half == 1 else 's_not_b64 exec, s[84:85]')
        tagged_store(g, vm, r, 's47', 'v2', x=16)
        g('s_mov_b64 exec, -1\ns_nop 1')
    srd(g, 32, 20, 3584 * 1024 * 2)
    g('s_lshr_b32 s48, s87, 6\ns_add_u32 s48, s48, 1')
    arrive(g, 's48', 64, ack=bool(args.qack))
    ts(g, 2)
    q_gather(g, args, 0, 3)
    vm.reset()
    ts(g, 4)
    g('s_cmp_lt_u32 s89, 32\ns_cbranch_scc1 L_A0_FIN')
    g('''s_sub_u32 s48, s89, 32
    s_lshr_b32 s49, s48, 3
    s_lshl_b32 s49, s49, 18
    s_and_b32 s48, s48, 7
    s_lshl_b32 s48, s48, 8
    s_add_u32 s48, s48, s49
    v_lshlrev_b32 v1, 14, v4
    v_lshl_add_u32 v1, v5, 4, v1''')
    if args.late:
        lds_wait(g, C_V, args.late)
    elif args.kfirst:
        lds_wait(g, C_K, 4)
    for kk in range(3):
        if kk >= args.ainfl and not args.late:
            vm.wait(f'wd{kk-args.ainfl}')
        tile_loads(g, vm, 32, 's48', 2048, kk, kk, f'wd{kk}')
    g(f'''v_and_b32 v3, 1, v0
    v_lshlrev_b32 v3, 8, v3
    v_lshl_add_u32 v3, v4, 4, v3
    v_add_u32 v3, {L_H}, v3''')
    gemv_tile(g, vm, 32, 's48', 2048, 'v3', True, 'wd', wait_fn=lambda: lds_wait(g, C_H, 1))
    g('v_and_b32 v2, 1, v0\nv_lshlrev_b32 v2, 14, v2\nv_lshl_add_u32 v2, v4, 7, v2\nv_bfe_u32 v6, v0, 1, 3\nv_lshl_add_u32 v2, v6, 4, v2')
    publish_acc(g, vm, 's56', tagged=False)
    g.label('L_A0_FIN')
    ts(g, 5)
    srd(g, 28, 4, 4096)
    srd(g, 32, 22, 4096)
    g(f'''s_lshr_b32 s44, s2, 5
    s_bfe_u32 s45, s2, 0x10004
    s_and_b32 s46, s2, 15
    ; S gather: W_S + ((c*2+b)*64 + hh*2 + half)*512 + o8*32 + q2*16
    s_lshr_b32 s48, s2, 4
    s_lshl_b32 s49, s48, 14
    s_lshl_b32 s48, s48, 15
    s_lshl_b32 s53, s46, 5
    s_add_u32 s48, s48, s53
    s_add_u32 s49, s49, s53
    s_add_u32 s48, s48, {W_S}
    s_add_u32 s49, s49, {W_F}
    v_lshrrev_b32 v2, 1, v0
    v_and_b32 v3, 1, v0
    v_lshlrev_b32 v1, 10, v2
    v_lshl_add_u32 v1, v3, 4, v1
    v_min_u32 v2, 27, v2
    v_lshlrev_b32 v2, 9, v2
    v_lshl_add_u32 v2, v3, 4, v2
    ; x / out element offset: (b*1024 + 128c + 32g + t)*2 , g=o8>>2, t=2*(o8&3)+q2 ; +16 bytes per r
    s_lshl_b32 s52, s45, 10
    s_lshl_b32 s53, s44, 7
    s_add_u32 s52, s52, s53
    s_lshr_b32 s53, s46, 2
    s_lshl_b32 s53, s53, 5
    s_add_u32 s52, s52, s53
    s_and_b32 s53, s46, 3
    s_lshl_b32 s53, s53, 1
    s_add_u32 s52, s52, s53
    v_add_u32 v4, s52, v3
    v_lshlrev_b32 v4, 1, v4
    buffer_load_ushort v24, v4, s[28:31], 0 offen
    buffer_load_ushort v25, v4, s[28:31], 0 offen offset:16
    buffer_load_ushort v26, v4, s[28:31], 0 offen offset:32
    buffer_load_ushort v27, v4, s[28:31], 0 offen offset:48''')
    g(f'v_lshlrev_b32 v3, 7, v0\ns_mov_b32 s46, {W_FL + 128}\ns_mov_b64 exec, 15')
    def issue_f4b():
        g('buffer_load_dword v9, v3, s[36:39], s46 offen sc1')
    tpoll_loop(g, issue_f4b, [9], sleep=16)
    g('s_mov_b64 exec, -1')
    lds_wait(g, C_S, 2)
    def issue_fin():
        g('buffer_load_dwordx4 v[8:11], v1, s[36:39], s48 offen sc1')
        g('buffer_load_dwordx4 v[12:15], v1, s[36:39], s48 offen offset:512 sc1')
        g('buffer_load_dwordx4 v[16:19], v2, s[36:39], s49 offen sc1')
    poll_loop(g, issue_fin, range(8, 20), sleep=args.finsleep)
    ts(g, 6)
    g('v_cmp_gt_u32 vcc, 56, v0\ns_nop 1')
    for r in range(4):
        g(f'v_add_f32 v{8+r}, v{8+r}, v{12+r}')
        g(f'v_cndmask_b32 v{16+r}, 0, v{16+r}, vcc')
    for r in list(range(8, 12)) + list(range(16, 20)):
        for rr in (2, 4, 8):
            g(f's_nop 1\nv_add_f32_dpp v20, v{r}, v{r} row_ror:{rr} row_mask:0xf bank_mask:0xf\nv_mov_b32 v{r}, v20')
        allred_x16(g, 'v_add_f32', f'v{r}', 'v20')
        allred_x32(g, 'v_add_f32', f'v{r}', 'v20')
    bf16r_pair(g, 'v8', 'v9', 'v20'); bf16r_pair(g, 'v10', 'v11', 'v20')
    bf16r_pair(g, 'v16', 'v17', 'v20'); bf16r_pair(g, 'v18', 'v19', 'v20')
    for r in range(4):
        silu(g, f'v{16+r}', 'v20', 'v21', 'v22')
    bf16r_pair(g, 'v16', 'v17', 'v20'); bf16r_pair(g, 'v18', 'v19', 'v20')
    for r in range(4):
        g(f'v_mul_f32 v{8+r}, v{8+r}, v{16+r}')
    bf16r_pair(g, 'v8', 'v9', 'v20'); bf16r_pair(g, 'v10', 'v11', 'v20')
    for r in range(4):
        g(f'v_lshlrev_b32 v{24+r}, 16, v{24+r}\nv_add_f32 v{8+r}, v{8+r}, v{24+r}\nv_cvt_pk_bf16_f32 v{8+r}, v{8+r}, v{8+r}')
    g('''s_mov_b64 exec, 3
    buffer_store_short v8, v4, s[32:35], 0 offen
    buffer_store_short v9, v4, s[32:35], 0 offen offset:16
    buffer_store_short v10, v4, s[32:35], 0 offen offset:32
    buffer_store_short v11, v4, s[32:35], 0 offen offset:48''')
    ts(g, 7)
    ts_dump(g, 8)
    g('s_endpgm')

    g.label('L_A12')
    vm = VM(g)
    g('''s_cmp_eq_u32 s3, 1
    s_cselect_b32 s28, s16, s18
    s_cselect_b32 s29, s17, s19
    s_mov_b32 s30, 7340032
    s_mov_b32 s31, 0x20000
    v_lshrrev_b32 v4, 4, v0
    v_and_b32 v5, 15, v0
    s_and_b32 s44, s2, 7
    s_mul_i32 s45, s44, 917504
    s_lshr_b32 s46, s2, 3
    s_lshl_b32 s46, s46, 8
    s_add_u32 s45, s45, s46
    v_mul_u32_u24 v1, 57344, v4
    v_lshl_add_u32 v1, v5, 4, v1
    v_and_b32 v2, 1, v0
    v_lshlrev_b32 v3, 11, v2
    v_lshl_add_u32 v3, v4, 4, v3
    s_lshl_b32 s46, s44, 8
    v_add_u32 v3, s46, v3
    v_lshlrev_b32 v2, 9, v2
    v_lshl_add_u32 v2, v4, 7, v2
    v_bfe_u32 v6, v0, 1, 3
    v_lshl_add_u32 v2, v6, 4, v2
    s_cmp_ge_u32 s2, 224
    s_cbranch_scc1 L_A12_SKIP''')
    g('s_barrier')
    if args.kfirst:
        lds_wait(g, C_K, 4)
    AI = args.ainfl
    for kk in range(AI):
        tile_loads(g, vm, 28, 's45', 7168, kk, kk, f'gu{kk}')
    lds_wait(g, C_X, 1)
    for kk in range(4):
        g(f'ds_read_b128 v[{A_B+4*kk}:{A_B+4*kk+3}], v3 offset:{64*kk}')
    g('s_waitcnt lgkmcnt(0)')
    for kk in range(4):
        vm.wait(f'gu{kk}')
        if kk + AI < 4:
            tile_loads(g, vm, 28, 's45', 7168, kk + AI, (kk + AI) % 3, f'gu{kk+AI}')
        tile_block_mfma(g, kk % 3, kk, kk == 0, A_B + 4 * kk)
    read_nonce(g)
    g(f'v_lshlrev_b32 v3, 7, v0\ns_mov_b32 s46, {W_FL + 128}\ns_mov_b64 exec, 15')
    def issue_f4():
        g('buffer_load_dword v9, v3, s[36:39], s46 offen sc1')
    tpoll_loop(g, issue_f4, [9], sleep=16)
    g('s_mov_b64 exec, -1')
    g(f's_lshl_b32 s46, s3, 10\ns_lshl_b32 s47, s2, 11\ns_add_u32 s46, s46, s47\ns_add_u32 s46, s46, {W_GU - 1024}')
    publish_acc(g, vm, 's46')
    g('s_lshr_b32 s48, s2, 3\ns_add_u32 s48, s48, 16')
    arrive(g, 's48', 16, sctr='s48', ack=False)
    g('s_branch L_A12_WO')
    g.label('L_A12_SKIP')
    g('s_barrier')
    if args.kfirst:
        lds_wait(g, C_K, 4)
    read_nonce(g)
    g.label('L_A12_WO')
    ts(g, 1)
    vm.reset()
    srd(g, 28, 12, 8 * 1024 * 1024)
    g('''s_and_b32 s44, s88, 3
    s_lshl_b32 s44, s44, 1
    s_add_u32 s44, s44, s3
    s_sub_u32 s44, s44, 1
    s_lshr_b32 s45, s88, 2
    s_lshl_b32 s45, s45, 17
    s_lshl_b32 s48, s44, 8
    s_add_u32 s45, s45, s48
    v_lshlrev_b32 v1, 14, v4
    v_lshl_add_u32 v1, v5, 4, v1''')
    if args.late:
        lds_wait(g, C_V, args.late)
    for kk in range(2):
        if kk == 1 and args.ainfl == 1:
            vm.wait('wo0')
        tile_loads(g, vm, 28, 's45', 2048, kk, kk, f'wo{kk}', stmp='s48')
    outs = [136, 8]
    for kk in range(2):
        vm.wait(f'wo{kk}')
        base = A_POOL + 32 * kk
        for t in range(8):
            d = t >> 1
            sel = 's58' if (t & 1) == 0 else 's59'
            for p in range(4):
                g(f'v_perm_b32 v{outs[kk] + 4*t + p}, v{base + 4*(2*p+1) + d}, v{base + 4*(2*p) + d}, {sel}')
    g(f'''v_and_b32 v3, 1, v0
    v_lshlrev_b32 v3, 7, v3
    v_lshl_add_u32 v3, v4, 4, v3
    v_add_u32 v3, {L_OB}, v3
    s_lshl_b32 s46, s44, 16
    s_lshr_b32 s48, s88, 2
    s_lshl_b32 s48, s48, 9
    s_add_u32 s46, s46, s48
    s_add_u32 s46, s46, {W_S}
    v_and_b32 v2, 1, v0
    v_lshlrev_b32 v2, 15, v2
    v_lshl_add_u32 v2, v4, 7, v2
    v_bfe_u32 v6, v0, 1, 3
    v_lshl_add_u32 v2, v6, 4, v2''')
    ts(g, 2)
    lds_wait(g, C_OG, 1)
    ts(g, 3)
    g('''ds_read_b128 v[72:75], v3
    ds_read_b128 v[76:79], v3 offset:64
    s_waitcnt lgkmcnt(0)''')
    for kk in range(2):
        for t in range(8):
            acc = A_ACC + 4 * t
            o = outs[kk] + 4 * t
            c = '0' if kk == 0 else f'v[{acc}:{acc+3}]'
            g(f'v_mfma_f32_16x16x32_bf16 v[{acc}:{acc+3}], v[{o}:{o+3}], v[{72+4*kk}:{75+4*kk}], {c}')
    publish_acc(g, vm, 's46', tagged=False)
    lds_signal(g, C_S, add=True)
    ts(g, 4)
    ts_dump(g, 5)
    g('s_endpgm')

    g.label('L_BULK')
    vm = VM(g)
    BQ, BS, BO, BP = 8, 24, 56, 88
    NT, NS, NL = 16, 10, 6
    TS = 16384 if args.inter else 4096
    srd(g, 28, 6, 64 * 1024 * 1024)
    srd(g, 32, 8, 64 * 1024 * 1024)
    g(f'''s_sub_u32 s44, s3, 4
    s_lshr_b32 s45, s86, 6
    s_bfe_u32 s46, s86, 0x10005
    s_lshl_b32 s46, s46, 2
    s_add_u32 s45, s45, s46
    s_lshl_b32 s45, s45, 23
    s_and_b32 s46, s86, 31
    s_lshl_b32 s46, s46, 18
    s_add_u32 s45, s45, s46
    s_lshl_b32 s46, s44, {12 if args.inter else 16}
    s_add_u32 s45, s45, s46
    v_and_b32 v4, 15, v0
    v_lshrrev_b32 v5, 4, v0
    v_lshlrev_b32 v2, 4, v0
    s_mul_i32 s48, s44, 24576
    s_add_u32 s48, s48, {L_V}
    v_xor_b32 v6, v4, v5
    v_lshlrev_b32 v7, 8, v5
    v_lshl_add_u32 v1, v6, 4, v7
    v_xor_b32 v249, 64, v1
    v_add_u32 v249, 1024, v249
    v_xor_b32 v250, 128, v1
    v_add_u32 v250, 2048, v250
    v_xor_b32 v251, 192, v1
    v_add_u32 v251, 3072, v251
    v_and_b32 v6, 3, v4
    v_lshlrev_b32 v6, 2, v6
    v_lshrrev_b32 v7, 2, v4
    v_add_u32 v6, v6, v7
    v_xor_b32 v7, v6, v5
    v_lshlrev_b32 v6, 8, v6
    v_lshl_add_u32 v252, v7, 4, v6
    v_xor_b32 v253, 64, v252
    v_xor_b32 v254, 128, v252
    v_xor_b32 v255, 192, v252
    v_add_u32 v252, s48, v252
    v_add_u32 v253, s48, v253
    v_add_u32 v254, s48, v254
    v_add_u32 v255, s48, v255''')
    g('s_barrier')
    INFL = args.infl
    order = []
    KV_ = ['v1', 'v249', 'v250', 'v251']
    def ldsload(isK, T, k):
        for j in range(4):
            if isK:
                g(f's_add_u32 s49, s48, {4096*k + 1024*j}\ns_mov_b32 m0, s49\ns_add_u32 s46, s45, {TS*T}')
                g(f'buffer_load_dwordx4 {KV_[j]}, s[28:31], s46 offen nt lds')
            else:
                g(f's_add_u32 s49, s48, {4096*k + 1024*j}\ns_mov_b32 m0, s49\ns_add_u32 s46, s45, {TS*T + 1024*j}')
                g('buffer_load_dwordx4 v2, s[32:35], s46 offen nt lds')
            vm.issue(f'{"K" if isK else "V"}{T}')
    def rload(isK, T, slot):
        assert not isK
        r0 = BP + 16 * slot
        g(f's_add_u32 s46, s45, {TS*T}')
        for j in range(4):
            r = r0 + 4 * j
            g(f'buffer_load_dwordx4 v[{r}:{r+3}], v2, s[32:35], s46 offen offset:{1024*j} nt')
            vm.issue(f'V{T}')
    def ldsread(k, slot):
        r0 = BP + 16 * slot
        for j in range(4):
            g(f'ds_read_b128 v[{r0+4*j}:{r0+4*j+3}], v3 offset:{4096*k + 1024*j}')
    def kread(k, slot):
        r0 = BP + 16 * slot
        for j in range(4):
            g(f'ds_read_b128 v[{r0+4*j}:{r0+4*j+3}], v{252+j} offset:{4096*k}')
    def pace(tag):
        order.append(tag)
        n = args.vinfl if (tag[0] == 'V' and args.vinfl) else INFL
        if len(order) - 1 - n >= 0:
            vm.wait(order[len(order) - 1 - n])
    vslot = lambda T: (T + 6) % NS
    def stream(isK, t0=0):
        c = 'K' if isK else 'V'
        if isK:
            order.clear()
            assert INFL <= 4
        for T in range(t0, NT):
            if isK and T == args.pre:
                lds_wait(g, C_X, 1)
            pace(f'{c}{T}')
            if T in (4, 8, 12, 15):
                ts(g, (7 if isK else 11) + (T // 4 if T < 15 else 4) - 0)
            if T == args.ksig and isK:
                lds_signal(g, C_K, add=True)
            if T == args.vsig and not isK:
                lds_signal(g, C_V, add=True)
            if isK:
                Tc = T - INFL
                if 0 <= Tc < NS:
                    kread(Tc % NL, Tc)
                if T >= NL:
                    later = [t for t in range(T - NL + 1, Tc + 1) if 0 <= t < NS]
                    g(f"s_waitcnt lgkmcnt({min(8, 4 * len(later))})")
                ldsload(True, T, T % NL)
            elif T < NS:
                rload(False, T, vslot(T))
            elif args.vpre and T >= NT - args.vpre:
                order.pop()
            else:
                ldsload(False, T, T - NS)
    stream(True)
    if args.ksig >= NT:
        lds_signal(g, C_K, add=True)
    for T in range(NT - args.vpre, NT):
        pace(f'V{T}')
        ldsload(False, T, T - NS + 2)
    lds_wait(g, C_Q, 2)
    ts(g, 1)
    g(f'''v_and_b32 v3, 7, v0
    v_lshlrev_b32 v3, 8, v3
    v_lshl_add_u32 v3, v5, 4, v3''')
    for j in range(4):
        g(f'ds_read_b128 v[{BQ+4*j}:{BQ+4*j+3}], v3 offset:{L_Q + 64*j}')
    g('s_waitcnt lgkmcnt(0)')
    for T in range(NT):
        if T >= NS:
            g(f's_waitcnt lgkmcnt({min(8, 4 * (NT - 1 - T))})')
        r0 = BP + 16 * (T % NS)
        s = BS + 4 * T
        for j in range(4):
            c = '0' if j == 0 else f'v[{s}:{s+3}]'
            g(f'v_mfma_f32_16x16x32_bf16 v[{s}:{s+3}], v[{r0+4*j}:{r0+4*j+3}], v[{BQ+4*j}:{BQ+4*j+3}], {c}')
        k = T - (NS - 3)
        if 0 <= k < NL:
            vm.wait(f'K{NS+k}')
            kread((NS + k) % NL, k)
        if 6 <= T < 6 + args.vearly:
            if T == 6:
                order.clear()
            order.append(f'V{T-6}')
            rload(False, T - 6, vslot(T - 6))
    g('s_nop 7')
    ts(g, 2)
    for i in range(2 * NT):
        a, b = f'v{BS+2*i}', f'v{BS+2*i+1}'
        if 'sc1' not in args.skip:
            bf16r_pair(g, a, b, 'v8')
        g(f'v_mul_f32 {a}, s61, {a}\nv_mul_f32 {b}, s61, {b}')
        if 'sc2' not in args.skip:
            bf16r_pair(g, a, b, 'v8')
    g(f'v_max_f32 v9, v{BS}, v{BS+1}')
    for i in range(1, 2 * NT):
        g(f'v_max3_f32 v9, v9, v{BS+2*i}, v{BS+2*i+1}')
    allred_x16(g, 'v_max_f32', 'v9', 'v10')
    allred_x32(g, 'v_max_f32', 'v9', 'v10')
    g('v_mov_b32 v11, 0\nv_mov_b32 v16, 0')
    for i in range(0, 4 * NT, 2):
        g(f'''v_sub_f32 v{BS+i}, v{BS+i}, v9
        v_sub_f32 v{BS+i+1}, v{BS+i+1}, v9
        v_mul_f32 v{BS+i}, s60, v{BS+i}
        v_mul_f32 v{BS+i+1}, s60, v{BS+i+1}
        v_exp_f32 v{BS+i}, v{BS+i}
        v_exp_f32 v{BS+i+1}, v{BS+i+1}
        s_nop 0
        v_add_f32 v11, v11, v{BS+i}
        v_add_f32 v16, v16, v{BS+i+1}''')
    g('v_mov_b32 v248, v9')
    g('v_add_f32 v11, v11, v16')
    allred_x16(g, 'v_add_f32', 'v11', 'v10')
    allred_x32(g, 'v_add_f32', 'v11', 'v10')
    g(f'''s_lshl_b32 s46, s44, 6
    v_lshlrev_b32 v3, 2, v0
    v_add_u32 v3, s46, v3
    s_mov_b64 exec, 0xff
    ds_write_b32 v3, v9 offset:{L_ST}
    ds_write_b32 v3, v11 offset:{L_ST+32}
    s_mov_b64 exec, -1''')
    lds_signal(g, C_ST, add=True)
    ts(g, 3)
    if args.latec:
        for i in range(2 * NT):
            g(f'v_cvt_pk_bf16_f32 v{BS+i}, v{BS+2*i}, v{BS+2*i+1}')
    if args.vearly == 0:
        order.clear()
    stream(False, args.vearly)
    if args.noml and args.vsig >= NT:
        lds_signal(g, C_V, add=True)
    def get_c():
        lds_wait(g, C_ML, 1)
        g(f'''v_and_b32 v3, 7, v0
        v_lshlrev_b32 v3, 2, v3
        ds_read_b32 v9, v3 offset:{L_ML}
        ds_read_b32 v10, v3 offset:{L_ML+32}
        s_waitcnt lgkmcnt(0)
        v_sub_f32 v9, v248, v9
        v_mul_f32 v9, s60, v9
        v_exp_f32 v9, v9
        s_nop 0
        v_mul_f32 v10, v10, v9''')
    if not args.latec:
        get_c()
        ts(g, 4)
        for i in range(2 * NT):
            a, b = BS + 2 * i, BS + 2 * i + 1
            g(f'''v_mul_f32 v12, v{a}, v10
            v_mul_f32 v13, v{b}, v10
            v_cvt_pk_bf16_f32 v{BS+i}, v12, v13''')
    else:
        ts(g, 4)
    g('v_lshlrev_b32 v3, 4, v0\nv_add_u32 v3, s48, v3')
    for U in range(NT // 2):
        T0, T1 = 2 * U, 2 * U + 1
        if T1 < NS:
            vm.wait(f'V{T1}')
        else:
            g(f's_waitcnt lgkmcnt({min(8, 4 * (NT - 1 - T1))})')
        ra = BP + 16 * vslot(T0 % NS)
        rb = BP + 16 * vslot(T1 % NS)
        for half in range(2):
            for tt in range(4):
                t = 4 * half + tt
                d = t >> 1
                sel = 's58' if (t & 1) == 0 else 's59'
                o = BQ + 4 * tt
                g(f'v_perm_b32 v{o}, v{ra+4+d}, v{ra+d}, {sel}')
                g(f'v_perm_b32 v{o+1}, v{ra+12+d}, v{ra+8+d}, {sel}')
                g(f'v_perm_b32 v{o+2}, v{rb+4+d}, v{rb+d}, {sel}')
                g(f'v_perm_b32 v{o+3}, v{rb+12+d}, v{rb+8+d}, {sel}')
            g('s_nop 1')
            for tt in range(4):
                t = 4 * half + tt
                o = BQ + 4 * tt
                acc = BO + 4 * t
                c = '0' if U == 0 else f'v[{acc}:{acc+3}]'
                g(f'v_mfma_f32_16x16x32_bf16 v[{acc}:{acc+3}], v[{o}:{o+3}], v[{BS+4*U}:{BS+4*U+3}], {c}')
        k = 2 * (U - 3)
        if 0 <= k < NL:
            vm.wait(f'V{NS+k+1}')
            lk = lambda kk: kk + 2 if (NS + kk >= NT - args.vpre) else kk
            ldsread(lk(k), vslot(k)); ldsread(lk(k + 1), vslot(k + 1))
    ts(g, 5)
    if args.latec:
        get_c()
        for i in range(32):
            g(f'v_mul_f32 v{BO+i}, v{BO+i}, v10')
    g(f'''s_lshl_b32 s46, s44, 12
    v_lshlrev_b32 v3, 9, v4
    v_lshl_add_u32 v3, v5, 7, v3
    v_add_u32 v3, s46, v3
    s_nop 7
    s_mov_b32 exec_lo, 0x00ff00ff
    s_mov_b32 exec_hi, 0x00ff00ff''')
    for t in range(8):
        acc = BO + 4 * t
        g(f'ds_write_b128 v3, v[{acc}:{acc+3}] offset:{L_OP + 16*t}')
    g('s_mov_b64 exec, -1')
    lds_signal(g, C_O, add=True)
    g(f'''s_lshr_b32 s46, s86, 6
    s_lshl_b32 s46, s46, 18
    s_lshl_b32 s49, s44, 16
    s_add_u32 s46, s46, s49
    s_bfe_u32 s49, s86, 0x10005
    s_lshl_b32 s49, s49, 14
    s_add_u32 s46, s46, s49
    s_and_b32 s49, s86, 31
    s_lshl_b32 s49, s49, 9
    s_add_u32 s46, s46, s49
    s_add_u32 s46, s46, {W_O}
    v_and_b32 v2, 31, v0
    v_lshlrev_b32 v2, 4, v2
    v_lshrrev_b32 v1, 5, v0
    v_lshl_add_u32 v2, v1, 15, v2
    s_lshl_b32 s49, s44, 10
    v_lshlrev_b32 v3, 4, v0
    v_add_u32 v3, s49, v3''')
    lds_wait(g, C_O, 4)
    for w in range(4):
        g(f'ds_read_b128 v[{88+4*w}:{91+4*w}], v3 offset:{L_OP + 4096*w}')
    g('s_waitcnt lgkmcnt(0)')
    for r in range(4):
        g(f'v_add_f32 v{8+r}, v{88+r}, v{92+r}\nv_add_f32 v{12+r}, v{96+r}, v{100+r}\nv_add_f32 v{8+r}, v{8+r}, v{12+r}')
    g('buffer_store_dwordx4 v[8:11], v2, s[36:39], s46 offen sc1')
    ts(g, 6)
    ts_dump(g, 7)
    g('s_endpgm')
    g.label('L_END')
    g('s_endpgm')
    T = f'''.section .rodata,"a"
.p2align 6
.amdhsa_kernel {KN}
  .amdhsa_next_free_vgpr 256
  .amdhsa_next_free_sgpr 100
  .amdhsa_accum_offset 256
  .amdhsa_group_segment_fixed_size 0
  .amdhsa_kernarg_size 96
  .amdhsa_user_sgpr_count 2
  .amdhsa_user_sgpr_kernarg_segment_ptr 1
  .amdhsa_system_sgpr_workgroup_id_x 1
  .amdhsa_float_denorm_mode_32 3
.end_amdhsa_kernel
'''
    return '\n'.join(H) + '\n' + '\n'.join(g.L) + '\n' + T

if __name__ == '__main__':
    ap = argparse.ArgumentParser()
    ap.add_argument('--prof', action='store_true')
    ap.add_argument('--vpre', type=int, default=0)
    ap.add_argument('--late', type=int, default=0)
    ap.add_argument('--vsig', type=int, default=16)
    ap.add_argument('--finsleep', type=int, default=1)
    ap.add_argument('--vinfl', type=int, default=0)
    ap.add_argument('--inter', type=int, default=1)
    ap.add_argument('--noml', type=int, default=0)
    ap.add_argument('--qack', type=int, default=1)
    ap.add_argument('--latec', type=int, default=0)
    ap.add_argument('--vearly', type=int, default=4)
    ap.add_argument('--ksig', type=int, default=16)
    ap.add_argument('--ainfl', type=int, default=2)
    ap.add_argument('--skip', default='')
    ap.add_argument('--remap', type=int, default=1)
    ap.add_argument('--plain', type=int, default=1)
    ap.add_argument('--nodma', action='store_true')
    ap.add_argument('--noaux', action='store_true')
    ap.add_argument('--nolds', action='store_true')
    ap.add_argument('--kfirst', type=int, default=1)
    ap.add_argument('--nohop', action='store_true')
    ap.add_argument('--fsleep', type=int, default=16)
    ap.add_argument('--infl', type=int, default=2)
    ap.add_argument('--pre', type=int, default=0)
    ap.add_argument('-o', default='recurrent_scan__gqa_block_cached__swiglu_ffn__decode.s')
    args = ap.parse_args()
    open(args.o, 'w').write(gen(args))
```

```python
import struct, sys, argparse

def f32hex(x):
    return '0x%08x' % struct.unpack('<I', struct.pack('<f', x))[0]

KN = 'recurrent_scan__gqa_block_cached__swiglu_ffn__decode_kernel'
NWG = 256
W_Q = 0x000000
W_GU = 0x040000
W_S = 0x0C0000
W_F = 0x140000
W_O = 0x180000
W_ML = 0x280000
W_B = 0x300000
W_CT = 0x2E0000
W_FL = 0x2C0000
L_XN = 0x0000
L_Q = 0x1000
L_ST = 0x1800
L_ML = 0x1A00
L_CT = 0x1A40
C_Q, C_ST, C_ML, C_O, C_OG, C_H, C_N, C_K, C_X, C_V, C_S = [L_CT + 4 * i for i in range(11)]
L_W = 0x1F00
L_OB = 0x1B00
L_H = 0x1D00
L_OP = 0x2000
L_V = 0x6000
LDS_BYTES = 0x6000 + 4 * 24576
SCALE = f32hex(128 ** -0.5)
LOG2E = f32hex(1.4426950408889634)
EPS = f32hex(1e-5)
SPIN_LDS = 4000000
SPIN_GLB = 40000

NOLDS = False
QSH, QOFF = 2, 0
class Gen:
    def __init__(self):
        self.L = []
        self.n = 0
    def __call__(self, s):
        for line in s.strip('\n').split('\n'):
            self.L.append('    ' + line.strip())
    def label(self, name):
        self.L.append(name + ':')
    def uniq(self, p):
        self.n += 1
        return f'{p}_{self.n}'

class VM:
    def __init__(self, g):
        self.g = g
        self.ops = []
    def issue(self, tag):
        self.ops.append(tag)
    def wait(self, tag):
        idx = max(i for i, t in enumerate(self.ops) if t == tag)
        n = len(self.ops) - 1 - idx
        assert n <= 63
        self.g(f's_waitcnt vmcnt({n})')
    def reset(self):
        self.ops = []

def srd(g, d, base, nbytes):
    g(f's_mov_b32 s{d}, s{base}\ns_mov_b32 s{d+1}, s{base+1}\ns_mov_b32 s{d+2}, {nbytes}\ns_mov_b32 s{d+3}, 0x20000')

def lds_wait(g, addr, target, vt='v7', va='v6', st='s50', sc='s51'):
    l = g.uniq('LW'); d = g.uniq('LWD')
    g(f'v_mov_b32 {va}, {addr}\ns_mov_b32 {sc}, {1 if NOLDS else SPIN_LDS}')
    g.label(l)
    g(f'''ds_read_b32 {vt}, {va}
    s_waitcnt lgkmcnt(0)
    v_readfirstlane_b32 {st}, {vt}
    s_cmp_ge_u32 {st}, {target}
    s_cbranch_scc1 {d}
    s_sleep 1
    s_sub_u32 {sc}, {sc}, 1
    s_cmp_lg_u32 {sc}, 0
    s_cbranch_scc1 {l}''')
    g.label(d)

def lds_signal(g, addr, add=False, vt='v7', va='v6'):
    g(f'''s_waitcnt lgkmcnt(0)
    v_mov_b32 {va}, {addr}
    v_mov_b32 {vt}, 1
    s_mov_b64 exec, 1''')
    g(f'ds_add_u32 {va}, {vt}' if add else f'ds_write_b32 {va}, {vt}')
    g('s_mov_b64 exec, -1')

def bf16r_pair(g, a, b, t):
    g(f'''v_cvt_pk_bf16_f32 {t}, {a}, {b}
    v_lshlrev_b32 {a}, 16, {t}
    v_and_b32 {b}, 0xffff0000, {t}''')

def bf16r(g, a):
    g(f'''v_cvt_pk_bf16_f32 {a}, {a}, {a}
    v_lshlrev_b32 {a}, 16, {a}''')

def allred_row16(g, op, v, t):
    for r in (1, 2, 4, 8):
        g(f's_nop 1\n{op}_dpp {t}, {v}, {v} row_ror:{r} row_mask:0xf bank_mask:0xf\nv_mov_b32 {v}, {t}')

def allred_x16(g, op, v, t):
    g(f'v_mov_b32 {t}, {v}\ns_nop 1\nv_permlane16_swap_b32 {v}, {t}\ns_nop 1\n{op} {v}, {v}, {t}')

def allred_x32(g, op, v, t):
    g(f'v_mov_b32 {t}, {v}\ns_nop 1\nv_permlane32_swap_b32 {v}, {t}\ns_nop 1\n{op} {v}, {v}, {t}')

def precise_div(g, d, num, den, t1, t2):
    g(f'''v_rcp_f32 {t1}, {den}
    s_nop 0
    v_mul_f32 {t2}, {num}, {t1}
    v_fma_f32 {d}, -{t2}, {den}, {num}
    v_fma_f32 {d}, {d}, {t1}, {t2}''')

def silu(g, x, t1, t2, t3):
    g(f'''v_mul_f32 {t1}, s60, {x}
    v_exp_f32 {t1}, -{t1}
    s_nop 0
    v_add_f32 {t1}, 1.0, {t1}''')
    g(f'''v_rcp_f32 {t2}, {t1}
    s_nop 0
    v_mul_f32 {t3}, {x}, {t2}
    v_fma_f32 {t1}, -{t3}, {t1}, {x}
    v_fma_f32 {t1}, {t1}, {t2}, {t3}
    v_cmp_eq_f32 vcc, 0, {t2}
    s_nop 1
    v_cndmask_b32 {x}, {t1}, {t3}, vcc''')

A_T = 8
A_B = 24
A_ACC = 40
A_POOL = 72

def tile_loads(g, vm, srdreg, sbase, rowbytes, kk, slot, tag, voff='v1', stmp='s46'):
    for i in range(8):
        r = A_POOL + 32 * slot + 4 * i
        g(f's_add_u32 {stmp}, {sbase}, {(32 * kk + i) * rowbytes}')
        g(f'buffer_load_dwordx4 v[{r}:{r+3}], {voff}, s[{srdreg}:{srdreg+3}], {stmp} offen nt')
        vm.issue(tag)

def tile_block_mfma(g, slot, kk, first, breg):
    base = A_POOL + 32 * slot
    for half in range(2):
        for tt in range(4):
            t = 4 * half + tt
            d = t >> 1
            sel = 's58' if (t & 1) == 0 else 's59'
            o = A_T + 4 * tt
            for p in range(4):
                g(f'v_perm_b32 v{o+p}, v{base + 4*(2*p+1) + d}, v{base + 4*(2*p) + d}, {sel}')
        g('s_nop 1')
        for tt in range(4):
            t = 4 * half + tt
            o = A_T + 4 * tt
            acc = A_ACC + 4 * t
            c = '0' if first else f'v[{acc}:{acc+3}]'
            g(f'v_mfma_f32_16x16x32_bf16 v[{acc}:{acc+3}], v[{o}:{o+3}], v[{breg}:{breg+3}], {c}')

def gemv_tile(g, vm, srdreg, sbase, rowbytes, ldsaddr_v, pre_issued, tagp, wait_fn=None):
    if wait_fn:
        wait_fn()
    for kk in range(4):
        g(f'ds_read_b128 v[{A_B+4*kk}:{A_B+4*kk+3}], {ldsaddr_v} offset:{64*kk}')
    g('s_waitcnt lgkmcnt(0)')
    for kk in range(4):
        vm.wait(f'{tagp}{kk}')
        tile_block_mfma(g, kk % 3, kk, kk == 0, A_B + 4 * kk)
        if kk == 0:
            tile_loads(g, vm, srdreg, sbase, rowbytes, 3, 0, f'{tagp}3')

def lane_masks(g):
    g('''s_mov_b32 s80, 0xcccccccc
    s_mov_b32 s81, 0xcccccccc
    s_mov_b32 s82, 0xf0f0f0f0
    s_mov_b32 s83, 0xf0f0f0f0
    s_mov_b32 s84, 0xff00ff00
    s_mov_b32 s85, 0xff00ff00''')

def select8(g, accs, levels=3):
    cur = list(accs)
    lv = 0
    while len(cur) > 1:
        nxt = []
        for i in range(0, len(cur), 2):
            a, b = cur[i], cur[i + 1]
            for r in range(4):
                g(f'v_cndmask_b32 v{a+r}, v{a+r}, v{b+r}, s[{80+2*lv}:{81+2*lv}]')
            nxt.append(a)
        cur = nxt
        lv += 1
    return cur[0]

def tagged_store(g, vm, r, soff, voff, x=8, stmp='s57', vtmp='v7'):
    g(f'''v_perm_b32 v{r}, v{r}, v{r+3}, s90
    v_perm_b32 v{r+1}, v{r+1}, v{r+3}, s91
    v_perm_b32 v{r+2}, v{r+2}, v{r+3}, s92
    v_mov_b32 v{r+3}, s55
    buffer_store_dwordx4 v[{r}:{r+3}], {voff}, s[36:39], {soff} offen sc1''')
    vm.issue('st')

def tagged_store_ab(g, vm, r, soff, voff, x=8, stmp='s57', vtmp='v7'):
    g(f'''v_mov_b32 v{x}, v{r+3}
    v_mov_b32 v{x+1}, s55
    v_mov_b32 v{r+3}, s55
    v_lshrrev_b32 {vtmp}, 1, {voff}
    s_lshr_b32 {stmp}, {soff}, 1
    s_add_u32 {stmp}, {stmp}, {W_B}
    buffer_store_dwordx4 v[{r}:{r+3}], {voff}, s[36:39], {soff} offen sc1
    buffer_store_dwordx2 v[{x}:{x+1}], {vtmp}, s[36:39], {stmp} offen sc1''')
    vm.issue('st'); vm.issue('st')

def unpack_d(g, r):
    g(f'v_perm_b32 v{r+3}, v{r}, v{r+1}, s93\nv_perm_b32 v{r+3}, v{r+3}, v{r+2}, s94')

def publish_acc(g, vm, soff, voff='v2', tagged=True):
    g('s_nop 7\ns_nop 1')
    r = select8(g, [A_ACC + 4 * t for t in range(8)])
    if tagged:
        tagged_store(g, vm, r, soff, voff)
    else:
        g(f'buffer_store_dwordx4 v[{r}:{r+3}], {voff}, s[36:39], {soff} offen sc1')
        vm.issue('st')

def tag_check(g, tags, acc='v7', tmp='v6'):
    tags = list(tags)
    g(f'v_xor_b32 {acc}, s55, v{tags[0]}')
    for t in tags[1:]:
        g(f'v_xor_b32 {tmp}, s55, v{t}\nv_or_b32 {acc}, {acc}, {tmp}')
    g(f'v_cmp_ne_u32 vcc, 0, {acc}')

NOHOP = False
PLAIN = True
def plain_first(g, issue_fn, check_fn, d):
    n0 = len(g.L)
    issue_fn()
    for i in range(n0, len(g.L)):
        g.L[i] = g.L[i].replace(' sc1', '')
    g('s_waitcnt vmcnt(0)')
    check_fn()
    g(f's_cbranch_vccz {d}')

def tpoll_loop(g, issue_fn, tags, sleep=2, sc='s51', acc='v7', tmp='v6', plain=False):
    l = g.uniq('TP'); d = g.uniq('TPD')
    if plain and PLAIN:
        plain_first(g, issue_fn, lambda: tag_check(g, tags, acc, tmp), d)
    g(f's_mov_b32 {sc}, {1 if NOHOP else SPIN_GLB}')
    g.label(l)
    issue_fn()
    g('s_waitcnt vmcnt(0)')
    tag_check(g, tags, acc, tmp)
    g(f'''s_cbranch_vccz {d}
    s_sleep {sleep}
    s_sub_u32 {sc}, {sc}, 1
    s_cmp_lg_u32 {sc}, 0
    s_cbranch_scc1 {l}''')
    g.label(d)

def read_nonce(g):
    lds_wait(g, C_N, 1)
    g('s_mov_b32 s55, s50')

def sentinel_check(g, regs, vmx):
    regs = list(regs)
    g(f'v_max_u32 {vmx}, v{regs[0]}, v{regs[1]}')
    i = 2
    while i < len(regs):
        if i + 1 < len(regs):
            g(f'v_max3_u32 {vmx}, {vmx}, v{regs[i]}, v{regs[i+1]}')
            i += 2
        else:
            g(f'v_max_u32 {vmx}, {vmx}, v{regs[i]}')
            i += 1
    g(f'v_cmp_eq_u32 vcc, -1, {vmx}')

def poll_loop(g, issue_fn, regs, vmx='v7', sc='s51', sleep=2, plain=False):
    l = g.uniq('PL'); d = g.uniq('PLD')
    if plain and PLAIN:
        plain_first(g, issue_fn, lambda: sentinel_check(g, regs, vmx), d)
    g(f's_mov_b32 {sc}, {1 if NOHOP else SPIN_GLB}')
    g.label(l)
    issue_fn()
    g('s_waitcnt vmcnt(0)')
    sentinel_check(g, regs, vmx)
    g(f'''s_cbranch_vccz {d}
    s_sleep {sleep}
    s_sub_u32 {sc}, {sc}, 1
    s_cmp_lg_u32 {sc}, 0
    s_cbranch_scc1 {l}''')
    g.label(d)

def arrive(g, sidx, n, stmp='s46', sctr=None, ack=True):
    d = g.uniq('ARR')
    if sctr is None:
        g(f's_lshl_b32 {stmp}, {sidx}, {QSH}\ns_add_u32 {stmp}, {stmp}, {QOFF}')
        srdn = 40
    else:
        g(f's_lshl_b32 {stmp}, {sctr}, 7\ns_add_u32 {stmp}, {stmp}, {W_CT}')
        srdn = 36
    g(f'''v_mov_b32 v6, {stmp}
    v_mov_b32 v7, 1
    {'s_waitcnt vmcnt(0)' if ack else 's_nop 0'}
    s_mov_b64 exec, 1
    buffer_atomic_add v7, v6, s[{srdn}:{srdn+3}], 0 offen sc0
    s_waitcnt vmcnt(0)
    v_readfirstlane_b32 {stmp}, v7
    s_cmp_eq_u32 {stmp}, {n-1}
    s_cbranch_scc0 {d}
    s_lshl_b32 {stmp}, {sidx}, 7
    s_add_u32 {stmp}, {stmp}, {W_FL}
    v_mov_b32 v6, 0
    v_mov_b32 v7, s55
    buffer_store_dword v7, v6, s[36:39], {stmp} offen sc1''')
    g.label(d)
    g('s_mov_b64 exec, -1')

def flag_wait(g, sidx, sleep, stmp='s46'):
    l = g.uniq('FW'); d = g.uniq('FWD')
    g(f'''s_lshl_b32 {stmp}, {sidx}, 7
    s_add_u32 {stmp}, {stmp}, {W_FL}
    v_mov_b32 v6, 0
    s_mov_b32 s51, {1 if NOHOP else SPIN_GLB}
    s_mov_b64 exec, 1''')
    g.label(l)
    g(f'''buffer_load_dword v7, v6, s[36:39], {stmp} offen sc1
    s_waitcnt vmcnt(0)
    v_readfirstlane_b32 s50, v7
    s_cmp_eq_u32 s50, s55
    s_cbranch_scc1 {d}
    s_sleep {sleep}
    s_sub_u32 s51, s51, 1
    s_cmp_lg_u32 s51, 0
    s_cbranch_scc1 {l}''')
    g.label(d)
    g('s_mov_b64 exec, -1')

def q_gather(g, args, rnd, tsa=None):
    g(f'''s_lshr_b32 s44, s86, 5
    s_lshl_b32 s44, s44, 15
    s_add_u32 s44, s44, {W_Q + rnd*16384}
    s_lshr_b32 s45, s44, 1
    s_add_u32 s45, s45, {W_B}
    s_lshr_b32 s48, s86, 6
    s_add_u32 s48, s48, 1''')
    flag_wait(g, 's48', args.fsleep)
    if tsa is not None:
        ts(g, tsa)
    g('''v_lshrrev_b32 v2, 5, v0
    v_lshlrev_b32 v2, 12, v2
    v_and_b32 v3, 31, v0
    v_lshl_add_u32 v2, v3, 4, v2
    v_lshrrev_b32 v3, 1, v2
    v_lshrrev_b32 v8, 5, v0
    v_lshlrev_b32 v8, 8, v8
    v_bfe_u32 v9, v0, 3, 2
    v_lshlrev_b32 v9, 6, v9
    v_and_b32 v10, 7, v0
    v_lshlrev_b32 v10, 1, v10
    v_add3_u32 v8, v8, v9, v10''')
    def issue_q2():
        for hh in range(2):
            g(f's_add_u32 s46, s44, {hh*8192}\ns_add_u32 s48, s45, {hh*4096}')
            for ks in range(8):
                r = 40 + 32 * hh + 4 * ks
                rb = 104 + 16 * hh + 2 * ks
                g(f'buffer_load_dwordx4 v[{r}:{r+3}], v2, s[36:39], s46 offen offset:{ks*512} sc1')
                if not args.qpack:
                    g(f'buffer_load_dwordx2 v[{rb}:{rb+1}], v3, s[36:39], s48 offen offset:{ks*256} sc1')
    tags = [43 + 4 * i for i in range(16)] + ([] if args.qpack else [105 + 2 * i for i in range(16)])
    if 'q2' not in args.skip:
        tpoll_loop(g, issue_q2, tags, sleep=4, plain=True)
    if args.qpack:
        for i in range(16):
            unpack_d(g, 40 + 4 * i)
    for hh in range(2):
        hp = 2 * rnd + hh
        for r in range(4):
            src = (lambda ks: 40 + 32 * hh + 4 * ks + r) if (r < 3 or args.qpack) else (lambda ks: 104 + 16 * hh + 2 * ks)
            g(f'v_add_f32 v{12+r}, v{src(0)}, v{src(1)}')
            for ks in range(2, 8):
                g(f'v_add_f32 v{12+r}, v{12+r}, v{src(ks)}')
        g(f'''v_cvt_pk_bf16_f32 v12, v12, v13
        v_cvt_pk_bf16_f32 v14, v14, v15
        ds_write_b16 v8, v12 offset:{L_Q + 512*hp}
        ds_write_b16_d16_hi v8, v12 offset:{L_Q + 512*hp + 16}
        ds_write_b16 v8, v14 offset:{L_Q + 512*hp + 32}
        ds_write_b16_d16_hi v8, v14 offset:{L_Q + 512*hp + 48}''')
    lds_signal(g, C_Q, add=True)

PROF = False
def ts(g, i):
    if PROF:
        g(f's_memrealtime s[96:97]\ns_waitcnt lgkmcnt(0)\ns_mov_b32 s{64+i}, s96')
def ts_dump(g, n):
    if not PROF:
        return
    g(f'''s_mul_i32 s62, s2, 12
    s_add_u32 s62, s62, s3
    s_lshl_b32 s62, s62, 6
    s_add_u32 s62, s62, 0x8000000
    s_mov_b64 exec, 1
    v_mov_b32 v6, 0''')
    for i in range(16):
        g(f'v_mov_b32 v7, s{64+i}\nbuffer_store_dword v7, v6, s[36:39], s62 offen offset:{4*i}')

def gen_flash(g, args):
    g.label('L_BULK')
    vm = VM(g)
    BQ, BS, BPK, BO, KST, VS = 8, 24, 40, 48, 80, 112
    KV_ = ['v240', 'v241', 'v242', 'v243']
    KR_ = ['v244', 'v245', 'v246', 'v247']
    TS = 16384
    srd(g, 28, 6, 64 * 1024 * 1024)
    srd(g, 32, 8, 64 * 1024 * 1024)
    g(f'''s_sub_u32 s44, s3, 4
    s_lshr_b32 s45, s86, 6
    s_bfe_u32 s46, s86, 0x10005
    s_lshl_b32 s46, s46, 2
    s_add_u32 s45, s45, s46
    s_lshl_b32 s45, s45, 23
    s_and_b32 s46, s86, 31
    s_lshl_b32 s46, s46, 18
    s_add_u32 s45, s45, s46
    s_lshl_b32 s46, s44, 12
    s_add_u32 s45, s45, s46
    v_and_b32 v4, 15, v0
    v_lshrrev_b32 v5, 4, v0
    v_lshlrev_b32 v2, 4, v0
    s_lshl_b32 s48, s44, 15
    s_add_u32 s48, s48, {L_V}
    v_xor_b32 v6, v4, v5
    v_lshlrev_b32 v7, 8, v5
    v_lshl_add_u32 v240, v6, 4, v7
    v_xor_b32 v241, 64, v240
    v_add_u32 v241, 1024, v241
    v_xor_b32 v242, 128, v240
    v_add_u32 v242, 2048, v242
    v_xor_b32 v243, 192, v240
    v_add_u32 v243, 3072, v243
    v_and_b32 v6, 3, v4
    v_lshlrev_b32 v6, 2, v6
    v_lshrrev_b32 v7, 2, v4
    v_add_u32 v6, v6, v7
    v_xor_b32 v7, v6, v5
    v_lshlrev_b32 v6, 8, v6
    v_lshl_add_u32 v244, v7, 4, v6
    v_xor_b32 v245, 64, v244
    v_xor_b32 v246, 128, v244
    v_xor_b32 v247, 192, v244
    v_add_u32 v244, s48, v244
    v_add_u32 v245, s48, v245
    v_add_u32 v246, s48, v246
    v_add_u32 v247, s48, v247
    s_barrier''')
    order = []
    cnt = [0]
    def pace(tag):
        order.append(tag)
        n = args.infl
        if len(order) - 1 - n >= 0:
            vm.wait(order[len(order) - 1 - n])
        if cnt[0] == args.pre:
            lds_wait(g, C_X, 1)
        if cnt[0] == args.ksig:
            lds_signal(g, C_K, add=True)
        if cnt[0] in (4, 8, 12, 15, 20, 24, 28, 31):
            ts(g, 8 + (4, 8, 12, 15, 20, 24, 28, 31).index(cnt[0]))
        cnt[0] += 1
    def kload(T):
        pace(f'K{T}')
        for j in range(4):
            g(f's_add_u32 s49, s48, {4096*(T % 8) + 1024*j}\ns_mov_b32 m0, s49\ns_add_u32 s46, s45, {TS*T}')
            g(f'buffer_load_dwordx4 {KV_[j]}, s[28:31], s46 offen nt lds')
            vm.issue(f'K{T}')
    def vload(T):
        pace(f'V{T}')
        r0 = VS + 16 * (T % 8)
        g(f's_add_u32 s46, s45, {TS*T}')
        for j in range(4):
            g(f'buffer_load_dwordx4 v[{r0+4*j}:{r0+4*j+3}], v2, s[32:35], s46 offen offset:{1024*j} nt')
            vm.issue(f'V{T}')
    def kread(T):
        r0 = KST + 16 * (T & 1)
        for j in range(4):
            g(f'ds_read_b128 v[{r0+4*j}:{r0+4*j+3}], {KR_[j]} offset:{4096*(T % 8)}')
    for c in range(2):
        for T in range(4 * c, 4 * c + 4):
            kload(T)
        for T in range(4 * c, 4 * c + 4):
            vload(T)
    lds_wait(g, C_Q, 2)
    ts(g, 1)
    g('''v_and_b32 v3, 7, v0
    v_lshlrev_b32 v3, 8, v3
    v_lshl_add_u32 v3, v5, 4, v3''')
    for j in range(4):
        g(f'ds_read_b128 v[{BQ+4*j}:{BQ+4*j+3}], v3 offset:{L_Q + 64*j}')
    for c in range(4):
        vm.wait(f'K{4*c+3}')
        kread(4 * c)
        for i in range(4):
            T = 4 * c + i
            if i < 3:
                kread(T + 1)
                g('s_waitcnt lgkmcnt(4)')
            else:
                g('s_waitcnt lgkmcnt(0)')
            r0 = KST + 16 * (T & 1)
            sreg = BS + 4 * i
            for j in range(4):
                cc = '0' if j == 0 else f'v[{sreg}:{sreg+3}]'
                g(f'v_mfma_f32_16x16x32_bf16 v[{sreg}:{sreg+3}], v[{r0+4*j}:{r0+4*j+3}], v[{BQ+4*j}:{BQ+4*j+3}], {cc}')
        if c == 0:
            ts(g, 2)
        if c < 2:
            for T in range(4 * c + 8, 4 * c + 12):
                kload(T)
        else:
            g('s_nop 7')
        for i in range(8):
            a, b = f'v{BS+2*i}', f'v{BS+2*i+1}'
            bf16r_pair(g, a, b, 'v250')
            g(f'v_mul_f32 {a}, s61, {a}\nv_mul_f32 {b}, s61, {b}')
            bf16r_pair(g, a, b, 'v250')
        g(f'v_max_f32 v250, v{BS}, v{BS+1}')
        for i in range(1, 8):
            g(f'v_max3_f32 v250, v250, v{BS+2*i}, v{BS+2*i+1}')
        allred_x16(g, 'v_max_f32', 'v250', 'v251')
        allred_x32(g, 'v_max_f32', 'v250', 'v251')
        if c > 0:
            g('''v_max_f32 v250, v250, v248
            v_sub_f32 v252, v248, v250
            v_mul_f32 v252, s60, v252
            v_exp_f32 v252, v252''')
        g('v_mov_b32 v248, v250\nv_mov_b32 v253, 0\nv_mov_b32 v254, 0')
        for i in range(0, 16, 2):
            g(f'''v_sub_f32 v{BS+i}, v{BS+i}, v248
            v_sub_f32 v{BS+i+1}, v{BS+i+1}, v248
            v_mul_f32 v{BS+i}, s60, v{BS+i}
            v_mul_f32 v{BS+i+1}, s60, v{BS+i+1}
            v_exp_f32 v{BS+i}, v{BS+i}
            v_exp_f32 v{BS+i+1}, v{BS+i+1}
            s_nop 0
            v_add_f32 v253, v253, v{BS+i}
            v_add_f32 v254, v254, v{BS+i+1}
            v_cvt_pk_bf16_f32 v{BPK+i//2}, v{BS+i}, v{BS+i+1}''')
        g('v_add_f32 v253, v253, v254')
        if c == 0:
            g('v_mov_b32 v249, v253')
        else:
            g('v_fma_f32 v249, v249, v252, v253')
            for i in range(32):
                g(f'v_mul_f32 v{BO+i}, v{BO+i}, v252')
        if c == 3:
            g('v_mov_b32 v253, v249')
            allred_x16(g, 'v_add_f32', 'v253', 'v251')
            allred_x32(g, 'v_add_f32', 'v253', 'v251')
            g(f'''s_lshl_b32 s46, s44, 6
            v_lshlrev_b32 v3, 2, v0
            v_add_u32 v3, s46, v3
            s_mov_b64 exec, 0xff
            ds_write_b32 v3, v248 offset:{L_ST}
            ds_write_b32 v3, v253 offset:{L_ST+32}
            s_mov_b64 exec, -1''')
            lds_signal(g, C_ST, add=True)
            ts(g, 3)
        for U in range(2):
            T0, T1 = 4 * c + 2 * U, 4 * c + 2 * U + 1
            vm.wait(f'V{T1}')
            ra = VS + 16 * (T0 % 8)
            rb = VS + 16 * (T1 % 8)
            for half in range(2):
                for tt in range(4):
                    t = 4 * half + tt
                    d = t >> 1
                    sel = 's58' if (t & 1) == 0 else 's59'
                    o = BS + 4 * tt
                    g(f'v_perm_b32 v{o}, v{ra+4+d}, v{ra+d}, {sel}')
                    g(f'v_perm_b32 v{o+1}, v{ra+12+d}, v{ra+8+d}, {sel}')
                    g(f'v_perm_b32 v{o+2}, v{rb+4+d}, v{rb+d}, {sel}')
                    g(f'v_perm_b32 v{o+3}, v{rb+12+d}, v{rb+8+d}, {sel}')
                g('s_nop 1')
                for tt in range(4):
                    t = 4 * half + tt
                    o = BS + 4 * tt
                    acc = BO + 4 * t
                    cc = '0' if (c == 0 and U == 0) else f'v[{acc}:{acc+3}]'
                    g(f'v_mfma_f32_16x16x32_bf16 v[{acc}:{acc+3}], v[{o}:{o+3}], v[{BPK+4*U}:{BPK+4*U+3}], {cc}')
        if c < 2:
            for T in range(4 * c + 8, 4 * c + 12):
                vload(T)
            if c == 1:
                lds_signal(g, C_V, add=True)
                ts(g, 4)
        g('s_nop 7')
    ts(g, 5)
    g(f'''s_lshl_b32 s46, s44, 12
    v_lshlrev_b32 v3, 9, v4
    v_lshl_add_u32 v3, v5, 7, v3
    v_add_u32 v3, s46, v3
    s_mov_b32 exec_lo, 0x00ff00ff
    s_mov_b32 exec_hi, 0x00ff00ff''')
    for t in range(8):
        acc = BO + 4 * t
        g(f'ds_write_b128 v3, v[{acc}:{acc+3}] offset:{L_OP + 16*t}')
    g('s_mov_b64 exec, -1')
    lds_signal(g, C_O, add=True)
    g(f'''s_lshr_b32 s46, s86, 6
    s_lshl_b32 s46, s46, 18
    s_lshl_b32 s49, s44, 16
    s_add_u32 s46, s46, s49
    s_bfe_u32 s49, s86, 0x10005
    s_lshl_b32 s49, s49, 14
    s_add_u32 s46, s46, s49
    s_and_b32 s49, s86, 31
    s_lshl_b32 s49, s49, 9
    s_add_u32 s46, s46, s49
    s_add_u32 s46, s46, {W_O}
    v_and_b32 v2, 31, v0
    v_lshlrev_b32 v2, 4, v2
    v_lshrrev_b32 v1, 5, v0
    v_lshl_add_u32 v2, v1, 15, v2
    s_lshl_b32 s49, s44, 10
    v_lshlrev_b32 v3, 4, v0
    v_add_u32 v3, s49, v3''')
    g(f'''s_lshl_b32 s49, s44, 3
    v_lshl_add_u32 v4, v1, 2, s49
    s_lshl_b32 s52, s86, 6
    s_add_u32 s52, s52, {W_ML}''')
    lds_wait(g, C_O, 4)
    for w in range(4):
        g(f'ds_read_b32 v{16+w}, v4 offset:{L_ST + 64*w}\nds_read_b32 v{20+w}, v4 offset:{L_ST + 64*w + 32}')
    for w in range(4):
        g(f'ds_read_b128 v[{88+4*w}:{91+4*w}], v3 offset:{L_OP + 4096*w}')
    g('''s_waitcnt lgkmcnt(4)
    v_max3_f32 v24, v16, v17, v18
    v_max_f32 v24, v24, v19''')
    for w in range(4):
        g(f'v_sub_f32 v{16+w}, v{16+w}, v24\nv_mul_f32 v{16+w}, s60, v{16+w}\nv_exp_f32 v{16+w}, v{16+w}')
    g('''s_nop 0
    v_mul_f32 v25, v20, v16
    v_fma_f32 v25, v21, v17, v25
    v_fma_f32 v25, v22, v18, v25
    v_fma_f32 v25, v23, v19, v25
    s_waitcnt lgkmcnt(0)''')
    for r in range(4):
        g(f'''v_mul_f32 v{8+r}, v{88+r}, v16
        v_mul_f32 v{12+r}, v{96+r}, v18
        v_fma_f32 v{8+r}, v{92+r}, v17, v{8+r}
        v_fma_f32 v{12+r}, v{100+r}, v19, v{12+r}
        v_add_f32 v{8+r}, v{8+r}, v{12+r}''')
    g('''buffer_store_dwordx4 v[8:11], v2, s[36:39], s46 offen sc1
    s_mov_b32 exec_lo, 1
    s_mov_b32 exec_hi, 1
    buffer_store_dword v24, v4, s[36:39], s52 offen sc1
    buffer_store_dword v25, v4, s[36:39], s52 offen offset:32 sc1
    s_mov_b64 exec, -1''')
    if args.omode == 2:
        d = g.uniq('OA')
        g(f'''v_mov_b32 v6, {C_ST}
        v_mov_b32 v7, 1
        s_mov_b64 exec, 1
        ds_add_rtn_u32 v7, v6, v7
        s_waitcnt lgkmcnt(0)
        v_readfirstlane_b32 s49, v7
        s_mov_b64 exec, -1
        s_cmp_eq_u32 s49, 7
        s_cbranch_scc0 {d}''')
        read_nonce(g)
        g('s_lshr_b32 s48, s86, 6\ns_add_u32 s48, s48, 8\ns_andn2_b32 s49, s86, 63\ns_add_u32 s49, s49, 256')
        arrive(g, 's48', 64, sctr='s49', ack=False)
        g.label(d)
    ts(g, 6)
    ts_dump(g, 7)
    g('s_endpgm')

def gen(args):
    global PROF, NOHOP, NOLDS, PLAIN, QSH, QOFF
    QSH, QOFF = {0: (2, 0), 1: (2, 124), 2: (5, 96)}[args.qline]
    PLAIN = bool(args.plain)
    NOLDS = args.nolds
    PROF = args.prof
    NOHOP = args.nohop
    g = Gen()
    H = []
    H.append(f'; @launch grid=({NWG},1,1) block=(512,1,1) lds={LDS_BYTES + (4*8192 if args.flash else 0)}')
    H.append('.amdgcn_target "amdgcn-amd-amdhsa--gfx950"\n.text')
    H.append(f'.globl {KN}\n.p2align 8\n.type {KN},@function\n{KN}:')
    g(f'''s_cmp_ge_u32 s2, {NWG}
    s_cbranch_scc1 L_END
    s_load_dwordx16 s[4:19], s[0:1], 0
    s_load_dwordx8 s[20:27], s[0:1], 64
    v_lshrrev_b32 v1, 6, v0
    v_and_b32 v0, 63, v0
    s_mov_b32 s58, 0x05040100
    s_mov_b32 s59, 0x07060302
    v_readfirstlane_b32 s3, v1
    s_mov_b32 s60, {LOG2E}
    s_mov_b32 s61, {SCALE}
    s_waitcnt lgkmcnt(0)''')
    srd(g, 36, 26, 0x10000000)
    lane_masks(g)
    srd(g, 40, 24, 256)
    if args.remap:
        g('''s_and_b32 s90, s2, 7
        s_lshr_b32 s91, s2, 3
        s_lshl_b32 s86, s90, 5
        s_add_u32 s86, s86, s91
        s_lshr_b32 s92, s90, 1
        s_lshl_b32 s92, s92, 6
        s_and_b32 s93, s90, 1
        s_lshl_b32 s87, s91, 1
        s_add_u32 s87, s87, s93
        s_add_u32 s87, s87, s92
        s_lshl_b32 s88, s93, 2
        s_and_b32 s94, s91, 3
        s_add_u32 s88, s88, s94
        s_lshl_b32 s88, s88, 3
        s_lshr_b32 s94, s91, 2
        s_add_u32 s88, s88, s94
        s_add_u32 s88, s88, s92
        s_lshr_b32 s89, s91, 3
        s_lshl_b32 s89, s89, 3
        s_add_u32 s89, s89, s90
        s_cmp_lt_u32 s89, 28
        s_cselect_b32 s95, 1, 0
        s_lshl_b32 s89, s89, 3
        s_and_b32 s94, s91, 7
        s_add_u32 s89, s89, s94
        s_add_u32 s89, s89, 32
        s_mul_i32 s89, s89, s95''')
    else:
        g('s_mov_b32 s86, s2\ns_mov_b32 s87, s2\ns_mov_b32 s88, s2\ns_mov_b32 s89, s2')
    g('''s_mov_b32 s90, 0x07060503
    s_mov_b32 s91, 0x07060502
    s_mov_b32 s92, 0x07060501
    s_mov_b32 s93, 0x04000c0c
    s_mov_b32 s94, 0x0706000c''')
    ts(g, 0)
    if args.noaux:
        g('s_cmp_ge_u32 s3, 4\ns_cbranch_scc1 L_BULK\ns_barrier\ns_endpgm')
    g('''s_cmp_ge_u32 s3, 4
    s_cbranch_scc1 L_BULK
    s_cmp_eq_u32 s3, 0
    s_cbranch_scc1 L_A0
    s_cmp_eq_u32 s3, 3
    s_cbranch_scc1 L_A3
    s_branch L_A12''')

    g.label('L_A3')
    srd(g, 28, 4, 4096)
    g('''v_lshlrev_b32 v1, 6, v0
    buffer_load_dwordx4 v[8:11], v1, s[28:31], 0 offen
    buffer_load_dwordx4 v[12:15], v1, s[28:31], 0 offen offset:16
    buffer_load_dwordx4 v[16:19], v1, s[28:31], 0 offen offset:32
    buffer_load_dwordx4 v[20:23], v1, s[28:31], 0 offen offset:48''')
    g(f'''v_mov_b32 v2, 0
    v_lshlrev_b32 v3, 2, v0
    v_add_u32 v3, {L_CT}, v3
    s_mov_b64 exec, 0xffff
    ds_write_b32 v3, v2
    s_mov_b64 exec, -1
    s_waitcnt lgkmcnt(0)
    s_barrier
    s_waitcnt vmcnt(0)''')
    for i in range(16):
        g(f'v_lshlrev_b32 v{24+2*i}, 16, v{8+i}\nv_and_b32 v{25+2*i}, 0xffff0000, v{8+i}')
    g('v_add_f32 v56, v24, v25')
    for i in range(26, 56):
        g(f'v_add_f32 v56, v56, v{i}')
    allred_row16(g, 'v_add_f32', 'v56', 'v57')
    allred_x16(g, 'v_add_f32', 'v56', 'v57')
    g('v_mul_f32 v56, 0x3a800000, v56')
    g('v_sub_f32 v58, v24, v56\nv_mul_f32 v59, v58, v58')
    for i in range(25, 56):
        g(f'v_sub_f32 v58, v{i}, v56\nv_fma_f32 v59, v58, v58, v59')
    allred_row16(g, 'v_add_f32', 'v59', 'v57')
    allred_x16(g, 'v_add_f32', 'v59', 'v57')
    g('v_mul_f32 v59, 0x3a800000, v59')
    bf16r(g, 'v56')
    bf16r(g, 'v59')
    g(f'v_add_f32 v59, {EPS}, v59')
    bf16r(g, 'v59')
    g('''v_sqrt_f32 v60, v59
    s_nop 0
    v_rcp_f32 v61, v60
    v_fma_f32 v62, -v60, v60, v59
    v_mul_f32 v61, 0.5, v61
    v_fma_f32 v60, v62, v61, v60''')
    bf16r(g, 'v60')
    g('v_rcp_f32 v61, v60')
    for i in range(16):
        a, b = f'v{24+2*i}', f'v{25+2*i}'
        g(f'v_sub_f32 {a}, {a}, v56\nv_sub_f32 {b}, {b}, v56')
        bf16r_pair(g, a, b, 'v62')
        for r in (a, b):
            g(f'''v_mul_f32 v62, {r}, v61
            v_fma_f32 v63, -v62, v60, {r}
            v_fma_f32 {r}, v63, v61, v62''')
        g(f'v_cvt_pk_bf16_f32 v{8+i}, {a}, {b}')
    g(f'''ds_write_b128 v1, v[8:11] offset:{L_XN}
    ds_write_b128 v1, v[12:15] offset:{L_XN+16}
    ds_write_b128 v1, v[16:19] offset:{L_XN+32}
    ds_write_b128 v1, v[20:23] offset:{L_XN+48}''')
    lds_signal(g, C_X)
    ts(g, 1)
    read_nonce(g)
    q_gather(g, args, 1)
    lds_wait(g, C_Q, 2)
    ts(g, 2)
    def ml_block():
        ts(g, 3)
        lds_wait(g, C_ST, 4)
        ts(g, 4)
        g(f'''v_and_b32 v1, 7, v0
        v_lshlrev_b32 v1, 2, v1''')
        for w in range(4):
            g(f'ds_read_b32 v{8+w}, v1 offset:{L_ST + 64*w}\nds_read_b32 v{16+w}, v1 offset:{L_ST + 64*w + 32}')
        g('s_waitcnt lgkmcnt(0)')
        g('v_max3_f32 v24, v8, v9, v10\nv_max_f32 v24, v24, v11')
        g('v_mov_b32 v25, 0')
        for w in range(4):
            g(f'''v_sub_f32 v26, v{8+w}, v24
            v_mul_f32 v26, s60, v26
            v_exp_f32 v26, v26
            s_nop 0
            v_fma_f32 v25, v26, v{16+w}, v25''')
        if args.noml:
            g(f'''v_and_b32 v2, 7, v0
            v_lshlrev_b32 v2, 2, v2
            v_mov_b32 v26, 1.0
            s_mov_b64 exec, 0xff
            ds_write_b32 v2, v24 offset:{L_ML}
            ds_write_b32 v2, v26 offset:{L_ML+32}
            s_mov_b64 exec, -1
            s_lshl_b32 s46, s86, 6
            s_add_u32 s46, s46, {W_ML}
            v_cndmask_b32 v24, v24, v25, s[84:85]
            v_lshlrev_b32 v1, 2, v0
            s_mov_b64 exec, 0xffff
            buffer_store_dword v24, v1, s[36:39], s46 offen sc1
            s_mov_b64 exec, -1''')
            ts(g, 5)
        else:
            g(f'''s_lshl_b32 s46, s86, 6
            s_add_u32 s46, s46, {W_ML}
            v_cndmask_b32 v24, v24, v25, s[84:85]
            v_lshlrev_b32 v1, 2, v0
            s_mov_b64 exec, 0xffff
            buffer_store_dword v24, v1, s[36:39], s46 offen sc1
            s_mov_b64 exec, -1
            s_lshr_b32 s48, s86, 5
            s_add_u32 s48, s48, 8''')
            g('s_andn2_b32 s49, s86, 31\ns_add_u32 s49, s49, 256')
            arrive(g, 's48', 32, sctr='s49', ack=False)
            flag_wait(g, 's48', 8)
            g(f'''s_andn2_b32 s44, s86, 31
            s_lshl_b32 s44, s44, 6
            s_add_u32 s44, s44, {W_ML}
            v_and_b32 v1, 31, v0
            v_lshlrev_b32 v1, 6, v1
            v_lshrrev_b32 v2, 5, v0
            v_lshl_add_u32 v1, v2, 4, v1''')
            def issue_ml():
                g('buffer_load_dwordx4 v[8:11], v1, s[36:39], s44 offen sc1')
                g('buffer_load_dwordx4 v[12:15], v1, s[36:39], s44 offen offset:32 sc1')
            poll_loop(g, issue_ml, range(8, 16), sleep=8)
            ts(g, 5)
            for r in range(4):
                g(f'v_mov_b32 v{16+r}, v{8+r}')
                allred_row16(g, 'v_max_f32', f'v{16+r}', 'v24')
                allred_x16(g, 'v_max_f32', f'v{16+r}', 'v24')
                g(f'''v_sub_f32 v24, v{8+r}, v{16+r}
                v_mul_f32 v24, s60, v24
                v_exp_f32 v24, v24
                s_nop 0
                v_mul_f32 v{12+r}, v{12+r}, v24''')
                allred_row16(g, 'v_add_f32', f'v{12+r}', 'v24')
                allred_x16(g, 'v_add_f32', f'v{12+r}', 'v24')
                g('v_mov_b32 v26, 1.0')
                precise_div(g, f'v{20+r}', 'v26', f'v{12+r}', 'v24', 'v25')
            g(f'''v_lshrrev_b32 v2, 5, v0
            v_lshlrev_b32 v2, 4, v2
            s_mov_b32 exec_lo, 1
            s_mov_b32 exec_hi, 1
            ds_write_b128 v2, v[16:19] offset:{L_ML}
            ds_write_b128 v2, v[20:23] offset:{L_ML+32}
            s_mov_b64 exec, -1''')
        lds_signal(g, C_ML)
    def h_block():
        g('s_cmp_lt_u32 s89, 32\ns_cbranch_scc1 L_A3_OG')
        g(f'''s_sub_u32 s44, s89, 32
        s_lshr_b32 s44, s44, 3
        s_lshl_b32 s44, s44, 14
        s_add_u32 s44, s44, {W_GU}
        s_lshr_b32 s45, s44, 1
        s_add_u32 s45, s45, {W_B}
        v_lshlrev_b32 v1, 4, v0
        v_lshlrev_b32 v2, 3, v0''')
        g('s_sub_u32 s48, s89, 32\ns_lshr_b32 s48, s48, 3\ns_add_u32 s48, s48, 16')
        flag_wait(g, 's48', 32)
        def issue_h():
            for ks in range(8):
                g(f's_add_u32 s46, s44, {ks*2048}')
                g(f'buffer_load_dwordx4 v[{72+4*ks}:{75+4*ks}], v1, s[36:39], s46 offen sc1')
                g(f'buffer_load_dwordx4 v[{104+4*ks}:{107+4*ks}], v1, s[36:39], s46 offen offset:1024 sc1')
        tags = [75 + 4 * k for k in range(16)]
        if 'h2' not in args.skip:
            tpoll_loop(g, issue_h, tags, sleep=16, plain=True)
        for k in range(16):
            unpack_d(g, 72 + 4 * k)
        for r in range(4):
            ga = (lambda ks: 72 + 4 * ks + r)
            ua = (lambda ks: 104 + 4 * ks + r)
            g(f'v_add_f32 v{8+r}, v{ga(0)}, v{ga(1)}\nv_add_f32 v{12+r}, v{ua(0)}, v{ua(1)}')
            for ks in range(2, 8):
                g(f'v_add_f32 v{8+r}, v{8+r}, v{ga(ks)}\nv_add_f32 v{12+r}, v{12+r}, v{ua(ks)}')
        bf16r_pair(g, 'v8', 'v9', 'v16'); bf16r_pair(g, 'v10', 'v11', 'v16')
        bf16r_pair(g, 'v12', 'v13', 'v16'); bf16r_pair(g, 'v14', 'v15', 'v16')
        for r in range(4):
            silu(g, f'v{8+r}', 'v16', 'v17', 'v18')
        bf16r_pair(g, 'v8', 'v9', 'v16'); bf16r_pair(g, 'v10', 'v11', 'v16')
        for r in range(4):
            g(f'v_mul_f32 v{8+r}, v{8+r}, v{12+r}')
        g('v_cvt_pk_bf16_f32 v8, v8, v9\nv_cvt_pk_bf16_f32 v10, v10, v11')
        g(f'''v_lshrrev_b32 v2, 5, v0
        v_lshlrev_b32 v2, 8, v2
        v_bfe_u32 v3, v0, 3, 2
        v_lshlrev_b32 v3, 6, v3
        v_and_b32 v4, 7, v0
        v_lshlrev_b32 v4, 1, v4
        v_add3_u32 v5, v2, v3, v4
        ds_write_b16 v5, v8 offset:{L_H}
        ds_write_b16_d16_hi v5, v8 offset:{L_H+16}
        ds_write_b16 v5, v10 offset:{L_H+32}
        ds_write_b16_d16_hi v5, v10 offset:{L_H+48}''')
        lds_signal(g, C_H)
        g.label('L_A3_OG')
    if args.flash:
        h_block()
    else:
        ml_block(); h_block()
    g(f'''s_lshr_b32 s44, s88, 3
    s_lshl_b32 s44, s44, 15
    s_bfe_u32 s45, s88, 0x10002
    s_lshl_b32 s45, s45, 8
    s_add_u32 s44, s44, s45
    s_add_u32 s44, s44, {W_O}
    v_bfe_u32 v2, v0, 4, 1
    v_lshlrev_b32 v2, 14, v2
    v_lshrrev_b32 v3, 5, v0
    v_lshl_add_u32 v2, v3, 13, v2
    v_and_b32 v1, 15, v0
    v_lshl_add_u32 v1, v1, 4, v2''')
    def issue_o():
        for sp in range(16):
            if sp % 8 == 0:
                g(f's_add_u32 s46, s44, {sp*512}')
            g(f'buffer_load_dwordx4 v[{40+4*sp}:{43+4*sp}], v1, s[36:39], s46 offen offset:{(sp%8)*512} sc1')
    assert args.noml
    g(f'''s_lshr_b32 s48, s88, 6
    s_lshl_b32 s48, s48, 12
    s_bfe_u32 s49, s88, 0x30003
    s_lshl_b32 s49, s49, 2
    s_add_u32 s48, s48, s49
    s_add_u32 s48, s48, {W_ML}
    v_lshlrev_b32 v2, 6, v0''')
    def issue_w():
        g('buffer_load_dword v8, v2, s[36:39], s48 offen sc1')
        g('buffer_load_dword v9, v2, s[36:39], s48 offen offset:32 sc1')
    def weights():
        g('v_mov_b32 v10, v8')
        allred_row16(g, 'v_max_f32', 'v10', 'v11')
        allred_x16(g, 'v_max_f32', 'v10', 'v11')
        g('''v_sub_f32 v8, v8, v10
        v_mul_f32 v8, s60, v8
        v_exp_f32 v8, v8
        s_nop 0
        v_mul_f32 v9, v9, v8''')
        allred_row16(g, 'v_add_f32', 'v9', 'v11')
        allred_x16(g, 'v_add_f32', 'v9', 'v11')
        precise_div(g, 'v10', 'v8', 'v9', 'v11', 'v12')
        g(f'''v_lshlrev_b32 v2, 2, v0
        ds_write_b32 v2, v10 offset:{L_W}
        v_bfe_u32 v2, v0, 4, 1
        v_lshlrev_b32 v2, 7, v2
        v_lshrrev_b32 v3, 5, v0
        v_lshl_add_u32 v2, v3, 6, v2
        s_waitcnt lgkmcnt(0)
        ds_read_b128 v[24:27], v2 offset:{L_W}
        ds_read_b128 v[28:31], v2 offset:{L_W+16}
        ds_read_b128 v[32:35], v2 offset:{L_W+32}
        ds_read_b128 v[36:39], v2 offset:{L_W+48}''')
    if args.flash:
        lds_wait(g, C_O, 4)
        def issue_both():
            issue_w(); issue_o()
        if args.omode == 0:
            poll_loop(g, issue_both, [8, 9] + list(range(40, 104)), sleep=args.osleep)
            weights()
        elif args.omode == 1:
            poll_loop(g, issue_w, [8, 9], sleep=args.osleep)
            weights()
            poll_loop(g, issue_o, range(40, 104), sleep=args.osleep)
        else:
            g('s_lshr_b32 s49, s88, 6\ns_add_u32 s49, s49, 8')
            flag_wait(g, 's49', 2, stmp='s53')
            poll_loop(g, issue_both, [8, 9] + list(range(40, 104)), sleep=4)
            weights()
    else:
        lds_wait(g, C_V, 1)
        poll_loop(g, issue_w, [8, 9], sleep=8)
        weights()
        lds_wait(g, C_O, 4)
    if 'o2' not in args.skip and not args.flash:
        poll_loop(g, issue_o, range(40, 104), sleep=args.osleep)
    g('s_waitcnt lgkmcnt(0)')
    ts(g, 6)
    for r in range(4):
        if args.noml:
            g(f'v_mul_f32 v{8+r}, v{40+r}, v24\nv_mul_f32 v{12+r}, v{44+r}, v25')
            for sp in range(2, 16, 2):
                g(f'v_fma_f32 v{8+r}, v{40+4*sp+r}, v{24+sp}, v{8+r}\nv_fma_f32 v{12+r}, v{44+4*sp+r}, v{25+sp}, v{12+r}')
        else:
            g(f'v_add_f32 v{8+r}, v{40+r}, v{44+r}\nv_add_f32 v{12+r}, v{48+r}, v{52+r}')
            for sp in range(4, 16, 2):
                g(f'v_add_f32 v{8+r}, v{8+r}, v{40+4*sp+r}\nv_add_f32 v{12+r}, v{12+r}, v{44+4*sp+r}')
        g(f'v_add_f32 v{8+r}, v{8+r}, v{12+r}')
    for r in range(4):
        allred_x32(g, 'v_add_f32', f'v{8+r}', 'v12')
    g('v_cvt_pk_bf16_f32 v8, v8, v9\nv_cvt_pk_bf16_f32 v10, v10, v11')
    g(f'''v_bfe_u32 v2, v0, 4, 1
    v_lshlrev_b32 v2, 7, v2
    v_bfe_u32 v3, v0, 3, 1
    v_lshlrev_b32 v3, 6, v3
    v_and_b32 v4, 7, v0
    v_lshlrev_b32 v4, 1, v4
    v_add3_u32 v5, v2, v3, v4
    s_mov_b32 exec_hi, 0
    ds_write_b16 v5, v8 offset:{L_OB}
    ds_write_b16_d16_hi v5, v8 offset:{L_OB+16}
    ds_write_b16 v5, v10 offset:{L_OB+32}
    ds_write_b16_d16_hi v5, v10 offset:{L_OB+48}
    s_mov_b64 exec, -1''')
    lds_signal(g, C_OG)
    ts(g, 7)
    ts_dump(g, 8)
    g('s_endpgm')

    g.label('L_A0')
    vm = VM(g)
    srd(g, 40, 24, 256)
    g('''s_memrealtime s[54:55]
    v_mov_b32 v8, -1
    v_mov_b32 v9, -1
    v_mov_b32 v10, -1
    v_mov_b32 v11, -1
    v_lshlrev_b32 v3, 4, v0
    v_lshrrev_b32 v4, 5, v0
    v_and_b32 v5, 31, v0
    v_lshlrev_b32 v5, 4, v5
    v_mov_b32 v13, 0
    v_mov_b32 v14, 0
    s_waitcnt lgkmcnt(0)
    s_or_b32 s54, s54, 1
    v_mov_b32 v12, s54
    s_mov_b64 exec, 1
    buffer_atomic_cmpswap v[12:13], v14, s[40:43], 0 offen sc0
    s_mov_b64 exec, -1''')
    vm.issue('nonce')
    def clr(voff, off=0):
        g(f'buffer_store_dwordx4 v[8:11], {voff}, s[36:39], s46 offen offset:{off} sc1')
        vm.issue('clr')
    g(f'''s_sub_u32 s48, s89, 32
    s_and_b32 s48, s48, 255
    s_and_b32 s46, s48, 7
    s_lshl_b32 s46, s46, 15
    s_lshr_b32 s48, s48, 3
    s_lshl_b32 s48, s48, 9
    s_add_u32 s46, s46, s48
    s_add_u32 s56, s46, {W_F}
    s_mov_b32 s46, s56
    v_lshl_add_u32 v6, v4, 14, v5''')
    clr('v6')
    g(f'''s_and_b32 s46, s88, 3
    s_lshl_b32 s46, s46, 17
    s_lshr_b32 s48, s88, 2
    s_lshl_b32 s48, s48, 9
    s_add_u32 s46, s46, s48
    s_add_u32 s46, s46, {W_S}
    v_lshl_add_u32 v6, v4, 15, v5''')
    clr('v6')
    g('s_add_u32 s46, s46, 65536')
    clr('v6')
    g(f'''s_lshr_b32 s46, s86, 6
    s_lshl_b32 s46, s46, 18
    s_bfe_u32 s48, s86, 0x10005
    s_lshl_b32 s48, s48, 14
    s_add_u32 s46, s46, s48
    s_and_b32 s48, s86, 31
    s_lshl_b32 s48, s48, 9
    s_add_u32 s46, s46, s48
    s_add_u32 s46, s46, {W_O}
    v_lshl_add_u32 v6, v4, 15, v5''')
    for i in range(4):
        clr('v6')
        if i < 3:
            g('s_add_u32 s46, s46, 65536')
    g(f'''s_lshl_b32 s46, s86, 6
    s_add_u32 s46, s46, {W_ML}
    s_mov_b64 exec, 15''')
    clr('v3')
    g(f'''s_mov_b64 exec, 1
    s_lshl_b32 s46, s2, 7
    s_add_u32 s46, s46, {W_CT}
    buffer_store_dword v14, v14, s[36:39], s46 offen sc1
    s_lshl_b32 s46, s86, 7
    s_add_u32 s46, s46, {W_CT + 256*128}
    buffer_store_dword v14, v14, s[36:39], s46 offen sc1''')
    vm.issue('clr'); vm.issue('clr')
    g('s_mov_b64 exec, -1')
    g(f'''s_lshr_b32 s47, s87, 6
    s_lshl_b32 s47, s47, 16
    s_and_b32 s48, s87, 63
    s_lshl_b32 s48, s48, 9
    s_add_u32 s47, s47, s48
    s_add_u32 s47, s47, {W_Q}''')
    srd(g, 28, 10, 8 * 1024 * 1024)
    g('''s_and_b32 s44, s87, 7
    s_lshl_b32 s45, s44, 20
    s_lshr_b32 s46, s87, 3
    s_lshl_b32 s46, s46, 8
    s_add_u32 s45, s45, s46
    v_lshrrev_b32 v4, 4, v0
    v_and_b32 v5, 15, v0
    v_lshlrev_b32 v1, 16, v4
    v_lshl_add_u32 v1, v5, 4, v1''')
    for kk in range(4):
        for i in range(8):
            r = 40 + 32 * kk + 4 * i
            g(f's_add_u32 s46, s45, {(32 * kk + i) * 8192}')
            g(f'buffer_load_dwordx4 v[{r}:{r+3}], v1, s[28:31], s46 offen nt')
            vm.issue(f'wq{kk}')
    g(f'''v_and_b32 v2, 1, v0
    v_lshlrev_b32 v3, 11, v2
    v_lshl_add_u32 v3, v4, 4, v3
    s_lshl_b32 s46, s44, 8
    v_add_u32 v3, s46, v3
    v_lshlrev_b32 v2, 15, v2
    v_lshl_add_u32 v2, v4, 7, v2
    v_bfe_u32 v6, v0, 1, 3
    v_lshl_add_u32 v2, v6, 4, v2
    s_barrier''')
    lds_wait(g, C_X, 1)
    ts(g, 1)
    vm.wait('clr')
    g(f'''v_readfirstlane_b32 s55, v12
    s_cmp_eq_u32 s55, 0
    s_cselect_b32 s55, s54, s55
    v_mov_b32 v6, {C_N}
    v_mov_b32 v7, s55
    s_mov_b64 exec, 1
    ds_write_b32 v6, v7
    s_mov_b64 exec, -1''')
    for half in range(2):
        for kk in range(4):
            b = 8 + 4 * (kk & 1)
            g(f'ds_read_b128 v[{b}:{b+3}], v3 offset:{64*kk}')
            if half == 0:
                vm.wait(f'wq{kk}')
            base = 40 + 32 * kk
            for tt in range(4):
                t = 4 * half + tt
                d = t >> 1
                sel = 's58' if (t & 1) == 0 else 's59'
                o = 16 + 4 * (tt & 1)
                for p in range(4):
                    g(f'v_perm_b32 v{o+p}, v{base + 4*(2*p+1) + d}, v{base + 4*(2*p) + d}, {sel}')
                acc = 24 + 4 * tt
                c = '0' if kk == 0 else f'v[{acc}:{acc+3}]'
                g('s_waitcnt lgkmcnt(0)\ns_nop 0' if tt == 0 else 's_nop 1')
                g(f'v_mfma_f32_16x16x32_bf16 v[{acc}:{acc+3}], v[{o}:{o+3}], v[{b}:{b+3}], {c}')
        g('s_nop 7\ns_nop 1')
        r = select8(g, [24 + 4 * tt for tt in range(4)])
        g('s_mov_b64 exec, s[84:85]' if half == 1 else 's_not_b64 exec, s[84:85]')
        (tagged_store if args.qpack else tagged_store_ab)(g, vm, r, 's47', 'v2', x=16)
        g('s_mov_b64 exec, -1\ns_nop 1')
    srd(g, 32, 20, 3584 * 1024 * 2)
    g('s_lshr_b32 s48, s87, 6\ns_add_u32 s48, s48, 1')
    arrive(g, 's48', 64, ack=bool(args.qack))
    ts(g, 2)
    q_gather(g, args, 0, 3)
    vm.reset()
    ts(g, 4)
    g('s_cmp_lt_u32 s89, 32\ns_cbranch_scc1 L_A0_FIN')
    g('''s_sub_u32 s48, s89, 32
    s_lshr_b32 s49, s48, 3
    s_lshl_b32 s49, s49, 18
    s_and_b32 s48, s48, 7
    s_lshl_b32 s48, s48, 8
    s_add_u32 s48, s48, s49
    v_lshlrev_b32 v1, 14, v4
    v_lshl_add_u32 v1, v5, 4, v1''')
    if args.late:
        lds_wait(g, C_V, args.late)
    elif args.kfirst:
        lds_wait(g, C_K, 4)
    for kk in range(3):
        if kk >= args.ainfl and not args.late:
            vm.wait(f'wd{kk-args.ainfl}')
        tile_loads(g, vm, 32, 's48', 2048, kk, kk, f'wd{kk}')
    g(f'''v_and_b32 v3, 1, v0
    v_lshlrev_b32 v3, 8, v3
    v_lshl_add_u32 v3, v4, 4, v3
    v_add_u32 v3, {L_H}, v3''')
    gemv_tile(g, vm, 32, 's48', 2048, 'v3', True, 'wd', wait_fn=lambda: lds_wait(g, C_H, 1))
    g('v_and_b32 v2, 1, v0\nv_lshlrev_b32 v2, 14, v2\nv_lshl_add_u32 v2, v4, 7, v2\nv_bfe_u32 v6, v0, 1, 3\nv_lshl_add_u32 v2, v6, 4, v2')
    publish_acc(g, vm, 's56', tagged=False)
    g.label('L_A0_FIN')
    ts(g, 5)
    srd(g, 28, 4, 4096)
    srd(g, 32, 22, 4096)
    g(f'''s_lshr_b32 s44, s2, 5
    s_bfe_u32 s45, s2, 0x10004
    s_and_b32 s46, s2, 15
    ; S gather: W_S + ((c*2+b)*64 + hh*2 + half)*512 + o8*32 + q2*16
    s_lshr_b32 s48, s2, 4
    s_lshl_b32 s49, s48, 14
    s_lshl_b32 s48, s48, 15
    s_lshl_b32 s53, s46, 5
    s_add_u32 s48, s48, s53
    s_add_u32 s49, s49, s53
    s_add_u32 s48, s48, {W_S}
    s_add_u32 s49, s49, {W_F}
    v_lshrrev_b32 v2, 1, v0
    v_and_b32 v3, 1, v0
    v_lshlrev_b32 v1, 10, v2
    v_lshl_add_u32 v1, v3, 4, v1
    v_min_u32 v2, 27, v2
    v_lshlrev_b32 v2, 9, v2
    v_lshl_add_u32 v2, v3, 4, v2
    ; x / out element offset: (b*1024 + 128c + 32g + t)*2 , g=o8>>2, t=2*(o8&3)+q2 ; +16 bytes per r
    s_lshl_b32 s52, s45, 10
    s_lshl_b32 s53, s44, 7
    s_add_u32 s52, s52, s53
    s_lshr_b32 s53, s46, 2
    s_lshl_b32 s53, s53, 5
    s_add_u32 s52, s52, s53
    s_and_b32 s53, s46, 3
    s_lshl_b32 s53, s53, 1
    s_add_u32 s52, s52, s53
    v_add_u32 v4, s52, v3
    v_lshlrev_b32 v4, 1, v4
    buffer_load_ushort v24, v4, s[28:31], 0 offen
    buffer_load_ushort v25, v4, s[28:31], 0 offen offset:16
    buffer_load_ushort v26, v4, s[28:31], 0 offen offset:32
    buffer_load_ushort v27, v4, s[28:31], 0 offen offset:48''')
    g(f'v_lshlrev_b32 v3, 7, v0\ns_mov_b32 s46, {W_FL + 128}\ns_mov_b64 exec, 15')
    def issue_f4b():
        g('buffer_load_dword v9, v3, s[36:39], s46 offen sc1')
    tpoll_loop(g, issue_f4b, [9], sleep=16)
    g('s_mov_b64 exec, -1')
    lds_wait(g, C_S, 2)
    def issue_fin():
        g('buffer_load_dwordx4 v[8:11], v1, s[36:39], s48 offen sc1')
        g('buffer_load_dwordx4 v[12:15], v1, s[36:39], s48 offen offset:512 sc1')
        g('buffer_load_dwordx4 v[16:19], v2, s[36:39], s49 offen sc1')
    poll_loop(g, issue_fin, range(8, 20), sleep=args.finsleep)
    ts(g, 6)
    g('v_cmp_gt_u32 vcc, 56, v0\ns_nop 1')
    for r in range(4):
        g(f'v_add_f32 v{8+r}, v{8+r}, v{12+r}')
        g(f'v_cndmask_b32 v{16+r}, 0, v{16+r}, vcc')
    R = list(range(8, 12)) + list(range(16, 20))
    A = {r: r for r in R}
    Bk = {r: 40 + i for i, r in enumerate(R)}
    g('s_nop 1')
    for rr in (2, 4, 8):
        for r in R:
            g(f'v_add_f32_dpp v{Bk[r]}, v{A[r]}, v{A[r]} row_ror:{rr} row_mask:0xf bank_mask:0xf')
        A, Bk = Bk, A
    for swp in ('v_permlane16_swap_b32', 'v_permlane32_swap_b32'):
        for r in R:
            g(f'v_mov_b32 v{Bk[r]}, v{A[r]}')
        for r in R:
            g(f'{swp} v{A[r]}, v{Bk[r]}')
        for r in R:
            g(f'v_add_f32 v{A[r]}, v{A[r]}, v{Bk[r]}')
    for r in R:
        if A[r] != r:
            g(f'v_mov_b32 v{r}, v{A[r]}')
    bf16r_pair(g, 'v8', 'v9', 'v20'); bf16r_pair(g, 'v10', 'v11', 'v20')
    bf16r_pair(g, 'v16', 'v17', 'v20'); bf16r_pair(g, 'v18', 'v19', 'v20')
    for r in range(4):
        silu(g, f'v{16+r}', 'v20', 'v21', 'v22')
    bf16r_pair(g, 'v16', 'v17', 'v20'); bf16r_pair(g, 'v18', 'v19', 'v20')
    for r in range(4):
        g(f'v_mul_f32 v{8+r}, v{8+r}, v{16+r}')
    bf16r_pair(g, 'v8', 'v9', 'v20'); bf16r_pair(g, 'v10', 'v11', 'v20')
    for r in range(4):
        g(f'v_lshlrev_b32 v{24+r}, 16, v{24+r}\nv_add_f32 v{8+r}, v{8+r}, v{24+r}\nv_cvt_pk_bf16_f32 v{8+r}, v{8+r}, v{8+r}')
    g('''s_mov_b64 exec, 3
    buffer_store_short v8, v4, s[32:35], 0 offen
    buffer_store_short v9, v4, s[32:35], 0 offen offset:16
    buffer_store_short v10, v4, s[32:35], 0 offen offset:32
    buffer_store_short v11, v4, s[32:35], 0 offen offset:48''')
    ts(g, 7)
    ts_dump(g, 8)
    g('s_endpgm')

    g.label('L_A12')
    vm = VM(g)
    g('''s_cmp_eq_u32 s3, 1
    s_cselect_b32 s28, s16, s18
    s_cselect_b32 s29, s17, s19
    s_mov_b32 s30, 7340032
    s_mov_b32 s31, 0x20000
    v_lshrrev_b32 v4, 4, v0
    v_and_b32 v5, 15, v0
    s_and_b32 s44, s2, 7
    s_mul_i32 s45, s44, 917504
    s_lshr_b32 s46, s2, 3
    s_lshl_b32 s46, s46, 8
    s_add_u32 s45, s45, s46
    v_mul_u32_u24 v1, 57344, v4
    v_lshl_add_u32 v1, v5, 4, v1
    v_and_b32 v2, 1, v0
    v_lshlrev_b32 v3, 11, v2
    v_lshl_add_u32 v3, v4, 4, v3
    s_lshl_b32 s46, s44, 8
    v_add_u32 v3, s46, v3
    v_lshlrev_b32 v2, 9, v2
    v_lshl_add_u32 v2, v4, 7, v2
    v_bfe_u32 v6, v0, 1, 3
    v_lshl_add_u32 v2, v6, 4, v2
    s_cmp_ge_u32 s2, 224
    s_cbranch_scc1 L_A12_SKIP''')
    g('s_barrier')
    if args.kfirst:
        lds_wait(g, C_K, 4)
    AI = args.ainfl
    for kk in range(AI):
        tile_loads(g, vm, 28, 's45', 7168, kk, kk, f'gu{kk}')
    lds_wait(g, C_X, 1)
    for kk in range(4):
        g(f'ds_read_b128 v[{A_B+4*kk}:{A_B+4*kk+3}], v3 offset:{64*kk}')
    g('s_waitcnt lgkmcnt(0)')
    for kk in range(4):
        vm.wait(f'gu{kk}')
        if kk + AI < 4:
            tile_loads(g, vm, 28, 's45', 7168, kk + AI, (kk + AI) % 3, f'gu{kk+AI}')
        tile_block_mfma(g, kk % 3, kk, kk == 0, A_B + 4 * kk)
    read_nonce(g)
    g(f'v_lshlrev_b32 v3, 7, v0\ns_mov_b32 s46, {W_FL + 128}\ns_mov_b64 exec, 15')
    def issue_f4():
        g('buffer_load_dword v9, v3, s[36:39], s46 offen sc1')
    tpoll_loop(g, issue_f4, [9], sleep=16)
    g('s_mov_b64 exec, -1')
    g(f's_lshl_b32 s46, s3, 10\ns_lshl_b32 s47, s2, 11\ns_add_u32 s46, s46, s47\ns_add_u32 s46, s46, {W_GU - 1024}')
    publish_acc(g, vm, 's46')
    g('s_lshr_b32 s48, s2, 3\ns_add_u32 s48, s48, 16')
    arrive(g, 's48', 16, sctr='s48', ack=False)
    g('s_branch L_A12_WO')
    g.label('L_A12_SKIP')
    g('s_barrier')
    if args.kfirst:
        lds_wait(g, C_K, 4)
    read_nonce(g)
    g.label('L_A12_WO')
    ts(g, 1)
    vm.reset()
    srd(g, 28, 12, 8 * 1024 * 1024)
    g('''s_and_b32 s44, s88, 3
    s_lshl_b32 s44, s44, 1
    s_add_u32 s44, s44, s3
    s_sub_u32 s44, s44, 1
    s_lshr_b32 s45, s88, 2
    s_lshl_b32 s45, s45, 17
    s_lshl_b32 s48, s44, 8
    s_add_u32 s45, s45, s48
    v_lshlrev_b32 v1, 14, v4
    v_lshl_add_u32 v1, v5, 4, v1''')
    if args.late:
        lds_wait(g, C_V, args.late)
    for kk in range(2):
        if kk == 1 and args.ainfl == 1:
            vm.wait('wo0')
        tile_loads(g, vm, 28, 's45', 2048, kk, kk, f'wo{kk}', stmp='s48')
    outs = [136, 8]
    for kk in range(2):
        vm.wait(f'wo{kk}')
        base = A_POOL + 32 * kk
        for t in range(8):
            d = t >> 1
            sel = 's58' if (t & 1) == 0 else 's59'
            for p in range(4):
                g(f'v_perm_b32 v{outs[kk] + 4*t + p}, v{base + 4*(2*p+1) + d}, v{base + 4*(2*p) + d}, {sel}')
    g(f'''v_and_b32 v3, 1, v0
    v_lshlrev_b32 v3, 7, v3
    v_lshl_add_u32 v3, v4, 4, v3
    v_add_u32 v3, {L_OB}, v3
    s_lshl_b32 s46, s44, 16
    s_lshr_b32 s48, s88, 2
    s_lshl_b32 s48, s48, 9
    s_add_u32 s46, s46, s48
    s_add_u32 s46, s46, {W_S}
    v_and_b32 v2, 1, v0
    v_lshlrev_b32 v2, 15, v2
    v_lshl_add_u32 v2, v4, 7, v2
    v_bfe_u32 v6, v0, 1, 3
    v_lshl_add_u32 v2, v6, 4, v2''')
    ts(g, 2)
    lds_wait(g, C_OG, 1)
    ts(g, 3)
    g('''ds_read_b128 v[72:75], v3
    ds_read_b128 v[76:79], v3 offset:64
    s_waitcnt lgkmcnt(0)''')
    for kk in range(2):
        for t in range(8):
            acc = A_ACC + 4 * t
            o = outs[kk] + 4 * t
            c = '0' if kk == 0 else f'v[{acc}:{acc+3}]'
            g(f'v_mfma_f32_16x16x32_bf16 v[{acc}:{acc+3}], v[{o}:{o+3}], v[{72+4*kk}:{75+4*kk}], {c}')
    publish_acc(g, vm, 's46', tagged=False)
    lds_signal(g, C_S, add=True)
    ts(g, 4)
    ts_dump(g, 5)
    g('s_endpgm')

    if args.flash:
        gen_flash(g, args)
    else:
        g.label('L_BULK')
        vm = VM(g)
        BQ, BS, BO, BP = 8, 24, 56, 88
        NT, NS, NL = 16, 10, 6
        TS = 16384 if args.inter else 4096
        srd(g, 28, 6, 64 * 1024 * 1024)
        srd(g, 32, 8, 64 * 1024 * 1024)
        g(f'''s_sub_u32 s44, s3, 4
        s_lshr_b32 s45, s86, 6
        s_bfe_u32 s46, s86, 0x10005
        s_lshl_b32 s46, s46, 2
        s_add_u32 s45, s45, s46
        s_lshl_b32 s45, s45, 23
        s_and_b32 s46, s86, 31
        s_lshl_b32 s46, s46, 18
        s_add_u32 s45, s45, s46
        s_lshl_b32 s46, s44, {12 if args.inter else 16}
        s_add_u32 s45, s45, s46
        v_and_b32 v4, 15, v0
        v_lshrrev_b32 v5, 4, v0
        v_lshlrev_b32 v2, 4, v0
        s_mul_i32 s48, s44, 24576
        s_add_u32 s48, s48, {L_V}
        v_xor_b32 v6, v4, v5
        v_lshlrev_b32 v7, 8, v5
        v_lshl_add_u32 v1, v6, 4, v7
        v_xor_b32 v249, 64, v1
        v_add_u32 v249, 1024, v249
        v_xor_b32 v250, 128, v1
        v_add_u32 v250, 2048, v250
        v_xor_b32 v251, 192, v1
        v_add_u32 v251, 3072, v251
        v_and_b32 v6, 3, v4
        v_lshlrev_b32 v6, 2, v6
        v_lshrrev_b32 v7, 2, v4
        v_add_u32 v6, v6, v7
        v_xor_b32 v7, v6, v5
        v_lshlrev_b32 v6, 8, v6
        v_lshl_add_u32 v252, v7, 4, v6
        v_xor_b32 v253, 64, v252
        v_xor_b32 v254, 128, v252
        v_xor_b32 v255, 192, v252
        v_add_u32 v252, s48, v252
        v_add_u32 v253, s48, v253
        v_add_u32 v254, s48, v254
        v_add_u32 v255, s48, v255''')
        g('s_barrier')
        INFL = args.infl
        order = []
        KV_ = ['v1', 'v249', 'v250', 'v251']
        def ldsload(isK, T, k):
            for j in range(4):
                if isK:
                    g(f's_add_u32 s49, s48, {4096*k + 1024*j}\ns_mov_b32 m0, s49\ns_add_u32 s46, s45, {TS*T}')
                    g(f'buffer_load_dwordx4 {KV_[j]}, s[28:31], s46 offen nt lds')
                else:
                    g(f's_add_u32 s49, s48, {4096*k + 1024*j}\ns_mov_b32 m0, s49\ns_add_u32 s46, s45, {TS*T + 1024*j}')
                    g('buffer_load_dwordx4 v2, s[32:35], s46 offen nt lds')
                vm.issue(f'{"K" if isK else "V"}{T}')
        def rload(isK, T, slot):
            assert not isK
            r0 = BP + 16 * slot
            g(f's_add_u32 s46, s45, {TS*T}')
            for j in range(4):
                r = r0 + 4 * j
                g(f'buffer_load_dwordx4 v[{r}:{r+3}], v2, s[32:35], s46 offen offset:{1024*j} nt')
                vm.issue(f'V{T}')
        def ldsread(k, slot):
            r0 = BP + 16 * slot
            for j in range(4):
                g(f'ds_read_b128 v[{r0+4*j}:{r0+4*j+3}], v3 offset:{4096*k + 1024*j}')
        def kread(k, slot):
            r0 = BP + 16 * slot
            for j in range(4):
                g(f'ds_read_b128 v[{r0+4*j}:{r0+4*j+3}], v{252+j} offset:{4096*k}')
        def pace(tag):
            order.append(tag)
            n = args.vinfl if (tag[0] == 'V' and args.vinfl) else INFL
            if len(order) - 1 - n >= 0:
                vm.wait(order[len(order) - 1 - n])
        vslot = lambda T: (T + 6) % NS
        def stream(isK, t0=0):
            c = 'K' if isK else 'V'
            if isK:
                order.clear()
                assert INFL <= 4
            for T in range(t0, NT):
                if isK and T == args.pre:
                    lds_wait(g, C_X, 1)
                pace(f'{c}{T}')
                if T in (4, 8, 12, 15):
                    ts(g, (7 if isK else 11) + (T // 4 if T < 15 else 4) - 0)
                if T == args.ksig and isK:
                    lds_signal(g, C_K, add=True)
                if T == args.vsig and not isK:
                    lds_signal(g, C_V, add=True)
                if isK:
                    Tc = T - INFL
                    if 0 <= Tc < NS:
                        kread(Tc % NL, Tc)
                    if T >= NL:
                        later = [t for t in range(T - NL + 1, Tc + 1) if 0 <= t < NS]
                        g(f"s_waitcnt lgkmcnt({min(8, 4 * len(later))})")
                    ldsload(True, T, T % NL)
                elif T < NS:
                    rload(False, T, vslot(T))
                elif args.vpre and T >= NT - args.vpre:
                    order.pop()
                else:
                    ldsload(False, T, T - NS)
        stream(True)
        if args.ksig >= NT:
            lds_signal(g, C_K, add=True)
        for T in range(NT - args.vpre, NT):
            pace(f'V{T}')
            ldsload(False, T, T - NS + 2)
        lds_wait(g, C_Q, 2)
        ts(g, 1)
        g(f'''v_and_b32 v3, 7, v0
        v_lshlrev_b32 v3, 8, v3
        v_lshl_add_u32 v3, v5, 4, v3''')
        for j in range(4):
            g(f'ds_read_b128 v[{BQ+4*j}:{BQ+4*j+3}], v3 offset:{L_Q + 64*j}')
        g('s_waitcnt lgkmcnt(0)')
        for T in range(NT):
            if T >= NS:
                g(f's_waitcnt lgkmcnt({min(8, 4 * (NT - 1 - T))})')
            r0 = BP + 16 * (T % NS)
            s = BS + 4 * T
            for j in range(4):
                c = '0' if j == 0 else f'v[{s}:{s+3}]'
                g(f'v_mfma_f32_16x16x32_bf16 v[{s}:{s+3}], v[{r0+4*j}:{r0+4*j+3}], v[{BQ+4*j}:{BQ+4*j+3}], {c}')
            k = T - (NS - 3)
            if 0 <= k < NL:
                vm.wait(f'K{NS+k}')
                kread((NS + k) % NL, k)
            if 6 <= T < 6 + args.vearly:
                if T == 6:
                    order.clear()
                order.append(f'V{T-6}')
                rload(False, T - 6, vslot(T - 6))
        g('s_nop 7')
        ts(g, 2)
        for i in range(2 * NT):
            a, b = f'v{BS+2*i}', f'v{BS+2*i+1}'
            if 'sc1' not in args.skip:
                bf16r_pair(g, a, b, 'v8')
            g(f'v_mul_f32 {a}, s61, {a}\nv_mul_f32 {b}, s61, {b}')
            if 'sc2' not in args.skip:
                bf16r_pair(g, a, b, 'v8')
        g(f'v_max_f32 v9, v{BS}, v{BS+1}')
        for i in range(1, 2 * NT):
            g(f'v_max3_f32 v9, v9, v{BS+2*i}, v{BS+2*i+1}')
        allred_x16(g, 'v_max_f32', 'v9', 'v10')
        allred_x32(g, 'v_max_f32', 'v9', 'v10')
        g('v_mov_b32 v11, 0\nv_mov_b32 v16, 0')
        for i in range(0, 4 * NT, 2):
            g(f'''v_sub_f32 v{BS+i}, v{BS+i}, v9
            v_sub_f32 v{BS+i+1}, v{BS+i+1}, v9
            v_mul_f32 v{BS+i}, s60, v{BS+i}
            v_mul_f32 v{BS+i+1}, s60, v{BS+i+1}
            v_exp_f32 v{BS+i}, v{BS+i}
            v_exp_f32 v{BS+i+1}, v{BS+i+1}
            s_nop 0
            v_add_f32 v11, v11, v{BS+i}
            v_add_f32 v16, v16, v{BS+i+1}''')
        g('v_mov_b32 v248, v9')
        g('v_add_f32 v11, v11, v16')
        allred_x16(g, 'v_add_f32', 'v11', 'v10')
        allred_x32(g, 'v_add_f32', 'v11', 'v10')
        g(f'''s_lshl_b32 s46, s44, 6
        v_lshlrev_b32 v3, 2, v0
        v_add_u32 v3, s46, v3
        s_mov_b64 exec, 0xff
        ds_write_b32 v3, v9 offset:{L_ST}
        ds_write_b32 v3, v11 offset:{L_ST+32}
        s_mov_b64 exec, -1''')
        lds_signal(g, C_ST, add=True)
        ts(g, 3)
        if args.latec:
            for i in range(2 * NT):
                g(f'v_cvt_pk_bf16_f32 v{BS+i}, v{BS+2*i}, v{BS+2*i+1}')
        if args.vearly == 0:
            order.clear()
        stream(False, args.vearly)
        if args.noml and args.vsig >= NT:
            lds_signal(g, C_V, add=True)
        def get_c():
            lds_wait(g, C_ML, 1)
            g(f'''v_and_b32 v3, 7, v0
            v_lshlrev_b32 v3, 2, v3
            ds_read_b32 v9, v3 offset:{L_ML}
            ds_read_b32 v10, v3 offset:{L_ML+32}
            s_waitcnt lgkmcnt(0)
            v_sub_f32 v9, v248, v9
            v_mul_f32 v9, s60, v9
            v_exp_f32 v9, v9
            s_nop 0
            v_mul_f32 v10, v10, v9''')
        if not args.latec:
            get_c()
            ts(g, 4)
            for i in range(2 * NT):
                a, b = BS + 2 * i, BS + 2 * i + 1
                g(f'''v_mul_f32 v12, v{a}, v10
                v_mul_f32 v13, v{b}, v10
                v_cvt_pk_bf16_f32 v{BS+i}, v12, v13''')
        else:
            ts(g, 4)
        g('v_lshlrev_b32 v3, 4, v0\nv_add_u32 v3, s48, v3')
        for U in range(NT // 2):
            T0, T1 = 2 * U, 2 * U + 1
            if T1 < NS:
                vm.wait(f'V{T1}')
            else:
                g(f's_waitcnt lgkmcnt({min(8, 4 * (NT - 1 - T1))})')
            ra = BP + 16 * vslot(T0 % NS)
            rb = BP + 16 * vslot(T1 % NS)
            for half in range(2):
                for tt in range(4):
                    t = 4 * half + tt
                    d = t >> 1
                    sel = 's58' if (t & 1) == 0 else 's59'
                    o = BQ + 4 * tt
                    g(f'v_perm_b32 v{o}, v{ra+4+d}, v{ra+d}, {sel}')
                    g(f'v_perm_b32 v{o+1}, v{ra+12+d}, v{ra+8+d}, {sel}')
                    g(f'v_perm_b32 v{o+2}, v{rb+4+d}, v{rb+d}, {sel}')
                    g(f'v_perm_b32 v{o+3}, v{rb+12+d}, v{rb+8+d}, {sel}')
                g('s_nop 1')
                for tt in range(4):
                    t = 4 * half + tt
                    o = BQ + 4 * tt
                    acc = BO + 4 * t
                    c = '0' if U == 0 else f'v[{acc}:{acc+3}]'
                    g(f'v_mfma_f32_16x16x32_bf16 v[{acc}:{acc+3}], v[{o}:{o+3}], v[{BS+4*U}:{BS+4*U+3}], {c}')
            k = 2 * (U - 3)
            if 0 <= k < NL:
                vm.wait(f'V{NS+k+1}')
                lk = lambda kk: kk + 2 if (NS + kk >= NT - args.vpre) else kk
                ldsread(lk(k), vslot(k)); ldsread(lk(k + 1), vslot(k + 1))
        ts(g, 5)
        if args.latec:
            get_c()
            for i in range(32):
                g(f'v_mul_f32 v{BO+i}, v{BO+i}, v10')
        g(f'''s_lshl_b32 s46, s44, 12
        v_lshlrev_b32 v3, 9, v4
        v_lshl_add_u32 v3, v5, 7, v3
        v_add_u32 v3, s46, v3
        s_nop 7
        s_mov_b32 exec_lo, 0x00ff00ff
        s_mov_b32 exec_hi, 0x00ff00ff''')
        for t in range(8):
            acc = BO + 4 * t
            g(f'ds_write_b128 v3, v[{acc}:{acc+3}] offset:{L_OP + 16*t}')
        g('s_mov_b64 exec, -1')
        lds_signal(g, C_O, add=True)
        g(f'''s_lshr_b32 s46, s86, 6
        s_lshl_b32 s46, s46, 18
        s_lshl_b32 s49, s44, 16
        s_add_u32 s46, s46, s49
        s_bfe_u32 s49, s86, 0x10005
        s_lshl_b32 s49, s49, 14
        s_add_u32 s46, s46, s49
        s_and_b32 s49, s86, 31
        s_lshl_b32 s49, s49, 9
        s_add_u32 s46, s46, s49
        s_add_u32 s46, s46, {W_O}
        v_and_b32 v2, 31, v0
        v_lshlrev_b32 v2, 4, v2
        v_lshrrev_b32 v1, 5, v0
        v_lshl_add_u32 v2, v1, 15, v2
        s_lshl_b32 s49, s44, 10
        v_lshlrev_b32 v3, 4, v0
        v_add_u32 v3, s49, v3''')
        lds_wait(g, C_O, 4)
        for w in range(4):
            g(f'ds_read_b128 v[{88+4*w}:{91+4*w}], v3 offset:{L_OP + 4096*w}')
        g('s_waitcnt lgkmcnt(0)')
        for r in range(4):
            g(f'v_add_f32 v{8+r}, v{88+r}, v{92+r}\nv_add_f32 v{12+r}, v{96+r}, v{100+r}\nv_add_f32 v{8+r}, v{8+r}, v{12+r}')
        g('buffer_store_dwordx4 v[8:11], v2, s[36:39], s46 offen sc1')
        ts(g, 6)
        ts_dump(g, 7)
        g('s_endpgm')
    g.label('L_END')
    g('s_endpgm')
    T = f'''.section .rodata,"a"
.p2align 6
.amdhsa_kernel {KN}
  .amdhsa_next_free_vgpr 256
  .amdhsa_next_free_sgpr 100
  .amdhsa_accum_offset 256
  .amdhsa_group_segment_fixed_size 0
  .amdhsa_kernarg_size 96
  .amdhsa_user_sgpr_count 2
  .amdhsa_user_sgpr_kernarg_segment_ptr 1
  .amdhsa_system_sgpr_workgroup_id_x 1
  .amdhsa_float_denorm_mode_32 3
.end_amdhsa_kernel
'''
    return '\n'.join(H) + '\n' + '\n'.join(g.L) + '\n' + T

if __name__ == '__main__':
    ap = argparse.ArgumentParser()
    ap.add_argument('--prof', action='store_true')
    ap.add_argument('--qline', type=int, default=0)
    ap.add_argument('--omode', type=int, default=0)
    ap.add_argument('--osleep', type=int, default=1)
    ap.add_argument('--flash', type=int, default=0)
    ap.add_argument('--qpack', type=int, default=0)
    ap.add_argument('--vpre', type=int, default=0)
    ap.add_argument('--late', type=int, default=0)
    ap.add_argument('--vsig', type=int, default=16)
    ap.add_argument('--finsleep', type=int, default=1)
    ap.add_argument('--vinfl', type=int, default=0)
    ap.add_argument('--inter', type=int, default=1)
    ap.add_argument('--noml', type=int, default=0)
    ap.add_argument('--qack', type=int, default=1)
    ap.add_argument('--latec', type=int, default=0)
    ap.add_argument('--vearly', type=int, default=4)
    ap.add_argument('--ksig', type=int, default=16)
    ap.add_argument('--ainfl', type=int, default=2)
    ap.add_argument('--skip', default='')
    ap.add_argument('--remap', type=int, default=1)
    ap.add_argument('--plain', type=int, default=1)
    ap.add_argument('--nodma', action='store_true')
    ap.add_argument('--noaux', action='store_true')
    ap.add_argument('--nolds', action='store_true')
    ap.add_argument('--kfirst', type=int, default=1)
    ap.add_argument('--nohop', action='store_true')
    ap.add_argument('--fsleep', type=int, default=16)
    ap.add_argument('--infl', type=int, default=2)
    ap.add_argument('--pre', type=int, default=0)
    ap.add_argument('-o', default='recurrent_scan__gqa_block_cached__swiglu_ffn__decode.s')
    args = ap.parse_args()
    open(args.o, 'w').write(gen(args))
```

```python
import struct, sys, argparse

def f32hex(x):
    return '0x%08x' % struct.unpack('<I', struct.pack('<f', x))[0]

KN = 'recurrent_scan__gqa_block_cached__swiglu_ffn__decode_kernel'
NWG = 256
W_Q = 0x000000
W_GU = 0x040000
W_S = 0x0C0000
W_F = 0x140000
W_O = 0x180000
W_ML = 0x280000
W_B = 0x300000
W_CT = 0x2E0000
W_FL = 0x2C0000
L_XN = 0x0000
L_Q = 0x1000
L_ST = 0x1800
L_ML = 0x1A00
L_CT = 0x1A40
C_Q, C_ST, C_ML, C_O, C_OG, C_H, C_N, C_K, C_X, C_V, C_S = [L_CT + 4 * i for i in range(11)]
L_W = 0x1F00
L_OB = 0x1B00
L_H = 0x1D00
L_OP = 0x2000
L_V = 0x6000
LDS_BYTES = 0x6000 + 4 * 24576
SCALE = f32hex(128 ** -0.5)
LOG2E = f32hex(1.4426950408889634)
EPS = f32hex(1e-5)
SPIN_LDS = 4000000
SPIN_GLB = 40000

NOLDS = False
QSH, QOFF = 2, 0
class Gen:
    def __init__(self):
        self.L = []
        self.n = 0
    def __call__(self, s):
        for line in s.strip('\n').split('\n'):
            self.L.append('    ' + line.strip())
    def label(self, name):
        self.L.append(name + ':')
    def uniq(self, p):
        self.n += 1
        return f'{p}_{self.n}'

class VM:
    def __init__(self, g):
        self.g = g
        self.ops = []
    def issue(self, tag):
        self.ops.append(tag)
    def wait(self, tag):
        idx = max(i for i, t in enumerate(self.ops) if t == tag)
        n = len(self.ops) - 1 - idx
        assert n <= 63
        self.g(f's_waitcnt vmcnt({n})')
    def reset(self):
        self.ops = []

def srd(g, d, base, nbytes):
    g(f's_mov_b32 s{d}, s{base}\ns_mov_b32 s{d+1}, s{base+1}\ns_mov_b32 s{d+2}, {nbytes}\ns_mov_b32 s{d+3}, 0x20000')

def lds_wait(g, addr, target, vt='v7', va='v6', st='s50', sc='s51'):
    l = g.uniq('LW'); d = g.uniq('LWD')
    g(f'v_mov_b32 {va}, {addr}\ns_mov_b32 {sc}, {1 if NOLDS else SPIN_LDS}')
    g.label(l)
    g(f'''ds_read_b32 {vt}, {va}
    s_waitcnt lgkmcnt(0)
    v_readfirstlane_b32 {st}, {vt}
    s_cmp_ge_u32 {st}, {target}
    s_cbranch_scc1 {d}
    s_sleep 1
    s_sub_u32 {sc}, {sc}, 1
    s_cmp_lg_u32 {sc}, 0
    s_cbranch_scc1 {l}''')
    g.label(d)

def lds_signal(g, addr, add=False, vt='v7', va='v6'):
    g(f'''s_waitcnt lgkmcnt(0)
    v_mov_b32 {va}, {addr}
    v_mov_b32 {vt}, 1
    s_mov_b64 exec, 1''')
    g(f'ds_add_u32 {va}, {vt}' if add else f'ds_write_b32 {va}, {vt}')
    g('s_mov_b64 exec, -1')

def bf16r_pair(g, a, b, t):
    g(f'''v_cvt_pk_bf16_f32 {t}, {a}, {b}
    v_lshlrev_b32 {a}, 16, {t}
    v_and_b32 {b}, 0xffff0000, {t}''')

def bf16r(g, a):
    g(f'''v_cvt_pk_bf16_f32 {a}, {a}, {a}
    v_lshlrev_b32 {a}, 16, {a}''')

def allred_row16(g, op, v, t):
    for r in (1, 2, 4, 8):
        g(f's_nop 1\n{op}_dpp {t}, {v}, {v} row_ror:{r} row_mask:0xf bank_mask:0xf\nv_mov_b32 {v}, {t}')

def allred_x16(g, op, v, t):
    g(f'v_mov_b32 {t}, {v}\ns_nop 1\nv_permlane16_swap_b32 {v}, {t}\ns_nop 1\n{op} {v}, {v}, {t}')

def allred_x32(g, op, v, t):
    g(f'v_mov_b32 {t}, {v}\ns_nop 1\nv_permlane32_swap_b32 {v}, {t}\ns_nop 1\n{op} {v}, {v}, {t}')

def precise_div(g, d, num, den, t1, t2):
    g(f'''v_rcp_f32 {t1}, {den}
    s_nop 0
    v_mul_f32 {t2}, {num}, {t1}
    v_fma_f32 {d}, -{t2}, {den}, {num}
    v_fma_f32 {d}, {d}, {t1}, {t2}''')

def silu(g, x, t1, t2, t3):
    g(f'''v_mul_f32 {t1}, s60, {x}
    v_exp_f32 {t1}, -{t1}
    s_nop 0
    v_add_f32 {t1}, 1.0, {t1}''')
    g(f'''v_rcp_f32 {t2}, {t1}
    s_nop 0
    v_mul_f32 {t3}, {x}, {t2}
    v_fma_f32 {t1}, -{t3}, {t1}, {x}
    v_fma_f32 {t1}, {t1}, {t2}, {t3}
    v_cmp_eq_f32 vcc, 0, {t2}
    s_nop 1
    v_cndmask_b32 {x}, {t1}, {t3}, vcc''')

A_T = 8
A_B = 24
A_ACC = 40
A_POOL = 72

def tile_loads(g, vm, srdreg, sbase, rowbytes, kk, slot, tag, voff='v1', stmp='s46'):
    for i in range(8):
        r = A_POOL + 32 * slot + 4 * i
        g(f's_add_u32 {stmp}, {sbase}, {(32 * kk + i) * rowbytes}')
        g(f'buffer_load_dwordx4 v[{r}:{r+3}], {voff}, s[{srdreg}:{srdreg+3}], {stmp} offen nt')
        vm.issue(tag)

def tile_block_mfma(g, slot, kk, first, breg):
    base = A_POOL + 32 * slot
    for half in range(2):
        for tt in range(4):
            t = 4 * half + tt
            d = t >> 1
            sel = 's58' if (t & 1) == 0 else 's59'
            o = A_T + 4 * tt
            for p in range(4):
                g(f'v_perm_b32 v{o+p}, v{base + 4*(2*p+1) + d}, v{base + 4*(2*p) + d}, {sel}')
        g('s_nop 1')
        for tt in range(4):
            t = 4 * half + tt
            o = A_T + 4 * tt
            acc = A_ACC + 4 * t
            c = '0' if first else f'v[{acc}:{acc+3}]'
            g(f'v_mfma_f32_16x16x32_bf16 v[{acc}:{acc+3}], v[{o}:{o+3}], v[{breg}:{breg+3}], {c}')

def gemv_tile(g, vm, srdreg, sbase, rowbytes, ldsaddr_v, pre_issued, tagp, wait_fn=None):
    if wait_fn:
        wait_fn()
    for kk in range(4):
        g(f'ds_read_b128 v[{A_B+4*kk}:{A_B+4*kk+3}], {ldsaddr_v} offset:{64*kk}')
    g('s_waitcnt lgkmcnt(0)')
    for kk in range(4):
        vm.wait(f'{tagp}{kk}')
        tile_block_mfma(g, kk % 3, kk, kk == 0, A_B + 4 * kk)
        if kk == 0:
            tile_loads(g, vm, srdreg, sbase, rowbytes, 3, 0, f'{tagp}3')

def lane_masks(g):
    g('''s_mov_b32 s80, 0xcccccccc
    s_mov_b32 s81, 0xcccccccc
    s_mov_b32 s82, 0xf0f0f0f0
    s_mov_b32 s83, 0xf0f0f0f0
    s_mov_b32 s84, 0xff00ff00
    s_mov_b32 s85, 0xff00ff00''')

def select8(g, accs, levels=3):
    cur = list(accs)
    lv = 0
    while len(cur) > 1:
        nxt = []
        for i in range(0, len(cur), 2):
            a, b = cur[i], cur[i + 1]
            for r in range(4):
                g(f'v_cndmask_b32 v{a+r}, v{a+r}, v{b+r}, s[{80+2*lv}:{81+2*lv}]')
            nxt.append(a)
        cur = nxt
        lv += 1
    return cur[0]

def tagged_store(g, vm, r, soff, voff, x=8, stmp='s57', vtmp='v7'):
    g(f'''v_perm_b32 v{r}, v{r}, v{r+3}, s90
    v_perm_b32 v{r+1}, v{r+1}, v{r+3}, s91
    v_perm_b32 v{r+2}, v{r+2}, v{r+3}, s92
    v_mov_b32 v{r+3}, s55
    buffer_store_dwordx4 v[{r}:{r+3}], {voff}, s[36:39], {soff} offen sc1''')
    vm.issue('st')

def tagged_store_ab(g, vm, r, soff, voff, x=8, stmp='s57', vtmp='v7'):
    g(f'''v_mov_b32 v{x}, v{r+3}
    v_mov_b32 v{x+1}, s55
    v_mov_b32 v{r+3}, s55
    v_lshrrev_b32 {vtmp}, 1, {voff}
    s_lshr_b32 {stmp}, {soff}, 1
    s_add_u32 {stmp}, {stmp}, {W_B}
    buffer_store_dwordx4 v[{r}:{r+3}], {voff}, s[36:39], {soff} offen sc1
    buffer_store_dwordx2 v[{x}:{x+1}], {vtmp}, s[36:39], {stmp} offen sc1''')
    vm.issue('st'); vm.issue('st')

def unpack_d(g, r):
    g(f'v_perm_b32 v{r+3}, v{r}, v{r+1}, s93\nv_perm_b32 v{r+3}, v{r+3}, v{r+2}, s94')

def publish_acc(g, vm, soff, voff='v2', tagged=True):
    g('s_nop 7\ns_nop 1')
    r = select8(g, [A_ACC + 4 * t for t in range(8)])
    if tagged:
        tagged_store(g, vm, r, soff, voff)
    else:
        g(f'buffer_store_dwordx4 v[{r}:{r+3}], {voff}, s[36:39], {soff} offen sc1')
        vm.issue('st')

def tag_check(g, tags, acc='v7', tmp='v6'):
    tags = list(tags)
    g(f'v_xor_b32 {acc}, s55, v{tags[0]}')
    for t in tags[1:]:
        g(f'v_xor_b32 {tmp}, s55, v{t}\nv_or_b32 {acc}, {acc}, {tmp}')
    g(f'v_cmp_ne_u32 vcc, 0, {acc}')

NOHOP = False
PLAIN = True
def plain_first(g, issue_fn, check_fn, d):
    n0 = len(g.L)
    issue_fn()
    for i in range(n0, len(g.L)):
        g.L[i] = g.L[i].replace(' sc1', '')
    g('s_waitcnt vmcnt(0)')
    check_fn()
    g(f's_cbranch_vccz {d}')

def tpoll_loop(g, issue_fn, tags, sleep=2, sc='s51', acc='v7', tmp='v6', plain=False):
    l = g.uniq('TP'); d = g.uniq('TPD')
    if plain and PLAIN:
        plain_first(g, issue_fn, lambda: tag_check(g, tags, acc, tmp), d)
    g(f's_mov_b32 {sc}, {1 if NOHOP else SPIN_GLB}')
    g.label(l)
    issue_fn()
    g('s_waitcnt vmcnt(0)')
    tag_check(g, tags, acc, tmp)
    g(f'''s_cbranch_vccz {d}
    s_sleep {sleep}
    s_sub_u32 {sc}, {sc}, 1
    s_cmp_lg_u32 {sc}, 0
    s_cbranch_scc1 {l}''')
    g.label(d)

def read_nonce(g):
    lds_wait(g, C_N, 1)
    g('s_mov_b32 s55, s50')

def sentinel_check(g, regs, vmx):
    regs = list(regs)
    g(f'v_max_u32 {vmx}, v{regs[0]}, v{regs[1]}')
    i = 2
    while i < len(regs):
        if i + 1 < len(regs):
            g(f'v_max3_u32 {vmx}, {vmx}, v{regs[i]}, v{regs[i+1]}')
            i += 2
        else:
            g(f'v_max_u32 {vmx}, {vmx}, v{regs[i]}')
            i += 1
    g(f'v_cmp_eq_u32 vcc, -1, {vmx}')

def poll_loop(g, issue_fn, regs, vmx='v7', sc='s51', sleep=2, plain=False):
    l = g.uniq('PL'); d = g.uniq('PLD')
    if plain and PLAIN:
        plain_first(g, issue_fn, lambda: sentinel_check(g, regs, vmx), d)
    g(f's_mov_b32 {sc}, {1 if NOHOP else SPIN_GLB}')
    g.label(l)
    issue_fn()
    g('s_waitcnt vmcnt(0)')
    sentinel_check(g, regs, vmx)
    g(f'''s_cbranch_vccz {d}
    s_sleep {sleep}
    s_sub_u32 {sc}, {sc}, 1
    s_cmp_lg_u32 {sc}, 0
    s_cbranch_scc1 {l}''')
    g.label(d)

def arrive(g, sidx, n, stmp='s46', sctr=None, ack=True):
    d = g.uniq('ARR')
    if sctr is None:
        g(f's_lshl_b32 {stmp}, {sidx}, {QSH}\ns_add_u32 {stmp}, {stmp}, {QOFF}')
        srdn = 40
    else:
        g(f's_lshl_b32 {stmp}, {sctr}, 7\ns_add_u32 {stmp}, {stmp}, {W_CT}')
        srdn = 36
    g(f'''v_mov_b32 v6, {stmp}
    v_mov_b32 v7, 1
    {'s_waitcnt vmcnt(0)' if ack else 's_nop 0'}
    s_mov_b64 exec, 1
    buffer_atomic_add v7, v6, s[{srdn}:{srdn+3}], 0 offen sc0
    s_waitcnt vmcnt(0)
    v_readfirstlane_b32 {stmp}, v7
    s_cmp_eq_u32 {stmp}, {n-1}
    s_cbranch_scc0 {d}
    s_lshl_b32 {stmp}, {sidx}, 7
    s_add_u32 {stmp}, {stmp}, {W_FL}
    v_mov_b32 v6, 0
    v_mov_b32 v7, s55
    buffer_store_dword v7, v6, s[36:39], {stmp} offen sc1''')
    g.label(d)
    g('s_mov_b64 exec, -1')

def flag_wait(g, sidx, sleep, stmp='s46'):
    l = g.uniq('FW'); d = g.uniq('FWD')
    g(f'''s_lshl_b32 {stmp}, {sidx}, 7
    s_add_u32 {stmp}, {stmp}, {W_FL}
    v_mov_b32 v6, 0
    s_mov_b32 s51, {1 if NOHOP else SPIN_GLB}
    s_mov_b64 exec, 1''')
    g.label(l)
    g(f'''buffer_load_dword v7, v6, s[36:39], {stmp} offen sc1
    s_waitcnt vmcnt(0)
    v_readfirstlane_b32 s50, v7
    s_cmp_eq_u32 s50, s55
    s_cbranch_scc1 {d}
    s_sleep {sleep}
    s_sub_u32 s51, s51, 1
    s_cmp_lg_u32 s51, 0
    s_cbranch_scc1 {l}''')
    g.label(d)
    g('s_mov_b64 exec, -1')

def q_gather(g, args, rnd, tsa=None):
    g(f'''s_lshr_b32 s44, s86, 5
    s_lshl_b32 s44, s44, 15
    s_add_u32 s44, s44, {W_Q + rnd*16384}
    s_lshr_b32 s45, s44, 1
    s_add_u32 s45, s45, {W_B}
    s_lshr_b32 s48, s86, 6
    s_add_u32 s48, s48, 1''')
    flag_wait(g, 's48', args.fsleep)
    if tsa is not None:
        ts(g, tsa)
    g('''v_lshrrev_b32 v2, 5, v0
    v_lshlrev_b32 v2, 12, v2
    v_and_b32 v3, 31, v0
    v_lshl_add_u32 v2, v3, 4, v2
    v_lshrrev_b32 v3, 1, v2
    v_lshrrev_b32 v8, 5, v0
    v_lshlrev_b32 v8, 8, v8
    v_bfe_u32 v9, v0, 3, 2
    v_lshlrev_b32 v9, 6, v9
    v_and_b32 v10, 7, v0
    v_lshlrev_b32 v10, 1, v10
    v_add3_u32 v8, v8, v9, v10''')
    def issue_q2():
        for hh in range(2):
            g(f's_add_u32 s46, s44, {hh*8192}\ns_add_u32 s48, s45, {hh*4096}')
            for ks in range(8):
                r = 40 + 32 * hh + 4 * ks
                rb = 104 + 16 * hh + 2 * ks
                g(f'buffer_load_dwordx4 v[{r}:{r+3}], v2, s[36:39], s46 offen offset:{ks*512} sc1')
                if not args.qpack:
                    g(f'buffer_load_dwordx2 v[{rb}:{rb+1}], v3, s[36:39], s48 offen offset:{ks*256} sc1')
    tags = [43 + 4 * i for i in range(16)] + ([] if args.qpack else [105 + 2 * i for i in range(16)])
    if 'q2' not in args.skip:
        tpoll_loop(g, issue_q2, tags, sleep=4, plain=True)
    if args.qpack:
        for i in range(16):
            unpack_d(g, 40 + 4 * i)
    for hh in range(2):
        hp = 2 * rnd + hh
        for r in range(4):
            src = (lambda ks: 40 + 32 * hh + 4 * ks + r) if (r < 3 or args.qpack) else (lambda ks: 104 + 16 * hh + 2 * ks)
            g(f'v_add_f32 v{12+r}, v{src(0)}, v{src(1)}')
            for ks in range(2, 8):
                g(f'v_add_f32 v{12+r}, v{12+r}, v{src(ks)}')
        g(f'''v_cvt_pk_bf16_f32 v12, v12, v13
        v_cvt_pk_bf16_f32 v14, v14, v15
        ds_write_b16 v8, v12 offset:{L_Q + 512*hp}
        ds_write_b16_d16_hi v8, v12 offset:{L_Q + 512*hp + 16}
        ds_write_b16 v8, v14 offset:{L_Q + 512*hp + 32}
        ds_write_b16_d16_hi v8, v14 offset:{L_Q + 512*hp + 48}''')
    lds_signal(g, C_Q, add=True)

PROF = False
def ts(g, i):
    if PROF:
        g(f's_memrealtime s[96:97]\ns_waitcnt lgkmcnt(0)\ns_mov_b32 s{64+i}, s96')
def ts_dump(g, n):
    if not PROF:
        return
    g(f'''s_mul_i32 s62, s2, 12
    s_add_u32 s62, s62, s3
    s_lshl_b32 s62, s62, 6
    s_add_u32 s62, s62, 0x8000000
    s_mov_b64 exec, 1
    v_mov_b32 v6, 0''')
    for i in range(16):
        g(f'v_mov_b32 v7, s{64+i}\nbuffer_store_dword v7, v6, s[36:39], s62 offen offset:{4*i}')

def gen_flash(g, args):
    g.label('L_BULK')
    vm = VM(g)
    BQ, BS, BPK, BO, KST, VS = 8, 24, 40, 48, 80, 112
    KV_ = ['v240', 'v241', 'v242', 'v243']
    KR_ = ['v244', 'v245', 'v246', 'v247']
    TS = 16384
    srd(g, 28, 6, 64 * 1024 * 1024)
    srd(g, 32, 8, 64 * 1024 * 1024)
    g(f'''s_sub_u32 s44, s3, 4
    s_lshr_b32 s45, s86, 6
    s_bfe_u32 s46, s86, 0x10005
    s_lshl_b32 s46, s46, 2
    s_add_u32 s45, s45, s46
    s_lshl_b32 s45, s45, 23
    s_and_b32 s46, s86, 31
    s_lshl_b32 s46, s46, 18
    s_add_u32 s45, s45, s46
    s_lshl_b32 s46, s44, 12
    s_add_u32 s45, s45, s46
    v_and_b32 v4, 15, v0
    v_lshrrev_b32 v5, 4, v0
    v_lshlrev_b32 v2, 4, v0
    s_lshl_b32 s48, s44, 15
    s_add_u32 s48, s48, {L_V}
    v_xor_b32 v6, v4, v5
    v_lshlrev_b32 v7, 8, v5
    v_lshl_add_u32 v240, v6, 4, v7
    v_xor_b32 v241, 64, v240
    v_add_u32 v241, 1024, v241
    v_xor_b32 v242, 128, v240
    v_add_u32 v242, 2048, v242
    v_xor_b32 v243, 192, v240
    v_add_u32 v243, 3072, v243
    v_and_b32 v6, 3, v4
    v_lshlrev_b32 v6, 2, v6
    v_lshrrev_b32 v7, 2, v4
    v_add_u32 v6, v6, v7
    v_xor_b32 v7, v6, v5
    v_lshlrev_b32 v6, 8, v6
    v_lshl_add_u32 v244, v7, 4, v6
    v_xor_b32 v245, 64, v244
    v_xor_b32 v246, 128, v244
    v_xor_b32 v247, 192, v244
    v_add_u32 v244, s48, v244
    v_add_u32 v245, s48, v245
    v_add_u32 v246, s48, v246
    v_add_u32 v247, s48, v247
    s_barrier''')
    order = []
    cnt = [0]
    def pace(tag):
        order.append(tag)
        n = args.infl
        if len(order) - 1 - n >= 0:
            vm.wait(order[len(order) - 1 - n])
        if cnt[0] == args.pre:
            lds_wait(g, C_X, 1)
        if cnt[0] == args.ksig:
            lds_signal(g, C_K, add=True)
        if cnt[0] in (4, 8, 12, 15, 20, 24, 28, 31):
            ts(g, 8 + (4, 8, 12, 15, 20, 24, 28, 31).index(cnt[0]))
        cnt[0] += 1
    def kload(T):
        pace(f'K{T}')
        for j in range(4):
            g(f's_add_u32 s49, s48, {4096*(T % 8) + 1024*j}\ns_mov_b32 m0, s49\ns_add_u32 s46, s45, {TS*T}')
            g(f'buffer_load_dwordx4 {KV_[j]}, s[28:31], s46 offen nt lds')
            vm.issue(f'K{T}')
    def vload(T):
        pace(f'V{T}')
        r0 = VS + 16 * (T % 8)
        g(f's_add_u32 s46, s45, {TS*T}')
        for j in range(4):
            g(f'buffer_load_dwordx4 v[{r0+4*j}:{r0+4*j+3}], v2, s[32:35], s46 offen offset:{1024*j} nt')
            vm.issue(f'V{T}')
    def kread(T):
        r0 = KST + 16 * (T & 1)
        for j in range(4):
            g(f'ds_read_b128 v[{r0+4*j}:{r0+4*j+3}], {KR_[j]} offset:{4096*(T % 8)}')
    for c in range(2):
        for T in range(4 * c, 4 * c + 4):
            kload(T)
        for T in range(4 * c, 4 * c + 4):
            vload(T)
    lds_wait(g, C_Q, 2)
    ts(g, 1)
    g('''v_and_b32 v3, 7, v0
    v_lshlrev_b32 v3, 8, v3
    v_lshl_add_u32 v3, v5, 4, v3''')
    for j in range(4):
        g(f'ds_read_b128 v[{BQ+4*j}:{BQ+4*j+3}], v3 offset:{L_Q + 64*j}')
    for c in range(4):
        vm.wait(f'K{4*c+3}')
        kread(4 * c)
        for i in range(4):
            T = 4 * c + i
            if i < 3:
                kread(T + 1)
                g('s_waitcnt lgkmcnt(4)')
            else:
                g('s_waitcnt lgkmcnt(0)')
            r0 = KST + 16 * (T & 1)
            sreg = BS + 4 * i
            for j in range(4):
                cc = '0' if j == 0 else f'v[{sreg}:{sreg+3}]'
                g(f'v_mfma_f32_16x16x32_bf16 v[{sreg}:{sreg+3}], v[{r0+4*j}:{r0+4*j+3}], v[{BQ+4*j}:{BQ+4*j+3}], {cc}')
        if c == 0:
            ts(g, 2)
        if c < 2:
            for T in range(4 * c + 8, 4 * c + 12):
                kload(T)
        else:
            g('s_nop 7')
        for i in range(8):
            a, b = f'v{BS+2*i}', f'v{BS+2*i+1}'
            bf16r_pair(g, a, b, 'v250')
            g(f'v_mul_f32 {a}, s61, {a}\nv_mul_f32 {b}, s61, {b}')
            bf16r_pair(g, a, b, 'v250')
        g(f'v_max_f32 v250, v{BS}, v{BS+1}')
        for i in range(1, 8):
            g(f'v_max3_f32 v250, v250, v{BS+2*i}, v{BS+2*i+1}')
        allred_x16(g, 'v_max_f32', 'v250', 'v251')
        allred_x32(g, 'v_max_f32', 'v250', 'v251')
        if c > 0:
            g('''v_max_f32 v250, v250, v248
            v_sub_f32 v252, v248, v250
            v_mul_f32 v252, s60, v252
            v_exp_f32 v252, v252''')
        g('v_mov_b32 v248, v250\nv_mov_b32 v253, 0\nv_mov_b32 v254, 0')
        for i in range(0, 16, 2):
            g(f'''v_sub_f32 v{BS+i}, v{BS+i}, v248
            v_sub_f32 v{BS+i+1}, v{BS+i+1}, v248
            v_mul_f32 v{BS+i}, s60, v{BS+i}
            v_mul_f32 v{BS+i+1}, s60, v{BS+i+1}
            v_exp_f32 v{BS+i}, v{BS+i}
            v_exp_f32 v{BS+i+1}, v{BS+i+1}
            s_nop 0
            v_add_f32 v253, v253, v{BS+i}
            v_add_f32 v254, v254, v{BS+i+1}
            v_cvt_pk_bf16_f32 v{BPK+i//2}, v{BS+i}, v{BS+i+1}''')
        g('v_add_f32 v253, v253, v254')
        if c == 0:
            g('v_mov_b32 v249, v253')
        else:
            g('v_fma_f32 v249, v249, v252, v253')
            for i in range(32):
                g(f'v_mul_f32 v{BO+i}, v{BO+i}, v252')
        if c == 3:
            g('v_mov_b32 v253, v249')
            allred_x16(g, 'v_add_f32', 'v253', 'v251')
            allred_x32(g, 'v_add_f32', 'v253', 'v251')
            g(f'''s_lshl_b32 s46, s44, 6
            v_lshlrev_b32 v3, 2, v0
            v_add_u32 v3, s46, v3
            s_mov_b64 exec, 0xff
            ds_write_b32 v3, v248 offset:{L_ST}
            ds_write_b32 v3, v253 offset:{L_ST+32}
            s_mov_b64 exec, -1''')
            lds_signal(g, C_ST, add=True)
            ts(g, 3)
        for U in range(2):
            T0, T1 = 4 * c + 2 * U, 4 * c + 2 * U + 1
            vm.wait(f'V{T1}')
            ra = VS + 16 * (T0 % 8)
            rb = VS + 16 * (T1 % 8)
            for half in range(2):
                for tt in range(4):
                    t = 4 * half + tt
                    d = t >> 1
                    sel = 's58' if (t & 1) == 0 else 's59'
                    o = BS + 4 * tt
                    g(f'v_perm_b32 v{o}, v{ra+4+d}, v{ra+d}, {sel}')
                    g(f'v_perm_b32 v{o+1}, v{ra+12+d}, v{ra+8+d}, {sel}')
                    g(f'v_perm_b32 v{o+2}, v{rb+4+d}, v{rb+d}, {sel}')
                    g(f'v_perm_b32 v{o+3}, v{rb+12+d}, v{rb+8+d}, {sel}')
                g('s_nop 1')
                for tt in range(4):
                    t = 4 * half + tt
                    o = BS + 4 * tt
                    acc = BO + 4 * t
                    cc = '0' if (c == 0 and U == 0) else f'v[{acc}:{acc+3}]'
                    g(f'v_mfma_f32_16x16x32_bf16 v[{acc}:{acc+3}], v[{o}:{o+3}], v[{BPK+4*U}:{BPK+4*U+3}], {cc}')
        if c < 2:
            for T in range(4 * c + 8, 4 * c + 12):
                vload(T)
            if c == 1:
                lds_signal(g, C_V, add=True)
                ts(g, 4)
        g('s_nop 7')
    ts(g, 5)
    g(f'''s_lshl_b32 s46, s44, 12
    v_lshlrev_b32 v3, 9, v4
    v_lshl_add_u32 v3, v5, 7, v3
    v_add_u32 v3, s46, v3
    s_mov_b32 exec_lo, 0x00ff00ff
    s_mov_b32 exec_hi, 0x00ff00ff''')
    for t in range(8):
        acc = BO + 4 * t
        g(f'ds_write_b128 v3, v[{acc}:{acc+3}] offset:{L_OP + 16*t}')
    g('s_mov_b64 exec, -1')
    lds_signal(g, C_O, add=True)
    g(f'''s_lshr_b32 s46, s86, 6
    s_lshl_b32 s46, s46, 18
    s_lshl_b32 s49, s44, 16
    s_add_u32 s46, s46, s49
    s_bfe_u32 s49, s86, 0x10005
    s_lshl_b32 s49, s49, 14
    s_add_u32 s46, s46, s49
    s_and_b32 s49, s86, 31
    s_lshl_b32 s49, s49, 9
    s_add_u32 s46, s46, s49
    s_add_u32 s46, s46, {W_O}
    v_and_b32 v2, 31, v0
    v_lshlrev_b32 v2, 4, v2
    v_lshrrev_b32 v1, 5, v0
    v_lshl_add_u32 v2, v1, 15, v2
    s_lshl_b32 s49, s44, 10
    v_lshlrev_b32 v3, 4, v0
    v_add_u32 v3, s49, v3''')
    g(f'''s_lshl_b32 s49, s44, 3
    v_lshl_add_u32 v4, v1, 2, s49
    s_lshl_b32 s52, s86, 6
    s_add_u32 s52, s52, {W_ML}''')
    lds_wait(g, C_O, 4)
    for w in range(4):
        g(f'ds_read_b32 v{16+w}, v4 offset:{L_ST + 64*w}\nds_read_b32 v{20+w}, v4 offset:{L_ST + 64*w + 32}')
    for w in range(4):
        g(f'ds_read_b128 v[{88+4*w}:{91+4*w}], v3 offset:{L_OP + 4096*w}')
    g('''s_waitcnt lgkmcnt(4)
    v_max3_f32 v24, v16, v17, v18
    v_max_f32 v24, v24, v19''')
    for w in range(4):
        g(f'v_sub_f32 v{16+w}, v{16+w}, v24\nv_mul_f32 v{16+w}, s60, v{16+w}\nv_exp_f32 v{16+w}, v{16+w}')
    g('''s_nop 0
    v_mul_f32 v25, v20, v16
    v_fma_f32 v25, v21, v17, v25
    v_fma_f32 v25, v22, v18, v25
    v_fma_f32 v25, v23, v19, v25
    s_waitcnt lgkmcnt(0)''')
    for r in range(4):
        g(f'''v_mul_f32 v{8+r}, v{88+r}, v16
        v_mul_f32 v{12+r}, v{96+r}, v18
        v_fma_f32 v{8+r}, v{92+r}, v17, v{8+r}
        v_fma_f32 v{12+r}, v{100+r}, v19, v{12+r}
        v_add_f32 v{8+r}, v{8+r}, v{12+r}''')
    g('''buffer_store_dwordx4 v[8:11], v2, s[36:39], s46 offen sc1
    s_mov_b32 exec_lo, 1
    s_mov_b32 exec_hi, 1
    buffer_store_dword v24, v4, s[36:39], s52 offen sc1
    buffer_store_dword v25, v4, s[36:39], s52 offen offset:32 sc1
    s_mov_b64 exec, -1''')
    if args.omode == 2:
        d = g.uniq('OA')
        g(f'''v_mov_b32 v6, {C_ST}
        v_mov_b32 v7, 1
        s_mov_b64 exec, 1
        ds_add_rtn_u32 v7, v6, v7
        s_waitcnt lgkmcnt(0)
        v_readfirstlane_b32 s49, v7
        s_mov_b64 exec, -1
        s_cmp_eq_u32 s49, 7
        s_cbranch_scc0 {d}''')
        read_nonce(g)
        g('s_lshr_b32 s48, s86, 6\ns_add_u32 s48, s48, 8\ns_andn2_b32 s49, s86, 63\ns_add_u32 s49, s49, 257')
        arrive(g, 's48', 64, sctr='s49', ack=False)
        g.label(d)
    ts(g, 6)
    ts_dump(g, 7)
    g('s_endpgm')

def gen_steal(g, args):
    g.label('L_BULK')
    vm = VM(g)
    BQ, BS, BPK, BO, KST, VS = 8, 24, 40, 48, 80, 112
    KV_ = ['v240', 'v241', 'v242', 'v243']
    KR_ = ['v244', 'v245', 'v246', 'v247']
    TS = 16384
    srd(g, 28, 6, 64 * 1024 * 1024)
    srd(g, 32, 8, 64 * 1024 * 1024)
    g(f'''s_sub_u32 s44, s3, 4
    s_lshr_b32 s45, s86, 6
    s_bfe_u32 s46, s86, 0x10005
    s_lshl_b32 s46, s46, 2
    s_add_u32 s45, s45, s46
    s_lshl_b32 s45, s45, 23
    s_mov_b32 s4, s45
    s_and_b32 s46, s86, 31
    s_lshl_b32 s46, s46, 18
    s_add_u32 s45, s45, s46
    s_lshl_b32 s46, s44, 14
    s_add_u32 s45, s45, s46
    v_and_b32 v4, 15, v0
    v_lshrrev_b32 v5, 4, v0
    v_lshlrev_b32 v2, 4, v0
    s_lshl_b32 s48, s44, 15
    s_add_u32 s48, s48, {L_V}
    v_xor_b32 v6, v4, v5
    v_lshlrev_b32 v7, 8, v5
    v_lshl_add_u32 v240, v6, 4, v7
    v_xor_b32 v241, 64, v240
    v_add_u32 v241, 1024, v241
    v_xor_b32 v242, 128, v240
    v_add_u32 v242, 2048, v242
    v_xor_b32 v243, 192, v240
    v_add_u32 v243, 3072, v243
    v_and_b32 v6, 3, v4
    v_lshlrev_b32 v6, 2, v6
    v_lshrrev_b32 v7, 2, v4
    v_add_u32 v6, v6, v7
    v_xor_b32 v7, v6, v5
    v_lshlrev_b32 v6, 8, v6
    v_lshl_add_u32 v244, v7, 4, v6
    v_xor_b32 v245, 64, v244
    v_xor_b32 v246, 128, v244
    v_xor_b32 v247, 192, v244
    v_add_u32 v244, s48, v244
    v_add_u32 v245, s48, v245
    v_add_u32 v246, s48, v246
    v_add_u32 v247, s48, v247
    s_barrier''')
    CAP = 4 * args.infl
    NSTAT = args.nstat
    NPOOL = (4 - NSTAT) * 128
    cnt = [0]
    def hooks():
        if cnt[0] == args.pre:
            lds_wait(g, C_X, 1)
        if cnt[0] == args.ksig:
            lds_signal(g, C_K, add=True)
        cnt[0] += 1
    def kload(buf, soff, hook=False):
        for i in range(4):
            g(f's_waitcnt vmcnt({CAP - 4})')
            if hook:
                hooks()
            g(f's_add_u32 s46, {soff}, {4096*i}')
            for j in range(4):
                g(f's_add_u32 s49, s48, {4096*(4*buf+i) + 1024*j}\ns_mov_b32 m0, s49\ns_nop 0')
                g(f'buffer_load_dwordx4 {KV_[j]}, s[28:31], s46 offen nt lds')
    def vload(buf, soff, hook=False):
        for i in range(4):
            g(f's_waitcnt vmcnt({CAP - 4})')
            if hook:
                hooks()
            r0 = VS + 16 * (4 * buf + i)
            g(f's_add_u32 s46, {soff}, {4096*i}')
            for j in range(4):
                g(f'buffer_load_dwordx4 v[{r0+4*j}:{r0+4*j+3}], v2, s[32:35], s46 offen offset:{1024*j} nt')
    def kread(slot):
        r0 = KST + 16 * (slot & 1)
        for j in range(4):
            g(f'ds_read_b128 v[{r0+4*j}:{r0+4*j+3}], {KR_[j]} offset:{4096*slot}')
    def ticket_req():
        g('''v_mov_b32 v255, 1
        s_mov_b64 exec, 1
        buffer_atomic_add v255, v1, s[36:39], 0 offen sc0
        s_mov_b64 exec, -1''')
    g('s_add_u32 s5, s45, 65536')
    kload(0, 's45', True); vload(0, 's45', True)
    kload(1, 's5', True); vload(1, 's5', True)
    g(f'''s_andn2_b32 s46, s86, 31
    s_add_u32 s46, s46, 256
    s_lshl_b32 s46, s46, 7
    s_add_u32 s46, s46, {W_CT}
    v_mov_b32 v1, s46
    v_mov_b32 v248, 0xff800000
    v_mov_b32 v249, 0''')
    for i in range(32):
        g(f'v_mov_b32 v{BO+i}, 0')
    lds_wait(g, C_Q, 2)
    ts(g, 1)
    g('''v_and_b32 v3, 7, v0
    v_lshlrev_b32 v3, 8, v3
    v_lshl_add_u32 v3, v5, 4, v3''')
    for j in range(4):
        g(f'ds_read_b128 v[{BQ+4*j}:{BQ+4*j+3}], v3 offset:{L_Q + 64*j}')
    g(f'''s_mov_b32 s6, {NSTAT - 2}
    s_add_u32 s5, s45, 131072
    s_mov_b32 s7, 1
    s_mov_b32 s8, 0''')
    assert NSTAT == 3
    def half(buf, nxt_label, exit_label):
        u = g.uniq('H')
        g(f'''s_cmp_eq_u32 s7, 0
        s_cbranch_scc1 {u}_w0
        s_waitcnt vmcnt(48)
        s_branch {u}_w1''')
        g.label(f'{u}_w0')
        g('s_waitcnt vmcnt(16)')
        g.label(f'{u}_w1')
        kread(4 * buf)
        for i in range(4):
            if i < 3:
                kread(4 * buf + i + 1)
                g('s_waitcnt lgkmcnt(4)')
            else:
                g('s_waitcnt lgkmcnt(0)')
            r0 = KST + 16 * (i & 1)
            sreg = BS + 4 * i
            for j in range(4):
                cc = '0' if j == 0 else f'v[{sreg}:{sreg+3}]'
                g(f'v_mfma_f32_16x16x32_bf16 v[{sreg}:{sreg+3}], v[{r0+4*j}:{r0+4*j+3}], v[{BQ+4*j}:{BQ+4*j+3}], {cc}')
        g(f'''s_mov_b32 s9, 0
        s_cmp_eq_u32 s6, 0
        s_cbranch_scc1 {u}_dyn
        s_mov_b32 s9, 1
        s_mov_b32 s10, s5
        s_add_u32 s5, s5, 65536
        s_sub_u32 s6, s6, 1
        s_branch {u}_got''')
        g.label(f'{u}_dyn')
        g(f'''s_cmp_eq_u32 s8, 0
        s_cbranch_scc1 {u}_got
        s_waitcnt vmcnt(32)
        v_readfirstlane_b32 s11, v255
        s_mov_b32 s8, 0
        s_cmp_ge_u32 s11, {NPOOL}
        s_cbranch_scc1 {u}_got
        s_mov_b32 s9, 1''')
        g(f'''s_and_b32 s10, s11, 127
        s_lshr_b32 s10, s10, 2
        s_lshl_b32 s10, s10, 18
        s_and_b32 s12, s11, 3
        s_lshl_b32 s12, s12, 14
        s_add_u32 s10, s10, s12
        s_lshr_b32 s12, s11, 7
        s_add_u32 s12, s12, {NSTAT}
        s_lshl_b32 s12, s12, 16
        s_add_u32 s10, s10, s12
        s_add_u32 s10, s10, s4''')
        g.label(f'{u}_got')
        g(f's_cmp_eq_u32 s9, 0\ns_cbranch_scc1 {u}_nok')
        g(f's_cmp_lg_u32 s6, 0\ns_cbranch_scc1 {u}_not')
        ticket_req()
        g('s_mov_b32 s8, 1')
        g.label(f'{u}_not')
        kload(buf, 's10')
        g.label(f'{u}_nok')
        g('s_nop 7')
        for i in range(8):
            a, b = f'v{BS+2*i}', f'v{BS+2*i+1}'
            bf16r_pair(g, a, b, 'v250')
            g(f'v_mul_f32 {a}, s61, {a}\nv_mul_f32 {b}, s61, {b}')
            bf16r_pair(g, a, b, 'v250')
        g(f'v_max3_f32 v250, v{BS}, v{BS+1}, v248')
        for i in range(1, 8):
            g(f'v_max3_f32 v250, v250, v{BS+2*i}, v{BS+2*i+1}')
        allred_x16(g, 'v_max_f32', 'v250', 'v251')
        allred_x32(g, 'v_max_f32', 'v250', 'v251')
        g('''v_sub_f32 v252, v248, v250
        v_mul_f32 v252, s60, v252
        v_exp_f32 v252, v252
        v_mov_b32 v248, v250
        v_mov_b32 v253, 0
        v_mov_b32 v254, 0''')
        for i in range(0, 16, 2):
            g(f'''v_sub_f32 v{BS+i}, v{BS+i}, v248
            v_sub_f32 v{BS+i+1}, v{BS+i+1}, v248
            v_mul_f32 v{BS+i}, s60, v{BS+i}
            v_mul_f32 v{BS+i+1}, s60, v{BS+i+1}
            v_exp_f32 v{BS+i}, v{BS+i}
            v_exp_f32 v{BS+i+1}, v{BS+i+1}
            s_nop 0
            v_add_f32 v253, v253, v{BS+i}
            v_add_f32 v254, v254, v{BS+i+1}
            v_cvt_pk_bf16_f32 v{BPK+i//2}, v{BS+i}, v{BS+i+1}''')
        g('v_add_f32 v253, v253, v254\nv_fma_f32 v249, v249, v252, v253')
        for i in range(32):
            g(f'v_mul_f32 v{BO+i}, v{BO+i}, v252')
        g(f'''s_lshl_b32 s12, s7, 1
        s_add_u32 s12, s12, s9
        s_cmp_eq_u32 s12, 3
        s_cbranch_scc1 {u}_v3
        s_cmp_eq_u32 s12, 2
        s_cbranch_scc1 {u}_v2
        s_cmp_eq_u32 s12, 1
        s_cbranch_scc1 {u}_v1
        s_waitcnt vmcnt(0)
        s_branch {u}_vd''')
        g.label(f'{u}_v3'); g(f's_waitcnt vmcnt(48)\ns_branch {u}_vd')
        g.label(f'{u}_v2'); g(f's_waitcnt vmcnt(32)\ns_branch {u}_vd')
        g.label(f'{u}_v1'); g('s_waitcnt vmcnt(16)')
        g.label(f'{u}_vd')
        for U in range(2):
            ra = VS + 16 * (4 * buf + 2 * U)
            rb = ra + 16
            for hf in range(2):
                for tt in range(4):
                    t = 4 * hf + tt
                    d = t >> 1
                    sel = 's58' if (t & 1) == 0 else 's59'
                    o = BS + 4 * tt
                    g(f'v_perm_b32 v{o}, v{ra+4+d}, v{ra+d}, {sel}')
                    g(f'v_perm_b32 v{o+1}, v{ra+12+d}, v{ra+8+d}, {sel}')
                    g(f'v_perm_b32 v{o+2}, v{rb+4+d}, v{rb+d}, {sel}')
                    g(f'v_perm_b32 v{o+3}, v{rb+12+d}, v{rb+8+d}, {sel}')
                g('s_nop 1')
                for tt in range(4):
                    t = 4 * hf + tt
                    o = BS + 4 * tt
                    acc = BO + 4 * t
                    g(f'v_mfma_f32_16x16x32_bf16 v[{acc}:{acc+3}], v[{o}:{o+3}], v[{BPK+4*U}:{BPK+4*U+3}], v[{acc}:{acc+3}]')
        g(f's_cmp_eq_u32 s9, 0\ns_cbranch_scc1 {u}_nov')
        vload(buf, 's10')
        g(f's_branch {u}_cont')
        g.label(f'{u}_nov')
        g(f's_cmp_eq_u32 s7, 0\ns_cbranch_scc1 {u}_cont')
        lds_signal(g, C_V, add=True)
        g.label(f'{u}_cont')
        g(f'''s_mov_b32 s12, s7
        s_mov_b32 s7, s9
        s_cmp_eq_u32 s12, 0
        s_cbranch_scc1 {exit_label}''')
        if nxt_label:
            g(f's_branch {nxt_label}')
    g.label('L_SLOOP')
    half(0, None, 'L_SEXIT')
    half(1, 'L_SLOOP', 'L_SEXIT')
    g.label('L_SEXIT')
    g('s_nop 7')
    g('v_mov_b32 v253, v249')
    allred_x16(g, 'v_add_f32', 'v253', 'v251')
    allred_x32(g, 'v_add_f32', 'v253', 'v251')
    g(f'''s_lshl_b32 s46, s44, 6
    v_lshlrev_b32 v3, 2, v0
    v_add_u32 v3, s46, v3
    s_mov_b64 exec, 0xff
    ds_write_b32 v3, v248 offset:{L_ST}
    ds_write_b32 v3, v253 offset:{L_ST+32}
    s_mov_b64 exec, -1''')
    lds_signal(g, C_ST, add=True)
    ts(g, 5)
    g(f'''s_lshl_b32 s46, s44, 12
    v_lshlrev_b32 v3, 9, v4
    v_lshl_add_u32 v3, v5, 7, v3
    v_add_u32 v3, s46, v3
    s_mov_b32 exec_lo, 0x00ff00ff
    s_mov_b32 exec_hi, 0x00ff00ff''')
    for t in range(8):
        acc = BO + 4 * t
        g(f'ds_write_b128 v3, v[{acc}:{acc+3}] offset:{L_OP + 16*t}')
    g('s_mov_b64 exec, -1')
    lds_signal(g, C_O, add=True)
    g(f'''s_lshr_b32 s46, s86, 6
    s_lshl_b32 s46, s46, 18
    s_lshl_b32 s49, s44, 16
    s_add_u32 s46, s46, s49
    s_bfe_u32 s49, s86, 0x10005
    s_lshl_b32 s49, s49, 14
    s_add_u32 s46, s46, s49
    s_and_b32 s49, s86, 31
    s_lshl_b32 s49, s49, 9
    s_add_u32 s46, s46, s49
    s_add_u32 s46, s46, {W_O}
    v_and_b32 v2, 31, v0
    v_lshlrev_b32 v2, 4, v2
    v_lshrrev_b32 v1, 5, v0
    v_lshl_add_u32 v2, v1, 15, v2
    s_lshl_b32 s49, s44, 10
    v_lshlrev_b32 v3, 4, v0
    v_add_u32 v3, s49, v3''')
    g(f'''s_lshl_b32 s49, s44, 3
    v_lshl_add_u32 v4, v1, 2, s49
    s_lshl_b32 s52, s86, 6
    s_add_u32 s52, s52, {W_ML}''')
    lds_wait(g, C_O, 4)
    for w in range(4):
        g(f'ds_read_b32 v{16+w}, v4 offset:{L_ST + 64*w}\nds_read_b32 v{20+w}, v4 offset:{L_ST + 64*w + 32}')
    for w in range(4):
        g(f'ds_read_b128 v[{88+4*w}:{91+4*w}], v3 offset:{L_OP + 4096*w}')
    g('''s_waitcnt lgkmcnt(4)
    v_max3_f32 v24, v16, v17, v18
    v_max_f32 v24, v24, v19''')
    for w in range(4):
        g(f'v_sub_f32 v{16+w}, v{16+w}, v24\nv_mul_f32 v{16+w}, s60, v{16+w}\nv_exp_f32 v{16+w}, v{16+w}')
    g('''s_nop 0
    v_mul_f32 v25, v20, v16
    v_fma_f32 v25, v21, v17, v25
    v_fma_f32 v25, v22, v18, v25
    v_fma_f32 v25, v23, v19, v25
    s_waitcnt lgkmcnt(0)''')
    for r in range(4):
        g(f'''v_mul_f32 v{8+r}, v{88+r}, v16
        v_mul_f32 v{12+r}, v{96+r}, v18
        v_fma_f32 v{8+r}, v{92+r}, v17, v{8+r}
        v_fma_f32 v{12+r}, v{100+r}, v19, v{12+r}
        v_add_f32 v{8+r}, v{8+r}, v{12+r}''')
    g('''buffer_store_dwordx4 v[8:11], v2, s[36:39], s46 offen sc1
    s_mov_b32 exec_lo, 1
    s_mov_b32 exec_hi, 1
    buffer_store_dword v24, v4, s[36:39], s52 offen sc1
    buffer_store_dword v25, v4, s[36:39], s52 offen offset:32 sc1
    s_mov_b64 exec, -1''')
    if args.omode == 2:
        d = g.uniq('OA')
        g(f'''v_mov_b32 v6, {C_ST}
        v_mov_b32 v7, 1
        s_mov_b64 exec, 1
        ds_add_rtn_u32 v7, v6, v7
        s_waitcnt lgkmcnt(0)
        v_readfirstlane_b32 s49, v7
        s_mov_b64 exec, -1
        s_cmp_eq_u32 s49, 7
        s_cbranch_scc0 {d}''')
        read_nonce(g)
        g('s_lshr_b32 s48, s86, 6\ns_add_u32 s48, s48, 8\ns_andn2_b32 s49, s86, 63\ns_add_u32 s49, s49, 257')
        arrive(g, 's48', 64, sctr='s49', ack=False)
        g.label(d)
    ts(g, 6)
    ts_dump(g, 7)
    g('s_endpgm')

def gen_steal2(g, args):
    g.label('L_BULK')
    vm = VM(g)
    BQ, BS, BPK, BO, KST, VS = 8, 24, 40, 48, 80, 112
    KV_ = ['v240', 'v241', 'v242', 'v243']
    KR_ = ['v244', 'v245', 'v246', 'v247']
    TS = 16384
    srd(g, 28, 6, 64 * 1024 * 1024)
    srd(g, 32, 8, 64 * 1024 * 1024)
    g(f'''s_sub_u32 s44, s3, 4
    s_lshr_b32 s45, s86, 6
    s_bfe_u32 s46, s86, 0x10005
    s_lshl_b32 s46, s46, 2
    s_add_u32 s45, s45, s46
    s_lshl_b32 s45, s45, 23
    s_mov_b32 s4, s45
    s_and_b32 s46, s86, 31
    s_lshl_b32 s46, s46, 18
    s_add_u32 s45, s45, s46
    s_lshl_b32 s46, s44, 13
    s_add_u32 s45, s45, s46
    v_and_b32 v4, 15, v0
    v_lshrrev_b32 v5, 4, v0
    v_lshlrev_b32 v2, 4, v0
    s_lshl_b32 s48, s44, 15
    s_add_u32 s48, s48, {L_V}
    v_xor_b32 v6, v4, v5
    v_lshlrev_b32 v7, 8, v5
    v_lshl_add_u32 v240, v6, 4, v7
    v_xor_b32 v241, 64, v240
    v_add_u32 v241, 1024, v241
    v_xor_b32 v242, 128, v240
    v_add_u32 v242, 2048, v242
    v_xor_b32 v243, 192, v240
    v_add_u32 v243, 3072, v243
    v_and_b32 v6, 3, v4
    v_lshlrev_b32 v6, 2, v6
    v_lshrrev_b32 v7, 2, v4
    v_add_u32 v6, v6, v7
    v_xor_b32 v7, v6, v5
    v_lshlrev_b32 v6, 8, v6
    v_lshl_add_u32 v244, v7, 4, v6
    v_xor_b32 v245, 64, v244
    v_xor_b32 v246, 128, v244
    v_xor_b32 v247, 192, v244
    v_add_u32 v244, s48, v244
    v_add_u32 v245, s48, v245
    v_add_u32 v246, s48, v246
    v_add_u32 v247, s48, v247
    s_barrier''')
    CAP = 4 * args.infl
    NSP = args.nsp
    NPOOL = (8 - NSP) * 128
    cnt = [0]
    def hooks():
        if cnt[0] == args.pre:
            lds_wait(g, C_X, 1)
        if cnt[0] == args.ksig:
            lds_signal(g, C_K, add=True)
        cnt[0] += 1
    def kload(buf, soff, hook=False):
        for i in range(2):
            g(f's_waitcnt vmcnt({CAP - 4})')
            if hook:
                hooks()
            g(f's_add_u32 s46, {soff}, {4096*i}')
            for j in range(4):
                g(f's_add_u32 s49, s48, {4096*(2*buf+i) + 1024*j}\ns_mov_b32 m0, s49\ns_nop 0')
                g(f'buffer_load_dwordx4 {KV_[j]}, s[28:31], s46 offen nt lds')
    def vload(buf, soff, hook=False):
        for i in range(2):
            g(f's_waitcnt vmcnt({CAP - 4})')
            if hook:
                hooks()
            r0 = VS + 16 * (2 * buf + i)
            g(f's_add_u32 s46, {soff}, {4096*i}')
            for j in range(4):
                g(f'buffer_load_dwordx4 v[{r0+4*j}:{r0+4*j+3}], v2, s[32:35], s46 offen offset:{1024*j} nt')
    def kread(slot):
        r0 = KST + 16 * (slot & 1)
        for j in range(4):
            g(f'ds_read_b128 v[{r0+4*j}:{r0+4*j+3}], {KR_[j]} offset:{4096*slot}')
    def ticket_req():
        g('''v_mov_b32 v255, 1
        s_mov_b64 exec, 1
        buffer_atomic_add v255, v1, s[36:39], 0 offen sc0
        s_mov_b64 exec, -1''')
    def qk(buf):
        kread(2 * buf); kread(2 * buf + 1)
        for i in range(2):
            g(f's_waitcnt lgkmcnt({4 if i == 0 else 0})')
            r0 = KST + 16 * i
            sreg = BS + 4 * i
            for j in range(4):
                cc = '0' if j == 0 else f'v[{sreg}:{sreg+3}]'
                g(f'v_mfma_f32_16x16x32_bf16 v[{sreg}:{sreg+3}], v[{r0+4*j}:{r0+4*j+3}], v[{BQ+4*j}:{BQ+4*j+3}], {cc}')
    def softmax():
        g('s_nop 7')
        for i in range(4):
            a, b = f'v{BS+2*i}', f'v{BS+2*i+1}'
            bf16r_pair(g, a, b, 'v250')
            g(f'v_mul_f32 {a}, s61, {a}\nv_mul_f32 {b}, s61, {b}')
            bf16r_pair(g, a, b, 'v250')
        g(f'v_max3_f32 v250, v{BS}, v{BS+1}, v248')
        for i in range(1, 4):
            g(f'v_max3_f32 v250, v250, v{BS+2*i}, v{BS+2*i+1}')
        allred_x16(g, 'v_max_f32', 'v250', 'v251')
        allred_x32(g, 'v_max_f32', 'v250', 'v251')
        g('''v_sub_f32 v252, v248, v250
        v_mul_f32 v252, s60, v252
        v_exp_f32 v252, v252
        v_mov_b32 v248, v250
        v_mov_b32 v253, 0
        v_mov_b32 v254, 0''')
        for i in range(0, 8, 2):
            g(f'''v_sub_f32 v{BS+i}, v{BS+i}, v248
            v_sub_f32 v{BS+i+1}, v{BS+i+1}, v248
            v_mul_f32 v{BS+i}, s60, v{BS+i}
            v_mul_f32 v{BS+i+1}, s60, v{BS+i+1}
            v_exp_f32 v{BS+i}, v{BS+i}
            v_exp_f32 v{BS+i+1}, v{BS+i+1}
            s_nop 0
            v_add_f32 v253, v253, v{BS+i}
            v_add_f32 v254, v254, v{BS+i+1}
            v_cvt_pk_bf16_f32 v{BPK+i//2}, v{BS+i}, v{BS+i+1}''')
        g('v_add_f32 v253, v253, v254\nv_fma_f32 v249, v249, v252, v253')
        for i in range(32):
            g(f'v_mul_f32 v{BO+i}, v{BO+i}, v252')
    def pv(buf):
        ra = VS + 32 * buf
        rb = ra + 16
        for hf in range(2):
            for tt in range(4):
                t = 4 * hf + tt
                d = t >> 1
                sel = 's58' if (t & 1) == 0 else 's59'
                o = BS + 4 * tt
                g(f'v_perm_b32 v{o}, v{ra+4+d}, v{ra+d}, {sel}')
                g(f'v_perm_b32 v{o+1}, v{ra+12+d}, v{ra+8+d}, {sel}')
                g(f'v_perm_b32 v{o+2}, v{rb+4+d}, v{rb+d}, {sel}')
                g(f'v_perm_b32 v{o+3}, v{rb+12+d}, v{rb+8+d}, {sel}')
            g('s_nop 1')
            for tt in range(4):
                t = 4 * hf + tt
                o = BS + 4 * tt
                acc = BO + 4 * t
                g(f'v_mfma_f32_16x16x32_bf16 v[{acc}:{acc+3}], v[{o}:{o+3}], v[{BPK}:{BPK+3}], v[{acc}:{acc+3}]')
        g('s_nop 7')
    for p in range(4):
        g(f's_add_u32 s5, s45, {32768*p}')
        kload(p, 's5', True); vload(p, 's5', True)
        for _ in range(8): vm.issue(f'K{p}')
        for _ in range(8): vm.issue(f'V{p}')
    g(f'''s_andn2_b32 s46, s86, 31
    s_add_u32 s46, s46, 256
    s_lshl_b32 s46, s46, 7
    s_add_u32 s46, s46, {W_CT}
    v_mov_b32 v1, s46
    v_mov_b32 v248, 0xff800000
    v_mov_b32 v249, 0''')
    for i in range(32):
        g(f'v_mov_b32 v{BO+i}, 0')
    lds_wait(g, C_Q, 2)
    ts(g, 1)
    g('''v_and_b32 v3, 7, v0
    v_lshlrev_b32 v3, 8, v3
    v_lshl_add_u32 v3, v5, 4, v3''')
    for j in range(4):
        g(f'ds_read_b128 v[{BQ+4*j}:{BQ+4*j+3}], v3 offset:{L_Q + 64*j}')
    def tk_addr():
        g(f'''s_and_b32 s10, s11, 127
        s_lshr_b32 s10, s10, 2
        s_lshl_b32 s10, s10, 18
        s_and_b32 s12, s11, 3
        s_lshl_b32 s12, s12, 13
        s_add_u32 s10, s10, s12
        s_lshr_b32 s12, s11, 7
        s_add_u32 s12, s12, {NSP}
        s_lshl_b32 s12, s12, 15
        s_add_u32 s10, s10, s12
        s_add_u32 s5, s10, s4''')
    assert NSP in (4, 6)
    if NSP == 6:
        for p in range(4):
            vm.wait(f'K{p}')
            qk(p)
            if p < 2:
                g(f's_add_u32 s5, s45, {32768*(p+4)}')
                if p == 1:
                    ticket_req(); vm.issue('A')
                kload(p, 's5')
                for _ in range(8): vm.issue(f'K{p+4}')
            softmax()
            vm.wait(f'V{p}')
            pv(p)
            if p < 2:
                vload(p, 's5')
                for _ in range(8): vm.issue(f'V{p+4}')
        ts(g, 2)
        g('s_mov_b32 s7, 1\ns_mov_b32 s8, 1')
    else:
        ticket_req()
        g('s_waitcnt vmcnt(0)\ns_mov_b32 s8, 1')
        for p in range(4):
            qk(p)
            fl = 's13' if p == 0 else 's7'
            if p < 2:
                u = g.uniq('SP')
                g(f'''s_mov_b32 {fl}, 0
                s_cmp_eq_u32 s8, 0
                s_cbranch_scc1 {u}
                s_waitcnt vmcnt(16)
                v_readfirstlane_b32 s11, v255
                s_mov_b32 s8, 0
                s_cmp_ge_u32 s11, {NPOOL}
                s_cbranch_scc1 {u}
                s_mov_b32 {fl}, 1''')
                tk_addr()
                ticket_req()
                g('s_mov_b32 s8, 1')
                kload(p, 's5')
                g.label(u)
            softmax()
            pv(p)
            if p < 2:
                u = g.uniq('SV')
                g(f's_cmp_eq_u32 {fl}, 0\ns_cbranch_scc1 {u}')
                vload(p, 's5')
                g.label(u)
        ts(g, 2)
        u = g.uniq('SC')
        g(f's_cmp_lg_u32 s7, 0\ns_cbranch_scc1 {u}')
        lds_signal(g, C_V, add=True)
        g.label(u)
        g('s_cmp_eq_u32 s13, 0\ns_cbranch_scc1 L_SEXIT')
    def half(buf, nxt_label, exit_label):
        u = g.uniq('H')
        g(f'''s_cmp_eq_u32 s7, 0
        s_cbranch_scc1 {u}_w0
        s_waitcnt vmcnt(24)
        s_branch {u}_w1''')
        g.label(f'{u}_w0')
        g('s_waitcnt vmcnt(8)')
        g.label(f'{u}_w1')
        qk(buf)
        g(f'''s_mov_b32 s9, 0
        s_cmp_eq_u32 s8, 0
        s_cbranch_scc1 {u}_nok
        s_waitcnt vmcnt(16)
        v_readfirstlane_b32 s11, v255
        s_mov_b32 s8, 0
        s_cmp_ge_u32 s11, {NPOOL}
        s_cbranch_scc1 {u}_nok
        s_mov_b32 s9, 1
        s_and_b32 s10, s11, 127
        s_lshr_b32 s10, s10, 2
        s_lshl_b32 s10, s10, 18
        s_and_b32 s12, s11, 3
        s_lshl_b32 s12, s12, 13
        s_add_u32 s10, s10, s12
        s_lshr_b32 s12, s11, 7
        s_add_u32 s12, s12, {NSP}
        s_lshl_b32 s12, s12, 15
        s_add_u32 s10, s10, s12
        s_add_u32 s10, s10, s4''')
        ticket_req()
        g('s_mov_b32 s8, 1')
        kload(buf, 's10')
        g.label(f'{u}_nok')
        softmax()
        g(f'''s_lshl_b32 s12, s7, 1
        s_add_u32 s12, s12, s9
        s_cmp_eq_u32 s12, 3
        s_cbranch_scc1 {u}_v3
        s_cmp_eq_u32 s12, 2
        s_cbranch_scc1 {u}_v2
        s_cmp_eq_u32 s12, 1
        s_cbranch_scc1 {u}_v1
        s_waitcnt vmcnt(0)
        s_branch {u}_vd''')
        g.label(f'{u}_v3'); g(f's_waitcnt vmcnt(24)\ns_branch {u}_vd')
        g.label(f'{u}_v2'); g(f's_waitcnt vmcnt(16)\ns_branch {u}_vd')
        g.label(f'{u}_v1'); g('s_waitcnt vmcnt(8)')
        g.label(f'{u}_vd')
        pv(buf)
        g(f's_cmp_eq_u32 s9, 0\ns_cbranch_scc1 {u}_nov')
        vload(buf, 's10')
        g(f's_branch {u}_cont')
        g.label(f'{u}_nov')
        g(f's_cmp_eq_u32 s7, 0\ns_cbranch_scc1 {u}_cont')
        lds_signal(g, C_V, add=True)
        g.label(f'{u}_cont')
        g(f'''s_mov_b32 s12, s7
        s_mov_b32 s7, s9
        s_cmp_eq_u32 s12, 0
        s_cbranch_scc1 {exit_label}''')
        if nxt_label:
            g(f's_branch {nxt_label}')
    g.label('L_SLOOP')
    half(0, None, 'L_SEXIT')
    half(1, 'L_SLOOP', 'L_SEXIT')
    g.label('L_SEXIT')
    g('s_nop 7')
    g('v_mov_b32 v253, v249')
    allred_x16(g, 'v_add_f32', 'v253', 'v251')
    allred_x32(g, 'v_add_f32', 'v253', 'v251')
    g(f'''s_lshl_b32 s46, s44, 6
    v_lshlrev_b32 v3, 2, v0
    v_add_u32 v3, s46, v3
    s_mov_b64 exec, 0xff
    ds_write_b32 v3, v248 offset:{L_ST}
    ds_write_b32 v3, v253 offset:{L_ST+32}
    s_mov_b64 exec, -1''')
    lds_signal(g, C_ST, add=True)
    ts(g, 5)
    g(f'''s_lshl_b32 s46, s44, 12
    v_lshlrev_b32 v3, 9, v4
    v_lshl_add_u32 v3, v5, 7, v3
    v_add_u32 v3, s46, v3
    s_mov_b32 exec_lo, 0x00ff00ff
    s_mov_b32 exec_hi, 0x00ff00ff''')
    for t in range(8):
        acc = BO + 4 * t
        g(f'ds_write_b128 v3, v[{acc}:{acc+3}] offset:{L_OP + 16*t}')
    g('s_mov_b64 exec, -1')
    lds_signal(g, C_O, add=True)
    g(f'''s_lshr_b32 s46, s86, 6
    s_lshl_b32 s46, s46, 18
    s_lshl_b32 s49, s44, 16
    s_add_u32 s46, s46, s49
    s_bfe_u32 s49, s86, 0x10005
    s_lshl_b32 s49, s49, 14
    s_add_u32 s46, s46, s49
    s_and_b32 s49, s86, 31
    s_lshl_b32 s49, s49, 9
    s_add_u32 s46, s46, s49
    s_add_u32 s46, s46, {W_O}
    v_and_b32 v2, 31, v0
    v_lshlrev_b32 v2, 4, v2
    v_lshrrev_b32 v1, 5, v0
    v_lshl_add_u32 v2, v1, 15, v2
    s_lshl_b32 s49, s44, 10
    v_lshlrev_b32 v3, 4, v0
    v_add_u32 v3, s49, v3''')
    g(f'''s_lshl_b32 s49, s44, 3
    v_lshl_add_u32 v4, v1, 2, s49
    s_lshl_b32 s52, s86, 6
    s_add_u32 s52, s52, {W_ML}''')
    lds_wait(g, C_O, 4)
    for w in range(4):
        g(f'ds_read_b32 v{16+w}, v4 offset:{L_ST + 64*w}\nds_read_b32 v{20+w}, v4 offset:{L_ST + 64*w + 32}')
    for w in range(4):
        g(f'ds_read_b128 v[{88+4*w}:{91+4*w}], v3 offset:{L_OP + 4096*w}')
    g('''s_waitcnt lgkmcnt(4)
    v_max3_f32 v24, v16, v17, v18
    v_max_f32 v24, v24, v19''')
    for w in range(4):
        g(f'v_sub_f32 v{16+w}, v{16+w}, v24\nv_mul_f32 v{16+w}, s60, v{16+w}\nv_exp_f32 v{16+w}, v{16+w}')
    g('''s_nop 0
    v_mul_f32 v25, v20, v16
    v_fma_f32 v25, v21, v17, v25
    v_fma_f32 v25, v22, v18, v25
    v_fma_f32 v25, v23, v19, v25
    s_waitcnt lgkmcnt(0)''')
    for r in range(4):
        g(f'''v_mul_f32 v{8+r}, v{88+r}, v16
        v_mul_f32 v{12+r}, v{96+r}, v18
        v_fma_f32 v{8+r}, v{92+r}, v17, v{8+r}
        v_fma_f32 v{12+r}, v{100+r}, v19, v{12+r}
        v_add_f32 v{8+r}, v{8+r}, v{12+r}''')
    g('''buffer_store_dwordx4 v[8:11], v2, s[36:39], s46 offen sc1
    s_mov_b32 exec_lo, 1
    s_mov_b32 exec_hi, 1
    buffer_store_dword v24, v4, s[36:39], s52 offen sc1
    buffer_store_dword v25, v4, s[36:39], s52 offen offset:32 sc1
    s_mov_b64 exec, -1''')
    if args.omode == 2:
        d = g.uniq('OA')
        g(f'''v_mov_b32 v6, {C_ST}
        v_mov_b32 v7, 1
        s_mov_b64 exec, 1
        ds_add_rtn_u32 v7, v6, v7
        s_waitcnt lgkmcnt(0)
        v_readfirstlane_b32 s49, v7
        s_mov_b64 exec, -1
        s_cmp_eq_u32 s49, 7
        s_cbranch_scc0 {d}''')
        read_nonce(g)
        g('s_lshr_b32 s48, s86, 6\ns_add_u32 s48, s48, 8\ns_andn2_b32 s49, s86, 63\ns_add_u32 s49, s49, 257')
        arrive(g, 's48', 64, sctr='s49', ack=False)
        g.label(d)
    ts(g, 6)
    ts_dump(g, 7)
    g('s_endpgm')

def gen(args):
    global PROF, NOHOP, NOLDS, PLAIN, QSH, QOFF
    QSH, QOFF = {0: (2, 0), 1: (2, 124), 2: (5, 96)}[args.qline]
    PLAIN = bool(args.plain)
    NOLDS = args.nolds
    PROF = args.prof
    NOHOP = args.nohop
    g = Gen()
    H = []
    H.append(f'; @launch grid=({NWG},1,1) block=(512,1,1) lds={LDS_BYTES + (4*8192 if args.flash else 0)}')
    H.append('.amdgcn_target "amdgcn-amd-amdhsa--gfx950"\n.text')
    H.append(f'.globl {KN}\n.p2align 8\n.type {KN},@function\n{KN}:')
    g(f'''s_cmp_ge_u32 s2, {NWG}
    s_cbranch_scc1 L_END
    s_load_dwordx16 s[4:19], s[0:1], 0
    s_load_dwordx8 s[20:27], s[0:1], 64
    v_lshrrev_b32 v1, 6, v0
    v_and_b32 v0, 63, v0
    s_mov_b32 s58, 0x05040100
    s_mov_b32 s59, 0x07060302
    v_readfirstlane_b32 s3, v1
    s_mov_b32 s60, {LOG2E}
    s_mov_b32 s61, {SCALE}
    s_waitcnt lgkmcnt(0)''')
    srd(g, 36, 26, 0x10000000)
    lane_masks(g)
    srd(g, 40, 24, 256)
    if args.remap:
        g('''s_and_b32 s90, s2, 7
        s_lshr_b32 s91, s2, 3
        s_lshl_b32 s86, s90, 5
        s_add_u32 s86, s86, s91
        s_lshr_b32 s92, s90, 1
        s_lshl_b32 s92, s92, 6
        s_and_b32 s93, s90, 1
        s_lshl_b32 s87, s91, 1
        s_add_u32 s87, s87, s93
        s_add_u32 s87, s87, s92
        s_lshl_b32 s88, s93, 2
        s_and_b32 s94, s91, 3
        s_add_u32 s88, s88, s94
        s_lshl_b32 s88, s88, 3
        s_lshr_b32 s94, s91, 2
        s_add_u32 s88, s88, s94
        s_add_u32 s88, s88, s92
        s_lshr_b32 s89, s91, 3
        s_lshl_b32 s89, s89, 3
        s_add_u32 s89, s89, s90
        s_cmp_lt_u32 s89, 28
        s_cselect_b32 s95, 1, 0
        s_lshl_b32 s89, s89, 3
        s_and_b32 s94, s91, 7
        s_add_u32 s89, s89, s94
        s_add_u32 s89, s89, 32
        s_mul_i32 s89, s89, s95''')
        if args.remap == 2:
            g('s_mov_b32 s86, s2\ns_mov_b32 s87, s2\ns_mov_b32 s88, s2')
    else:
        g('s_mov_b32 s86, s2\ns_mov_b32 s87, s2\ns_mov_b32 s88, s2\ns_mov_b32 s89, s2')
    g('''s_mov_b32 s90, 0x07060503
    s_mov_b32 s91, 0x07060502
    s_mov_b32 s92, 0x07060501
    s_mov_b32 s93, 0x04000c0c
    s_mov_b32 s94, 0x0706000c''')
    ts(g, 0)
    if args.noaux:
        g('s_cmp_ge_u32 s3, 4\ns_cbranch_scc1 L_BULK\ns_barrier\ns_endpgm')
    g('''s_cmp_ge_u32 s3, 4
    s_cbranch_scc1 L_BULK
    s_cmp_eq_u32 s3, 0
    s_cbranch_scc1 L_A0
    s_cmp_eq_u32 s3, 3
    s_cbranch_scc1 L_A3
    s_branch L_A12''')

    g.label('L_A3')
    srd(g, 28, 4, 4096)
    g('''v_lshlrev_b32 v1, 6, v0
    buffer_load_dwordx4 v[8:11], v1, s[28:31], 0 offen
    buffer_load_dwordx4 v[12:15], v1, s[28:31], 0 offen offset:16
    buffer_load_dwordx4 v[16:19], v1, s[28:31], 0 offen offset:32
    buffer_load_dwordx4 v[20:23], v1, s[28:31], 0 offen offset:48''')
    g(f'''v_mov_b32 v2, 0
    v_lshlrev_b32 v3, 2, v0
    v_add_u32 v3, {L_CT}, v3
    s_mov_b64 exec, 0xffff
    ds_write_b32 v3, v2
    s_mov_b64 exec, -1
    s_waitcnt lgkmcnt(0)
    s_barrier
    s_waitcnt vmcnt(0)''')
    for i in range(16):
        g(f'v_lshlrev_b32 v{24+2*i}, 16, v{8+i}\nv_and_b32 v{25+2*i}, 0xffff0000, v{8+i}')
    g('v_add_f32 v56, v24, v25')
    for i in range(26, 56):
        g(f'v_add_f32 v56, v56, v{i}')
    allred_row16(g, 'v_add_f32', 'v56', 'v57')
    allred_x16(g, 'v_add_f32', 'v56', 'v57')
    g('v_mul_f32 v56, 0x3a800000, v56')
    g('v_sub_f32 v58, v24, v56\nv_mul_f32 v59, v58, v58')
    for i in range(25, 56):
        g(f'v_sub_f32 v58, v{i}, v56\nv_fma_f32 v59, v58, v58, v59')
    allred_row16(g, 'v_add_f32', 'v59', 'v57')
    allred_x16(g, 'v_add_f32', 'v59', 'v57')
    g('v_mul_f32 v59, 0x3a800000, v59')
    bf16r(g, 'v56')
    bf16r(g, 'v59')
    g(f'v_add_f32 v59, {EPS}, v59')
    bf16r(g, 'v59')
    g('''v_sqrt_f32 v60, v59
    s_nop 0
    v_rcp_f32 v61, v60
    v_fma_f32 v62, -v60, v60, v59
    v_mul_f32 v61, 0.5, v61
    v_fma_f32 v60, v62, v61, v60''')
    bf16r(g, 'v60')
    g('v_rcp_f32 v61, v60')
    for i in range(16):
        a, b = f'v{24+2*i}', f'v{25+2*i}'
        g(f'v_sub_f32 {a}, {a}, v56\nv_sub_f32 {b}, {b}, v56')
        bf16r_pair(g, a, b, 'v62')
        for r in (a, b):
            g(f'''v_mul_f32 v62, {r}, v61
            v_fma_f32 v63, -v62, v60, {r}
            v_fma_f32 {r}, v63, v61, v62''')
        g(f'v_cvt_pk_bf16_f32 v{8+i}, {a}, {b}')
    g(f'''ds_write_b128 v1, v[8:11] offset:{L_XN}
    ds_write_b128 v1, v[12:15] offset:{L_XN+16}
    ds_write_b128 v1, v[16:19] offset:{L_XN+32}
    ds_write_b128 v1, v[20:23] offset:{L_XN+48}''')
    lds_signal(g, C_X)
    ts(g, 1)
    read_nonce(g)
    q_gather(g, args, 1)
    lds_wait(g, C_Q, 2)
    ts(g, 2)
    def ml_block():
        ts(g, 3)
        lds_wait(g, C_ST, 4)
        ts(g, 4)
        g(f'''v_and_b32 v1, 7, v0
        v_lshlrev_b32 v1, 2, v1''')
        for w in range(4):
            g(f'ds_read_b32 v{8+w}, v1 offset:{L_ST + 64*w}\nds_read_b32 v{16+w}, v1 offset:{L_ST + 64*w + 32}')
        g('s_waitcnt lgkmcnt(0)')
        g('v_max3_f32 v24, v8, v9, v10\nv_max_f32 v24, v24, v11')
        g('v_mov_b32 v25, 0')
        for w in range(4):
            g(f'''v_sub_f32 v26, v{8+w}, v24
            v_mul_f32 v26, s60, v26
            v_exp_f32 v26, v26
            s_nop 0
            v_fma_f32 v25, v26, v{16+w}, v25''')
        if args.noml:
            g(f'''v_and_b32 v2, 7, v0
            v_lshlrev_b32 v2, 2, v2
            v_mov_b32 v26, 1.0
            s_mov_b64 exec, 0xff
            ds_write_b32 v2, v24 offset:{L_ML}
            ds_write_b32 v2, v26 offset:{L_ML+32}
            s_mov_b64 exec, -1
            s_lshl_b32 s46, s86, 6
            s_add_u32 s46, s46, {W_ML}
            v_cndmask_b32 v24, v24, v25, s[84:85]
            v_lshlrev_b32 v1, 2, v0
            s_mov_b64 exec, 0xffff
            buffer_store_dword v24, v1, s[36:39], s46 offen sc1
            s_mov_b64 exec, -1''')
            ts(g, 5)
        else:
            g(f'''s_lshl_b32 s46, s86, 6
            s_add_u32 s46, s46, {W_ML}
            v_cndmask_b32 v24, v24, v25, s[84:85]
            v_lshlrev_b32 v1, 2, v0
            s_mov_b64 exec, 0xffff
            buffer_store_dword v24, v1, s[36:39], s46 offen sc1
            s_mov_b64 exec, -1
            s_lshr_b32 s48, s86, 5
            s_add_u32 s48, s48, 8''')
            g('s_andn2_b32 s49, s86, 31\ns_add_u32 s49, s49, 256')
            arrive(g, 's48', 32, sctr='s49', ack=False)
            flag_wait(g, 's48', 8)
            g(f'''s_andn2_b32 s44, s86, 31
            s_lshl_b32 s44, s44, 6
            s_add_u32 s44, s44, {W_ML}
            v_and_b32 v1, 31, v0
            v_lshlrev_b32 v1, 6, v1
            v_lshrrev_b32 v2, 5, v0
            v_lshl_add_u32 v1, v2, 4, v1''')
            def issue_ml():
                g('buffer_load_dwordx4 v[8:11], v1, s[36:39], s44 offen sc1')
                g('buffer_load_dwordx4 v[12:15], v1, s[36:39], s44 offen offset:32 sc1')
            poll_loop(g, issue_ml, range(8, 16), sleep=8)
            ts(g, 5)
            for r in range(4):
                g(f'v_mov_b32 v{16+r}, v{8+r}')
                allred_row16(g, 'v_max_f32', f'v{16+r}', 'v24')
                allred_x16(g, 'v_max_f32', f'v{16+r}', 'v24')
                g(f'''v_sub_f32 v24, v{8+r}, v{16+r}
                v_mul_f32 v24, s60, v24
                v_exp_f32 v24, v24
                s_nop 0
                v_mul_f32 v{12+r}, v{12+r}, v24''')
                allred_row16(g, 'v_add_f32', f'v{12+r}', 'v24')
                allred_x16(g, 'v_add_f32', f'v{12+r}', 'v24')
                g('v_mov_b32 v26, 1.0')
                precise_div(g, f'v{20+r}', 'v26', f'v{12+r}', 'v24', 'v25')
            g(f'''v_lshrrev_b32 v2, 5, v0
            v_lshlrev_b32 v2, 4, v2
            s_mov_b32 exec_lo, 1
            s_mov_b32 exec_hi, 1
            ds_write_b128 v2, v[16:19] offset:{L_ML}
            ds_write_b128 v2, v[20:23] offset:{L_ML+32}
            s_mov_b64 exec, -1''')
        lds_signal(g, C_ML)
    def h_block():
        g('s_cmp_lt_u32 s89, 32\ns_cbranch_scc1 L_A3_OG')
        g(f'''s_sub_u32 s44, s89, 32
        s_lshr_b32 s44, s44, 3
        s_lshl_b32 s44, s44, 14
        s_add_u32 s44, s44, {W_GU}
        s_lshr_b32 s45, s44, 1
        s_add_u32 s45, s45, {W_B}
        v_lshlrev_b32 v1, 4, v0
        v_lshlrev_b32 v2, 3, v0''')
        g('s_sub_u32 s48, s89, 32\ns_lshr_b32 s48, s48, 3\ns_add_u32 s48, s48, 16')
        flag_wait(g, 's48', 32)
        def issue_h():
            for ks in range(8):
                g(f's_add_u32 s46, s44, {ks*2048}')
                g(f'buffer_load_dwordx4 v[{72+4*ks}:{75+4*ks}], v1, s[36:39], s46 offen sc1')
                g(f'buffer_load_dwordx4 v[{104+4*ks}:{107+4*ks}], v1, s[36:39], s46 offen offset:1024 sc1')
        tags = [75 + 4 * k for k in range(16)]
        if 'h2' not in args.skip:
            tpoll_loop(g, issue_h, tags, sleep=16, plain=True)
        for k in range(16):
            unpack_d(g, 72 + 4 * k)
        for r in range(4):
            ga = (lambda ks: 72 + 4 * ks + r)
            ua = (lambda ks: 104 + 4 * ks + r)
            g(f'v_add_f32 v{8+r}, v{ga(0)}, v{ga(1)}\nv_add_f32 v{12+r}, v{ua(0)}, v{ua(1)}')
            for ks in range(2, 8):
                g(f'v_add_f32 v{8+r}, v{8+r}, v{ga(ks)}\nv_add_f32 v{12+r}, v{12+r}, v{ua(ks)}')
        bf16r_pair(g, 'v8', 'v9', 'v16'); bf16r_pair(g, 'v10', 'v11', 'v16')
        bf16r_pair(g, 'v12', 'v13', 'v16'); bf16r_pair(g, 'v14', 'v15', 'v16')
        for r in range(4):
            silu(g, f'v{8+r}', 'v16', 'v17', 'v18')
        bf16r_pair(g, 'v8', 'v9', 'v16'); bf16r_pair(g, 'v10', 'v11', 'v16')
        for r in range(4):
            g(f'v_mul_f32 v{8+r}, v{8+r}, v{12+r}')
        g('v_cvt_pk_bf16_f32 v8, v8, v9\nv_cvt_pk_bf16_f32 v10, v10, v11')
        g(f'''v_lshrrev_b32 v2, 5, v0
        v_lshlrev_b32 v2, 8, v2
        v_bfe_u32 v3, v0, 3, 2
        v_lshlrev_b32 v3, 6, v3
        v_and_b32 v4, 7, v0
        v_lshlrev_b32 v4, 1, v4
        v_add3_u32 v5, v2, v3, v4
        ds_write_b16 v5, v8 offset:{L_H}
        ds_write_b16_d16_hi v5, v8 offset:{L_H+16}
        ds_write_b16 v5, v10 offset:{L_H+32}
        ds_write_b16_d16_hi v5, v10 offset:{L_H+48}''')
        lds_signal(g, C_H)
        g.label('L_A3_OG')
    if args.flash:
        h_block()
    else:
        ml_block(); h_block()
    g(f'''s_lshr_b32 s44, s88, 3
    s_lshl_b32 s44, s44, 15
    s_bfe_u32 s45, s88, 0x10002
    s_lshl_b32 s45, s45, 8
    s_add_u32 s44, s44, s45
    s_add_u32 s44, s44, {W_O}
    v_bfe_u32 v2, v0, 4, 1
    v_lshlrev_b32 v2, 14, v2
    v_lshrrev_b32 v3, 5, v0
    v_lshl_add_u32 v2, v3, 13, v2
    v_and_b32 v1, 15, v0
    v_lshl_add_u32 v1, v1, 4, v2''')
    def issue_o():
        for sp in range(16):
            if sp % 8 == 0:
                g(f's_add_u32 s46, s44, {sp*512}')
            g(f'buffer_load_dwordx4 v[{40+4*sp}:{43+4*sp}], v1, s[36:39], s46 offen offset:{(sp%8)*512} sc1')
    assert args.noml
    g(f'''s_lshr_b32 s48, s88, 6
    s_lshl_b32 s48, s48, 12
    s_bfe_u32 s49, s88, 0x30003
    s_lshl_b32 s49, s49, 2
    s_add_u32 s48, s48, s49
    s_add_u32 s48, s48, {W_ML}
    v_lshlrev_b32 v2, 6, v0''')
    def issue_w():
        g('buffer_load_dword v8, v2, s[36:39], s48 offen sc1')
        g('buffer_load_dword v9, v2, s[36:39], s48 offen offset:32 sc1')
    def weights():
        g('v_mov_b32 v10, v8')
        allred_row16(g, 'v_max_f32', 'v10', 'v11')
        allred_x16(g, 'v_max_f32', 'v10', 'v11')
        g('''v_sub_f32 v8, v8, v10
        v_mul_f32 v8, s60, v8
        v_exp_f32 v8, v8
        s_nop 0
        v_mul_f32 v9, v9, v8''')
        allred_row16(g, 'v_add_f32', 'v9', 'v11')
        allred_x16(g, 'v_add_f32', 'v9', 'v11')
        precise_div(g, 'v10', 'v8', 'v9', 'v11', 'v12')
        g(f'''v_lshlrev_b32 v2, 2, v0
        ds_write_b32 v2, v10 offset:{L_W}
        v_bfe_u32 v2, v0, 4, 1
        v_lshlrev_b32 v2, 7, v2
        v_lshrrev_b32 v3, 5, v0
        v_lshl_add_u32 v2, v3, 6, v2
        s_waitcnt lgkmcnt(0)
        ds_read_b128 v[24:27], v2 offset:{L_W}
        ds_read_b128 v[28:31], v2 offset:{L_W+16}
        ds_read_b128 v[32:35], v2 offset:{L_W+32}
        ds_read_b128 v[36:39], v2 offset:{L_W+48}''')
    if args.flash:
        lds_wait(g, C_O, 4)
        def issue_both():
            issue_w(); issue_o()
        if args.omode == 0:
            poll_loop(g, issue_both, [8, 9] + list(range(40, 104)), sleep=args.osleep)
            weights()
        elif args.omode == 1:
            poll_loop(g, issue_w, [8, 9], sleep=args.osleep)
            weights()
            poll_loop(g, issue_o, range(40, 104), sleep=args.osleep)
        else:
            g('s_lshr_b32 s49, s88, 6\ns_add_u32 s49, s49, 8')
            flag_wait(g, 's49', 2, stmp='s53')
            poll_loop(g, issue_both, [8, 9] + list(range(40, 104)), sleep=4)
            weights()
    else:
        lds_wait(g, C_V, 1)
        poll_loop(g, issue_w, [8, 9], sleep=8)
        weights()
        lds_wait(g, C_O, 4)
    if 'o2' not in args.skip and not args.flash:
        poll_loop(g, issue_o, range(40, 104), sleep=args.osleep)
    g('s_waitcnt lgkmcnt(0)')
    ts(g, 6)
    for r in range(4):
        if args.noml:
            g(f'v_mul_f32 v{8+r}, v{40+r}, v24\nv_mul_f32 v{12+r}, v{44+r}, v25')
            for sp in range(2, 16, 2):
                g(f'v_fma_f32 v{8+r}, v{40+4*sp+r}, v{24+sp}, v{8+r}\nv_fma_f32 v{12+r}, v{44+4*sp+r}, v{25+sp}, v{12+r}')
        else:
            g(f'v_add_f32 v{8+r}, v{40+r}, v{44+r}\nv_add_f32 v{12+r}, v{48+r}, v{52+r}')
            for sp in range(4, 16, 2):
                g(f'v_add_f32 v{8+r}, v{8+r}, v{40+4*sp+r}\nv_add_f32 v{12+r}, v{12+r}, v{44+4*sp+r}')
        g(f'v_add_f32 v{8+r}, v{8+r}, v{12+r}')
    for r in range(4):
        allred_x32(g, 'v_add_f32', f'v{8+r}', 'v12')
    g('v_cvt_pk_bf16_f32 v8, v8, v9\nv_cvt_pk_bf16_f32 v10, v10, v11')
    g(f'''v_bfe_u32 v2, v0, 4, 1
    v_lshlrev_b32 v2, 7, v2
    v_bfe_u32 v3, v0, 3, 1
    v_lshlrev_b32 v3, 6, v3
    v_and_b32 v4, 7, v0
    v_lshlrev_b32 v4, 1, v4
    v_add3_u32 v5, v2, v3, v4
    s_mov_b32 exec_hi, 0
    ds_write_b16 v5, v8 offset:{L_OB}
    ds_write_b16_d16_hi v5, v8 offset:{L_OB+16}
    ds_write_b16 v5, v10 offset:{L_OB+32}
    ds_write_b16_d16_hi v5, v10 offset:{L_OB+48}
    s_mov_b64 exec, -1''')
    lds_signal(g, C_OG)
    ts(g, 7)
    ts_dump(g, 8)
    g('s_endpgm')

    g.label('L_A0')
    vm = VM(g)
    srd(g, 40, 24, 256)
    g('''s_memrealtime s[54:55]
    v_mov_b32 v8, -1
    v_mov_b32 v9, -1
    v_mov_b32 v10, -1
    v_mov_b32 v11, -1
    v_lshlrev_b32 v3, 4, v0
    v_lshrrev_b32 v4, 5, v0
    v_and_b32 v5, 31, v0
    v_lshlrev_b32 v5, 4, v5
    v_mov_b32 v13, 0
    v_mov_b32 v14, 0
    s_waitcnt lgkmcnt(0)
    s_or_b32 s54, s54, 1
    v_mov_b32 v12, s54
    s_mov_b64 exec, 1
    buffer_atomic_cmpswap v[12:13], v14, s[40:43], 0 offen sc0
    s_mov_b64 exec, -1''')
    vm.issue('nonce')
    def clr(voff, off=0):
        g(f'buffer_store_dwordx4 v[8:11], {voff}, s[36:39], s46 offen offset:{off} sc1')
        vm.issue('clr')
    g(f'''s_sub_u32 s48, s89, 32
    s_and_b32 s48, s48, 255
    s_and_b32 s46, s48, 7
    s_lshl_b32 s46, s46, 15
    s_lshr_b32 s48, s48, 3
    s_lshl_b32 s48, s48, 9
    s_add_u32 s46, s46, s48
    s_add_u32 s56, s46, {W_F}
    s_mov_b32 s46, s56
    v_lshl_add_u32 v6, v4, 14, v5''')
    clr('v6')
    g(f'''s_and_b32 s46, s88, 3
    s_lshl_b32 s46, s46, 17
    s_lshr_b32 s48, s88, 2
    s_lshl_b32 s48, s48, 9
    s_add_u32 s46, s46, s48
    s_add_u32 s46, s46, {W_S}
    v_lshl_add_u32 v6, v4, 15, v5''')
    clr('v6')
    g('s_add_u32 s46, s46, 65536')
    clr('v6')
    g(f'''s_lshr_b32 s46, s86, 6
    s_lshl_b32 s46, s46, 18
    s_bfe_u32 s48, s86, 0x10005
    s_lshl_b32 s48, s48, 14
    s_add_u32 s46, s46, s48
    s_and_b32 s48, s86, 31
    s_lshl_b32 s48, s48, 9
    s_add_u32 s46, s46, s48
    s_add_u32 s46, s46, {W_O}
    v_lshl_add_u32 v6, v4, 15, v5''')
    for i in range(4):
        clr('v6')
        if i < 3:
            g('s_add_u32 s46, s46, 65536')
    g(f'''s_lshl_b32 s46, s86, 6
    s_add_u32 s46, s46, {W_ML}
    s_mov_b64 exec, 15''')
    clr('v3')
    g(f'''s_mov_b64 exec, 1
    s_lshl_b32 s46, s2, 7
    s_add_u32 s46, s46, {W_CT}
    buffer_store_dword v14, v14, s[36:39], s46 offen sc1
    s_lshl_b32 s46, s86, 7
    s_add_u32 s46, s46, {W_CT + 256*128}
    buffer_store_dword v14, v14, s[36:39], s46 offen sc1''')
    vm.issue('clr'); vm.issue('clr')
    g('s_mov_b64 exec, -1')
    g(f'''s_lshr_b32 s47, s87, 6
    s_lshl_b32 s47, s47, 16
    s_and_b32 s48, s87, 63
    s_lshl_b32 s48, s48, 9
    s_add_u32 s47, s47, s48
    s_add_u32 s47, s47, {W_Q}''')
    srd(g, 28, 10, 8 * 1024 * 1024)
    g('''s_and_b32 s44, s87, 7
    s_lshl_b32 s45, s44, 20
    s_lshr_b32 s46, s87, 3
    s_lshl_b32 s46, s46, 8
    s_add_u32 s45, s45, s46
    v_lshrrev_b32 v4, 4, v0
    v_and_b32 v5, 15, v0
    v_lshlrev_b32 v1, 16, v4
    v_lshl_add_u32 v1, v5, 4, v1''')
    for kk in range(4):
        for i in range(8):
            r = 40 + 32 * kk + 4 * i
            g(f's_add_u32 s46, s45, {(32 * kk + i) * 8192}')
            g(f'buffer_load_dwordx4 v[{r}:{r+3}], v1, s[28:31], s46 offen nt')
            vm.issue(f'wq{kk}')
    g(f'''v_and_b32 v2, 1, v0
    v_lshlrev_b32 v3, 11, v2
    v_lshl_add_u32 v3, v4, 4, v3
    s_lshl_b32 s46, s44, 8
    v_add_u32 v3, s46, v3
    v_lshlrev_b32 v2, 15, v2
    v_lshl_add_u32 v2, v4, 7, v2
    v_bfe_u32 v6, v0, 1, 3
    v_lshl_add_u32 v2, v6, 4, v2
    s_barrier''')
    lds_wait(g, C_X, 1)
    ts(g, 1)
    vm.wait('clr')
    g(f'''v_readfirstlane_b32 s55, v12
    s_cmp_eq_u32 s55, 0
    s_cselect_b32 s55, s54, s55
    v_mov_b32 v6, {C_N}
    v_mov_b32 v7, s55
    s_mov_b64 exec, 1
    ds_write_b32 v6, v7
    s_mov_b64 exec, -1''')
    for half in range(2):
        for kk in range(4):
            b = 8 + 4 * (kk & 1)
            g(f'ds_read_b128 v[{b}:{b+3}], v3 offset:{64*kk}')
            if half == 0:
                vm.wait(f'wq{kk}')
            base = 40 + 32 * kk
            for tt in range(4):
                t = 4 * half + tt
                d = t >> 1
                sel = 's58' if (t & 1) == 0 else 's59'
                o = 16 + 4 * (tt & 1)
                for p in range(4):
                    g(f'v_perm_b32 v{o+p}, v{base + 4*(2*p+1) + d}, v{base + 4*(2*p) + d}, {sel}')
                acc = 24 + 4 * tt
                c = '0' if kk == 0 else f'v[{acc}:{acc+3}]'
                g('s_waitcnt lgkmcnt(0)\ns_nop 0' if tt == 0 else 's_nop 1')
                g(f'v_mfma_f32_16x16x32_bf16 v[{acc}:{acc+3}], v[{o}:{o+3}], v[{b}:{b+3}], {c}')
        g('s_nop 7\ns_nop 1')
        r = select8(g, [24 + 4 * tt for tt in range(4)])
        g('s_mov_b64 exec, s[84:85]' if half == 1 else 's_not_b64 exec, s[84:85]')
        (tagged_store if args.qpack else tagged_store_ab)(g, vm, r, 's47', 'v2', x=16)
        g('s_mov_b64 exec, -1\ns_nop 1')
    srd(g, 32, 20, 3584 * 1024 * 2)
    g('s_lshr_b32 s48, s87, 6\ns_add_u32 s48, s48, 1')
    arrive(g, 's48', 64, ack=bool(args.qack))
    ts(g, 2)
    q_gather(g, args, 0, 3)
    vm.reset()
    ts(g, 4)
    g('s_cmp_lt_u32 s89, 32\ns_cbranch_scc1 L_A0_FIN')
    g('''s_sub_u32 s48, s89, 32
    s_lshr_b32 s49, s48, 3
    s_lshl_b32 s49, s49, 18
    s_and_b32 s48, s48, 7
    s_lshl_b32 s48, s48, 8
    s_add_u32 s48, s48, s49
    v_lshlrev_b32 v1, 14, v4
    v_lshl_add_u32 v1, v5, 4, v1''')
    if args.late:
        lds_wait(g, C_V, args.late)
    elif args.kfirst:
        lds_wait(g, C_K, 4)
    for kk in range(3):
        if kk >= args.ainfl and not args.late:
            vm.wait(f'wd{kk-args.ainfl}')
        tile_loads(g, vm, 32, 's48', 2048, kk, kk, f'wd{kk}')
    g(f'''v_and_b32 v3, 1, v0
    v_lshlrev_b32 v3, 8, v3
    v_lshl_add_u32 v3, v4, 4, v3
    v_add_u32 v3, {L_H}, v3''')
    gemv_tile(g, vm, 32, 's48', 2048, 'v3', True, 'wd', wait_fn=lambda: lds_wait(g, C_H, 1))
    g('v_and_b32 v2, 1, v0\nv_lshlrev_b32 v2, 14, v2\nv_lshl_add_u32 v2, v4, 7, v2\nv_bfe_u32 v6, v0, 1, 3\nv_lshl_add_u32 v2, v6, 4, v2')
    publish_acc(g, vm, 's56', tagged=False)
    g.label('L_A0_FIN')
    ts(g, 5)
    srd(g, 28, 4, 4096)
    srd(g, 32, 22, 4096)
    g(f'''s_lshr_b32 s44, s2, 5
    s_bfe_u32 s45, s2, 0x10004
    s_and_b32 s46, s2, 15
    ; S gather: W_S + ((c*2+b)*64 + hh*2 + half)*512 + o8*32 + q2*16
    s_lshr_b32 s48, s2, 4
    s_lshl_b32 s49, s48, 14
    s_lshl_b32 s48, s48, 15
    s_lshl_b32 s53, s46, 5
    s_add_u32 s48, s48, s53
    s_add_u32 s49, s49, s53
    s_add_u32 s48, s48, {W_S}
    s_add_u32 s49, s49, {W_F}
    v_lshrrev_b32 v2, 1, v0
    v_and_b32 v3, 1, v0
    v_lshlrev_b32 v1, 10, v2
    v_lshl_add_u32 v1, v3, 4, v1
    v_min_u32 v2, 27, v2
    v_lshlrev_b32 v2, 9, v2
    v_lshl_add_u32 v2, v3, 4, v2
    ; x / out element offset: (b*1024 + 128c + 32g + t)*2 , g=o8>>2, t=2*(o8&3)+q2 ; +16 bytes per r
    s_lshl_b32 s52, s45, 10
    s_lshl_b32 s53, s44, 7
    s_add_u32 s52, s52, s53
    s_lshr_b32 s53, s46, 2
    s_lshl_b32 s53, s53, 5
    s_add_u32 s52, s52, s53
    s_and_b32 s53, s46, 3
    s_lshl_b32 s53, s53, 1
    s_add_u32 s52, s52, s53
    v_add_u32 v4, s52, v3
    v_lshlrev_b32 v4, 1, v4
    buffer_load_ushort v24, v4, s[28:31], 0 offen
    buffer_load_ushort v25, v4, s[28:31], 0 offen offset:16
    buffer_load_ushort v26, v4, s[28:31], 0 offen offset:32
    buffer_load_ushort v27, v4, s[28:31], 0 offen offset:48''')
    g(f'v_lshlrev_b32 v3, 7, v0\ns_mov_b32 s46, {W_FL + 128}\ns_mov_b64 exec, 15')
    def issue_f4b():
        g('buffer_load_dword v9, v3, s[36:39], s46 offen sc1')
    tpoll_loop(g, issue_f4b, [9], sleep=16)
    g('s_mov_b64 exec, -1')
    lds_wait(g, C_S, 2)
    def issue_fin():
        g('buffer_load_dwordx4 v[8:11], v1, s[36:39], s48 offen sc1')
        g('buffer_load_dwordx4 v[12:15], v1, s[36:39], s48 offen offset:512 sc1')
        g('buffer_load_dwordx4 v[16:19], v2, s[36:39], s49 offen sc1')
    poll_loop(g, issue_fin, range(8, 20), sleep=args.finsleep)
    ts(g, 6)
    g('v_cmp_gt_u32 vcc, 56, v0\ns_nop 1')
    for r in range(4):
        g(f'v_add_f32 v{8+r}, v{8+r}, v{12+r}')
        g(f'v_cndmask_b32 v{16+r}, 0, v{16+r}, vcc')
    R = list(range(8, 12)) + list(range(16, 20))
    A = {r: r for r in R}
    Bk = {r: 40 + i for i, r in enumerate(R)}
    g('s_nop 1')
    for rr in (2, 4, 8):
        for r in R:
            g(f'v_add_f32_dpp v{Bk[r]}, v{A[r]}, v{A[r]} row_ror:{rr} row_mask:0xf bank_mask:0xf')
        A, Bk = Bk, A
    for swp in ('v_permlane16_swap_b32', 'v_permlane32_swap_b32'):
        for r in R:
            g(f'v_mov_b32 v{Bk[r]}, v{A[r]}')
        for r in R:
            g(f'{swp} v{A[r]}, v{Bk[r]}')
        for r in R:
            g(f'v_add_f32 v{A[r]}, v{A[r]}, v{Bk[r]}')
    for r in R:
        if A[r] != r:
            g(f'v_mov_b32 v{r}, v{A[r]}')
    bf16r_pair(g, 'v8', 'v9', 'v20'); bf16r_pair(g, 'v10', 'v11', 'v20')
    bf16r_pair(g, 'v16', 'v17', 'v20'); bf16r_pair(g, 'v18', 'v19', 'v20')
    for r in range(4):
        silu(g, f'v{16+r}', 'v20', 'v21', 'v22')
    bf16r_pair(g, 'v16', 'v17', 'v20'); bf16r_pair(g, 'v18', 'v19', 'v20')
    for r in range(4):
        g(f'v_mul_f32 v{8+r}, v{8+r}, v{16+r}')
    bf16r_pair(g, 'v8', 'v9', 'v20'); bf16r_pair(g, 'v10', 'v11', 'v20')
    for r in range(4):
        g(f'v_lshlrev_b32 v{24+r}, 16, v{24+r}\nv_add_f32 v{8+r}, v{8+r}, v{24+r}\nv_cvt_pk_bf16_f32 v{8+r}, v{8+r}, v{8+r}')
    g('''s_mov_b64 exec, 3
    buffer_store_short v8, v4, s[32:35], 0 offen
    buffer_store_short v9, v4, s[32:35], 0 offen offset:16
    buffer_store_short v10, v4, s[32:35], 0 offen offset:32
    buffer_store_short v11, v4, s[32:35], 0 offen offset:48''')
    ts(g, 7)
    ts_dump(g, 8)
    g('s_endpgm')

    g.label('L_A12')
    vm = VM(g)
    g('''s_cmp_eq_u32 s3, 1
    s_cselect_b32 s28, s16, s18
    s_cselect_b32 s29, s17, s19
    s_mov_b32 s30, 7340032
    s_mov_b32 s31, 0x20000
    v_lshrrev_b32 v4, 4, v0
    v_and_b32 v5, 15, v0
    s_and_b32 s44, s2, 7
    s_mul_i32 s45, s44, 917504
    s_lshr_b32 s46, s2, 3
    s_lshl_b32 s46, s46, 8
    s_add_u32 s45, s45, s46
    v_mul_u32_u24 v1, 57344, v4
    v_lshl_add_u32 v1, v5, 4, v1
    v_and_b32 v2, 1, v0
    v_lshlrev_b32 v3, 11, v2
    v_lshl_add_u32 v3, v4, 4, v3
    s_lshl_b32 s46, s44, 8
    v_add_u32 v3, s46, v3
    v_lshlrev_b32 v2, 9, v2
    v_lshl_add_u32 v2, v4, 7, v2
    v_bfe_u32 v6, v0, 1, 3
    v_lshl_add_u32 v2, v6, 4, v2
    s_cmp_ge_u32 s2, 224
    s_cbranch_scc1 L_A12_SKIP''')
    g('s_barrier')
    if args.kfirst:
        lds_wait(g, C_K, 4)
    AI = args.ainfl
    for kk in range(AI):
        tile_loads(g, vm, 28, 's45', 7168, kk, kk, f'gu{kk}')
    lds_wait(g, C_X, 1)
    for kk in range(4):
        g(f'ds_read_b128 v[{A_B+4*kk}:{A_B+4*kk+3}], v3 offset:{64*kk}')
    g('s_waitcnt lgkmcnt(0)')
    for kk in range(4):
        vm.wait(f'gu{kk}')
        if kk + AI < 4:
            tile_loads(g, vm, 28, 's45', 7168, kk + AI, (kk + AI) % 3, f'gu{kk+AI}')
        tile_block_mfma(g, kk % 3, kk, kk == 0, A_B + 4 * kk)
    read_nonce(g)
    g(f'v_lshlrev_b32 v3, 7, v0\ns_mov_b32 s46, {W_FL + 128}\ns_mov_b64 exec, 15')
    def issue_f4():
        g('buffer_load_dword v9, v3, s[36:39], s46 offen sc1')
    tpoll_loop(g, issue_f4, [9], sleep=16)
    g('s_mov_b64 exec, -1')
    g(f's_lshl_b32 s46, s3, 10\ns_lshl_b32 s47, s2, 11\ns_add_u32 s46, s46, s47\ns_add_u32 s46, s46, {W_GU - 1024}')
    publish_acc(g, vm, 's46')
    g('s_lshr_b32 s48, s2, 3\ns_add_u32 s48, s48, 16')
    arrive(g, 's48', 16, sctr='s48', ack=False)
    g('s_branch L_A12_WO')
    g.label('L_A12_SKIP')
    g('s_barrier')
    if args.kfirst:
        lds_wait(g, C_K, 4)
    read_nonce(g)
    g.label('L_A12_WO')
    ts(g, 1)
    vm.reset()
    srd(g, 28, 12, 8 * 1024 * 1024)
    g('''s_and_b32 s44, s88, 3
    s_lshl_b32 s44, s44, 1
    s_add_u32 s44, s44, s3
    s_sub_u32 s44, s44, 1
    s_lshr_b32 s45, s88, 2
    s_lshl_b32 s45, s45, 17
    s_lshl_b32 s48, s44, 8
    s_add_u32 s45, s45, s48
    v_lshlrev_b32 v1, 14, v4
    v_lshl_add_u32 v1, v5, 4, v1''')
    if args.late:
        lds_wait(g, C_V, args.late)
    for kk in range(2):
        if kk == 1 and args.ainfl == 1:
            vm.wait('wo0')
        tile_loads(g, vm, 28, 's45', 2048, kk, kk, f'wo{kk}', stmp='s48')
    outs = [136, 8]
    for kk in range(2):
        vm.wait(f'wo{kk}')
        base = A_POOL + 32 * kk
        for t in range(8):
            d = t >> 1
            sel = 's58' if (t & 1) == 0 else 's59'
            for p in range(4):
                g(f'v_perm_b32 v{outs[kk] + 4*t + p}, v{base + 4*(2*p+1) + d}, v{base + 4*(2*p) + d}, {sel}')
    g(f'''v_and_b32 v3, 1, v0
    v_lshlrev_b32 v3, 7, v3
    v_lshl_add_u32 v3, v4, 4, v3
    v_add_u32 v3, {L_OB}, v3
    s_lshl_b32 s46, s44, 16
    s_lshr_b32 s48, s88, 2
    s_lshl_b32 s48, s48, 9
    s_add_u32 s46, s46, s48
    s_add_u32 s46, s46, {W_S}
    v_and_b32 v2, 1, v0
    v_lshlrev_b32 v2, 15, v2
    v_lshl_add_u32 v2, v4, 7, v2
    v_bfe_u32 v6, v0, 1, 3
    v_lshl_add_u32 v2, v6, 4, v2''')
    ts(g, 2)
    lds_wait(g, C_OG, 1)
    ts(g, 3)
    g('''ds_read_b128 v[72:75], v3
    ds_read_b128 v[76:79], v3 offset:64
    s_waitcnt lgkmcnt(0)''')
    for kk in range(2):
        for t in range(8):
            acc = A_ACC + 4 * t
            o = outs[kk] + 4 * t
            c = '0' if kk == 0 else f'v[{acc}:{acc+3}]'
            g(f'v_mfma_f32_16x16x32_bf16 v[{acc}:{acc+3}], v[{o}:{o+3}], v[{72+4*kk}:{75+4*kk}], {c}')
    publish_acc(g, vm, 's46', tagged=False)
    lds_signal(g, C_S, add=True)
    ts(g, 4)
    ts_dump(g, 5)
    g('s_endpgm')

    if args.flash == 3:
        gen_steal2(g, args)
    elif args.flash == 2:
        gen_steal(g, args)
    elif args.flash:
        gen_flash(g, args)
    else:
        g.label('L_BULK')
        vm = VM(g)
        BQ, BS, BO, BP = 8, 24, 56, 88
        NT, NS, NL = 16, 10, 6
        TS = 16384 if args.inter else 4096
        srd(g, 28, 6, 64 * 1024 * 1024)
        srd(g, 32, 8, 64 * 1024 * 1024)
        g(f'''s_sub_u32 s44, s3, 4
        s_lshr_b32 s45, s86, 6
        s_bfe_u32 s46, s86, 0x10005
        s_lshl_b32 s46, s46, 2
        s_add_u32 s45, s45, s46
        s_lshl_b32 s45, s45, 23
        s_and_b32 s46, s86, 31
        s_lshl_b32 s46, s46, 18
        s_add_u32 s45, s45, s46
        s_lshl_b32 s46, s44, {12 if args.inter else 16}
        s_add_u32 s45, s45, s46
        v_and_b32 v4, 15, v0
        v_lshrrev_b32 v5, 4, v0
        v_lshlrev_b32 v2, 4, v0
        s_mul_i32 s48, s44, 24576
        s_add_u32 s48, s48, {L_V}
        v_xor_b32 v6, v4, v5
        v_lshlrev_b32 v7, 8, v5
        v_lshl_add_u32 v1, v6, 4, v7
        v_xor_b32 v249, 64, v1
        v_add_u32 v249, 1024, v249
        v_xor_b32 v250, 128, v1
        v_add_u32 v250, 2048, v250
        v_xor_b32 v251, 192, v1
        v_add_u32 v251, 3072, v251
        v_and_b32 v6, 3, v4
        v_lshlrev_b32 v6, 2, v6
        v_lshrrev_b32 v7, 2, v4
        v_add_u32 v6, v6, v7
        v_xor_b32 v7, v6, v5
        v_lshlrev_b32 v6, 8, v6
        v_lshl_add_u32 v252, v7, 4, v6
        v_xor_b32 v253, 64, v252
        v_xor_b32 v254, 128, v252
        v_xor_b32 v255, 192, v252
        v_add_u32 v252, s48, v252
        v_add_u32 v253, s48, v253
        v_add_u32 v254, s48, v254
        v_add_u32 v255, s48, v255''')
        g('s_barrier')
        INFL = args.infl
        order = []
        KV_ = ['v1', 'v249', 'v250', 'v251']
        def ldsload(isK, T, k):
            for j in range(4):
                if isK:
                    g(f's_add_u32 s49, s48, {4096*k + 1024*j}\ns_mov_b32 m0, s49\ns_add_u32 s46, s45, {TS*T}')
                    g(f'buffer_load_dwordx4 {KV_[j]}, s[28:31], s46 offen nt lds')
                else:
                    g(f's_add_u32 s49, s48, {4096*k + 1024*j}\ns_mov_b32 m0, s49\ns_add_u32 s46, s45, {TS*T + 1024*j}')
                    g('buffer_load_dwordx4 v2, s[32:35], s46 offen nt lds')
                vm.issue(f'{"K" if isK else "V"}{T}')
        def rload(isK, T, slot):
            assert not isK
            r0 = BP + 16 * slot
            g(f's_add_u32 s46, s45, {TS*T}')
            for j in range(4):
                r = r0 + 4 * j
                g(f'buffer_load_dwordx4 v[{r}:{r+3}], v2, s[32:35], s46 offen offset:{1024*j} nt')
                vm.issue(f'V{T}')
        def ldsread(k, slot):
            r0 = BP + 16 * slot
            for j in range(4):
                g(f'ds_read_b128 v[{r0+4*j}:{r0+4*j+3}], v3 offset:{4096*k + 1024*j}')
        def kread(k, slot):
            r0 = BP + 16 * slot
            for j in range(4):
                g(f'ds_read_b128 v[{r0+4*j}:{r0+4*j+3}], v{252+j} offset:{4096*k}')
        def pace(tag):
            order.append(tag)
            n = args.vinfl if (tag[0] == 'V' and args.vinfl) else INFL
            if len(order) - 1 - n >= 0:
                vm.wait(order[len(order) - 1 - n])
        vslot = lambda T: (T + 6) % NS
        def stream(isK, t0=0):
            c = 'K' if isK else 'V'
            if isK:
                order.clear()
                assert INFL <= 4
            for T in range(t0, NT):
                if isK and T == args.pre:
                    lds_wait(g, C_X, 1)
                pace(f'{c}{T}')
                if T in (4, 8, 12, 15):
                    ts(g, (7 if isK else 11) + (T // 4 if T < 15 else 4) - 0)
                if T == args.ksig and isK:
                    lds_signal(g, C_K, add=True)
                if T == args.vsig and not isK:
                    lds_signal(g, C_V, add=True)
                if isK:
                    Tc = T - INFL
                    if 0 <= Tc < NS:
                        kread(Tc % NL, Tc)
                    if T >= NL:
                        later = [t for t in range(T - NL + 1, Tc + 1) if 0 <= t < NS]
                        g(f"s_waitcnt lgkmcnt({min(8, 4 * len(later))})")
                    ldsload(True, T, T % NL)
                elif T < NS:
                    rload(False, T, vslot(T))
                elif args.vpre and T >= NT - args.vpre:
                    order.pop()
                else:
                    ldsload(False, T, T - NS)
        stream(True)
        if args.ksig >= NT:
            lds_signal(g, C_K, add=True)
        for T in range(NT - args.vpre, NT):
            pace(f'V{T}')
            ldsload(False, T, T - NS + 2)
        lds_wait(g, C_Q, 2)
        ts(g, 1)
        g(f'''v_and_b32 v3, 7, v0
        v_lshlrev_b32 v3, 8, v3
        v_lshl_add_u32 v3, v5, 4, v3''')
        for j in range(4):
            g(f'ds_read_b128 v[{BQ+4*j}:{BQ+4*j+3}], v3 offset:{L_Q + 64*j}')
        g('s_waitcnt lgkmcnt(0)')
        for T in range(NT):
            if T >= NS:
                g(f's_waitcnt lgkmcnt({min(8, 4 * (NT - 1 - T))})')
            r0 = BP + 16 * (T % NS)
            s = BS + 4 * T
            for j in range(4):
                c = '0' if j == 0 else f'v[{s}:{s+3}]'
                g(f'v_mfma_f32_16x16x32_bf16 v[{s}:{s+3}], v[{r0+4*j}:{r0+4*j+3}], v[{BQ+4*j}:{BQ+4*j+3}], {c}')
            k = T - (NS - 3)
            if 0 <= k < NL:
                vm.wait(f'K{NS+k}')
                kread((NS + k) % NL, k)
            if 6 <= T < 6 + args.vearly:
                if T == 6:
                    order.clear()
                order.append(f'V{T-6}')
                rload(False, T - 6, vslot(T - 6))
        g('s_nop 7')
        ts(g, 2)
        for i in range(2 * NT):
            a, b = f'v{BS+2*i}', f'v{BS+2*i+1}'
            if 'sc1' not in args.skip:
                bf16r_pair(g, a, b, 'v8')
            g(f'v_mul_f32 {a}, s61, {a}\nv_mul_f32 {b}, s61, {b}')
            if 'sc2' not in args.skip:
                bf16r_pair(g, a, b, 'v8')
        g(f'v_max_f32 v9, v{BS}, v{BS+1}')
        for i in range(1, 2 * NT):
            g(f'v_max3_f32 v9, v9, v{BS+2*i}, v{BS+2*i+1}')
        allred_x16(g, 'v_max_f32', 'v9', 'v10')
        allred_x32(g, 'v_max_f32', 'v9', 'v10')
        g('v_mov_b32 v11, 0\nv_mov_b32 v16, 0')
        for i in range(0, 4 * NT, 2):
            g(f'''v_sub_f32 v{BS+i}, v{BS+i}, v9
            v_sub_f32 v{BS+i+1}, v{BS+i+1}, v9
            v_mul_f32 v{BS+i}, s60, v{BS+i}
            v_mul_f32 v{BS+i+1}, s60, v{BS+i+1}
            v_exp_f32 v{BS+i}, v{BS+i}
            v_exp_f32 v{BS+i+1}, v{BS+i+1}
            s_nop 0
            v_add_f32 v11, v11, v{BS+i}
            v_add_f32 v16, v16, v{BS+i+1}''')
        g('v_mov_b32 v248, v9')
        g('v_add_f32 v11, v11, v16')
        allred_x16(g, 'v_add_f32', 'v11', 'v10')
        allred_x32(g, 'v_add_f32', 'v11', 'v10')
        g(f'''s_lshl_b32 s46, s44, 6
        v_lshlrev_b32 v3, 2, v0
        v_add_u32 v3, s46, v3
        s_mov_b64 exec, 0xff
        ds_write_b32 v3, v9 offset:{L_ST}
        ds_write_b32 v3, v11 offset:{L_ST+32}
        s_mov_b64 exec, -1''')
        lds_signal(g, C_ST, add=True)
        ts(g, 3)
        if args.latec:
            for i in range(2 * NT):
                g(f'v_cvt_pk_bf16_f32 v{BS+i}, v{BS+2*i}, v{BS+2*i+1}')
        if args.vearly == 0:
            order.clear()
        stream(False, args.vearly)
        if args.noml and args.vsig >= NT:
            lds_signal(g, C_V, add=True)
        def get_c():
            lds_wait(g, C_ML, 1)
            g(f'''v_and_b32 v3, 7, v0
            v_lshlrev_b32 v3, 2, v3
            ds_read_b32 v9, v3 offset:{L_ML}
            ds_read_b32 v10, v3 offset:{L_ML+32}
            s_waitcnt lgkmcnt(0)
            v_sub_f32 v9, v248, v9
            v_mul_f32 v9, s60, v9
            v_exp_f32 v9, v9
            s_nop 0
            v_mul_f32 v10, v10, v9''')
        if not args.latec:
            get_c()
            ts(g, 4)
            for i in range(2 * NT):
                a, b = BS + 2 * i, BS + 2 * i + 1
                g(f'''v_mul_f32 v12, v{a}, v10
                v_mul_f32 v13, v{b}, v10
                v_cvt_pk_bf16_f32 v{BS+i}, v12, v13''')
        else:
            ts(g, 4)
        g('v_lshlrev_b32 v3, 4, v0\nv_add_u32 v3, s48, v3')
        for U in range(NT // 2):
            T0, T1 = 2 * U, 2 * U + 1
            if T1 < NS:
                vm.wait(f'V{T1}')
            else:
                g(f's_waitcnt lgkmcnt({min(8, 4 * (NT - 1 - T1))})')
            ra = BP + 16 * vslot(T0 % NS)
            rb = BP + 16 * vslot(T1 % NS)
            for half in range(2):
                for tt in range(4):
                    t = 4 * half + tt
                    d = t >> 1
                    sel = 's58' if (t & 1) == 0 else 's59'
                    o = BQ + 4 * tt
                    g(f'v_perm_b32 v{o}, v{ra+4+d}, v{ra+d}, {sel}')
                    g(f'v_perm_b32 v{o+1}, v{ra+12+d}, v{ra+8+d}, {sel}')
                    g(f'v_perm_b32 v{o+2}, v{rb+4+d}, v{rb+d}, {sel}')
                    g(f'v_perm_b32 v{o+3}, v{rb+12+d}, v{rb+8+d}, {sel}')
                g('s_nop 1')
                for tt in range(4):
                    t = 4 * half + tt
                    o = BQ + 4 * tt
                    acc = BO + 4 * t
                    c = '0' if U == 0 else f'v[{acc}:{acc+3}]'
                    g(f'v_mfma_f32_16x16x32_bf16 v[{acc}:{acc+3}], v[{o}:{o+3}], v[{BS+4*U}:{BS+4*U+3}], {c}')
            k = 2 * (U - 3)
            if 0 <= k < NL:
                vm.wait(f'V{NS+k+1}')
                lk = lambda kk: kk + 2 if (NS + kk >= NT - args.vpre) else kk
                ldsread(lk(k), vslot(k)); ldsread(lk(k + 1), vslot(k + 1))
        ts(g, 5)
        if args.latec:
            get_c()
            for i in range(32):
                g(f'v_mul_f32 v{BO+i}, v{BO+i}, v10')
        g(f'''s_lshl_b32 s46, s44, 12
        v_lshlrev_b32 v3, 9, v4
        v_lshl_add_u32 v3, v5, 7, v3
        v_add_u32 v3, s46, v3
        s_nop 7
        s_mov_b32 exec_lo, 0x00ff00ff
        s_mov_b32 exec_hi, 0x00ff00ff''')
        for t in range(8):
            acc = BO + 4 * t
            g(f'ds_write_b128 v3, v[{acc}:{acc+3}] offset:{L_OP + 16*t}')
        g('s_mov_b64 exec, -1')
        lds_signal(g, C_O, add=True)
        g(f'''s_lshr_b32 s46, s86, 6
        s_lshl_b32 s46, s46, 18
        s_lshl_b32 s49, s44, 16
        s_add_u32 s46, s46, s49
        s_bfe_u32 s49, s86, 0x10005
        s_lshl_b32 s49, s49, 14
        s_add_u32 s46, s46, s49
        s_and_b32 s49, s86, 31
        s_lshl_b32 s49, s49, 9
        s_add_u32 s46, s46, s49
        s_add_u32 s46, s46, {W_O}
        v_and_b32 v2, 31, v0
        v_lshlrev_b32 v2, 4, v2
        v_lshrrev_b32 v1, 5, v0
        v_lshl_add_u32 v2, v1, 15, v2
        s_lshl_b32 s49, s44, 10
        v_lshlrev_b32 v3, 4, v0
        v_add_u32 v3, s49, v3''')
        lds_wait(g, C_O, 4)
        for w in range(4):
            g(f'ds_read_b128 v[{88+4*w}:{91+4*w}], v3 offset:{L_OP + 4096*w}')
        g('s_waitcnt lgkmcnt(0)')
        for r in range(4):
            g(f'v_add_f32 v{8+r}, v{88+r}, v{92+r}\nv_add_f32 v{12+r}, v{96+r}, v{100+r}\nv_add_f32 v{8+r}, v{8+r}, v{12+r}')
        g('buffer_store_dwordx4 v[8:11], v2, s[36:39], s46 offen sc1')
        ts(g, 6)
        ts_dump(g, 7)
        g('s_endpgm')
    g.label('L_END')
    g('s_endpgm')
    T = f'''.section .rodata,"a"
.p2align 6
.amdhsa_kernel {KN}
  .amdhsa_next_free_vgpr 256
  .amdhsa_next_free_sgpr 100
  .amdhsa_accum_offset 256
  .amdhsa_group_segment_fixed_size 0
  .amdhsa_kernarg_size 96
  .amdhsa_user_sgpr_count 2
  .amdhsa_user_sgpr_kernarg_segment_ptr 1
  .amdhsa_system_sgpr_workgroup_id_x 1
  .amdhsa_float_denorm_mode_32 3
.end_amdhsa_kernel
'''
    return '\n'.join(H) + '\n' + '\n'.join(g.L) + '\n' + T

if __name__ == '__main__':
    ap = argparse.ArgumentParser()
    ap.add_argument('--prof', action='store_true')
    ap.add_argument('--nsp', type=int, default=6)
    ap.add_argument('--nstat', type=int, default=3)
    ap.add_argument('--qline', type=int, default=0)
    ap.add_argument('--omode', type=int, default=0)
    ap.add_argument('--osleep', type=int, default=1)
    ap.add_argument('--flash', type=int, default=0)
    ap.add_argument('--qpack', type=int, default=0)
    ap.add_argument('--vpre', type=int, default=0)
    ap.add_argument('--late', type=int, default=0)
    ap.add_argument('--vsig', type=int, default=16)
    ap.add_argument('--finsleep', type=int, default=1)
    ap.add_argument('--vinfl', type=int, default=0)
    ap.add_argument('--inter', type=int, default=1)
    ap.add_argument('--noml', type=int, default=0)
    ap.add_argument('--qack', type=int, default=1)
    ap.add_argument('--latec', type=int, default=0)
    ap.add_argument('--vearly', type=int, default=4)
    ap.add_argument('--ksig', type=int, default=16)
    ap.add_argument('--ainfl', type=int, default=2)
    ap.add_argument('--skip', default='')
    ap.add_argument('--remap', type=int, default=1)
    ap.add_argument('--plain', type=int, default=1)
    ap.add_argument('--nodma', action='store_true')
    ap.add_argument('--noaux', action='store_true')
    ap.add_argument('--nolds', action='store_true')
    ap.add_argument('--kfirst', type=int, default=1)
    ap.add_argument('--nohop', action='store_true')
    ap.add_argument('--fsleep', type=int, default=16)
    ap.add_argument('--infl', type=int, default=2)
    ap.add_argument('--pre', type=int, default=0)
    ap.add_argument('-o', default='recurrent_scan__gqa_block_cached__swiglu_ffn__decode.s')
    args = ap.parse_args()
    open(args.o, 'w').write(gen(args))
```

```python
import struct, sys, argparse

def f32hex(x):
    return '0x%08x' % struct.unpack('<I', struct.pack('<f', x))[0]

KN = 'recurrent_scan__gqa_block_cached__swiglu_ffn__decode_kernel'
NWG = 256
W_Q = 0x000000
W_GU = 0x040000
W_S = 0x0C0000
W_F = 0x140000
W_O = 0x180000
W_ML = 0x280000
W_B = 0x300000
W_CT = 0x2E0000
W_FL = 0x2C0000
L_XN = 0x0000
L_Q = 0x1000
L_ST = 0x1800
L_ML = 0x1A00
L_CT = 0x1A40
C_Q, C_ST, C_ML, C_O, C_OG, C_H, C_N, C_K, C_X, C_V, C_S = [L_CT + 4 * i for i in range(11)]
L_W = 0x1F00
L_OB = 0x1B00
L_H = 0x1D00
L_OP = 0x2000
L_V = 0x6000
LDS_BYTES = 0x6000 + 4 * 24576
SCALE = f32hex(128 ** -0.5)
LOG2E = f32hex(1.4426950408889634)
EPS = f32hex(1e-5)
SPIN_LDS = 4000000
SPIN_GLB = 40000

NOLDS = False
QSH, QOFF = 2, 0
class Gen:
    def __init__(self):
        self.L = []
        self.n = 0
    def __call__(self, s):
        for line in s.strip('\n').split('\n'):
            self.L.append('    ' + line.strip())
    def label(self, name):
        self.L.append(name + ':')
    def uniq(self, p):
        self.n += 1
        return f'{p}_{self.n}'

class VM:
    def __init__(self, g):
        self.g = g
        self.ops = []
    def issue(self, tag):
        self.ops.append(tag)
    def wait(self, tag):
        idx = max(i for i, t in enumerate(self.ops) if t == tag)
        n = len(self.ops) - 1 - idx
        assert n <= 63
        self.g(f's_waitcnt vmcnt({n})')
    def reset(self):
        self.ops = []

def srd(g, d, base, nbytes):
    g(f's_mov_b32 s{d}, s{base}\ns_mov_b32 s{d+1}, s{base+1}\ns_mov_b32 s{d+2}, {nbytes}\ns_mov_b32 s{d+3}, 0x20000')

def lds_wait(g, addr, target, vt='v7', va='v6', st='s50', sc='s51'):
    l = g.uniq('LW'); d = g.uniq('LWD')
    g(f'v_mov_b32 {va}, {addr}\ns_mov_b32 {sc}, {1 if NOLDS else SPIN_LDS}')
    g.label(l)
    g(f'''ds_read_b32 {vt}, {va}
    s_waitcnt lgkmcnt(0)
    v_readfirstlane_b32 {st}, {vt}
    s_cmp_ge_u32 {st}, {target}
    s_cbranch_scc1 {d}
    s_sleep 1
    s_sub_u32 {sc}, {sc}, 1
    s_cmp_lg_u32 {sc}, 0
    s_cbranch_scc1 {l}''')
    g.label(d)

def lds_signal(g, addr, add=False, vt='v7', va='v6'):
    g(f'''s_waitcnt lgkmcnt(0)
    v_mov_b32 {va}, {addr}
    v_mov_b32 {vt}, 1
    s_mov_b64 exec, 1''')
    g(f'ds_add_u32 {va}, {vt}' if add else f'ds_write_b32 {va}, {vt}')
    g('s_mov_b64 exec, -1')

def bf16r_pair(g, a, b, t):
    g(f'''v_cvt_pk_bf16_f32 {t}, {a}, {b}
    v_lshlrev_b32 {a}, 16, {t}
    v_and_b32 {b}, 0xffff0000, {t}''')

def bf16r(g, a):
    g(f'''v_cvt_pk_bf16_f32 {a}, {a}, {a}
    v_lshlrev_b32 {a}, 16, {a}''')

def allred_row16(g, op, v, t):
    for r in (1, 2, 4, 8):
        g(f's_nop 1\n{op}_dpp {t}, {v}, {v} row_ror:{r} row_mask:0xf bank_mask:0xf\nv_mov_b32 {v}, {t}')

def allred_x16(g, op, v, t):
    g(f'v_mov_b32 {t}, {v}\ns_nop 1\nv_permlane16_swap_b32 {v}, {t}\ns_nop 1\n{op} {v}, {v}, {t}')

def allred_x32(g, op, v, t):
    g(f'v_mov_b32 {t}, {v}\ns_nop 1\nv_permlane32_swap_b32 {v}, {t}\ns_nop 1\n{op} {v}, {v}, {t}')

def precise_div(g, d, num, den, t1, t2):
    g(f'''v_rcp_f32 {t1}, {den}
    s_nop 0
    v_mul_f32 {t2}, {num}, {t1}
    v_fma_f32 {d}, -{t2}, {den}, {num}
    v_fma_f32 {d}, {d}, {t1}, {t2}''')

def silu(g, x, t1, t2, t3):
    g(f'''v_mul_f32 {t1}, s60, {x}
    v_exp_f32 {t1}, -{t1}
    s_nop 0
    v_add_f32 {t1}, 1.0, {t1}''')
    g(f'''v_rcp_f32 {t2}, {t1}
    s_nop 0
    v_mul_f32 {t3}, {x}, {t2}
    v_fma_f32 {t1}, -{t3}, {t1}, {x}
    v_fma_f32 {t1}, {t1}, {t2}, {t3}
    v_cmp_eq_f32 vcc, 0, {t2}
    s_nop 1
    v_cndmask_b32 {x}, {t1}, {t3}, vcc''')

A_T = 8
A_B = 24
A_ACC = 40
A_POOL = 72

def tile_loads(g, vm, srdreg, sbase, rowbytes, kk, slot, tag, voff='v1', stmp='s46'):
    for i in range(8):
        r = A_POOL + 32 * slot + 4 * i
        g(f's_add_u32 {stmp}, {sbase}, {(32 * kk + i) * rowbytes}')
        g(f'buffer_load_dwordx4 v[{r}:{r+3}], {voff}, s[{srdreg}:{srdreg+3}], {stmp} offen nt')
        vm.issue(tag)

def tile_block_mfma(g, slot, kk, first, breg):
    base = A_POOL + 32 * slot
    for half in range(2):
        for tt in range(4):
            t = 4 * half + tt
            d = t >> 1
            sel = 's58' if (t & 1) == 0 else 's59'
            o = A_T + 4 * tt
            for p in range(4):
                g(f'v_perm_b32 v{o+p}, v{base + 4*(2*p+1) + d}, v{base + 4*(2*p) + d}, {sel}')
        g('s_nop 1')
        for tt in range(4):
            t = 4 * half + tt
            o = A_T + 4 * tt
            acc = A_ACC + 4 * t
            c = '0' if first else f'v[{acc}:{acc+3}]'
            g(f'v_mfma_f32_16x16x32_bf16 v[{acc}:{acc+3}], v[{o}:{o+3}], v[{breg}:{breg+3}], {c}')

def gemv_tile(g, vm, srdreg, sbase, rowbytes, ldsaddr_v, pre_issued, tagp, wait_fn=None):
    if wait_fn:
        wait_fn()
    for kk in range(4):
        g(f'ds_read_b128 v[{A_B+4*kk}:{A_B+4*kk+3}], {ldsaddr_v} offset:{64*kk}')
    g('s_waitcnt lgkmcnt(0)')
    for kk in range(4):
        vm.wait(f'{tagp}{kk}')
        tile_block_mfma(g, kk % 3, kk, kk == 0, A_B + 4 * kk)
        if kk == 0:
            tile_loads(g, vm, srdreg, sbase, rowbytes, 3, 0, f'{tagp}3')

def lane_masks(g):
    g('''s_mov_b32 s80, 0xcccccccc
    s_mov_b32 s81, 0xcccccccc
    s_mov_b32 s82, 0xf0f0f0f0
    s_mov_b32 s83, 0xf0f0f0f0
    s_mov_b32 s84, 0xff00ff00
    s_mov_b32 s85, 0xff00ff00''')

def select8(g, accs, levels=3):
    cur = list(accs)
    lv = 0
    while len(cur) > 1:
        nxt = []
        for i in range(0, len(cur), 2):
            a, b = cur[i], cur[i + 1]
            for r in range(4):
                g(f'v_cndmask_b32 v{a+r}, v{a+r}, v{b+r}, s[{80+2*lv}:{81+2*lv}]')
            nxt.append(a)
        cur = nxt
        lv += 1
    return cur[0]

def tagged_store(g, vm, r, soff, voff, x=8, stmp='s57', vtmp='v7'):
    g(f'''v_perm_b32 v{r}, v{r}, v{r+3}, s90
    v_perm_b32 v{r+1}, v{r+1}, v{r+3}, s91
    v_perm_b32 v{r+2}, v{r+2}, v{r+3}, s92
    v_mov_b32 v{r+3}, s55
    buffer_store_dwordx4 v[{r}:{r+3}], {voff}, s[36:39], {soff} offen sc1''')
    vm.issue('st')

def tagged_store_ab(g, vm, r, soff, voff, x=8, stmp='s57', vtmp='v7'):
    g(f'''v_mov_b32 v{x}, v{r+3}
    v_mov_b32 v{x+1}, s55
    v_mov_b32 v{r+3}, s55
    v_lshrrev_b32 {vtmp}, 1, {voff}
    s_lshr_b32 {stmp}, {soff}, 1
    s_add_u32 {stmp}, {stmp}, {W_B}
    buffer_store_dwordx4 v[{r}:{r+3}], {voff}, s[36:39], {soff} offen sc1
    buffer_store_dwordx2 v[{x}:{x+1}], {vtmp}, s[36:39], {stmp} offen sc1''')
    vm.issue('st'); vm.issue('st')

def unpack_d(g, r):
    g(f'v_perm_b32 v{r+3}, v{r}, v{r+1}, s93\nv_perm_b32 v{r+3}, v{r+3}, v{r+2}, s94')

def publish_acc(g, vm, soff, voff='v2', tagged=True):
    g('s_nop 7\ns_nop 1')
    r = select8(g, [A_ACC + 4 * t for t in range(8)])
    if tagged:
        tagged_store(g, vm, r, soff, voff)
    else:
        g(f'buffer_store_dwordx4 v[{r}:{r+3}], {voff}, s[36:39], {soff} offen sc1')
        vm.issue('st')

def tag_check(g, tags, acc='v7', tmp='v6'):
    tags = list(tags)
    g(f'v_xor_b32 {acc}, s55, v{tags[0]}')
    for t in tags[1:]:
        g(f'v_xor_b32 {tmp}, s55, v{t}\nv_or_b32 {acc}, {acc}, {tmp}')
    g(f'v_cmp_ne_u32 vcc, 0, {acc}')

NOHOP = False
PLAIN = True
def plain_first(g, issue_fn, check_fn, d):
    n0 = len(g.L)
    issue_fn()
    for i in range(n0, len(g.L)):
        g.L[i] = g.L[i].replace(' sc1', '')
    g('s_waitcnt vmcnt(0)')
    check_fn()
    g(f's_cbranch_vccz {d}')

def tpoll_loop(g, issue_fn, tags, sleep=2, sc='s51', acc='v7', tmp='v6', plain=False):
    l = g.uniq('TP'); d = g.uniq('TPD')
    if plain and PLAIN:
        plain_first(g, issue_fn, lambda: tag_check(g, tags, acc, tmp), d)
    g(f's_mov_b32 {sc}, {1 if NOHOP else SPIN_GLB}')
    g.label(l)
    issue_fn()
    g('s_waitcnt vmcnt(0)')
    tag_check(g, tags, acc, tmp)
    g(f'''s_cbranch_vccz {d}
    s_sleep {sleep}
    s_sub_u32 {sc}, {sc}, 1
    s_cmp_lg_u32 {sc}, 0
    s_cbranch_scc1 {l}''')
    g.label(d)

def read_nonce(g):
    lds_wait(g, C_N, 1)
    g('s_mov_b32 s55, s50')

def sentinel_check(g, regs, vmx):
    regs = list(regs)
    g(f'v_max_u32 {vmx}, v{regs[0]}, v{regs[1]}')
    i = 2
    while i < len(regs):
        if i + 1 < len(regs):
            g(f'v_max3_u32 {vmx}, {vmx}, v{regs[i]}, v{regs[i+1]}')
            i += 2
        else:
            g(f'v_max_u32 {vmx}, {vmx}, v{regs[i]}')
            i += 1
    g(f'v_cmp_eq_u32 vcc, -1, {vmx}')

def poll_loop(g, issue_fn, regs, vmx='v7', sc='s51', sleep=2, plain=False):
    l = g.uniq('PL'); d = g.uniq('PLD')
    if plain and PLAIN:
        plain_first(g, issue_fn, lambda: sentinel_check(g, regs, vmx), d)
    g(f's_mov_b32 {sc}, {1 if NOHOP else SPIN_GLB}')
    g.label(l)
    issue_fn()
    g('s_waitcnt vmcnt(0)')
    sentinel_check(g, regs, vmx)
    g(f'''s_cbranch_vccz {d}
    s_sleep {sleep}
    s_sub_u32 {sc}, {sc}, 1
    s_cmp_lg_u32 {sc}, 0
    s_cbranch_scc1 {l}''')
    g.label(d)

def arrive(g, sidx, n, stmp='s46', sctr=None, ack=True):
    d = g.uniq('ARR')
    if sctr is None:
        g(f's_lshl_b32 {stmp}, {sidx}, {QSH}\ns_add_u32 {stmp}, {stmp}, {QOFF}')
        srdn = 40
    else:
        g(f's_lshl_b32 {stmp}, {sctr}, 7\ns_add_u32 {stmp}, {stmp}, {W_CT}')
        srdn = 36
    g(f'''v_mov_b32 v6, {stmp}
    v_mov_b32 v7, 1
    {'s_waitcnt vmcnt(0)' if ack else 's_nop 0'}
    s_mov_b64 exec, 1
    buffer_atomic_add v7, v6, s[{srdn}:{srdn+3}], 0 offen sc0
    s_waitcnt vmcnt(0)
    v_readfirstlane_b32 {stmp}, v7
    s_cmp_eq_u32 {stmp}, {n-1}
    s_cbranch_scc0 {d}
    s_lshl_b32 {stmp}, {sidx}, 7
    s_add_u32 {stmp}, {stmp}, {W_FL}
    v_mov_b32 v6, 0
    v_mov_b32 v7, s55
    buffer_store_dword v7, v6, s[36:39], {stmp} offen sc1''')
    g.label(d)
    g('s_mov_b64 exec, -1')

def flag_wait(g, sidx, sleep, stmp='s46'):
    l = g.uniq('FW'); d = g.uniq('FWD')
    g(f'''s_lshl_b32 {stmp}, {sidx}, 7
    s_add_u32 {stmp}, {stmp}, {W_FL}
    v_mov_b32 v6, 0
    s_mov_b32 s51, {1 if NOHOP else SPIN_GLB}
    s_mov_b64 exec, 1''')
    g.label(l)
    g(f'''buffer_load_dword v7, v6, s[36:39], {stmp} offen sc1
    s_waitcnt vmcnt(0)
    v_readfirstlane_b32 s50, v7
    s_cmp_eq_u32 s50, s55
    s_cbranch_scc1 {d}
    s_sleep {sleep}
    s_sub_u32 s51, s51, 1
    s_cmp_lg_u32 s51, 0
    s_cbranch_scc1 {l}''')
    g.label(d)
    g('s_mov_b64 exec, -1')

def counter_wait(g, srdn, soff, n, sleep):
    l = g.uniq('CW'); d = g.uniq('CWD')
    g(f'''v_mov_b32 v6, 0
    s_mov_b32 s51, {1 if NOHOP else SPIN_GLB}
    s_mov_b64 exec, 1''')
    g.label(l)
    g(f'''buffer_load_dword v7, v6, s[{srdn}:{srdn+3}], {soff} offen sc1
    s_waitcnt vmcnt(0)
    v_readfirstlane_b32 s50, v7
    s_cmp_ge_u32 s50, {n}
    s_cbranch_scc1 {d}
    s_sleep {sleep}
    s_sub_u32 s51, s51, 1
    s_cmp_lg_u32 s51, 0
    s_cbranch_scc1 {l}''')
    g.label(d)
    g('s_mov_b64 exec, -1')

def q_gather(g, args, rnd, tsa=None):
    g(f'''s_lshr_b32 s44, s86, 5
    s_lshl_b32 s44, s44, 15
    s_add_u32 s44, s44, {W_Q + rnd*16384}
    s_lshr_b32 s45, s44, 1
    s_add_u32 s45, s45, {W_B}
    s_lshr_b32 s48, s86, 6
    s_add_u32 s48, s48, 1''')
    if args.qmode == 1:
        g(f's_lshl_b32 s48, s48, {QSH}\ns_add_u32 s48, s48, {QOFF}')
        counter_wait(g, 40, 's48', 64, args.fsleep)
    else:
        flag_wait(g, 's48', args.fsleep)
    if tsa is not None:
        ts(g, tsa)
    g('''v_lshrrev_b32 v2, 5, v0
    v_lshlrev_b32 v2, 12, v2
    v_and_b32 v3, 31, v0
    v_lshl_add_u32 v2, v3, 4, v2
    v_lshrrev_b32 v3, 1, v2
    v_lshrrev_b32 v8, 5, v0
    v_lshlrev_b32 v8, 8, v8
    v_bfe_u32 v9, v0, 3, 2
    v_lshlrev_b32 v9, 6, v9
    v_and_b32 v10, 7, v0
    v_lshlrev_b32 v10, 1, v10
    v_add3_u32 v8, v8, v9, v10''')
    def issue_q2():
        for hh in range(2):
            g(f's_add_u32 s46, s44, {hh*8192}\ns_add_u32 s48, s45, {hh*4096}')
            for ks in range(8):
                r = 40 + 32 * hh + 4 * ks
                rb = 104 + 16 * hh + 2 * ks
                g(f'buffer_load_dwordx4 v[{r}:{r+3}], v2, s[36:39], s46 offen offset:{ks*512} sc1')
                if not args.qpack:
                    g(f'buffer_load_dwordx2 v[{rb}:{rb+1}], v3, s[36:39], s48 offen offset:{ks*256} sc1')
    tags = [43 + 4 * i for i in range(16)] + ([] if args.qpack else [105 + 2 * i for i in range(16)])
    if 'q2' not in args.skip:
        tpoll_loop(g, issue_q2, tags, sleep=4, plain=True)
    if args.qpack:
        for i in range(16):
            unpack_d(g, 40 + 4 * i)
    for hh in range(2):
        hp = 2 * rnd + hh
        for r in range(4):
            src = (lambda ks: 40 + 32 * hh + 4 * ks + r) if (r < 3 or args.qpack) else (lambda ks: 104 + 16 * hh + 2 * ks)
            g(f'v_add_f32 v{12+r}, v{src(0)}, v{src(1)}')
            for ks in range(2, 8):
                g(f'v_add_f32 v{12+r}, v{12+r}, v{src(ks)}')
        g(f'''v_cvt_pk_bf16_f32 v12, v12, v13
        v_cvt_pk_bf16_f32 v14, v14, v15
        ds_write_b16 v8, v12 offset:{L_Q + 512*hp}
        ds_write_b16_d16_hi v8, v12 offset:{L_Q + 512*hp + 16}
        ds_write_b16 v8, v14 offset:{L_Q + 512*hp + 32}
        ds_write_b16_d16_hi v8, v14 offset:{L_Q + 512*hp + 48}''')
    lds_signal(g, C_Q, add=True)

PROF = False
def ts(g, i):
    if PROF:
        g(f's_memrealtime s[96:97]\ns_waitcnt lgkmcnt(0)\ns_mov_b32 s{64+i}, s96')
def ts_dump(g, n):
    if not PROF:
        return
    g(f'''s_mul_i32 s62, s2, 12
    s_add_u32 s62, s62, s3
    s_lshl_b32 s62, s62, 6
    s_add_u32 s62, s62, 0x8000000
    s_mov_b64 exec, 1
    v_mov_b32 v6, 0''')
    for i in range(16):
        g(f'v_mov_b32 v7, s{64+i}\nbuffer_store_dword v7, v6, s[36:39], s62 offen offset:{4*i}')

def gen_flash(g, args):
    g.label('L_BULK')
    vm = VM(g)
    BQ, BS, BPK, BO, KST, VS = 8, 24, 40, 48, 80, 112
    KV_ = ['v240', 'v241', 'v242', 'v243']
    KR_ = ['v244', 'v245', 'v246', 'v247']
    TS = 16384
    srd(g, 28, 6, 64 * 1024 * 1024)
    srd(g, 32, 8, 64 * 1024 * 1024)
    g(f'''s_sub_u32 s44, s3, 4
    s_lshr_b32 s45, s86, 6
    s_bfe_u32 s46, s86, 0x10005
    s_lshl_b32 s46, s46, 2
    s_add_u32 s45, s45, s46
    s_lshl_b32 s45, s45, 23
    s_and_b32 s46, s86, 31
    s_lshl_b32 s46, s46, 18
    s_add_u32 s45, s45, s46
    s_lshl_b32 s46, s44, 12
    s_add_u32 s45, s45, s46
    v_and_b32 v4, 15, v0
    v_lshrrev_b32 v5, 4, v0
    v_lshlrev_b32 v2, 4, v0
    s_lshl_b32 s48, s44, 15
    s_add_u32 s48, s48, {L_V}
    v_xor_b32 v6, v4, v5
    v_lshlrev_b32 v7, 8, v5
    v_lshl_add_u32 v240, v6, 4, v7
    v_xor_b32 v241, 64, v240
    v_add_u32 v241, 1024, v241
    v_xor_b32 v242, 128, v240
    v_add_u32 v242, 2048, v242
    v_xor_b32 v243, 192, v240
    v_add_u32 v243, 3072, v243
    v_and_b32 v6, 3, v4
    v_lshlrev_b32 v6, 2, v6
    v_lshrrev_b32 v7, 2, v4
    v_add_u32 v6, v6, v7
    v_xor_b32 v7, v6, v5
    v_lshlrev_b32 v6, 8, v6
    v_lshl_add_u32 v244, v7, 4, v6
    v_xor_b32 v245, 64, v244
    v_xor_b32 v246, 128, v244
    v_xor_b32 v247, 192, v244
    v_add_u32 v244, s48, v244
    v_add_u32 v245, s48, v245
    v_add_u32 v246, s48, v246
    v_add_u32 v247, s48, v247
    s_barrier''')
    order = []
    cnt = [0]
    def pace(tag):
        order.append(tag)
        n = args.infl
        if len(order) - 1 - n >= 0:
            vm.wait(order[len(order) - 1 - n])
        if cnt[0] == args.pre:
            lds_wait(g, C_X, 1)
        if cnt[0] == args.ksig:
            lds_signal(g, C_K, add=True)
        if cnt[0] in (4, 8, 12, 15, 20, 24, 28, 31):
            ts(g, 8 + (4, 8, 12, 15, 20, 24, 28, 31).index(cnt[0]))
        cnt[0] += 1
    def kload(T):
        pace(f'K{T}')
        for j in range(4):
            g(f's_add_u32 s49, s48, {4096*(T % 8) + 1024*j}\ns_mov_b32 m0, s49\ns_add_u32 s46, s45, {TS*T}')
            g(f'buffer_load_dwordx4 {KV_[j]}, s[28:31], s46 offen nt lds')
            vm.issue(f'K{T}')
    def vload(T):
        pace(f'V{T}')
        r0 = VS + 16 * (T % 8)
        g(f's_add_u32 s46, s45, {TS*T}')
        for j in range(4):
            g(f'buffer_load_dwordx4 v[{r0+4*j}:{r0+4*j+3}], v2, s[32:35], s46 offen offset:{1024*j} nt')
            vm.issue(f'V{T}')
    def kread(T):
        r0 = KST + 16 * (T & 1)
        for j in range(4):
            g(f'ds_read_b128 v[{r0+4*j}:{r0+4*j+3}], {KR_[j]} offset:{4096*(T % 8)}')
    for c in range(2):
        for T in range(4 * c, 4 * c + 4):
            kload(T)
        for T in range(4 * c, 4 * c + 4):
            vload(T)
    lds_wait(g, C_Q, 2)
    ts(g, 1)
    g('''v_and_b32 v3, 7, v0
    v_lshlrev_b32 v3, 8, v3
    v_lshl_add_u32 v3, v5, 4, v3''')
    for j in range(4):
        g(f'ds_read_b128 v[{BQ+4*j}:{BQ+4*j+3}], v3 offset:{L_Q + 64*j}')
    for c in range(4):
        vm.wait(f'K{4*c+3}')
        kread(4 * c)
        for i in range(4):
            T = 4 * c + i
            if i < 3:
                kread(T + 1)
                g('s_waitcnt lgkmcnt(4)')
            else:
                g('s_waitcnt lgkmcnt(0)')
            r0 = KST + 16 * (T & 1)
            sreg = BS + 4 * i
            for j in range(4):
                cc = '0' if j == 0 else f'v[{sreg}:{sreg+3}]'
                g(f'v_mfma_f32_16x16x32_bf16 v[{sreg}:{sreg+3}], v[{r0+4*j}:{r0+4*j+3}], v[{BQ+4*j}:{BQ+4*j+3}], {cc}')
        if c == 0:
            ts(g, 2)
        if c < 2:
            for T in range(4 * c + 8, 4 * c + 12):
                kload(T)
        else:
            g('s_nop 7')
        for i in range(8):
            a, b = f'v{BS+2*i}', f'v{BS+2*i+1}'
            bf16r_pair(g, a, b, 'v250')
            g(f'v_mul_f32 {a}, s61, {a}\nv_mul_f32 {b}, s61, {b}')
            bf16r_pair(g, a, b, 'v250')
        g(f'v_max_f32 v250, v{BS}, v{BS+1}')
        for i in range(1, 8):
            g(f'v_max3_f32 v250, v250, v{BS+2*i}, v{BS+2*i+1}')
        allred_x16(g, 'v_max_f32', 'v250', 'v251')
        allred_x32(g, 'v_max_f32', 'v250', 'v251')
        if c > 0:
            g('''v_max_f32 v250, v250, v248
            v_sub_f32 v252, v248, v250
            v_mul_f32 v252, s60, v252
            v_exp_f32 v252, v252''')
        g('v_mov_b32 v248, v250\nv_mov_b32 v253, 0\nv_mov_b32 v254, 0')
        for i in range(0, 16, 2):
            g(f'''v_sub_f32 v{BS+i}, v{BS+i}, v248
            v_sub_f32 v{BS+i+1}, v{BS+i+1}, v248
            v_mul_f32 v{BS+i}, s60, v{BS+i}
            v_mul_f32 v{BS+i+1}, s60, v{BS+i+1}
            v_exp_f32 v{BS+i}, v{BS+i}
            v_exp_f32 v{BS+i+1}, v{BS+i+1}
            s_nop 0
            v_add_f32 v253, v253, v{BS+i}
            v_add_f32 v254, v254, v{BS+i+1}
            v_cvt_pk_bf16_f32 v{BPK+i//2}, v{BS+i}, v{BS+i+1}''')
        g('v_add_f32 v253, v253, v254')
        if c == 0:
            g('v_mov_b32 v249, v253')
        else:
            g('v_fma_f32 v249, v249, v252, v253')
            for i in range(32):
                g(f'v_mul_f32 v{BO+i}, v{BO+i}, v252')
        if c == 3:
            g('v_mov_b32 v253, v249')
            allred_x16(g, 'v_add_f32', 'v253', 'v251')
            allred_x32(g, 'v_add_f32', 'v253', 'v251')
            g(f'''s_lshl_b32 s46, s44, 6
            v_lshlrev_b32 v3, 2, v0
            v_add_u32 v3, s46, v3
            s_mov_b64 exec, 0xff
            ds_write_b32 v3, v248 offset:{L_ST}
            ds_write_b32 v3, v253 offset:{L_ST+32}
            s_mov_b64 exec, -1''')
            lds_signal(g, C_ST, add=True)
            ts(g, 3)
        for U in range(2):
            T0, T1 = 4 * c + 2 * U, 4 * c + 2 * U + 1
            vm.wait(f'V{T1}')
            ra = VS + 16 * (T0 % 8)
            rb = VS + 16 * (T1 % 8)
            for half in range(2):
                for tt in range(4):
                    t = 4 * half + tt
                    d = t >> 1
                    sel = 's58' if (t & 1) == 0 else 's59'
                    o = BS + 4 * tt
                    g(f'v_perm_b32 v{o}, v{ra+4+d}, v{ra+d}, {sel}')
                    g(f'v_perm_b32 v{o+1}, v{ra+12+d}, v{ra+8+d}, {sel}')
                    g(f'v_perm_b32 v{o+2}, v{rb+4+d}, v{rb+d}, {sel}')
                    g(f'v_perm_b32 v{o+3}, v{rb+12+d}, v{rb+8+d}, {sel}')
                g('s_nop 1')
                for tt in range(4):
                    t = 4 * half + tt
                    o = BS + 4 * tt
                    acc = BO + 4 * t
                    cc = '0' if (c == 0 and U == 0) else f'v[{acc}:{acc+3}]'
                    g(f'v_mfma_f32_16x16x32_bf16 v[{acc}:{acc+3}], v[{o}:{o+3}], v[{BPK+4*U}:{BPK+4*U+3}], {cc}')
        if c < 2:
            for T in range(4 * c + 8, 4 * c + 12):
                vload(T)
            if c == 1:
                lds_signal(g, C_V, add=True)
                ts(g, 4)
        g('s_nop 7')
    ts(g, 5)
    g(f'''s_lshl_b32 s46, s44, 12
    v_lshlrev_b32 v3, 9, v4
    v_lshl_add_u32 v3, v5, 7, v3
    v_add_u32 v3, s46, v3
    s_mov_b32 exec_lo, 0x00ff00ff
    s_mov_b32 exec_hi, 0x00ff00ff''')
    for t in range(8):
        acc = BO + 4 * t
        g(f'ds_write_b128 v3, v[{acc}:{acc+3}] offset:{L_OP + 16*t}')
    g('s_mov_b64 exec, -1')
    lds_signal(g, C_O, add=True)
    g(f'''s_lshr_b32 s46, s86, 6
    s_lshl_b32 s46, s46, 18
    s_lshl_b32 s49, s44, 16
    s_add_u32 s46, s46, s49
    s_bfe_u32 s49, s86, 0x10005
    s_lshl_b32 s49, s49, 14
    s_add_u32 s46, s46, s49
    s_and_b32 s49, s86, 31
    s_lshl_b32 s49, s49, 9
    s_add_u32 s46, s46, s49
    s_add_u32 s46, s46, {W_O}
    v_and_b32 v2, 31, v0
    v_lshlrev_b32 v2, 4, v2
    v_lshrrev_b32 v1, 5, v0
    v_lshl_add_u32 v2, v1, 15, v2
    s_lshl_b32 s49, s44, 10
    v_lshlrev_b32 v3, 4, v0
    v_add_u32 v3, s49, v3''')
    g(f'''s_lshl_b32 s49, s44, 3
    v_lshl_add_u32 v4, v1, 2, s49
    s_lshl_b32 s52, s86, 6
    s_add_u32 s52, s52, {W_ML}''')
    lds_wait(g, C_O, 4)
    for w in range(4):
        g(f'ds_read_b32 v{16+w}, v4 offset:{L_ST + 64*w}\nds_read_b32 v{20+w}, v4 offset:{L_ST + 64*w + 32}')
    for w in range(4):
        g(f'ds_read_b128 v[{88+4*w}:{91+4*w}], v3 offset:{L_OP + 4096*w}')
    g('''s_waitcnt lgkmcnt(4)
    v_max3_f32 v24, v16, v17, v18
    v_max_f32 v24, v24, v19''')
    for w in range(4):
        g(f'v_sub_f32 v{16+w}, v{16+w}, v24\nv_mul_f32 v{16+w}, s60, v{16+w}\nv_exp_f32 v{16+w}, v{16+w}')
    g('''s_nop 0
    v_mul_f32 v25, v20, v16
    v_fma_f32 v25, v21, v17, v25
    v_fma_f32 v25, v22, v18, v25
    v_fma_f32 v25, v23, v19, v25
    s_waitcnt lgkmcnt(0)''')
    for r in range(4):
        g(f'''v_mul_f32 v{8+r}, v{88+r}, v16
        v_mul_f32 v{12+r}, v{96+r}, v18
        v_fma_f32 v{8+r}, v{92+r}, v17, v{8+r}
        v_fma_f32 v{12+r}, v{100+r}, v19, v{12+r}
        v_add_f32 v{8+r}, v{8+r}, v{12+r}''')
    g('''buffer_store_dwordx4 v[8:11], v2, s[36:39], s46 offen sc1
    s_mov_b32 exec_lo, 1
    s_mov_b32 exec_hi, 1
    buffer_store_dword v24, v4, s[36:39], s52 offen sc1
    buffer_store_dword v25, v4, s[36:39], s52 offen offset:32 sc1
    s_mov_b64 exec, -1''')
    if args.omode >= 2:
        d = g.uniq('OA')
        g(f'''v_mov_b32 v6, {C_ST}
        v_mov_b32 v7, 1
        s_mov_b64 exec, 1
        ds_add_rtn_u32 v7, v6, v7
        s_waitcnt lgkmcnt(0)
        v_readfirstlane_b32 s49, v7
        s_mov_b64 exec, -1
        s_cmp_eq_u32 s49, 7
        s_cbranch_scc0 {d}''')
        read_nonce(g)
        g('s_lshr_b32 s48, s86, 6\ns_add_u32 s48, s48, 8\ns_andn2_b32 s49, s86, 63\ns_add_u32 s49, s49, 257')
        arrive(g, 's48', 64, sctr='s49', ack=False)
        g.label(d)
    ts(g, 6)
    ts_dump(g, 7)
    g('s_endpgm')

def gen_steal(g, args):
    g.label('L_BULK')
    vm = VM(g)
    BQ, BS, BPK, BO, KST, VS = 8, 24, 40, 48, 80, 112
    KV_ = ['v240', 'v241', 'v242', 'v243']
    KR_ = ['v244', 'v245', 'v246', 'v247']
    TS = 16384
    srd(g, 28, 6, 64 * 1024 * 1024)
    srd(g, 32, 8, 64 * 1024 * 1024)
    g(f'''s_sub_u32 s44, s3, 4
    s_lshr_b32 s45, s86, 6
    s_bfe_u32 s46, s86, 0x10005
    s_lshl_b32 s46, s46, 2
    s_add_u32 s45, s45, s46
    s_lshl_b32 s45, s45, 23
    s_mov_b32 s4, s45
    s_and_b32 s46, s86, 31
    s_lshl_b32 s46, s46, 18
    s_add_u32 s45, s45, s46
    s_lshl_b32 s46, s44, 14
    s_add_u32 s45, s45, s46
    v_and_b32 v4, 15, v0
    v_lshrrev_b32 v5, 4, v0
    v_lshlrev_b32 v2, 4, v0
    s_lshl_b32 s48, s44, 15
    s_add_u32 s48, s48, {L_V}
    v_xor_b32 v6, v4, v5
    v_lshlrev_b32 v7, 8, v5
    v_lshl_add_u32 v240, v6, 4, v7
    v_xor_b32 v241, 64, v240
    v_add_u32 v241, 1024, v241
    v_xor_b32 v242, 128, v240
    v_add_u32 v242, 2048, v242
    v_xor_b32 v243, 192, v240
    v_add_u32 v243, 3072, v243
    v_and_b32 v6, 3, v4
    v_lshlrev_b32 v6, 2, v6
    v_lshrrev_b32 v7, 2, v4
    v_add_u32 v6, v6, v7
    v_xor_b32 v7, v6, v5
    v_lshlrev_b32 v6, 8, v6
    v_lshl_add_u32 v244, v7, 4, v6
    v_xor_b32 v245, 64, v244
    v_xor_b32 v246, 128, v244
    v_xor_b32 v247, 192, v244
    v_add_u32 v244, s48, v244
    v_add_u32 v245, s48, v245
    v_add_u32 v246, s48, v246
    v_add_u32 v247, s48, v247
    s_barrier''')
    CAP = 4 * args.infl
    NSTAT = args.nstat
    NPOOL = (4 - NSTAT) * 128
    cnt = [0]
    def hooks():
        if cnt[0] == args.pre:
            lds_wait(g, C_X, 1)
        if cnt[0] == args.ksig:
            lds_signal(g, C_K, add=True)
        cnt[0] += 1
    def kload(buf, soff, hook=False):
        for i in range(4):
            g(f's_waitcnt vmcnt({CAP - 4})')
            if hook:
                hooks()
            g(f's_add_u32 s46, {soff}, {4096*i}')
            for j in range(4):
                g(f's_add_u32 s49, s48, {4096*(4*buf+i) + 1024*j}\ns_mov_b32 m0, s49\ns_nop 0')
                g(f'buffer_load_dwordx4 {KV_[j]}, s[28:31], s46 offen nt lds')
    def vload(buf, soff, hook=False):
        for i in range(4):
            g(f's_waitcnt vmcnt({CAP - 4})')
            if hook:
                hooks()
            r0 = VS + 16 * (4 * buf + i)
            g(f's_add_u32 s46, {soff}, {4096*i}')
            for j in range(4):
                g(f'buffer_load_dwordx4 v[{r0+4*j}:{r0+4*j+3}], v2, s[32:35], s46 offen offset:{1024*j} nt')
    def kread(slot):
        r0 = KST + 16 * (slot & 1)
        for j in range(4):
            g(f'ds_read_b128 v[{r0+4*j}:{r0+4*j+3}], {KR_[j]} offset:{4096*slot}')
    def ticket_req():
        g('''v_mov_b32 v255, 1
        s_mov_b64 exec, 1
        buffer_atomic_add v255, v1, s[36:39], 0 offen sc0
        s_mov_b64 exec, -1''')
    g('s_add_u32 s5, s45, 65536')
    kload(0, 's45', True); vload(0, 's45', True)
    kload(1, 's5', True); vload(1, 's5', True)
    g(f'''s_andn2_b32 s46, s86, 31
    s_add_u32 s46, s46, 256
    s_lshl_b32 s46, s46, 7
    s_add_u32 s46, s46, {W_CT}
    v_mov_b32 v1, s46
    v_mov_b32 v248, 0xff800000
    v_mov_b32 v249, 0''')
    for i in range(32):
        g(f'v_mov_b32 v{BO+i}, 0')
    lds_wait(g, C_Q, 2)
    ts(g, 1)
    g('''v_and_b32 v3, 7, v0
    v_lshlrev_b32 v3, 8, v3
    v_lshl_add_u32 v3, v5, 4, v3''')
    for j in range(4):
        g(f'ds_read_b128 v[{BQ+4*j}:{BQ+4*j+3}], v3 offset:{L_Q + 64*j}')
    g(f'''s_mov_b32 s6, {NSTAT - 2}
    s_add_u32 s5, s45, 131072
    s_mov_b32 s7, 1
    s_mov_b32 s8, 0''')
    assert NSTAT == 3
    def half(buf, nxt_label, exit_label):
        u = g.uniq('H')
        g(f'''s_cmp_eq_u32 s7, 0
        s_cbranch_scc1 {u}_w0
        s_waitcnt vmcnt(48)
        s_branch {u}_w1''')
        g.label(f'{u}_w0')
        g('s_waitcnt vmcnt(16)')
        g.label(f'{u}_w1')
        kread(4 * buf)
        for i in range(4):
            if i < 3:
                kread(4 * buf + i + 1)
                g('s_waitcnt lgkmcnt(4)')
            else:
                g('s_waitcnt lgkmcnt(0)')
            r0 = KST + 16 * (i & 1)
            sreg = BS + 4 * i
            for j in range(4):
                cc = '0' if j == 0 else f'v[{sreg}:{sreg+3}]'
                g(f'v_mfma_f32_16x16x32_bf16 v[{sreg}:{sreg+3}], v[{r0+4*j}:{r0+4*j+3}], v[{BQ+4*j}:{BQ+4*j+3}], {cc}')
        g(f'''s_mov_b32 s9, 0
        s_cmp_eq_u32 s6, 0
        s_cbranch_scc1 {u}_dyn
        s_mov_b32 s9, 1
        s_mov_b32 s10, s5
        s_add_u32 s5, s5, 65536
        s_sub_u32 s6, s6, 1
        s_branch {u}_got''')
        g.label(f'{u}_dyn')
        g(f'''s_cmp_eq_u32 s8, 0
        s_cbranch_scc1 {u}_got
        s_waitcnt vmcnt(32)
        v_readfirstlane_b32 s11, v255
        s_mov_b32 s8, 0
        s_cmp_ge_u32 s11, {NPOOL}
        s_cbranch_scc1 {u}_got
        s_mov_b32 s9, 1''')
        g(f'''s_and_b32 s10, s11, 127
        s_lshr_b32 s10, s10, 2
        s_lshl_b32 s10, s10, 18
        s_and_b32 s12, s11, 3
        s_lshl_b32 s12, s12, 14
        s_add_u32 s10, s10, s12
        s_lshr_b32 s12, s11, 7
        s_add_u32 s12, s12, {NSTAT}
        s_lshl_b32 s12, s12, 16
        s_add_u32 s10, s10, s12
        s_add_u32 s10, s10, s4''')
        g.label(f'{u}_got')
        g(f's_cmp_eq_u32 s9, 0\ns_cbranch_scc1 {u}_nok')
        g(f's_cmp_lg_u32 s6, 0\ns_cbranch_scc1 {u}_not')
        ticket_req()
        g('s_mov_b32 s8, 1')
        g.label(f'{u}_not')
        kload(buf, 's10')
        g.label(f'{u}_nok')
        g('s_nop 7')
        for i in range(8):
            a, b = f'v{BS+2*i}', f'v{BS+2*i+1}'
            bf16r_pair(g, a, b, 'v250')
            g(f'v_mul_f32 {a}, s61, {a}\nv_mul_f32 {b}, s61, {b}')
            bf16r_pair(g, a, b, 'v250')
        g(f'v_max3_f32 v250, v{BS}, v{BS+1}, v248')
        for i in range(1, 8):
            g(f'v_max3_f32 v250, v250, v{BS+2*i}, v{BS+2*i+1}')
        allred_x16(g, 'v_max_f32', 'v250', 'v251')
        allred_x32(g, 'v_max_f32', 'v250', 'v251')
        g('''v_sub_f32 v252, v248, v250
        v_mul_f32 v252, s60, v252
        v_exp_f32 v252, v252
        v_mov_b32 v248, v250
        v_mov_b32 v253, 0
        v_mov_b32 v254, 0''')
        for i in range(0, 16, 2):
            g(f'''v_sub_f32 v{BS+i}, v{BS+i}, v248
            v_sub_f32 v{BS+i+1}, v{BS+i+1}, v248
            v_mul_f32 v{BS+i}, s60, v{BS+i}
            v_mul_f32 v{BS+i+1}, s60, v{BS+i+1}
            v_exp_f32 v{BS+i}, v{BS+i}
            v_exp_f32 v{BS+i+1}, v{BS+i+1}
            s_nop 0
            v_add_f32 v253, v253, v{BS+i}
            v_add_f32 v254, v254, v{BS+i+1}
            v_cvt_pk_bf16_f32 v{BPK+i//2}, v{BS+i}, v{BS+i+1}''')
        g('v_add_f32 v253, v253, v254\nv_fma_f32 v249, v249, v252, v253')
        for i in range(32):
            g(f'v_mul_f32 v{BO+i}, v{BO+i}, v252')
        g(f'''s_lshl_b32 s12, s7, 1
        s_add_u32 s12, s12, s9
        s_cmp_eq_u32 s12, 3
        s_cbranch_scc1 {u}_v3
        s_cmp_eq_u32 s12, 2
        s_cbranch_scc1 {u}_v2
        s_cmp_eq_u32 s12, 1
        s_cbranch_scc1 {u}_v1
        s_waitcnt vmcnt(0)
        s_branch {u}_vd''')
        g.label(f'{u}_v3'); g(f's_waitcnt vmcnt(48)\ns_branch {u}_vd')
        g.label(f'{u}_v2'); g(f's_waitcnt vmcnt(32)\ns_branch {u}_vd')
        g.label(f'{u}_v1'); g('s_waitcnt vmcnt(16)')
        g.label(f'{u}_vd')
        for U in range(2):
            ra = VS + 16 * (4 * buf + 2 * U)
            rb = ra + 16
            for hf in range(2):
                for tt in range(4):
                    t = 4 * hf + tt
                    d = t >> 1
                    sel = 's58' if (t & 1) == 0 else 's59'
                    o = BS + 4 * tt
                    g(f'v_perm_b32 v{o}, v{ra+4+d}, v{ra+d}, {sel}')
                    g(f'v_perm_b32 v{o+1}, v{ra+12+d}, v{ra+8+d}, {sel}')
                    g(f'v_perm_b32 v{o+2}, v{rb+4+d}, v{rb+d}, {sel}')
                    g(f'v_perm_b32 v{o+3}, v{rb+12+d}, v{rb+8+d}, {sel}')
                g('s_nop 1')
                for tt in range(4):
                    t = 4 * hf + tt
                    o = BS + 4 * tt
                    acc = BO + 4 * t
                    g(f'v_mfma_f32_16x16x32_bf16 v[{acc}:{acc+3}], v[{o}:{o+3}], v[{BPK+4*U}:{BPK+4*U+3}], v[{acc}:{acc+3}]')
        g(f's_cmp_eq_u32 s9, 0\ns_cbranch_scc1 {u}_nov')
        vload(buf, 's10')
        g(f's_branch {u}_cont')
        g.label(f'{u}_nov')
        g(f's_cmp_eq_u32 s7, 0\ns_cbranch_scc1 {u}_cont')
        lds_signal(g, C_V, add=True)
        g.label(f'{u}_cont')
        g(f'''s_mov_b32 s12, s7
        s_mov_b32 s7, s9
        s_cmp_eq_u32 s12, 0
        s_cbranch_scc1 {exit_label}''')
        if nxt_label:
            g(f's_branch {nxt_label}')
    g.label('L_SLOOP')
    half(0, None, 'L_SEXIT')
    half(1, 'L_SLOOP', 'L_SEXIT')
    g.label('L_SEXIT')
    g('s_nop 7')
    g('v_mov_b32 v253, v249')
    allred_x16(g, 'v_add_f32', 'v253', 'v251')
    allred_x32(g, 'v_add_f32', 'v253', 'v251')
    g(f'''s_lshl_b32 s46, s44, 6
    v_lshlrev_b32 v3, 2, v0
    v_add_u32 v3, s46, v3
    s_mov_b64 exec, 0xff
    ds_write_b32 v3, v248 offset:{L_ST}
    ds_write_b32 v3, v253 offset:{L_ST+32}
    s_mov_b64 exec, -1''')
    lds_signal(g, C_ST, add=True)
    ts(g, 5)
    g(f'''s_lshl_b32 s46, s44, 12
    v_lshlrev_b32 v3, 9, v4
    v_lshl_add_u32 v3, v5, 7, v3
    v_add_u32 v3, s46, v3
    s_mov_b32 exec_lo, 0x00ff00ff
    s_mov_b32 exec_hi, 0x00ff00ff''')
    for t in range(8):
        acc = BO + 4 * t
        g(f'ds_write_b128 v3, v[{acc}:{acc+3}] offset:{L_OP + 16*t}')
    g('s_mov_b64 exec, -1')
    lds_signal(g, C_O, add=True)
    g(f'''s_lshr_b32 s46, s86, 6
    s_lshl_b32 s46, s46, 18
    s_lshl_b32 s49, s44, 16
    s_add_u32 s46, s46, s49
    s_bfe_u32 s49, s86, 0x10005
    s_lshl_b32 s49, s49, 14
    s_add_u32 s46, s46, s49
    s_and_b32 s49, s86, 31
    s_lshl_b32 s49, s49, 9
    s_add_u32 s46, s46, s49
    s_add_u32 s46, s46, {W_O}
    v_and_b32 v2, 31, v0
    v_lshlrev_b32 v2, 4, v2
    v_lshrrev_b32 v1, 5, v0
    v_lshl_add_u32 v2, v1, 15, v2
    s_lshl_b32 s49, s44, 10
    v_lshlrev_b32 v3, 4, v0
    v_add_u32 v3, s49, v3''')
    g(f'''s_lshl_b32 s49, s44, 3
    v_lshl_add_u32 v4, v1, 2, s49
    s_lshl_b32 s52, s86, 6
    s_add_u32 s52, s52, {W_ML}''')
    lds_wait(g, C_O, 4)
    for w in range(4):
        g(f'ds_read_b32 v{16+w}, v4 offset:{L_ST + 64*w}\nds_read_b32 v{20+w}, v4 offset:{L_ST + 64*w + 32}')
    for w in range(4):
        g(f'ds_read_b128 v[{88+4*w}:{91+4*w}], v3 offset:{L_OP + 4096*w}')
    g('''s_waitcnt lgkmcnt(4)
    v_max3_f32 v24, v16, v17, v18
    v_max_f32 v24, v24, v19''')
    for w in range(4):
        g(f'v_sub_f32 v{16+w}, v{16+w}, v24\nv_mul_f32 v{16+w}, s60, v{16+w}\nv_exp_f32 v{16+w}, v{16+w}')
    g('''s_nop 0
    v_mul_f32 v25, v20, v16
    v_fma_f32 v25, v21, v17, v25
    v_fma_f32 v25, v22, v18, v25
    v_fma_f32 v25, v23, v19, v25
    s_waitcnt lgkmcnt(0)''')
    for r in range(4):
        g(f'''v_mul_f32 v{8+r}, v{88+r}, v16
        v_mul_f32 v{12+r}, v{96+r}, v18
        v_fma_f32 v{8+r}, v{92+r}, v17, v{8+r}
        v_fma_f32 v{12+r}, v{100+r}, v19, v{12+r}
        v_add_f32 v{8+r}, v{8+r}, v{12+r}''')
    g('''buffer_store_dwordx4 v[8:11], v2, s[36:39], s46 offen sc1
    s_mov_b32 exec_lo, 1
    s_mov_b32 exec_hi, 1
    buffer_store_dword v24, v4, s[36:39], s52 offen sc1
    buffer_store_dword v25, v4, s[36:39], s52 offen offset:32 sc1
    s_mov_b64 exec, -1''')
    if args.omode >= 2:
        d = g.uniq('OA')
        g(f'''v_mov_b32 v6, {C_ST}
        v_mov_b32 v7, 1
        s_mov_b64 exec, 1
        ds_add_rtn_u32 v7, v6, v7
        s_waitcnt lgkmcnt(0)
        v_readfirstlane_b32 s49, v7
        s_mov_b64 exec, -1
        s_cmp_eq_u32 s49, 7
        s_cbranch_scc0 {d}''')
        read_nonce(g)
        g('s_lshr_b32 s48, s86, 6\ns_add_u32 s48, s48, 8\ns_andn2_b32 s49, s86, 63\ns_add_u32 s49, s49, 257')
        arrive(g, 's48', 64, sctr='s49', ack=False)
        g.label(d)
    ts(g, 6)
    ts_dump(g, 7)
    g('s_endpgm')

def gen_steal2(g, args):
    g.label('L_BULK')
    vm = VM(g)
    BQ, BS, BPK, BO, KST, VS = 8, 24, 40, 48, 80, 112
    KV_ = ['v240', 'v241', 'v242', 'v243']
    KR_ = ['v244', 'v245', 'v246', 'v247']
    TS = 16384
    srd(g, 28, 6, 64 * 1024 * 1024)
    srd(g, 32, 8, 64 * 1024 * 1024)
    g(f'''s_sub_u32 s44, s3, 4
    s_lshr_b32 s45, s86, 6
    s_bfe_u32 s46, s86, 0x10005
    s_lshl_b32 s46, s46, 2
    s_add_u32 s45, s45, s46
    s_lshl_b32 s45, s45, 23
    s_mov_b32 s4, s45
    s_and_b32 s46, s86, 31
    s_lshl_b32 s46, s46, 18
    s_add_u32 s45, s45, s46
    s_lshl_b32 s46, s44, 13
    s_add_u32 s45, s45, s46
    v_and_b32 v4, 15, v0
    v_lshrrev_b32 v5, 4, v0
    v_lshlrev_b32 v2, 4, v0
    s_lshl_b32 s48, s44, 15
    s_add_u32 s48, s48, {L_V}
    v_xor_b32 v6, v4, v5
    v_lshlrev_b32 v7, 8, v5
    v_lshl_add_u32 v240, v6, 4, v7
    v_xor_b32 v241, 64, v240
    v_add_u32 v241, 1024, v241
    v_xor_b32 v242, 128, v240
    v_add_u32 v242, 2048, v242
    v_xor_b32 v243, 192, v240
    v_add_u32 v243, 3072, v243
    v_and_b32 v6, 3, v4
    v_lshlrev_b32 v6, 2, v6
    v_lshrrev_b32 v7, 2, v4
    v_add_u32 v6, v6, v7
    v_xor_b32 v7, v6, v5
    v_lshlrev_b32 v6, 8, v6
    v_lshl_add_u32 v244, v7, 4, v6
    v_xor_b32 v245, 64, v244
    v_xor_b32 v246, 128, v244
    v_xor_b32 v247, 192, v244
    v_add_u32 v244, s48, v244
    v_add_u32 v245, s48, v245
    v_add_u32 v246, s48, v246
    v_add_u32 v247, s48, v247
    s_barrier''')
    CAP = 4 * args.infl
    NSP = args.nsp
    NPOOL = (8 - NSP) * 128
    cnt = [0]
    def hooks():
        if cnt[0] == args.pre:
            lds_wait(g, C_X, 1)
        if cnt[0] == args.ksig:
            lds_signal(g, C_K, add=True)
        cnt[0] += 1
    def kload(buf, soff, hook=False):
        for i in range(2):
            g(f's_waitcnt vmcnt({CAP - 4})')
            if hook:
                hooks()
            g(f's_add_u32 s46, {soff}, {4096*i}')
            for j in range(4):
                g(f's_add_u32 s49, s48, {4096*(2*buf+i) + 1024*j}\ns_mov_b32 m0, s49\ns_nop 0')
                g(f'buffer_load_dwordx4 {KV_[j]}, s[28:31], s46 offen nt lds')
    def vload(buf, soff, hook=False):
        for i in range(2):
            g(f's_waitcnt vmcnt({CAP - 4})')
            if hook:
                hooks()
            r0 = VS + 16 * (2 * buf + i)
            g(f's_add_u32 s46, {soff}, {4096*i}')
            for j in range(4):
                g(f'buffer_load_dwordx4 v[{r0+4*j}:{r0+4*j+3}], v2, s[32:35], s46 offen offset:{1024*j} nt')
    def kread(slot):
        r0 = KST + 16 * (slot & 1)
        for j in range(4):
            g(f'ds_read_b128 v[{r0+4*j}:{r0+4*j+3}], {KR_[j]} offset:{4096*slot}')
    def ticket_req():
        g('''v_mov_b32 v255, 1
        s_mov_b64 exec, 1
        buffer_atomic_add v255, v1, s[36:39], 0 offen sc0
        s_mov_b64 exec, -1''')
    def qk(buf):
        kread(2 * buf); kread(2 * buf + 1)
        for i in range(2):
            g(f's_waitcnt lgkmcnt({4 if i == 0 else 0})')
            r0 = KST + 16 * i
            sreg = BS + 4 * i
            for j in range(4):
                cc = '0' if j == 0 else f'v[{sreg}:{sreg+3}]'
                g(f'v_mfma_f32_16x16x32_bf16 v[{sreg}:{sreg+3}], v[{r0+4*j}:{r0+4*j+3}], v[{BQ+4*j}:{BQ+4*j+3}], {cc}')
    def softmax():
        g('s_nop 7')
        for i in range(4):
            a, b = f'v{BS+2*i}', f'v{BS+2*i+1}'
            bf16r_pair(g, a, b, 'v250')
            g(f'v_mul_f32 {a}, s61, {a}\nv_mul_f32 {b}, s61, {b}')
            bf16r_pair(g, a, b, 'v250')
        g(f'v_max3_f32 v250, v{BS}, v{BS+1}, v248')
        for i in range(1, 4):
            g(f'v_max3_f32 v250, v250, v{BS+2*i}, v{BS+2*i+1}')
        allred_x16(g, 'v_max_f32', 'v250', 'v251')
        allred_x32(g, 'v_max_f32', 'v250', 'v251')
        g('''v_sub_f32 v252, v248, v250
        v_mul_f32 v252, s60, v252
        v_exp_f32 v252, v252
        v_mov_b32 v248, v250
        v_mov_b32 v253, 0
        v_mov_b32 v254, 0''')
        for i in range(0, 8, 2):
            g(f'''v_sub_f32 v{BS+i}, v{BS+i}, v248
            v_sub_f32 v{BS+i+1}, v{BS+i+1}, v248
            v_mul_f32 v{BS+i}, s60, v{BS+i}
            v_mul_f32 v{BS+i+1}, s60, v{BS+i+1}
            v_exp_f32 v{BS+i}, v{BS+i}
            v_exp_f32 v{BS+i+1}, v{BS+i+1}
            s_nop 0
            v_add_f32 v253, v253, v{BS+i}
            v_add_f32 v254, v254, v{BS+i+1}
            v_cvt_pk_bf16_f32 v{BPK+i//2}, v{BS+i}, v{BS+i+1}''')
        g('v_add_f32 v253, v253, v254\nv_fma_f32 v249, v249, v252, v253')
        for i in range(32):
            g(f'v_mul_f32 v{BO+i}, v{BO+i}, v252')
    def pv(buf):
        ra = VS + 32 * buf
        rb = ra + 16
        for hf in range(2):
            for tt in range(4):
                t = 4 * hf + tt
                d = t >> 1
                sel = 's58' if (t & 1) == 0 else 's59'
                o = BS + 4 * tt
                g(f'v_perm_b32 v{o}, v{ra+4+d}, v{ra+d}, {sel}')
                g(f'v_perm_b32 v{o+1}, v{ra+12+d}, v{ra+8+d}, {sel}')
                g(f'v_perm_b32 v{o+2}, v{rb+4+d}, v{rb+d}, {sel}')
                g(f'v_perm_b32 v{o+3}, v{rb+12+d}, v{rb+8+d}, {sel}')
            g('s_nop 1')
            for tt in range(4):
                t = 4 * hf + tt
                o = BS + 4 * tt
                acc = BO + 4 * t
                g(f'v_mfma_f32_16x16x32_bf16 v[{acc}:{acc+3}], v[{o}:{o+3}], v[{BPK}:{BPK+3}], v[{acc}:{acc+3}]')
        g('s_nop 7')
    for p in range(4):
        g(f's_add_u32 s5, s45, {32768*p}')
        kload(p, 's5', True); vload(p, 's5', True)
        for _ in range(8): vm.issue(f'K{p}')
        for _ in range(8): vm.issue(f'V{p}')
    g(f'''s_andn2_b32 s46, s86, 31
    s_add_u32 s46, s46, 256
    s_lshl_b32 s46, s46, 7
    s_add_u32 s46, s46, {W_CT}
    v_mov_b32 v1, s46
    v_mov_b32 v248, 0xff800000
    v_mov_b32 v249, 0''')
    for i in range(32):
        g(f'v_mov_b32 v{BO+i}, 0')
    lds_wait(g, C_Q, 2)
    ts(g, 1)
    g('''v_and_b32 v3, 7, v0
    v_lshlrev_b32 v3, 8, v3
    v_lshl_add_u32 v3, v5, 4, v3''')
    for j in range(4):
        g(f'ds_read_b128 v[{BQ+4*j}:{BQ+4*j+3}], v3 offset:{L_Q + 64*j}')
    def tk_addr():
        g(f'''s_and_b32 s10, s11, 127
        s_lshr_b32 s10, s10, 2
        s_lshl_b32 s10, s10, 18
        s_and_b32 s12, s11, 3
        s_lshl_b32 s12, s12, 13
        s_add_u32 s10, s10, s12
        s_lshr_b32 s12, s11, 7
        s_add_u32 s12, s12, {NSP}
        s_lshl_b32 s12, s12, 15
        s_add_u32 s10, s10, s12
        s_add_u32 s5, s10, s4''')
    assert NSP in (4, 6)
    if NSP == 6:
        for p in range(4):
            vm.wait(f'K{p}')
            qk(p)
            if p < 2:
                g(f's_add_u32 s5, s45, {32768*(p+4)}')
                if p == 1:
                    ticket_req(); vm.issue('A')
                kload(p, 's5')
                for _ in range(8): vm.issue(f'K{p+4}')
            softmax()
            vm.wait(f'V{p}')
            pv(p)
            if p < 2:
                vload(p, 's5')
                for _ in range(8): vm.issue(f'V{p+4}')
        ts(g, 2)
        g('s_mov_b32 s7, 1\ns_mov_b32 s8, 1')
    else:
        ticket_req()
        g('s_waitcnt vmcnt(0)\ns_mov_b32 s8, 1')
        for p in range(4):
            qk(p)
            fl = 's13' if p == 0 else 's7'
            if p < 2:
                u = g.uniq('SP')
                g(f'''s_mov_b32 {fl}, 0
                s_cmp_eq_u32 s8, 0
                s_cbranch_scc1 {u}
                s_waitcnt vmcnt(16)
                v_readfirstlane_b32 s11, v255
                s_mov_b32 s8, 0
                s_cmp_ge_u32 s11, {NPOOL}
                s_cbranch_scc1 {u}
                s_mov_b32 {fl}, 1''')
                tk_addr()
                ticket_req()
                g('s_mov_b32 s8, 1')
                kload(p, 's5')
                g.label(u)
            softmax()
            pv(p)
            if p < 2:
                u = g.uniq('SV')
                g(f's_cmp_eq_u32 {fl}, 0\ns_cbranch_scc1 {u}')
                vload(p, 's5')
                g.label(u)
        ts(g, 2)
        u = g.uniq('SC')
        g(f's_cmp_lg_u32 s7, 0\ns_cbranch_scc1 {u}')
        lds_signal(g, C_V, add=True)
        g.label(u)
        g('s_cmp_eq_u32 s13, 0\ns_cbranch_scc1 L_SEXIT')
    def half(buf, nxt_label, exit_label):
        u = g.uniq('H')
        g(f'''s_cmp_eq_u32 s7, 0
        s_cbranch_scc1 {u}_w0
        s_waitcnt vmcnt(24)
        s_branch {u}_w1''')
        g.label(f'{u}_w0')
        g('s_waitcnt vmcnt(8)')
        g.label(f'{u}_w1')
        qk(buf)
        g(f'''s_mov_b32 s9, 0
        s_cmp_eq_u32 s8, 0
        s_cbranch_scc1 {u}_nok
        s_waitcnt vmcnt(16)
        v_readfirstlane_b32 s11, v255
        s_mov_b32 s8, 0
        s_cmp_ge_u32 s11, {NPOOL}
        s_cbranch_scc1 {u}_nok
        s_mov_b32 s9, 1
        s_and_b32 s10, s11, 127
        s_lshr_b32 s10, s10, 2
        s_lshl_b32 s10, s10, 18
        s_and_b32 s12, s11, 3
        s_lshl_b32 s12, s12, 13
        s_add_u32 s10, s10, s12
        s_lshr_b32 s12, s11, 7
        s_add_u32 s12, s12, {NSP}
        s_lshl_b32 s12, s12, 15
        s_add_u32 s10, s10, s12
        s_add_u32 s10, s10, s4''')
        ticket_req()
        g('s_mov_b32 s8, 1')
        kload(buf, 's10')
        g.label(f'{u}_nok')
        softmax()
        g(f'''s_lshl_b32 s12, s7, 1
        s_add_u32 s12, s12, s9
        s_cmp_eq_u32 s12, 3
        s_cbranch_scc1 {u}_v3
        s_cmp_eq_u32 s12, 2
        s_cbranch_scc1 {u}_v2
        s_cmp_eq_u32 s12, 1
        s_cbranch_scc1 {u}_v1
        s_waitcnt vmcnt(0)
        s_branch {u}_vd''')
        g.label(f'{u}_v3'); g(f's_waitcnt vmcnt(24)\ns_branch {u}_vd')
        g.label(f'{u}_v2'); g(f's_waitcnt vmcnt(16)\ns_branch {u}_vd')
        g.label(f'{u}_v1'); g('s_waitcnt vmcnt(8)')
        g.label(f'{u}_vd')
        pv(buf)
        g(f's_cmp_eq_u32 s9, 0\ns_cbranch_scc1 {u}_nov')
        vload(buf, 's10')
        g(f's_branch {u}_cont')
        g.label(f'{u}_nov')
        g(f's_cmp_eq_u32 s7, 0\ns_cbranch_scc1 {u}_cont')
        lds_signal(g, C_V, add=True)
        g.label(f'{u}_cont')
        g(f'''s_mov_b32 s12, s7
        s_mov_b32 s7, s9
        s_cmp_eq_u32 s12, 0
        s_cbranch_scc1 {exit_label}''')
        if nxt_label:
            g(f's_branch {nxt_label}')
    g.label('L_SLOOP')
    half(0, None, 'L_SEXIT')
    half(1, 'L_SLOOP', 'L_SEXIT')
    g.label('L_SEXIT')
    g('s_nop 7')
    g('v_mov_b32 v253, v249')
    allred_x16(g, 'v_add_f32', 'v253', 'v251')
    allred_x32(g, 'v_add_f32', 'v253', 'v251')
    g(f'''s_lshl_b32 s46, s44, 6
    v_lshlrev_b32 v3, 2, v0
    v_add_u32 v3, s46, v3
    s_mov_b64 exec, 0xff
    ds_write_b32 v3, v248 offset:{L_ST}
    ds_write_b32 v3, v253 offset:{L_ST+32}
    s_mov_b64 exec, -1''')
    lds_signal(g, C_ST, add=True)
    ts(g, 5)
    g(f'''s_lshl_b32 s46, s44, 12
    v_lshlrev_b32 v3, 9, v4
    v_lshl_add_u32 v3, v5, 7, v3
    v_add_u32 v3, s46, v3
    s_mov_b32 exec_lo, 0x00ff00ff
    s_mov_b32 exec_hi, 0x00ff00ff''')
    for t in range(8):
        acc = BO + 4 * t
        g(f'ds_write_b128 v3, v[{acc}:{acc+3}] offset:{L_OP + 16*t}')
    g('s_mov_b64 exec, -1')
    lds_signal(g, C_O, add=True)
    g(f'''s_lshr_b32 s46, s86, 6
    s_lshl_b32 s46, s46, 18
    s_lshl_b32 s49, s44, 16
    s_add_u32 s46, s46, s49
    s_bfe_u32 s49, s86, 0x10005
    s_lshl_b32 s49, s49, 14
    s_add_u32 s46, s46, s49
    s_and_b32 s49, s86, 31
    s_lshl_b32 s49, s49, 9
    s_add_u32 s46, s46, s49
    s_add_u32 s46, s46, {W_O}
    v_and_b32 v2, 31, v0
    v_lshlrev_b32 v2, 4, v2
    v_lshrrev_b32 v1, 5, v0
    v_lshl_add_u32 v2, v1, 15, v2
    s_lshl_b32 s49, s44, 10
    v_lshlrev_b32 v3, 4, v0
    v_add_u32 v3, s49, v3''')
    g(f'''s_lshl_b32 s49, s44, 3
    v_lshl_add_u32 v4, v1, 2, s49
    s_lshl_b32 s52, s86, 6
    s_add_u32 s52, s52, {W_ML}''')
    lds_wait(g, C_O, 4)
    for w in range(4):
        g(f'ds_read_b32 v{16+w}, v4 offset:{L_ST + 64*w}\nds_read_b32 v{20+w}, v4 offset:{L_ST + 64*w + 32}')
    for w in range(4):
        g(f'ds_read_b128 v[{88+4*w}:{91+4*w}], v3 offset:{L_OP + 4096*w}')
    g('''s_waitcnt lgkmcnt(4)
    v_max3_f32 v24, v16, v17, v18
    v_max_f32 v24, v24, v19''')
    for w in range(4):
        g(f'v_sub_f32 v{16+w}, v{16+w}, v24\nv_mul_f32 v{16+w}, s60, v{16+w}\nv_exp_f32 v{16+w}, v{16+w}')
    g('''s_nop 0
    v_mul_f32 v25, v20, v16
    v_fma_f32 v25, v21, v17, v25
    v_fma_f32 v25, v22, v18, v25
    v_fma_f32 v25, v23, v19, v25
    s_waitcnt lgkmcnt(0)''')
    for r in range(4):
        g(f'''v_mul_f32 v{8+r}, v{88+r}, v16
        v_mul_f32 v{12+r}, v{96+r}, v18
        v_fma_f32 v{8+r}, v{92+r}, v17, v{8+r}
        v_fma_f32 v{12+r}, v{100+r}, v19, v{12+r}
        v_add_f32 v{8+r}, v{8+r}, v{12+r}''')
    g('''buffer_store_dwordx4 v[8:11], v2, s[36:39], s46 offen sc1
    s_mov_b32 exec_lo, 1
    s_mov_b32 exec_hi, 1
    buffer_store_dword v24, v4, s[36:39], s52 offen sc1
    buffer_store_dword v25, v4, s[36:39], s52 offen offset:32 sc1
    s_mov_b64 exec, -1''')
    if args.omode >= 2:
        d = g.uniq('OA')
        g(f'''v_mov_b32 v6, {C_ST}
        v_mov_b32 v7, 1
        s_mov_b64 exec, 1
        ds_add_rtn_u32 v7, v6, v7
        s_waitcnt lgkmcnt(0)
        v_readfirstlane_b32 s49, v7
        s_mov_b64 exec, -1
        s_cmp_eq_u32 s49, 7
        s_cbranch_scc0 {d}''')
        read_nonce(g)
        g('s_lshr_b32 s48, s86, 6\ns_add_u32 s48, s48, 8\ns_andn2_b32 s49, s86, 63\ns_add_u32 s49, s49, 257')
        arrive(g, 's48', 64, sctr='s49', ack=False)
        g.label(d)
    ts(g, 6)
    ts_dump(g, 7)
    g('s_endpgm')

def gen(args):
    global PROF, NOHOP, NOLDS, PLAIN, QSH, QOFF
    QSH, QOFF = {0: (2, 0), 1: (2, 124), 2: (5, 96)}[args.qline]
    PLAIN = bool(args.plain)
    NOLDS = args.nolds
    PROF = args.prof
    NOHOP = args.nohop
    g = Gen()
    H = []
    H.append(f'; @launch grid=({NWG},1,1) block=(512,1,1) lds={LDS_BYTES + (4*8192 if args.flash else 0)}')
    H.append('.amdgcn_target "amdgcn-amd-amdhsa--gfx950"\n.text')
    H.append(f'.globl {KN}\n.p2align 8\n.type {KN},@function\n{KN}:')
    g(f'''s_cmp_ge_u32 s2, {NWG}
    s_cbranch_scc1 L_END
    s_load_dwordx16 s[4:19], s[0:1], 0
    s_load_dwordx8 s[20:27], s[0:1], 64
    v_lshrrev_b32 v1, 6, v0
    v_and_b32 v0, 63, v0
    s_mov_b32 s58, 0x05040100
    s_mov_b32 s59, 0x07060302
    v_readfirstlane_b32 s3, v1
    s_mov_b32 s60, {LOG2E}
    s_mov_b32 s61, {SCALE}
    s_waitcnt lgkmcnt(0)''')
    srd(g, 36, 26, 0x10000000)
    lane_masks(g)
    srd(g, 40, 24, 256)
    if args.remap:
        g('''s_and_b32 s90, s2, 7
        s_lshr_b32 s91, s2, 3
        s_lshl_b32 s86, s90, 5
        s_add_u32 s86, s86, s91
        s_lshr_b32 s92, s90, 1
        s_lshl_b32 s92, s92, 6
        s_and_b32 s93, s90, 1
        s_lshl_b32 s87, s91, 1
        s_add_u32 s87, s87, s93
        s_add_u32 s87, s87, s92
        s_lshl_b32 s88, s93, 2
        s_and_b32 s94, s91, 3
        s_add_u32 s88, s88, s94
        s_lshl_b32 s88, s88, 3
        s_lshr_b32 s94, s91, 2
        s_add_u32 s88, s88, s94
        s_add_u32 s88, s88, s92
        s_lshr_b32 s89, s91, 3
        s_lshl_b32 s89, s89, 3
        s_add_u32 s89, s89, s90
        s_cmp_lt_u32 s89, 28
        s_cselect_b32 s95, 1, 0
        s_lshl_b32 s89, s89, 3
        s_and_b32 s94, s91, 7
        s_add_u32 s89, s89, s94
        s_add_u32 s89, s89, 32
        s_mul_i32 s89, s89, s95''')
        if args.remap == 2:
            g('s_mov_b32 s86, s2\ns_mov_b32 s87, s2\ns_mov_b32 s88, s2')
    else:
        g('s_mov_b32 s86, s2\ns_mov_b32 s87, s2\ns_mov_b32 s88, s2\ns_mov_b32 s89, s2')
    g('''s_mov_b32 s90, 0x07060503
    s_mov_b32 s91, 0x07060502
    s_mov_b32 s92, 0x07060501
    s_mov_b32 s93, 0x04000c0c
    s_mov_b32 s94, 0x0706000c''')
    ts(g, 0)
    if args.noaux:
        g('s_cmp_ge_u32 s3, 4\ns_cbranch_scc1 L_BULK\ns_barrier\ns_endpgm')
    g('''s_cmp_ge_u32 s3, 4
    s_cbranch_scc1 L_BULK
    s_cmp_eq_u32 s3, 0
    s_cbranch_scc1 L_A0
    s_cmp_eq_u32 s3, 3
    s_cbranch_scc1 L_A3
    s_branch L_A12''')

    g.label('L_A3')
    srd(g, 28, 4, 4096)
    g('''v_lshlrev_b32 v1, 6, v0
    buffer_load_dwordx4 v[8:11], v1, s[28:31], 0 offen
    buffer_load_dwordx4 v[12:15], v1, s[28:31], 0 offen offset:16
    buffer_load_dwordx4 v[16:19], v1, s[28:31], 0 offen offset:32
    buffer_load_dwordx4 v[20:23], v1, s[28:31], 0 offen offset:48''')
    g(f'''v_mov_b32 v2, 0
    v_lshlrev_b32 v3, 2, v0
    v_add_u32 v3, {L_CT}, v3
    s_mov_b64 exec, 0xffff
    ds_write_b32 v3, v2
    s_mov_b64 exec, -1
    s_waitcnt lgkmcnt(0)
    s_barrier
    s_waitcnt vmcnt(0)''')
    for i in range(16):
        g(f'v_lshlrev_b32 v{24+2*i}, 16, v{8+i}\nv_and_b32 v{25+2*i}, 0xffff0000, v{8+i}')
    g('v_add_f32 v56, v24, v25')
    for i in range(26, 56):
        g(f'v_add_f32 v56, v56, v{i}')
    allred_row16(g, 'v_add_f32', 'v56', 'v57')
    allred_x16(g, 'v_add_f32', 'v56', 'v57')
    g('v_mul_f32 v56, 0x3a800000, v56')
    g('v_sub_f32 v58, v24, v56\nv_mul_f32 v59, v58, v58')
    for i in range(25, 56):
        g(f'v_sub_f32 v58, v{i}, v56\nv_fma_f32 v59, v58, v58, v59')
    allred_row16(g, 'v_add_f32', 'v59', 'v57')
    allred_x16(g, 'v_add_f32', 'v59', 'v57')
    g('v_mul_f32 v59, 0x3a800000, v59')
    bf16r(g, 'v56')
    bf16r(g, 'v59')
    g(f'v_add_f32 v59, {EPS}, v59')
    bf16r(g, 'v59')
    g('''v_sqrt_f32 v60, v59
    s_nop 0
    v_rcp_f32 v61, v60
    v_fma_f32 v62, -v60, v60, v59
    v_mul_f32 v61, 0.5, v61
    v_fma_f32 v60, v62, v61, v60''')
    bf16r(g, 'v60')
    g('v_rcp_f32 v61, v60')
    for i in range(16):
        a, b = f'v{24+2*i}', f'v{25+2*i}'
        g(f'v_sub_f32 {a}, {a}, v56\nv_sub_f32 {b}, {b}, v56')
        bf16r_pair(g, a, b, 'v62')
        for r in (a, b):
            g(f'''v_mul_f32 v62, {r}, v61
            v_fma_f32 v63, -v62, v60, {r}
            v_fma_f32 {r}, v63, v61, v62''')
        g(f'v_cvt_pk_bf16_f32 v{8+i}, {a}, {b}')
    g(f'''ds_write_b128 v1, v[8:11] offset:{L_XN}
    ds_write_b128 v1, v[12:15] offset:{L_XN+16}
    ds_write_b128 v1, v[16:19] offset:{L_XN+32}
    ds_write_b128 v1, v[20:23] offset:{L_XN+48}''')
    lds_signal(g, C_X)
    ts(g, 1)
    read_nonce(g)
    q_gather(g, args, 1)
    lds_wait(g, C_Q, 2)
    ts(g, 2)
    def ml_block():
        ts(g, 3)
        lds_wait(g, C_ST, 4)
        ts(g, 4)
        g(f'''v_and_b32 v1, 7, v0
        v_lshlrev_b32 v1, 2, v1''')
        for w in range(4):
            g(f'ds_read_b32 v{8+w}, v1 offset:{L_ST + 64*w}\nds_read_b32 v{16+w}, v1 offset:{L_ST + 64*w + 32}')
        g('s_waitcnt lgkmcnt(0)')
        g('v_max3_f32 v24, v8, v9, v10\nv_max_f32 v24, v24, v11')
        g('v_mov_b32 v25, 0')
        for w in range(4):
            g(f'''v_sub_f32 v26, v{8+w}, v24
            v_mul_f32 v26, s60, v26
            v_exp_f32 v26, v26
            s_nop 0
            v_fma_f32 v25, v26, v{16+w}, v25''')
        if args.noml:
            g(f'''v_and_b32 v2, 7, v0
            v_lshlrev_b32 v2, 2, v2
            v_mov_b32 v26, 1.0
            s_mov_b64 exec, 0xff
            ds_write_b32 v2, v24 offset:{L_ML}
            ds_write_b32 v2, v26 offset:{L_ML+32}
            s_mov_b64 exec, -1
            s_lshl_b32 s46, s86, 6
            s_add_u32 s46, s46, {W_ML}
            v_cndmask_b32 v24, v24, v25, s[84:85]
            v_lshlrev_b32 v1, 2, v0
            s_mov_b64 exec, 0xffff
            buffer_store_dword v24, v1, s[36:39], s46 offen sc1
            s_mov_b64 exec, -1''')
            ts(g, 5)
        else:
            g(f'''s_lshl_b32 s46, s86, 6
            s_add_u32 s46, s46, {W_ML}
            v_cndmask_b32 v24, v24, v25, s[84:85]
            v_lshlrev_b32 v1, 2, v0
            s_mov_b64 exec, 0xffff
            buffer_store_dword v24, v1, s[36:39], s46 offen sc1
            s_mov_b64 exec, -1
            s_lshr_b32 s48, s86, 5
            s_add_u32 s48, s48, 8''')
            g('s_andn2_b32 s49, s86, 31\ns_add_u32 s49, s49, 256')
            arrive(g, 's48', 32, sctr='s49', ack=False)
            flag_wait(g, 's48', 8)
            g(f'''s_andn2_b32 s44, s86, 31
            s_lshl_b32 s44, s44, 6
            s_add_u32 s44, s44, {W_ML}
            v_and_b32 v1, 31, v0
            v_lshlrev_b32 v1, 6, v1
            v_lshrrev_b32 v2, 5, v0
            v_lshl_add_u32 v1, v2, 4, v1''')
            def issue_ml():
                g('buffer_load_dwordx4 v[8:11], v1, s[36:39], s44 offen sc1')
                g('buffer_load_dwordx4 v[12:15], v1, s[36:39], s44 offen offset:32 sc1')
            poll_loop(g, issue_ml, range(8, 16), sleep=8)
            ts(g, 5)
            for r in range(4):
                g(f'v_mov_b32 v{16+r}, v{8+r}')
                allred_row16(g, 'v_max_f32', f'v{16+r}', 'v24')
                allred_x16(g, 'v_max_f32', f'v{16+r}', 'v24')
                g(f'''v_sub_f32 v24, v{8+r}, v{16+r}
                v_mul_f32 v24, s60, v24
                v_exp_f32 v24, v24
                s_nop 0
                v_mul_f32 v{12+r}, v{12+r}, v24''')
                allred_row16(g, 'v_add_f32', f'v{12+r}', 'v24')
                allred_x16(g, 'v_add_f32', f'v{12+r}', 'v24')
                g('v_mov_b32 v26, 1.0')
                precise_div(g, f'v{20+r}', 'v26', f'v{12+r}', 'v24', 'v25')
            g(f'''v_lshrrev_b32 v2, 5, v0
            v_lshlrev_b32 v2, 4, v2
            s_mov_b32 exec_lo, 1
            s_mov_b32 exec_hi, 1
            ds_write_b128 v2, v[16:19] offset:{L_ML}
            ds_write_b128 v2, v[20:23] offset:{L_ML+32}
            s_mov_b64 exec, -1''')
        lds_signal(g, C_ML)
    def h_block():
        g('s_cmp_lt_u32 s89, 32\ns_cbranch_scc1 L_A3_OG')
        g(f'''s_sub_u32 s44, s89, 32
        s_lshr_b32 s44, s44, 3
        s_lshl_b32 s44, s44, 14
        s_add_u32 s44, s44, {W_GU}
        s_lshr_b32 s45, s44, 1
        s_add_u32 s45, s45, {W_B}
        v_lshlrev_b32 v1, 4, v0
        v_lshlrev_b32 v2, 3, v0''')
        g('s_sub_u32 s48, s89, 32\ns_lshr_b32 s48, s48, 3\ns_add_u32 s48, s48, 16')
        flag_wait(g, 's48', 32)
        def issue_h():
            for ks in range(8):
                g(f's_add_u32 s46, s44, {ks*2048}')
                g(f'buffer_load_dwordx4 v[{72+4*ks}:{75+4*ks}], v1, s[36:39], s46 offen sc1')
                g(f'buffer_load_dwordx4 v[{104+4*ks}:{107+4*ks}], v1, s[36:39], s46 offen offset:1024 sc1')
        tags = [75 + 4 * k for k in range(16)]
        if 'h2' not in args.skip:
            tpoll_loop(g, issue_h, tags, sleep=16, plain=True)
        for k in range(16):
            unpack_d(g, 72 + 4 * k)
        for r in range(4):
            ga = (lambda ks: 72 + 4 * ks + r)
            ua = (lambda ks: 104 + 4 * ks + r)
            g(f'v_add_f32 v{8+r}, v{ga(0)}, v{ga(1)}\nv_add_f32 v{12+r}, v{ua(0)}, v{ua(1)}')
            for ks in range(2, 8):
                g(f'v_add_f32 v{8+r}, v{8+r}, v{ga(ks)}\nv_add_f32 v{12+r}, v{12+r}, v{ua(ks)}')
        bf16r_pair(g, 'v8', 'v9', 'v16'); bf16r_pair(g, 'v10', 'v11', 'v16')
        bf16r_pair(g, 'v12', 'v13', 'v16'); bf16r_pair(g, 'v14', 'v15', 'v16')
        for r in range(4):
            silu(g, f'v{8+r}', 'v16', 'v17', 'v18')
        bf16r_pair(g, 'v8', 'v9', 'v16'); bf16r_pair(g, 'v10', 'v11', 'v16')
        for r in range(4):
            g(f'v_mul_f32 v{8+r}, v{8+r}, v{12+r}')
        g('v_cvt_pk_bf16_f32 v8, v8, v9\nv_cvt_pk_bf16_f32 v10, v10, v11')
        g(f'''v_lshrrev_b32 v2, 5, v0
        v_lshlrev_b32 v2, 8, v2
        v_bfe_u32 v3, v0, 3, 2
        v_lshlrev_b32 v3, 6, v3
        v_and_b32 v4, 7, v0
        v_lshlrev_b32 v4, 1, v4
        v_add3_u32 v5, v2, v3, v4
        ds_write_b16 v5, v8 offset:{L_H}
        ds_write_b16_d16_hi v5, v8 offset:{L_H+16}
        ds_write_b16 v5, v10 offset:{L_H+32}
        ds_write_b16_d16_hi v5, v10 offset:{L_H+48}''')
        lds_signal(g, C_H)
        g.label('L_A3_OG')
    if args.flash:
        h_block()
    else:
        ml_block(); h_block()
    g(f'''s_lshr_b32 s44, s88, 3
    s_lshl_b32 s44, s44, 15
    s_bfe_u32 s45, s88, 0x10002
    s_lshl_b32 s45, s45, 8
    s_add_u32 s44, s44, s45
    s_add_u32 s44, s44, {W_O}
    v_bfe_u32 v2, v0, 4, 1
    v_lshlrev_b32 v2, 14, v2
    v_lshrrev_b32 v3, 5, v0
    v_lshl_add_u32 v2, v3, 13, v2
    v_and_b32 v1, 15, v0
    v_lshl_add_u32 v1, v1, 4, v2''')
    def issue_o():
        for sp in range(16):
            if sp % 8 == 0:
                g(f's_add_u32 s46, s44, {sp*512}')
            g(f'buffer_load_dwordx4 v[{40+4*sp}:{43+4*sp}], v1, s[36:39], s46 offen offset:{(sp%8)*512} sc1')
    assert args.noml
    g(f'''s_lshr_b32 s48, s88, 6
    s_lshl_b32 s48, s48, 12
    s_bfe_u32 s49, s88, 0x30003
    s_lshl_b32 s49, s49, 2
    s_add_u32 s48, s48, s49
    s_add_u32 s48, s48, {W_ML}
    v_lshlrev_b32 v2, 6, v0''')
    def issue_w():
        g('buffer_load_dword v8, v2, s[36:39], s48 offen sc1')
        g('buffer_load_dword v9, v2, s[36:39], s48 offen offset:32 sc1')
    def weights():
        g('v_mov_b32 v10, v8')
        allred_row16(g, 'v_max_f32', 'v10', 'v11')
        allred_x16(g, 'v_max_f32', 'v10', 'v11')
        g('''v_sub_f32 v8, v8, v10
        v_mul_f32 v8, s60, v8
        v_exp_f32 v8, v8
        s_nop 0
        v_mul_f32 v9, v9, v8''')
        allred_row16(g, 'v_add_f32', 'v9', 'v11')
        allred_x16(g, 'v_add_f32', 'v9', 'v11')
        precise_div(g, 'v10', 'v8', 'v9', 'v11', 'v12')
        g(f'''v_lshlrev_b32 v2, 2, v0
        ds_write_b32 v2, v10 offset:{L_W}
        v_bfe_u32 v2, v0, 4, 1
        v_lshlrev_b32 v2, 7, v2
        v_lshrrev_b32 v3, 5, v0
        v_lshl_add_u32 v2, v3, 6, v2
        s_waitcnt lgkmcnt(0)
        ds_read_b128 v[24:27], v2 offset:{L_W}
        ds_read_b128 v[28:31], v2 offset:{L_W+16}
        ds_read_b128 v[32:35], v2 offset:{L_W+32}
        ds_read_b128 v[36:39], v2 offset:{L_W+48}''')
    if args.flash:
        lds_wait(g, C_O, 4)
        def issue_both():
            issue_w(); issue_o()
        if args.omode == 0:
            poll_loop(g, issue_both, [8, 9] + list(range(40, 104)), sleep=args.osleep)
            weights()
        elif args.omode == 1:
            poll_loop(g, issue_w, [8, 9], sleep=args.osleep)
            weights()
            poll_loop(g, issue_o, range(40, 104), sleep=args.osleep)
        elif args.omode == 3:
            g(f's_andn2_b32 s53, s88, 63\ns_add_u32 s53, s53, 257\ns_lshl_b32 s53, s53, 7\ns_add_u32 s53, s53, {W_CT}')
            counter_wait(g, 36, 's53', 64, args.osleep)
            poll_loop(g, issue_both, [8, 9] + list(range(40, 104)), sleep=4)
            weights()
        else:
            g('s_lshr_b32 s49, s88, 6\ns_add_u32 s49, s49, 8')
            flag_wait(g, 's49', 2, stmp='s53')
            poll_loop(g, issue_both, [8, 9] + list(range(40, 104)), sleep=4)
            weights()
    else:
        lds_wait(g, C_V, 1)
        poll_loop(g, issue_w, [8, 9], sleep=8)
        weights()
        lds_wait(g, C_O, 4)
    if 'o2' not in args.skip and not args.flash:
        poll_loop(g, issue_o, range(40, 104), sleep=args.osleep)
    g('s_waitcnt lgkmcnt(0)')
    ts(g, 6)
    for r in range(4):
        if args.noml:
            g(f'v_mul_f32 v{8+r}, v{40+r}, v24\nv_mul_f32 v{12+r}, v{44+r}, v25')
            for sp in range(2, 16, 2):
                g(f'v_fma_f32 v{8+r}, v{40+4*sp+r}, v{24+sp}, v{8+r}\nv_fma_f32 v{12+r}, v{44+4*sp+r}, v{25+sp}, v{12+r}')
        else:
            g(f'v_add_f32 v{8+r}, v{40+r}, v{44+r}\nv_add_f32 v{12+r}, v{48+r}, v{52+r}')
            for sp in range(4, 16, 2):
                g(f'v_add_f32 v{8+r}, v{8+r}, v{40+4*sp+r}\nv_add_f32 v{12+r}, v{12+r}, v{44+4*sp+r}')
        g(f'v_add_f32 v{8+r}, v{8+r}, v{12+r}')
    for r in range(4):
        allred_x32(g, 'v_add_f32', f'v{8+r}', 'v12')
    g('v_cvt_pk_bf16_f32 v8, v8, v9\nv_cvt_pk_bf16_f32 v10, v10, v11')
    g(f'''v_bfe_u32 v2, v0, 4, 1
    v_lshlrev_b32 v2, 7, v2
    v_bfe_u32 v3, v0, 3, 1
    v_lshlrev_b32 v3, 6, v3
    v_and_b32 v4, 7, v0
    v_lshlrev_b32 v4, 1, v4
    v_add3_u32 v5, v2, v3, v4
    s_mov_b32 exec_hi, 0
    ds_write_b16 v5, v8 offset:{L_OB}
    ds_write_b16_d16_hi v5, v8 offset:{L_OB+16}
    ds_write_b16 v5, v10 offset:{L_OB+32}
    ds_write_b16_d16_hi v5, v10 offset:{L_OB+48}
    s_mov_b64 exec, -1''')
    lds_signal(g, C_OG)
    ts(g, 7)
    ts_dump(g, 8)
    g('s_endpgm')

    g.label('L_A0')
    vm = VM(g)
    srd(g, 40, 24, 256)
    g('''s_memrealtime s[54:55]
    v_mov_b32 v8, -1
    v_mov_b32 v9, -1
    v_mov_b32 v10, -1
    v_mov_b32 v11, -1
    v_lshlrev_b32 v3, 4, v0
    v_lshrrev_b32 v4, 5, v0
    v_and_b32 v5, 31, v0
    v_lshlrev_b32 v5, 4, v5
    v_mov_b32 v13, 0
    v_mov_b32 v14, 0
    s_waitcnt lgkmcnt(0)
    s_or_b32 s54, s54, 1
    v_mov_b32 v12, s54
    s_mov_b64 exec, 1
    buffer_atomic_cmpswap v[12:13], v14, s[40:43], 0 offen sc0
    s_mov_b64 exec, -1''')
    vm.issue('nonce')
    def clr(voff, off=0):
        g(f'buffer_store_dwordx4 v[8:11], {voff}, s[36:39], s46 offen offset:{off} sc1')
        vm.issue('clr')
    g(f'''s_sub_u32 s48, s89, 32
    s_and_b32 s48, s48, 255
    s_and_b32 s46, s48, 7
    s_lshl_b32 s46, s46, 15
    s_lshr_b32 s48, s48, 3
    s_lshl_b32 s48, s48, 9
    s_add_u32 s46, s46, s48
    s_add_u32 s56, s46, {W_F}
    s_mov_b32 s46, s56
    v_lshl_add_u32 v6, v4, 14, v5''')
    clr('v6')
    g(f'''s_and_b32 s46, s88, 3
    s_lshl_b32 s46, s46, 17
    s_lshr_b32 s48, s88, 2
    s_lshl_b32 s48, s48, 9
    s_add_u32 s46, s46, s48
    s_add_u32 s46, s46, {W_S}
    v_lshl_add_u32 v6, v4, 15, v5''')
    clr('v6')
    g('s_add_u32 s46, s46, 65536')
    clr('v6')
    g(f'''s_lshr_b32 s46, s86, 6
    s_lshl_b32 s46, s46, 18
    s_bfe_u32 s48, s86, 0x10005
    s_lshl_b32 s48, s48, 14
    s_add_u32 s46, s46, s48
    s_and_b32 s48, s86, 31
    s_lshl_b32 s48, s48, 9
    s_add_u32 s46, s46, s48
    s_add_u32 s46, s46, {W_O}
    v_lshl_add_u32 v6, v4, 15, v5''')
    for i in range(4):
        clr('v6')
        if i < 3:
            g('s_add_u32 s46, s46, 65536')
    g(f'''s_lshl_b32 s46, s86, 6
    s_add_u32 s46, s46, {W_ML}
    s_mov_b64 exec, 15''')
    clr('v3')
    g(f'''s_mov_b64 exec, 1
    s_lshl_b32 s46, s2, 7
    s_add_u32 s46, s46, {W_CT}
    buffer_store_dword v14, v14, s[36:39], s46 offen sc1
    s_lshl_b32 s46, s86, 7
    s_add_u32 s46, s46, {W_CT + 256*128}
    buffer_store_dword v14, v14, s[36:39], s46 offen sc1''')
    vm.issue('clr'); vm.issue('clr')
    g('s_mov_b64 exec, -1')
    g(f'''s_lshr_b32 s47, s87, 6
    s_lshl_b32 s47, s47, 16
    s_and_b32 s48, s87, 63
    s_lshl_b32 s48, s48, 9
    s_add_u32 s47, s47, s48
    s_add_u32 s47, s47, {W_Q}''')
    srd(g, 28, 10, 8 * 1024 * 1024)
    g('''s_and_b32 s44, s87, 7
    s_lshl_b32 s45, s44, 20
    s_lshr_b32 s46, s87, 3
    s_lshl_b32 s46, s46, 8
    s_add_u32 s45, s45, s46
    v_lshrrev_b32 v4, 4, v0
    v_and_b32 v5, 15, v0
    v_lshlrev_b32 v1, 16, v4
    v_lshl_add_u32 v1, v5, 4, v1''')
    for kk in range(4):
        for i in range(8):
            r = 40 + 32 * kk + 4 * i
            g(f's_add_u32 s46, s45, {(32 * kk + i) * 8192}')
            g(f'buffer_load_dwordx4 v[{r}:{r+3}], v1, s[28:31], s46 offen nt')
            vm.issue(f'wq{kk}')
    g(f'''v_and_b32 v2, 1, v0
    v_lshlrev_b32 v3, 11, v2
    v_lshl_add_u32 v3, v4, 4, v3
    s_lshl_b32 s46, s44, 8
    v_add_u32 v3, s46, v3
    v_lshlrev_b32 v2, 15, v2
    v_lshl_add_u32 v2, v4, 7, v2
    v_bfe_u32 v6, v0, 1, 3
    v_lshl_add_u32 v2, v6, 4, v2
    s_barrier''')
    lds_wait(g, C_X, 1)
    ts(g, 1)
    vm.wait('clr')
    g(f'''v_readfirstlane_b32 s55, v12
    s_cmp_eq_u32 s55, 0
    s_cselect_b32 s55, s54, s55
    v_mov_b32 v6, {C_N}
    v_mov_b32 v7, s55
    s_mov_b64 exec, 1
    ds_write_b32 v6, v7
    s_mov_b64 exec, -1''')
    for half in range(2):
        for kk in range(4):
            b = 8 + 4 * (kk & 1)
            g(f'ds_read_b128 v[{b}:{b+3}], v3 offset:{64*kk}')
            if half == 0:
                vm.wait(f'wq{kk}')
            base = 40 + 32 * kk
            for tt in range(4):
                t = 4 * half + tt
                d = t >> 1
                sel = 's58' if (t & 1) == 0 else 's59'
                o = 16 + 4 * (tt & 1)
                for p in range(4):
                    g(f'v_perm_b32 v{o+p}, v{base + 4*(2*p+1) + d}, v{base + 4*(2*p) + d}, {sel}')
                acc = 24 + 4 * tt
                c = '0' if kk == 0 else f'v[{acc}:{acc+3}]'
                g('s_waitcnt lgkmcnt(0)\ns_nop 0' if tt == 0 else 's_nop 1')
                g(f'v_mfma_f32_16x16x32_bf16 v[{acc}:{acc+3}], v[{o}:{o+3}], v[{b}:{b+3}], {c}')
        g('s_nop 7\ns_nop 1')
        r = select8(g, [24 + 4 * tt for tt in range(4)])
        g('s_mov_b64 exec, s[84:85]' if half == 1 else 's_not_b64 exec, s[84:85]')
        (tagged_store if args.qpack else tagged_store_ab)(g, vm, r, 's47', 'v2', x=16)
        g('s_mov_b64 exec, -1\ns_nop 1')
    srd(g, 32, 20, 3584 * 1024 * 2)
    g('s_lshr_b32 s48, s87, 6\ns_add_u32 s48, s48, 1')
    arrive(g, 's48', 64, ack=bool(args.qack))
    ts(g, 2)
    q_gather(g, args, 0, 3)
    vm.reset()
    ts(g, 4)
    g('s_cmp_lt_u32 s89, 32\ns_cbranch_scc1 L_A0_FIN')
    g('''s_sub_u32 s48, s89, 32
    s_lshr_b32 s49, s48, 3
    s_lshl_b32 s49, s49, 18
    s_and_b32 s48, s48, 7
    s_lshl_b32 s48, s48, 8
    s_add_u32 s48, s48, s49
    v_lshlrev_b32 v1, 14, v4
    v_lshl_add_u32 v1, v5, 4, v1''')
    if args.late:
        lds_wait(g, C_V, args.late)
    elif args.kfirst:
        lds_wait(g, C_K, 4)
    for kk in range(3):
        if kk >= args.ainfl and not args.late:
            vm.wait(f'wd{kk-args.ainfl}')
        tile_loads(g, vm, 32, 's48', 2048, kk, kk, f'wd{kk}')
    g(f'''v_and_b32 v3, 1, v0
    v_lshlrev_b32 v3, 8, v3
    v_lshl_add_u32 v3, v4, 4, v3
    v_add_u32 v3, {L_H}, v3''')
    gemv_tile(g, vm, 32, 's48', 2048, 'v3', True, 'wd', wait_fn=lambda: lds_wait(g, C_H, 1))
    g('v_and_b32 v2, 1, v0\nv_lshlrev_b32 v2, 14, v2\nv_lshl_add_u32 v2, v4, 7, v2\nv_bfe_u32 v6, v0, 1, 3\nv_lshl_add_u32 v2, v6, 4, v2')
    publish_acc(g, vm, 's56', tagged=False)
    g.label('L_A0_FIN')
    ts(g, 5)
    srd(g, 28, 4, 4096)
    srd(g, 32, 22, 4096)
    g(f'''s_lshr_b32 s44, s2, 5
    s_bfe_u32 s45, s2, 0x10004
    s_and_b32 s46, s2, 15
    ; S gather: W_S + ((c*2+b)*64 + hh*2 + half)*512 + o8*32 + q2*16
    s_lshr_b32 s48, s2, 4
    s_lshl_b32 s49, s48, 14
    s_lshl_b32 s48, s48, 15
    s_lshl_b32 s53, s46, 5
    s_add_u32 s48, s48, s53
    s_add_u32 s49, s49, s53
    s_add_u32 s48, s48, {W_S}
    s_add_u32 s49, s49, {W_F}
    v_lshrrev_b32 v2, 1, v0
    v_and_b32 v3, 1, v0
    v_lshlrev_b32 v1, 10, v2
    v_lshl_add_u32 v1, v3, 4, v1
    v_min_u32 v2, 27, v2
    v_lshlrev_b32 v2, 9, v2
    v_lshl_add_u32 v2, v3, 4, v2
    ; x / out element offset: (b*1024 + 128c + 32g + t)*2 , g=o8>>2, t=2*(o8&3)+q2 ; +16 bytes per r
    s_lshl_b32 s52, s45, 10
    s_lshl_b32 s53, s44, 7
    s_add_u32 s52, s52, s53
    s_lshr_b32 s53, s46, 2
    s_lshl_b32 s53, s53, 5
    s_add_u32 s52, s52, s53
    s_and_b32 s53, s46, 3
    s_lshl_b32 s53, s53, 1
    s_add_u32 s52, s52, s53
    v_add_u32 v4, s52, v3
    v_lshlrev_b32 v4, 1, v4
    buffer_load_ushort v24, v4, s[28:31], 0 offen
    buffer_load_ushort v25, v4, s[28:31], 0 offen offset:16
    buffer_load_ushort v26, v4, s[28:31], 0 offen offset:32
    buffer_load_ushort v27, v4, s[28:31], 0 offen offset:48''')
    g(f'v_lshlrev_b32 v3, 7, v0\ns_mov_b32 s46, {W_FL + 128}\ns_mov_b64 exec, 15')
    def issue_f4b():
        g('buffer_load_dword v9, v3, s[36:39], s46 offen sc1')
    tpoll_loop(g, issue_f4b, [9], sleep=16)
    g('s_mov_b64 exec, -1')
    lds_wait(g, C_S, 2)
    def issue_fin():
        g('buffer_load_dwordx4 v[8:11], v1, s[36:39], s48 offen sc1')
        g('buffer_load_dwordx4 v[12:15], v1, s[36:39], s48 offen offset:512 sc1')
        g('buffer_load_dwordx4 v[16:19], v2, s[36:39], s49 offen sc1')
    poll_loop(g, issue_fin, range(8, 20), sleep=args.finsleep)
    ts(g, 6)
    g('v_cmp_gt_u32 vcc, 56, v0\ns_nop 1')
    for r in range(4):
        g(f'v_add_f32 v{8+r}, v{8+r}, v{12+r}')
        g(f'v_cndmask_b32 v{16+r}, 0, v{16+r}, vcc')
    R = list(range(8, 12)) + list(range(16, 20))
    A = {r: r for r in R}
    Bk = {r: 40 + i for i, r in enumerate(R)}
    g('s_nop 1')
    for rr in (2, 4, 8):
        for r in R:
            g(f'v_add_f32_dpp v{Bk[r]}, v{A[r]}, v{A[r]} row_ror:{rr} row_mask:0xf bank_mask:0xf')
        A, Bk = Bk, A
    for swp in ('v_permlane16_swap_b32', 'v_permlane32_swap_b32'):
        for r in R:
            g(f'v_mov_b32 v{Bk[r]}, v{A[r]}')
        for r in R:
            g(f'{swp} v{A[r]}, v{Bk[r]}')
        for r in R:
            g(f'v_add_f32 v{A[r]}, v{A[r]}, v{Bk[r]}')
    for r in R:
        if A[r] != r:
            g(f'v_mov_b32 v{r}, v{A[r]}')
    bf16r_pair(g, 'v8', 'v9', 'v20'); bf16r_pair(g, 'v10', 'v11', 'v20')
    bf16r_pair(g, 'v16', 'v17', 'v20'); bf16r_pair(g, 'v18', 'v19', 'v20')
    for r in range(4):
        silu(g, f'v{16+r}', 'v20', 'v21', 'v22')
    bf16r_pair(g, 'v16', 'v17', 'v20'); bf16r_pair(g, 'v18', 'v19', 'v20')
    for r in range(4):
        g(f'v_mul_f32 v{8+r}, v{8+r}, v{16+r}')
    bf16r_pair(g, 'v8', 'v9', 'v20'); bf16r_pair(g, 'v10', 'v11', 'v20')
    for r in range(4):
        g(f'v_lshlrev_b32 v{24+r}, 16, v{24+r}\nv_add_f32 v{8+r}, v{8+r}, v{24+r}\nv_cvt_pk_bf16_f32 v{8+r}, v{8+r}, v{8+r}')
    g('''s_mov_b64 exec, 3
    buffer_store_short v8, v4, s[32:35], 0 offen
    buffer_store_short v9, v4, s[32:35], 0 offen offset:16
    buffer_store_short v10, v4, s[32:35], 0 offen offset:32
    buffer_store_short v11, v4, s[32:35], 0 offen offset:48''')
    ts(g, 7)
    ts_dump(g, 8)
    g('s_endpgm')

    g.label('L_A12')
    vm = VM(g)
    g('''s_cmp_eq_u32 s3, 1
    s_cselect_b32 s28, s16, s18
    s_cselect_b32 s29, s17, s19
    s_mov_b32 s30, 7340032
    s_mov_b32 s31, 0x20000
    v_lshrrev_b32 v4, 4, v0
    v_and_b32 v5, 15, v0
    s_and_b32 s44, s2, 7
    s_mul_i32 s45, s44, 917504
    s_lshr_b32 s46, s2, 3
    s_lshl_b32 s46, s46, 8
    s_add_u32 s45, s45, s46
    v_mul_u32_u24 v1, 57344, v4
    v_lshl_add_u32 v1, v5, 4, v1
    v_and_b32 v2, 1, v0
    v_lshlrev_b32 v3, 11, v2
    v_lshl_add_u32 v3, v4, 4, v3
    s_lshl_b32 s46, s44, 8
    v_add_u32 v3, s46, v3
    v_lshlrev_b32 v2, 9, v2
    v_lshl_add_u32 v2, v4, 7, v2
    v_bfe_u32 v6, v0, 1, 3
    v_lshl_add_u32 v2, v6, 4, v2
    s_cmp_ge_u32 s2, 224
    s_cbranch_scc1 L_A12_SKIP''')
    g('s_barrier')
    if args.kfirst:
        lds_wait(g, C_K, 4)
    AI = args.ainfl
    for kk in range(AI):
        tile_loads(g, vm, 28, 's45', 7168, kk, kk, f'gu{kk}')
    lds_wait(g, C_X, 1)
    for kk in range(4):
        g(f'ds_read_b128 v[{A_B+4*kk}:{A_B+4*kk+3}], v3 offset:{64*kk}')
    g('s_waitcnt lgkmcnt(0)')
    for kk in range(4):
        vm.wait(f'gu{kk}')
        if kk + AI < 4:
            tile_loads(g, vm, 28, 's45', 7168, kk + AI, (kk + AI) % 3, f'gu{kk+AI}')
        tile_block_mfma(g, kk % 3, kk, kk == 0, A_B + 4 * kk)
    read_nonce(g)
    g(f'v_lshlrev_b32 v3, 7, v0\ns_mov_b32 s46, {W_FL + 128}\ns_mov_b64 exec, 15')
    def issue_f4():
        g('buffer_load_dword v9, v3, s[36:39], s46 offen sc1')
    tpoll_loop(g, issue_f4, [9], sleep=16)
    g('s_mov_b64 exec, -1')
    g(f's_lshl_b32 s46, s3, 10\ns_lshl_b32 s47, s2, 11\ns_add_u32 s46, s46, s47\ns_add_u32 s46, s46, {W_GU - 1024}')
    publish_acc(g, vm, 's46')
    g('s_lshr_b32 s48, s2, 3\ns_add_u32 s48, s48, 16')
    arrive(g, 's48', 16, sctr='s48', ack=False)
    g('s_branch L_A12_WO')
    g.label('L_A12_SKIP')
    g('s_barrier')
    if args.kfirst:
        lds_wait(g, C_K, 4)
    read_nonce(g)
    g.label('L_A12_WO')
    ts(g, 1)
    vm.reset()
    srd(g, 28, 12, 8 * 1024 * 1024)
    g('''s_and_b32 s44, s88, 3
    s_lshl_b32 s44, s44, 1
    s_add_u32 s44, s44, s3
    s_sub_u32 s44, s44, 1
    s_lshr_b32 s45, s88, 2
    s_lshl_b32 s45, s45, 17
    s_lshl_b32 s48, s44, 8
    s_add_u32 s45, s45, s48
    v_lshlrev_b32 v1, 14, v4
    v_lshl_add_u32 v1, v5, 4, v1''')
    if args.late:
        lds_wait(g, C_V, args.late)
    for kk in range(2):
        if kk == 1 and args.ainfl == 1:
            vm.wait('wo0')
        tile_loads(g, vm, 28, 's45', 2048, kk, kk, f'wo{kk}', stmp='s48')
    outs = [136, 8]
    for kk in range(2):
        vm.wait(f'wo{kk}')
        base = A_POOL + 32 * kk
        for t in range(8):
            d = t >> 1
            sel = 's58' if (t & 1) == 0 else 's59'
            for p in range(4):
                g(f'v_perm_b32 v{outs[kk] + 4*t + p}, v{base + 4*(2*p+1) + d}, v{base + 4*(2*p) + d}, {sel}')
    g(f'''v_and_b32 v3, 1, v0
    v_lshlrev_b32 v3, 7, v3
    v_lshl_add_u32 v3, v4, 4, v3
    v_add_u32 v3, {L_OB}, v3
    s_lshl_b32 s46, s44, 16
    s_lshr_b32 s48, s88, 2
    s_lshl_b32 s48, s48, 9
    s_add_u32 s46, s46, s48
    s_add_u32 s46, s46, {W_S}
    v_and_b32 v2, 1, v0
    v_lshlrev_b32 v2, 15, v2
    v_lshl_add_u32 v2, v4, 7, v2
    v_bfe_u32 v6, v0, 1, 3
    v_lshl_add_u32 v2, v6, 4, v2''')
    ts(g, 2)
    lds_wait(g, C_OG, 1)
    ts(g, 3)
    g('''ds_read_b128 v[72:75], v3
    ds_read_b128 v[76:79], v3 offset:64
    s_waitcnt lgkmcnt(0)''')
    for kk in range(2):
        for t in range(8):
            acc = A_ACC + 4 * t
            o = outs[kk] + 4 * t
            c = '0' if kk == 0 else f'v[{acc}:{acc+3}]'
            g(f'v_mfma_f32_16x16x32_bf16 v[{acc}:{acc+3}], v[{o}:{o+3}], v[{72+4*kk}:{75+4*kk}], {c}')
    publish_acc(g, vm, 's46', tagged=False)
    lds_signal(g, C_S, add=True)
    ts(g, 4)
    ts_dump(g, 5)
    g('s_endpgm')

    if args.flash == 3:
        gen_steal2(g, args)
    elif args.flash == 2:
        gen_steal(g, args)
    elif args.flash:
        gen_flash(g, args)
    else:
        g.label('L_BULK')
        vm = VM(g)
        BQ, BS, BO, BP = 8, 24, 56, 88
        NT, NS, NL = 16, 10, 6
        TS = 16384 if args.inter else 4096
        srd(g, 28, 6, 64 * 1024 * 1024)
        srd(g, 32, 8, 64 * 1024 * 1024)
        g(f'''s_sub_u32 s44, s3, 4
        s_lshr_b32 s45, s86, 6
        s_bfe_u32 s46, s86, 0x10005
        s_lshl_b32 s46, s46, 2
        s_add_u32 s45, s45, s46
        s_lshl_b32 s45, s45, 23
        s_and_b32 s46, s86, 31
        s_lshl_b32 s46, s46, 18
        s_add_u32 s45, s45, s46
        s_lshl_b32 s46, s44, {12 if args.inter else 16}
        s_add_u32 s45, s45, s46
        v_and_b32 v4, 15, v0
        v_lshrrev_b32 v5, 4, v0
        v_lshlrev_b32 v2, 4, v0
        s_mul_i32 s48, s44, 24576
        s_add_u32 s48, s48, {L_V}
        v_xor_b32 v6, v4, v5
        v_lshlrev_b32 v7, 8, v5
        v_lshl_add_u32 v1, v6, 4, v7
        v_xor_b32 v249, 64, v1
        v_add_u32 v249, 1024, v249
        v_xor_b32 v250, 128, v1
        v_add_u32 v250, 2048, v250
        v_xor_b32 v251, 192, v1
        v_add_u32 v251, 3072, v251
        v_and_b32 v6, 3, v4
        v_lshlrev_b32 v6, 2, v6
        v_lshrrev_b32 v7, 2, v4
        v_add_u32 v6, v6, v7
        v_xor_b32 v7, v6, v5
        v_lshlrev_b32 v6, 8, v6
        v_lshl_add_u32 v252, v7, 4, v6
        v_xor_b32 v253, 64, v252
        v_xor_b32 v254, 128, v252
        v_xor_b32 v255, 192, v252
        v_add_u32 v252, s48, v252
        v_add_u32 v253, s48, v253
        v_add_u32 v254, s48, v254
        v_add_u32 v255, s48, v255''')
        g('s_barrier')
        INFL = args.infl
        order = []
        KV_ = ['v1', 'v249', 'v250', 'v251']
        def ldsload(isK, T, k):
            for j in range(4):
                if isK:
                    g(f's_add_u32 s49, s48, {4096*k + 1024*j}\ns_mov_b32 m0, s49\ns_add_u32 s46, s45, {TS*T}')
                    g(f'buffer_load_dwordx4 {KV_[j]}, s[28:31], s46 offen nt lds')
                else:
                    g(f's_add_u32 s49, s48, {4096*k + 1024*j}\ns_mov_b32 m0, s49\ns_add_u32 s46, s45, {TS*T + 1024*j}')
                    g('buffer_load_dwordx4 v2, s[32:35], s46 offen nt lds')
                vm.issue(f'{"K" if isK else "V"}{T}')
        def rload(isK, T, slot):
            assert not isK
            r0 = BP + 16 * slot
            g(f's_add_u32 s46, s45, {TS*T}')
            for j in range(4):
                r = r0 + 4 * j
                g(f'buffer_load_dwordx4 v[{r}:{r+3}], v2, s[32:35], s46 offen offset:{1024*j} nt')
                vm.issue(f'V{T}')
        def ldsread(k, slot):
            r0 = BP + 16 * slot
            for j in range(4):
                g(f'ds_read_b128 v[{r0+4*j}:{r0+4*j+3}], v3 offset:{4096*k + 1024*j}')
        def kread(k, slot):
            r0 = BP + 16 * slot
            for j in range(4):
                g(f'ds_read_b128 v[{r0+4*j}:{r0+4*j+3}], v{252+j} offset:{4096*k}')
        def pace(tag):
            order.append(tag)
            n = args.vinfl if (tag[0] == 'V' and args.vinfl) else INFL
            if len(order) - 1 - n >= 0:
                vm.wait(order[len(order) - 1 - n])
        vslot = lambda T: (T + 6) % NS
        def stream(isK, t0=0):
            c = 'K' if isK else 'V'
            if isK:
                order.clear()
                assert INFL <= 4
            for T in range(t0, NT):
                if isK and T == args.pre:
                    lds_wait(g, C_X, 1)
                pace(f'{c}{T}')
                if T in (4, 8, 12, 15):
                    ts(g, (7 if isK else 11) + (T // 4 if T < 15 else 4) - 0)
                if T == args.ksig and isK:
                    lds_signal(g, C_K, add=True)
                if T == args.vsig and not isK:
                    lds_signal(g, C_V, add=True)
                if isK:
                    Tc = T - INFL
                    if 0 <= Tc < NS:
                        kread(Tc % NL, Tc)
                    if T >= NL:
                        later = [t for t in range(T - NL + 1, Tc + 1) if 0 <= t < NS]
                        g(f"s_waitcnt lgkmcnt({min(8, 4 * len(later))})")
                    ldsload(True, T, T % NL)
                elif T < NS:
                    rload(False, T, vslot(T))
                elif args.vpre and T >= NT - args.vpre:
                    order.pop()
                else:
                    ldsload(False, T, T - NS)
        stream(True)
        if args.ksig >= NT:
            lds_signal(g, C_K, add=True)
        for T in range(NT - args.vpre, NT):
            pace(f'V{T}')
            ldsload(False, T, T - NS + 2)
        lds_wait(g, C_Q, 2)
        ts(g, 1)
        g(f'''v_and_b32 v3, 7, v0
        v_lshlrev_b32 v3, 8, v3
        v_lshl_add_u32 v3, v5, 4, v3''')
        for j in range(4):
            g(f'ds_read_b128 v[{BQ+4*j}:{BQ+4*j+3}], v3 offset:{L_Q + 64*j}')
        g('s_waitcnt lgkmcnt(0)')
        for T in range(NT):
            if T >= NS:
                g(f's_waitcnt lgkmcnt({min(8, 4 * (NT - 1 - T))})')
            r0 = BP + 16 * (T % NS)
            s = BS + 4 * T
            for j in range(4):
                c = '0' if j == 0 else f'v[{s}:{s+3}]'
                g(f'v_mfma_f32_16x16x32_bf16 v[{s}:{s+3}], v[{r0+4*j}:{r0+4*j+3}], v[{BQ+4*j}:{BQ+4*j+3}], {c}')
            k = T - (NS - 3)
            if 0 <= k < NL:
                vm.wait(f'K{NS+k}')
                kread((NS + k) % NL, k)
            if 6 <= T < 6 + args.vearly:
                if T == 6:
                    order.clear()
                order.append(f'V{T-6}')
                rload(False, T - 6, vslot(T - 6))
        g('s_nop 7')
        ts(g, 2)
        for i in range(2 * NT):
            a, b = f'v{BS+2*i}', f'v{BS+2*i+1}'
            if 'sc1' not in args.skip:
                bf16r_pair(g, a, b, 'v8')
            g(f'v_mul_f32 {a}, s61, {a}\nv_mul_f32 {b}, s61, {b}')
            if 'sc2' not in args.skip:
                bf16r_pair(g, a, b, 'v8')
        g(f'v_max_f32 v9, v{BS}, v{BS+1}')
        for i in range(1, 2 * NT):
            g(f'v_max3_f32 v9, v9, v{BS+2*i}, v{BS+2*i+1}')
        allred_x16(g, 'v_max_f32', 'v9', 'v10')
        allred_x32(g, 'v_max_f32', 'v9', 'v10')
        g('v_mov_b32 v11, 0\nv_mov_b32 v16, 0')
        for i in range(0, 4 * NT, 2):
            g(f'''v_sub_f32 v{BS+i}, v{BS+i}, v9
            v_sub_f32 v{BS+i+1}, v{BS+i+1}, v9
            v_mul_f32 v{BS+i}, s60, v{BS+i}
            v_mul_f32 v{BS+i+1}, s60, v{BS+i+1}
            v_exp_f32 v{BS+i}, v{BS+i}
            v_exp_f32 v{BS+i+1}, v{BS+i+1}
            s_nop 0
            v_add_f32 v11, v11, v{BS+i}
            v_add_f32 v16, v16, v{BS+i+1}''')
        g('v_mov_b32 v248, v9')
        g('v_add_f32 v11, v11, v16')
        allred_x16(g, 'v_add_f32', 'v11', 'v10')
        allred_x32(g, 'v_add_f32', 'v11', 'v10')
        g(f'''s_lshl_b32 s46, s44, 6
        v_lshlrev_b32 v3, 2, v0
        v_add_u32 v3, s46, v3
        s_mov_b64 exec, 0xff
        ds_write_b32 v3, v9 offset:{L_ST}
        ds_write_b32 v3, v11 offset:{L_ST+32}
        s_mov_b64 exec, -1''')
        lds_signal(g, C_ST, add=True)
        ts(g, 3)
        if args.latec:
            for i in range(2 * NT):
                g(f'v_cvt_pk_bf16_f32 v{BS+i}, v{BS+2*i}, v{BS+2*i+1}')
        if args.vearly == 0:
            order.clear()
        stream(False, args.vearly)
        if args.noml and args.vsig >= NT:
            lds_signal(g, C_V, add=True)
        def get_c():
            lds_wait(g, C_ML, 1)
            g(f'''v_and_b32 v3, 7, v0
            v_lshlrev_b32 v3, 2, v3
            ds_read_b32 v9, v3 offset:{L_ML}
            ds_read_b32 v10, v3 offset:{L_ML+32}
            s_waitcnt lgkmcnt(0)
            v_sub_f32 v9, v248, v9
            v_mul_f32 v9, s60, v9
            v_exp_f32 v9, v9
            s_nop 0
            v_mul_f32 v10, v10, v9''')
        if not args.latec:
            get_c()
            ts(g, 4)
            for i in range(2 * NT):
                a, b = BS + 2 * i, BS + 2 * i + 1
                g(f'''v_mul_f32 v12, v{a}, v10
                v_mul_f32 v13, v{b}, v10
                v_cvt_pk_bf16_f32 v{BS+i}, v12, v13''')
        else:
            ts(g, 4)
        g('v_lshlrev_b32 v3, 4, v0\nv_add_u32 v3, s48, v3')
        for U in range(NT // 2):
            T0, T1 = 2 * U, 2 * U + 1
            if T1 < NS:
                vm.wait(f'V{T1}')
            else:
                g(f's_waitcnt lgkmcnt({min(8, 4 * (NT - 1 - T1))})')
            ra = BP + 16 * vslot(T0 % NS)
            rb = BP + 16 * vslot(T1 % NS)
            for half in range(2):
                for tt in range(4):
                    t = 4 * half + tt
                    d = t >> 1
                    sel = 's58' if (t & 1) == 0 else 's59'
                    o = BQ + 4 * tt
                    g(f'v_perm_b32 v{o}, v{ra+4+d}, v{ra+d}, {sel}')
                    g(f'v_perm_b32 v{o+1}, v{ra+12+d}, v{ra+8+d}, {sel}')
                    g(f'v_perm_b32 v{o+2}, v{rb+4+d}, v{rb+d}, {sel}')
                    g(f'v_perm_b32 v{o+3}, v{rb+12+d}, v{rb+8+d}, {sel}')
                g('s_nop 1')
                for tt in range(4):
                    t = 4 * half + tt
                    o = BQ + 4 * tt
                    acc = BO + 4 * t
                    c = '0' if U == 0 else f'v[{acc}:{acc+3}]'
                    g(f'v_mfma_f32_16x16x32_bf16 v[{acc}:{acc+3}], v[{o}:{o+3}], v[{BS+4*U}:{BS+4*U+3}], {c}')
            k = 2 * (U - 3)
            if 0 <= k < NL:
                vm.wait(f'V{NS+k+1}')
                lk = lambda kk: kk + 2 if (NS + kk >= NT - args.vpre) else kk
                ldsread(lk(k), vslot(k)); ldsread(lk(k + 1), vslot(k + 1))
        ts(g, 5)
        if args.latec:
            get_c()
            for i in range(32):
                g(f'v_mul_f32 v{BO+i}, v{BO+i}, v10')
        g(f'''s_lshl_b32 s46, s44, 12
        v_lshlrev_b32 v3, 9, v4
        v_lshl_add_u32 v3, v5, 7, v3
        v_add_u32 v3, s46, v3
        s_nop 7
        s_mov_b32 exec_lo, 0x00ff00ff
        s_mov_b32 exec_hi, 0x00ff00ff''')
        for t in range(8):
            acc = BO + 4 * t
            g(f'ds_write_b128 v3, v[{acc}:{acc+3}] offset:{L_OP + 16*t}')
        g('s_mov_b64 exec, -1')
        lds_signal(g, C_O, add=True)
        g(f'''s_lshr_b32 s46, s86, 6
        s_lshl_b32 s46, s46, 18
        s_lshl_b32 s49, s44, 16
        s_add_u32 s46, s46, s49
        s_bfe_u32 s49, s86, 0x10005
        s_lshl_b32 s49, s49, 14
        s_add_u32 s46, s46, s49
        s_and_b32 s49, s86, 31
        s_lshl_b32 s49, s49, 9
        s_add_u32 s46, s46, s49
        s_add_u32 s46, s46, {W_O}
        v_and_b32 v2, 31, v0
        v_lshlrev_b32 v2, 4, v2
        v_lshrrev_b32 v1, 5, v0
        v_lshl_add_u32 v2, v1, 15, v2
        s_lshl_b32 s49, s44, 10
        v_lshlrev_b32 v3, 4, v0
        v_add_u32 v3, s49, v3''')
        lds_wait(g, C_O, 4)
        for w in range(4):
            g(f'ds_read_b128 v[{88+4*w}:{91+4*w}], v3 offset:{L_OP + 4096*w}')
        g('s_waitcnt lgkmcnt(0)')
        for r in range(4):
            g(f'v_add_f32 v{8+r}, v{88+r}, v{92+r}\nv_add_f32 v{12+r}, v{96+r}, v{100+r}\nv_add_f32 v{8+r}, v{8+r}, v{12+r}')
        g('buffer_store_dwordx4 v[8:11], v2, s[36:39], s46 offen sc1')
        ts(g, 6)
        ts_dump(g, 7)
        g('s_endpgm')
    g.label('L_END')
    g('s_endpgm')
    T = f'''.section .rodata,"a"
.p2align 6
.amdhsa_kernel {KN}
  .amdhsa_next_free_vgpr 256
  .amdhsa_next_free_sgpr 100
  .amdhsa_accum_offset 256
  .amdhsa_group_segment_fixed_size 0
  .amdhsa_kernarg_size 96
  .amdhsa_user_sgpr_count 2
  .amdhsa_user_sgpr_kernarg_segment_ptr 1
  .amdhsa_system_sgpr_workgroup_id_x 1
  .amdhsa_float_denorm_mode_32 3
.end_amdhsa_kernel
'''
    return '\n'.join(H) + '\n' + '\n'.join(g.L) + '\n' + T

if __name__ == '__main__':
    ap = argparse.ArgumentParser()
    ap.add_argument('--prof', action='store_true')
    ap.add_argument('--qmode', type=int, default=0)
    ap.add_argument('--nsp', type=int, default=6)
    ap.add_argument('--nstat', type=int, default=3)
    ap.add_argument('--qline', type=int, default=0)
    ap.add_argument('--omode', type=int, default=0)
    ap.add_argument('--osleep', type=int, default=1)
    ap.add_argument('--flash', type=int, default=0)
    ap.add_argument('--qpack', type=int, default=0)
    ap.add_argument('--vpre', type=int, default=0)
    ap.add_argument('--late', type=int, default=0)
    ap.add_argument('--vsig', type=int, default=16)
    ap.add_argument('--finsleep', type=int, default=1)
    ap.add_argument('--vinfl', type=int, default=0)
    ap.add_argument('--inter', type=int, default=1)
    ap.add_argument('--noml', type=int, default=0)
    ap.add_argument('--qack', type=int, default=1)
    ap.add_argument('--latec', type=int, default=0)
    ap.add_argument('--vearly', type=int, default=4)
    ap.add_argument('--ksig', type=int, default=16)
    ap.add_argument('--ainfl', type=int, default=2)
    ap.add_argument('--skip', default='')
    ap.add_argument('--remap', type=int, default=1)
    ap.add_argument('--plain', type=int, default=1)
    ap.add_argument('--nodma', action='store_true')
    ap.add_argument('--noaux', action='store_true')
    ap.add_argument('--nolds', action='store_true')
    ap.add_argument('--kfirst', type=int, default=1)
    ap.add_argument('--nohop', action='store_true')
    ap.add_argument('--fsleep', type=int, default=16)
    ap.add_argument('--infl', type=int, default=2)
    ap.add_argument('--pre', type=int, default=0)
    ap.add_argument('-o', default='recurrent_scan__gqa_block_cached__swiglu_ffn__decode.s')
    args = ap.parse_args()
    open(args.o, 'w').write(gen(args))
```

```python
import struct, sys, argparse

def f32hex(x):
    return '0x%08x' % struct.unpack('<I', struct.pack('<f', x))[0]

KN = 'recurrent_scan__gqa_block_cached__swiglu_ffn__decode_kernel'
NWG = 256
W_Q = 0x000000
W_GU = 0x040000
W_S = 0x0C0000
W_F = 0x140000
W_O = 0x180000
W_ML = 0x280000
W_B = 0x300000
W_CT = 0x2E0000
W_FL = 0x2C0000
L_XN = 0x0000
L_Q = 0x1000
L_ST = 0x1800
L_ML = 0x1A00
L_CT = 0x1A40
C_Q, C_ST, C_ML, C_O, C_OG, C_H, C_N, C_K, C_X, C_V, C_S = [L_CT + 4 * i for i in range(11)]
L_W = 0x1F00
L_OB = 0x1B00
L_H = 0x1D00
L_OP = 0x2000
L_V = 0x6000
LDS_BYTES = 0x6000 + 4 * 24576
SCALE = f32hex(128 ** -0.5)
LOG2E = f32hex(1.4426950408889634)
EPS = f32hex(1e-5)
SPIN_LDS = 4000000
SPIN_GLB = 40000

NOLDS = False
QSH, QOFF = 2, 0
class Gen:
    def __init__(self):
        self.L = []
        self.n = 0
    def __call__(self, s):
        for line in s.strip('\n').split('\n'):
            self.L.append('    ' + line.strip())
    def label(self, name):
        self.L.append(name + ':')
    def uniq(self, p):
        self.n += 1
        return f'{p}_{self.n}'

class VM:
    def __init__(self, g):
        self.g = g
        self.ops = []
    def issue(self, tag):
        self.ops.append(tag)
    def wait(self, tag):
        idx = max(i for i, t in enumerate(self.ops) if t == tag)
        n = len(self.ops) - 1 - idx
        assert n <= 63
        self.g(f's_waitcnt vmcnt({n})')
    def reset(self):
        self.ops = []

def srd(g, d, base, nbytes):
    g(f's_mov_b32 s{d}, s{base}\ns_mov_b32 s{d+1}, s{base+1}\ns_mov_b32 s{d+2}, {nbytes}\ns_mov_b32 s{d+3}, 0x20000')

def lds_wait(g, addr, target, vt='v7', va='v6', st='s50', sc='s51'):
    l = g.uniq('LW'); d = g.uniq('LWD')
    g(f'v_mov_b32 {va}, {addr}\ns_mov_b32 {sc}, {1 if NOLDS else SPIN_LDS}')
    g.label(l)
    g(f'''ds_read_b32 {vt}, {va}
    s_waitcnt lgkmcnt(0)
    v_readfirstlane_b32 {st}, {vt}
    s_cmp_ge_u32 {st}, {target}
    s_cbranch_scc1 {d}
    s_sleep 1
    s_sub_u32 {sc}, {sc}, 1
    s_cmp_lg_u32 {sc}, 0
    s_cbranch_scc1 {l}''')
    g.label(d)

def lds_signal(g, addr, add=False, vt='v7', va='v6'):
    g(f'''s_waitcnt lgkmcnt(0)
    v_mov_b32 {va}, {addr}
    v_mov_b32 {vt}, 1
    s_mov_b64 exec, 1''')
    g(f'ds_add_u32 {va}, {vt}' if add else f'ds_write_b32 {va}, {vt}')
    g('s_mov_b64 exec, -1')

def bf16r_pair(g, a, b, t):
    g(f'''v_cvt_pk_bf16_f32 {t}, {a}, {b}
    v_lshlrev_b32 {a}, 16, {t}
    v_and_b32 {b}, 0xffff0000, {t}''')

def bf16r(g, a):
    g(f'''v_cvt_pk_bf16_f32 {a}, {a}, {a}
    v_lshlrev_b32 {a}, 16, {a}''')

def allred_row16(g, op, v, t):
    for r in (1, 2, 4, 8):
        g(f's_nop 1\n{op}_dpp {t}, {v}, {v} row_ror:{r} row_mask:0xf bank_mask:0xf\nv_mov_b32 {v}, {t}')

def allred_x16(g, op, v, t):
    g(f'v_mov_b32 {t}, {v}\ns_nop 1\nv_permlane16_swap_b32 {v}, {t}\ns_nop 1\n{op} {v}, {v}, {t}')

def allred_x32(g, op, v, t):
    g(f'v_mov_b32 {t}, {v}\ns_nop 1\nv_permlane32_swap_b32 {v}, {t}\ns_nop 1\n{op} {v}, {v}, {t}')

def precise_div(g, d, num, den, t1, t2):
    g(f'''v_rcp_f32 {t1}, {den}
    s_nop 0
    v_mul_f32 {t2}, {num}, {t1}
    v_fma_f32 {d}, -{t2}, {den}, {num}
    v_fma_f32 {d}, {d}, {t1}, {t2}''')

def silu(g, x, t1, t2, t3):
    g(f'''v_mul_f32 {t1}, s60, {x}
    v_exp_f32 {t1}, -{t1}
    s_nop 0
    v_add_f32 {t1}, 1.0, {t1}''')
    g(f'''v_rcp_f32 {t2}, {t1}
    s_nop 0
    v_mul_f32 {t3}, {x}, {t2}
    v_fma_f32 {t1}, -{t3}, {t1}, {x}
    v_fma_f32 {t1}, {t1}, {t2}, {t3}
    v_cmp_eq_f32 vcc, 0, {t2}
    s_nop 1
    v_cndmask_b32 {x}, {t1}, {t3}, vcc''')

A_T = 8
A_B = 24
A_ACC = 40
A_POOL = 72

def tile_loads(g, vm, srdreg, sbase, rowbytes, kk, slot, tag, voff='v1', stmp='s46'):
    for i in range(8):
        r = A_POOL + 32 * slot + 4 * i
        g(f's_add_u32 {stmp}, {sbase}, {(32 * kk + i) * rowbytes}')
        g(f'buffer_load_dwordx4 v[{r}:{r+3}], {voff}, s[{srdreg}:{srdreg+3}], {stmp} offen nt')
        vm.issue(tag)

def tile_block_mfma(g, slot, kk, first, breg):
    base = A_POOL + 32 * slot
    for half in range(2):
        for tt in range(4):
            t = 4 * half + tt
            d = t >> 1
            sel = 's58' if (t & 1) == 0 else 's59'
            o = A_T + 4 * tt
            for p in range(4):
                g(f'v_perm_b32 v{o+p}, v{base + 4*(2*p+1) + d}, v{base + 4*(2*p) + d}, {sel}')
        g('s_nop 1')
        for tt in range(4):
            t = 4 * half + tt
            o = A_T + 4 * tt
            acc = A_ACC + 4 * t
            c = '0' if first else f'v[{acc}:{acc+3}]'
            g(f'v_mfma_f32_16x16x32_bf16 v[{acc}:{acc+3}], v[{o}:{o+3}], v[{breg}:{breg+3}], {c}')

def gemv_tile(g, vm, srdreg, sbase, rowbytes, ldsaddr_v, pre_issued, tagp, wait_fn=None):
    if wait_fn:
        wait_fn()
    for kk in range(4):
        g(f'ds_read_b128 v[{A_B+4*kk}:{A_B+4*kk+3}], {ldsaddr_v} offset:{64*kk}')
    g('s_waitcnt lgkmcnt(0)')
    for kk in range(4):
        vm.wait(f'{tagp}{kk}')
        tile_block_mfma(g, kk % 3, kk, kk == 0, A_B + 4 * kk)
        if kk == 0:
            tile_loads(g, vm, srdreg, sbase, rowbytes, 3, 0, f'{tagp}3')

def lane_masks(g):
    g('''s_mov_b32 s80, 0xcccccccc
    s_mov_b32 s81, 0xcccccccc
    s_mov_b32 s82, 0xf0f0f0f0
    s_mov_b32 s83, 0xf0f0f0f0
    s_mov_b32 s84, 0xff00ff00
    s_mov_b32 s85, 0xff00ff00''')

def select8(g, accs, levels=3):
    cur = list(accs)
    lv = 0
    while len(cur) > 1:
        nxt = []
        for i in range(0, len(cur), 2):
            a, b = cur[i], cur[i + 1]
            for r in range(4):
                g(f'v_cndmask_b32 v{a+r}, v{a+r}, v{b+r}, s[{80+2*lv}:{81+2*lv}]')
            nxt.append(a)
        cur = nxt
        lv += 1
    return cur[0]

def tagged_store(g, vm, r, soff, voff, x=8, stmp='s57', vtmp='v7'):
    g(f'''v_perm_b32 v{r}, v{r}, v{r+3}, s90
    v_perm_b32 v{r+1}, v{r+1}, v{r+3}, s91
    v_perm_b32 v{r+2}, v{r+2}, v{r+3}, s92
    v_mov_b32 v{r+3}, s55
    buffer_store_dwordx4 v[{r}:{r+3}], {voff}, s[36:39], {soff} offen sc1''')
    vm.issue('st')

def tagged_store_ab(g, vm, r, soff, voff, x=8, stmp='s57', vtmp='v7'):
    g(f'''v_mov_b32 v{x}, v{r+3}
    v_mov_b32 v{x+1}, s55
    v_mov_b32 v{r+3}, s55
    v_lshrrev_b32 {vtmp}, 1, {voff}
    s_lshr_b32 {stmp}, {soff}, 1
    s_add_u32 {stmp}, {stmp}, {W_B}
    buffer_store_dwordx4 v[{r}:{r+3}], {voff}, s[36:39], {soff} offen sc1
    buffer_store_dwordx2 v[{x}:{x+1}], {vtmp}, s[36:39], {stmp} offen sc1''')
    vm.issue('st'); vm.issue('st')

def unpack_d(g, r):
    g(f'v_perm_b32 v{r+3}, v{r}, v{r+1}, s93\nv_perm_b32 v{r+3}, v{r+3}, v{r+2}, s94')

def publish_acc(g, vm, soff, voff='v2', tagged=True):
    g('s_nop 7\ns_nop 1')
    r = select8(g, [A_ACC + 4 * t for t in range(8)])
    if tagged:
        tagged_store(g, vm, r, soff, voff)
    else:
        g(f'buffer_store_dwordx4 v[{r}:{r+3}], {voff}, s[36:39], {soff} offen sc1')
        vm.issue('st')

def tag_check(g, tags, acc='v7', tmp='v6'):
    tags = list(tags)
    g(f'v_xor_b32 {acc}, s55, v{tags[0]}')
    for t in tags[1:]:
        g(f'v_xor_b32 {tmp}, s55, v{t}\nv_or_b32 {acc}, {acc}, {tmp}')
    g(f'v_cmp_ne_u32 vcc, 0, {acc}')

NOHOP = False
PLAIN = True
def plain_first(g, issue_fn, check_fn, d):
    n0 = len(g.L)
    issue_fn()
    for i in range(n0, len(g.L)):
        g.L[i] = g.L[i].replace(' sc1', '')
    g('s_waitcnt vmcnt(0)')
    check_fn()
    g(f's_cbranch_vccz {d}')

def tpoll_loop(g, issue_fn, tags, sleep=2, sc='s51', acc='v7', tmp='v6', plain=False):
    l = g.uniq('TP'); d = g.uniq('TPD')
    if plain and PLAIN:
        plain_first(g, issue_fn, lambda: tag_check(g, tags, acc, tmp), d)
    g(f's_mov_b32 {sc}, {1 if NOHOP else SPIN_GLB}')
    g.label(l)
    issue_fn()
    g('s_waitcnt vmcnt(0)')
    tag_check(g, tags, acc, tmp)
    g(f'''s_cbranch_vccz {d}
    s_sleep {sleep}
    s_sub_u32 {sc}, {sc}, 1
    s_cmp_lg_u32 {sc}, 0
    s_cbranch_scc1 {l}''')
    g.label(d)

def read_nonce(g):
    lds_wait(g, C_N, 1)
    g('s_mov_b32 s55, s50')

def sentinel_check(g, regs, vmx):
    regs = list(regs)
    g(f'v_max_u32 {vmx}, v{regs[0]}, v{regs[1]}')
    i = 2
    while i < len(regs):
        if i + 1 < len(regs):
            g(f'v_max3_u32 {vmx}, {vmx}, v{regs[i]}, v{regs[i+1]}')
            i += 2
        else:
            g(f'v_max_u32 {vmx}, {vmx}, v{regs[i]}')
            i += 1
    g(f'v_cmp_eq_u32 vcc, -1, {vmx}')

def poll_loop(g, issue_fn, regs, vmx='v7', sc='s51', sleep=2, plain=False):
    l = g.uniq('PL'); d = g.uniq('PLD')
    if plain and PLAIN:
        plain_first(g, issue_fn, lambda: sentinel_check(g, regs, vmx), d)
    g(f's_mov_b32 {sc}, {1 if NOHOP else SPIN_GLB}')
    g.label(l)
    issue_fn()
    g('s_waitcnt vmcnt(0)')
    sentinel_check(g, regs, vmx)
    g(f'''s_cbranch_vccz {d}
    s_sleep {sleep}
    s_sub_u32 {sc}, {sc}, 1
    s_cmp_lg_u32 {sc}, 0
    s_cbranch_scc1 {l}''')
    g.label(d)

def arrive(g, sidx, n, stmp='s46', sctr=None, ack=True):
    d = g.uniq('ARR')
    if sctr is None:
        g(f's_lshl_b32 {stmp}, {sidx}, {QSH}\ns_add_u32 {stmp}, {stmp}, {QOFF}')
        srdn = 40
    else:
        g(f's_lshl_b32 {stmp}, {sctr}, 7\ns_add_u32 {stmp}, {stmp}, {W_CT}')
        srdn = 36
    g(f'''v_mov_b32 v6, {stmp}
    v_mov_b32 v7, 1
    {'s_waitcnt vmcnt(0)' if ack else 's_nop 0'}
    s_mov_b64 exec, 1
    buffer_atomic_add v7, v6, s[{srdn}:{srdn+3}], 0 offen sc0
    s_waitcnt vmcnt(0)
    v_readfirstlane_b32 {stmp}, v7
    s_cmp_eq_u32 {stmp}, {n-1}
    s_cbranch_scc0 {d}
    s_lshl_b32 {stmp}, {sidx}, 7
    s_add_u32 {stmp}, {stmp}, {W_FL}
    v_mov_b32 v6, 0
    v_mov_b32 v7, s55
    buffer_store_dword v7, v6, s[36:39], {stmp} offen sc1''')
    g.label(d)
    g('s_mov_b64 exec, -1')

def flag_wait(g, sidx, sleep, stmp='s46'):
    l = g.uniq('FW'); d = g.uniq('FWD')
    g(f'''s_lshl_b32 {stmp}, {sidx}, 7
    s_add_u32 {stmp}, {stmp}, {W_FL}
    v_mov_b32 v6, 0
    s_mov_b32 s51, {1 if NOHOP else SPIN_GLB}
    s_mov_b64 exec, 1''')
    g.label(l)
    g(f'''buffer_load_dword v7, v6, s[36:39], {stmp} offen sc1
    s_waitcnt vmcnt(0)
    v_readfirstlane_b32 s50, v7
    s_cmp_eq_u32 s50, s55
    s_cbranch_scc1 {d}
    s_sleep {sleep}
    s_sub_u32 s51, s51, 1
    s_cmp_lg_u32 s51, 0
    s_cbranch_scc1 {l}''')
    g.label(d)
    g('s_mov_b64 exec, -1')

def counter_wait(g, srdn, soff, n, sleep):
    l = g.uniq('CW'); d = g.uniq('CWD')
    g(f'''v_mov_b32 v6, 0
    s_mov_b32 s51, {1 if NOHOP else SPIN_GLB}
    s_mov_b64 exec, 1''')
    g.label(l)
    g(f'''buffer_load_dword v7, v6, s[{srdn}:{srdn+3}], {soff} offen sc1
    s_waitcnt vmcnt(0)
    v_readfirstlane_b32 s50, v7
    s_cmp_ge_u32 s50, {n}
    s_cbranch_scc1 {d}
    s_sleep {sleep}
    s_sub_u32 s51, s51, 1
    s_cmp_lg_u32 s51, 0
    s_cbranch_scc1 {l}''')
    g.label(d)
    g('s_mov_b64 exec, -1')

def q_gather(g, args, rnd, tsa=None):
    g(f'''s_lshr_b32 s44, s86, 5
    s_lshl_b32 s44, s44, 15
    s_add_u32 s44, s44, {W_Q + rnd*16384}
    s_lshr_b32 s45, s44, 1
    s_add_u32 s45, s45, {W_B}
    s_lshr_b32 s48, s86, 6
    s_add_u32 s48, s48, 1''')
    if args.qmode == 1:
        g(f's_lshl_b32 s48, s48, {QSH}\ns_add_u32 s48, s48, {QOFF}')
        counter_wait(g, 40, 's48', 64, args.fsleep)
    else:
        flag_wait(g, 's48', args.fsleep)
    if tsa is not None:
        ts(g, tsa)
    g('''v_lshrrev_b32 v2, 5, v0
    v_lshlrev_b32 v2, 12, v2
    v_and_b32 v3, 31, v0
    v_lshl_add_u32 v2, v3, 4, v2
    v_lshrrev_b32 v3, 1, v2
    v_lshrrev_b32 v8, 5, v0
    v_lshlrev_b32 v8, 8, v8
    v_bfe_u32 v9, v0, 3, 2
    v_lshlrev_b32 v9, 6, v9
    v_and_b32 v10, 7, v0
    v_lshlrev_b32 v10, 1, v10
    v_add3_u32 v8, v8, v9, v10''')
    def issue_q2():
        for hh in range(2):
            g(f's_add_u32 s46, s44, {hh*8192}\ns_add_u32 s48, s45, {hh*4096}')
            for ks in range(8):
                r = 40 + 32 * hh + 4 * ks
                rb = 104 + 16 * hh + 2 * ks
                g(f'buffer_load_dwordx4 v[{r}:{r+3}], v2, s[36:39], s46 offen offset:{ks*512} sc1')
                if not args.qpack:
                    g(f'buffer_load_dwordx2 v[{rb}:{rb+1}], v3, s[36:39], s48 offen offset:{ks*256} sc1')
    tags = [43 + 4 * i for i in range(16)] + ([] if args.qpack else [105 + 2 * i for i in range(16)])
    if 'q2' not in args.skip:
        tpoll_loop(g, issue_q2, tags, sleep=4, plain=True)
    if args.qpack:
        for i in range(16):
            unpack_d(g, 40 + 4 * i)
    for hh in range(2):
        hp = 2 * rnd + hh
        for r in range(4):
            src = (lambda ks: 40 + 32 * hh + 4 * ks + r) if (r < 3 or args.qpack) else (lambda ks: 104 + 16 * hh + 2 * ks)
            g(f'v_add_f32 v{12+r}, v{src(0)}, v{src(1)}')
            for ks in range(2, 8):
                g(f'v_add_f32 v{12+r}, v{12+r}, v{src(ks)}')
        g(f'''v_cvt_pk_bf16_f32 v12, v12, v13
        v_cvt_pk_bf16_f32 v14, v14, v15
        ds_write_b16 v8, v12 offset:{L_Q + 512*hp}
        ds_write_b16_d16_hi v8, v12 offset:{L_Q + 512*hp + 16}
        ds_write_b16 v8, v14 offset:{L_Q + 512*hp + 32}
        ds_write_b16_d16_hi v8, v14 offset:{L_Q + 512*hp + 48}''')
    lds_signal(g, C_Q, add=True)

PROF = False
def ts(g, i):
    if PROF:
        g(f's_memrealtime s[96:97]\ns_waitcnt lgkmcnt(0)\ns_mov_b32 s{64+i}, s96')
def ts_dump(g, n):
    if not PROF:
        return
    g(f'''s_mul_i32 s62, s2, 12
    s_add_u32 s62, s62, s3
    s_lshl_b32 s62, s62, 6
    s_add_u32 s62, s62, 0x8000000
    s_mov_b64 exec, 1
    v_mov_b32 v6, 0''')
    for i in range(16):
        g(f'v_mov_b32 v7, s{64+i}\nbuffer_store_dword v7, v6, s[36:39], s62 offen offset:{4*i}')

def gen_flash(g, args):
    g.label('L_BULK')
    vm = VM(g)
    BQ, BS, BPK, BO, KST, VS = 8, 24, 40, 48, 80, 112
    KV_ = ['v240', 'v241', 'v242', 'v243']
    KR_ = ['v244', 'v245', 'v246', 'v247']
    TS = 16384
    srd(g, 28, 6, 64 * 1024 * 1024)
    srd(g, 32, 8, 64 * 1024 * 1024)
    g(f'''s_sub_u32 s44, s3, 4
    s_lshr_b32 s45, s86, 6
    s_bfe_u32 s46, s86, 0x10005
    s_lshl_b32 s46, s46, 2
    s_add_u32 s45, s45, s46
    s_lshl_b32 s45, s45, 23
    s_and_b32 s46, s86, 31
    s_lshl_b32 s46, s46, 18
    s_add_u32 s45, s45, s46
    s_lshl_b32 s46, s44, 12
    s_add_u32 s45, s45, s46
    v_and_b32 v4, 15, v0
    v_lshrrev_b32 v5, 4, v0
    v_lshlrev_b32 v2, 4, v0
    s_lshl_b32 s48, s44, 15
    s_add_u32 s48, s48, {L_V}
    v_xor_b32 v6, v4, v5
    v_lshlrev_b32 v7, 8, v5
    v_lshl_add_u32 v240, v6, 4, v7
    v_xor_b32 v241, 64, v240
    v_add_u32 v241, 1024, v241
    v_xor_b32 v242, 128, v240
    v_add_u32 v242, 2048, v242
    v_xor_b32 v243, 192, v240
    v_add_u32 v243, 3072, v243
    v_and_b32 v6, 3, v4
    v_lshlrev_b32 v6, 2, v6
    v_lshrrev_b32 v7, 2, v4
    v_add_u32 v6, v6, v7
    v_xor_b32 v7, v6, v5
    v_lshlrev_b32 v6, 8, v6
    v_lshl_add_u32 v244, v7, 4, v6
    v_xor_b32 v245, 64, v244
    v_xor_b32 v246, 128, v244
    v_xor_b32 v247, 192, v244
    v_add_u32 v244, s48, v244
    v_add_u32 v245, s48, v245
    v_add_u32 v246, s48, v246
    v_add_u32 v247, s48, v247
    s_barrier''')
    order = []
    cnt = [0]
    def pace(tag):
        order.append(tag)
        n = args.infl
        if len(order) - 1 - n >= 0:
            vm.wait(order[len(order) - 1 - n])
        if cnt[0] == args.pre:
            lds_wait(g, C_X, 1)
        if cnt[0] == args.ksig:
            lds_signal(g, C_K, add=True)
        if cnt[0] in (4, 8, 12, 15, 20, 24, 28, 31):
            ts(g, 8 + (4, 8, 12, 15, 20, 24, 28, 31).index(cnt[0]))
        cnt[0] += 1
    def kload(T):
        pace(f'K{T}')
        for j in range(4):
            g(f's_add_u32 s49, s48, {4096*(T % 8) + 1024*j}\ns_mov_b32 m0, s49\ns_add_u32 s46, s45, {TS*T}')
            g(f'buffer_load_dwordx4 {KV_[j]}, s[28:31], s46 offen nt lds')
            vm.issue(f'K{T}')
    def vload(T):
        pace(f'V{T}')
        r0 = VS + 16 * (T % 8)
        g(f's_add_u32 s46, s45, {TS*T}')
        for j in range(4):
            g(f'buffer_load_dwordx4 v[{r0+4*j}:{r0+4*j+3}], v2, s[32:35], s46 offen offset:{1024*j} nt')
            vm.issue(f'V{T}')
    def kread(T):
        r0 = KST + 16 * (T & 1)
        for j in range(4):
            g(f'ds_read_b128 v[{r0+4*j}:{r0+4*j+3}], {KR_[j]} offset:{4096*(T % 8)}')
    for c in range(2):
        for T in range(4 * c, 4 * c + 4):
            kload(T)
        for T in range(4 * c, 4 * c + 4):
            vload(T)
    lds_wait(g, C_Q, 2)
    ts(g, 1)
    g('''v_and_b32 v3, 7, v0
    v_lshlrev_b32 v3, 8, v3
    v_lshl_add_u32 v3, v5, 4, v3''')
    for j in range(4):
        g(f'ds_read_b128 v[{BQ+4*j}:{BQ+4*j+3}], v3 offset:{L_Q + 64*j}')
    for c in range(4):
        vm.wait(f'K{4*c+3}')
        kread(4 * c)
        for i in range(4):
            T = 4 * c + i
            if i < 3:
                kread(T + 1)
                g('s_waitcnt lgkmcnt(4)')
            else:
                g('s_waitcnt lgkmcnt(0)')
            r0 = KST + 16 * (T & 1)
            sreg = BS + 4 * i
            for j in range(4):
                cc = '0' if j == 0 else f'v[{sreg}:{sreg+3}]'
                g(f'v_mfma_f32_16x16x32_bf16 v[{sreg}:{sreg+3}], v[{r0+4*j}:{r0+4*j+3}], v[{BQ+4*j}:{BQ+4*j+3}], {cc}')
        if c == 0:
            ts(g, 2)
        if c < 2:
            for T in range(4 * c + 8, 4 * c + 12):
                kload(T)
        else:
            g('s_nop 7')
        for i in range(8):
            a, b = f'v{BS+2*i}', f'v{BS+2*i+1}'
            bf16r_pair(g, a, b, 'v250')
            g(f'v_mul_f32 {a}, s61, {a}\nv_mul_f32 {b}, s61, {b}')
            bf16r_pair(g, a, b, 'v250')
        g(f'v_max_f32 v250, v{BS}, v{BS+1}')
        for i in range(1, 8):
            g(f'v_max3_f32 v250, v250, v{BS+2*i}, v{BS+2*i+1}')
        allred_x16(g, 'v_max_f32', 'v250', 'v251')
        allred_x32(g, 'v_max_f32', 'v250', 'v251')
        if c > 0:
            g('''v_max_f32 v250, v250, v248
            v_sub_f32 v252, v248, v250
            v_mul_f32 v252, s60, v252
            v_exp_f32 v252, v252''')
        g('v_mov_b32 v248, v250\nv_mov_b32 v253, 0\nv_mov_b32 v254, 0')
        for i in range(0, 16, 2):
            g(f'''v_sub_f32 v{BS+i}, v{BS+i}, v248
            v_sub_f32 v{BS+i+1}, v{BS+i+1}, v248
            v_mul_f32 v{BS+i}, s60, v{BS+i}
            v_mul_f32 v{BS+i+1}, s60, v{BS+i+1}
            v_exp_f32 v{BS+i}, v{BS+i}
            v_exp_f32 v{BS+i+1}, v{BS+i+1}
            s_nop 0
            v_add_f32 v253, v253, v{BS+i}
            v_add_f32 v254, v254, v{BS+i+1}
            v_cvt_pk_bf16_f32 v{BPK+i//2}, v{BS+i}, v{BS+i+1}''')
        g('v_add_f32 v253, v253, v254')
        if c == 0:
            g('v_mov_b32 v249, v253')
        else:
            g('v_fma_f32 v249, v249, v252, v253')
            for i in range(32):
                g(f'v_mul_f32 v{BO+i}, v{BO+i}, v252')
        if c == 3:
            g('v_mov_b32 v253, v249')
            allred_x16(g, 'v_add_f32', 'v253', 'v251')
            allred_x32(g, 'v_add_f32', 'v253', 'v251')
            g(f'''s_lshl_b32 s46, s44, 6
            v_lshlrev_b32 v3, 2, v0
            v_add_u32 v3, s46, v3
            s_mov_b64 exec, 0xff
            ds_write_b32 v3, v248 offset:{L_ST}
            ds_write_b32 v3, v253 offset:{L_ST+32}
            s_mov_b64 exec, -1''')
            lds_signal(g, C_ST, add=True)
            ts(g, 3)
        for U in range(2):
            T0, T1 = 4 * c + 2 * U, 4 * c + 2 * U + 1
            vm.wait(f'V{T1}')
            ra = VS + 16 * (T0 % 8)
            rb = VS + 16 * (T1 % 8)
            for half in range(2):
                for tt in range(4):
                    t = 4 * half + tt
                    d = t >> 1
                    sel = 's58' if (t & 1) == 0 else 's59'
                    o = BS + 4 * tt
                    g(f'v_perm_b32 v{o}, v{ra+4+d}, v{ra+d}, {sel}')
                    g(f'v_perm_b32 v{o+1}, v{ra+12+d}, v{ra+8+d}, {sel}')
                    g(f'v_perm_b32 v{o+2}, v{rb+4+d}, v{rb+d}, {sel}')
                    g(f'v_perm_b32 v{o+3}, v{rb+12+d}, v{rb+8+d}, {sel}')
                g('s_nop 1')
                for tt in range(4):
                    t = 4 * half + tt
                    o = BS + 4 * tt
                    acc = BO + 4 * t
                    cc = '0' if (c == 0 and U == 0) else f'v[{acc}:{acc+3}]'
                    g(f'v_mfma_f32_16x16x32_bf16 v[{acc}:{acc+3}], v[{o}:{o+3}], v[{BPK+4*U}:{BPK+4*U+3}], {cc}')
        if c < 2:
            for T in range(4 * c + 8, 4 * c + 12):
                vload(T)
            if c == 1:
                lds_signal(g, C_V, add=True)
                ts(g, 4)
        g('s_nop 7')
    ts(g, 5)
    g(f'''s_lshl_b32 s46, s44, 12
    v_lshlrev_b32 v3, 9, v4
    v_lshl_add_u32 v3, v5, 7, v3
    v_add_u32 v3, s46, v3
    s_mov_b32 exec_lo, 0x00ff00ff
    s_mov_b32 exec_hi, 0x00ff00ff''')
    for t in range(8):
        acc = BO + 4 * t
        g(f'ds_write_b128 v3, v[{acc}:{acc+3}] offset:{L_OP + 16*t}')
    g('s_mov_b64 exec, -1')
    lds_signal(g, C_O, add=True)
    g(f'''s_lshr_b32 s46, s86, 6
    s_lshl_b32 s46, s46, 18
    s_lshl_b32 s49, s44, 16
    s_add_u32 s46, s46, s49
    s_bfe_u32 s49, s86, 0x10005
    s_lshl_b32 s49, s49, 14
    s_add_u32 s46, s46, s49
    s_and_b32 s49, s86, 31
    s_lshl_b32 s49, s49, 9
    s_add_u32 s46, s46, s49
    s_add_u32 s46, s46, {W_O}
    v_and_b32 v2, 31, v0
    v_lshlrev_b32 v2, 4, v2
    v_lshrrev_b32 v1, 5, v0
    v_lshl_add_u32 v2, v1, 15, v2
    s_lshl_b32 s49, s44, 10
    v_lshlrev_b32 v3, 4, v0
    v_add_u32 v3, s49, v3''')
    g(f'''s_lshl_b32 s49, s44, 3
    v_lshl_add_u32 v4, v1, 2, s49
    s_lshl_b32 s52, s86, 6
    s_add_u32 s52, s52, {W_ML}''')
    lds_wait(g, C_O, 4)
    for w in range(4):
        g(f'ds_read_b32 v{16+w}, v4 offset:{L_ST + 64*w}\nds_read_b32 v{20+w}, v4 offset:{L_ST + 64*w + 32}')
    for w in range(4):
        g(f'ds_read_b128 v[{88+4*w}:{91+4*w}], v3 offset:{L_OP + 4096*w}')
    g('''s_waitcnt lgkmcnt(4)
    v_max3_f32 v24, v16, v17, v18
    v_max_f32 v24, v24, v19''')
    for w in range(4):
        g(f'v_sub_f32 v{16+w}, v{16+w}, v24\nv_mul_f32 v{16+w}, s60, v{16+w}\nv_exp_f32 v{16+w}, v{16+w}')
    g('''s_nop 0
    v_mul_f32 v25, v20, v16
    v_fma_f32 v25, v21, v17, v25
    v_fma_f32 v25, v22, v18, v25
    v_fma_f32 v25, v23, v19, v25
    s_waitcnt lgkmcnt(0)''')
    for r in range(4):
        g(f'''v_mul_f32 v{8+r}, v{88+r}, v16
        v_mul_f32 v{12+r}, v{96+r}, v18
        v_fma_f32 v{8+r}, v{92+r}, v17, v{8+r}
        v_fma_f32 v{12+r}, v{100+r}, v19, v{12+r}
        v_add_f32 v{8+r}, v{8+r}, v{12+r}''')
    g('''buffer_store_dwordx4 v[8:11], v2, s[36:39], s46 offen sc1
    s_mov_b32 exec_lo, 1
    s_mov_b32 exec_hi, 1
    buffer_store_dword v24, v4, s[36:39], s52 offen sc1
    buffer_store_dword v25, v4, s[36:39], s52 offen offset:32 sc1
    s_mov_b64 exec, -1''')
    if args.omode >= 2:
        d = g.uniq('OA')
        g(f'''v_mov_b32 v6, {C_ST}
        v_mov_b32 v7, 1
        s_mov_b64 exec, 1
        ds_add_rtn_u32 v7, v6, v7
        s_waitcnt lgkmcnt(0)
        v_readfirstlane_b32 s49, v7
        s_mov_b64 exec, -1
        s_cmp_eq_u32 s49, 7
        s_cbranch_scc0 {d}''')
        read_nonce(g)
        g('s_lshr_b32 s48, s86, 6\ns_add_u32 s48, s48, 8\ns_andn2_b32 s49, s86, 63\ns_add_u32 s49, s49, 257')
        arrive(g, 's48', 64, sctr='s49', ack=False)
        g.label(d)
    ts(g, 6)
    ts_dump(g, 7)
    g('s_endpgm')

def gen_steal(g, args):
    g.label('L_BULK')
    vm = VM(g)
    BQ, BS, BPK, BO, KST, VS = 8, 24, 40, 48, 80, 112
    KV_ = ['v240', 'v241', 'v242', 'v243']
    KR_ = ['v244', 'v245', 'v246', 'v247']
    TS = 16384
    srd(g, 28, 6, 64 * 1024 * 1024)
    srd(g, 32, 8, 64 * 1024 * 1024)
    g(f'''s_sub_u32 s44, s3, 4
    s_lshr_b32 s45, s86, 6
    s_bfe_u32 s46, s86, 0x10005
    s_lshl_b32 s46, s46, 2
    s_add_u32 s45, s45, s46
    s_lshl_b32 s45, s45, 23
    s_mov_b32 s4, s45
    s_and_b32 s46, s86, 31
    s_lshl_b32 s46, s46, 18
    s_add_u32 s45, s45, s46
    s_lshl_b32 s46, s44, 14
    s_add_u32 s45, s45, s46
    v_and_b32 v4, 15, v0
    v_lshrrev_b32 v5, 4, v0
    v_lshlrev_b32 v2, 4, v0
    s_lshl_b32 s48, s44, 15
    s_add_u32 s48, s48, {L_V}
    v_xor_b32 v6, v4, v5
    v_lshlrev_b32 v7, 8, v5
    v_lshl_add_u32 v240, v6, 4, v7
    v_xor_b32 v241, 64, v240
    v_add_u32 v241, 1024, v241
    v_xor_b32 v242, 128, v240
    v_add_u32 v242, 2048, v242
    v_xor_b32 v243, 192, v240
    v_add_u32 v243, 3072, v243
    v_and_b32 v6, 3, v4
    v_lshlrev_b32 v6, 2, v6
    v_lshrrev_b32 v7, 2, v4
    v_add_u32 v6, v6, v7
    v_xor_b32 v7, v6, v5
    v_lshlrev_b32 v6, 8, v6
    v_lshl_add_u32 v244, v7, 4, v6
    v_xor_b32 v245, 64, v244
    v_xor_b32 v246, 128, v244
    v_xor_b32 v247, 192, v244
    v_add_u32 v244, s48, v244
    v_add_u32 v245, s48, v245
    v_add_u32 v246, s48, v246
    v_add_u32 v247, s48, v247
    s_barrier''')
    CAP = 4 * args.infl
    NSTAT = args.nstat
    NPOOL = (4 - NSTAT) * 128
    cnt = [0]
    def hooks():
        if cnt[0] == args.pre:
            lds_wait(g, C_X, 1)
        if cnt[0] == args.ksig:
            lds_signal(g, C_K, add=True)
        cnt[0] += 1
    def kload(buf, soff, hook=False):
        for i in range(4):
            g(f's_waitcnt vmcnt({CAP - 4})')
            if hook:
                hooks()
            g(f's_add_u32 s46, {soff}, {4096*i}')
            for j in range(4):
                g(f's_add_u32 s49, s48, {4096*(4*buf+i) + 1024*j}\ns_mov_b32 m0, s49\ns_nop 0')
                g(f'buffer_load_dwordx4 {KV_[j]}, s[28:31], s46 offen nt lds')
    def vload(buf, soff, hook=False):
        for i in range(4):
            g(f's_waitcnt vmcnt({CAP - 4})')
            if hook:
                hooks()
            r0 = VS + 16 * (4 * buf + i)
            g(f's_add_u32 s46, {soff}, {4096*i}')
            for j in range(4):
                g(f'buffer_load_dwordx4 v[{r0+4*j}:{r0+4*j+3}], v2, s[32:35], s46 offen offset:{1024*j} nt')
    def kread(slot):
        r0 = KST + 16 * (slot & 1)
        for j in range(4):
            g(f'ds_read_b128 v[{r0+4*j}:{r0+4*j+3}], {KR_[j]} offset:{4096*slot}')
    def ticket_req():
        g('''v_mov_b32 v255, 1
        s_mov_b64 exec, 1
        buffer_atomic_add v255, v1, s[36:39], 0 offen sc0
        s_mov_b64 exec, -1''')
    g('s_add_u32 s5, s45, 65536')
    kload(0, 's45', True); vload(0, 's45', True)
    kload(1, 's5', True); vload(1, 's5', True)
    g(f'''s_andn2_b32 s46, s86, 31
    s_add_u32 s46, s46, 256
    s_lshl_b32 s46, s46, 7
    s_add_u32 s46, s46, {W_CT}
    v_mov_b32 v1, s46
    v_mov_b32 v248, 0xff800000
    v_mov_b32 v249, 0''')
    for i in range(32):
        g(f'v_mov_b32 v{BO+i}, 0')
    lds_wait(g, C_Q, 2)
    ts(g, 1)
    g('''v_and_b32 v3, 7, v0
    v_lshlrev_b32 v3, 8, v3
    v_lshl_add_u32 v3, v5, 4, v3''')
    for j in range(4):
        g(f'ds_read_b128 v[{BQ+4*j}:{BQ+4*j+3}], v3 offset:{L_Q + 64*j}')
    g(f'''s_mov_b32 s6, {NSTAT - 2}
    s_add_u32 s5, s45, 131072
    s_mov_b32 s7, 1
    s_mov_b32 s8, 0''')
    assert NSTAT == 3
    def half(buf, nxt_label, exit_label):
        u = g.uniq('H')
        g(f'''s_cmp_eq_u32 s7, 0
        s_cbranch_scc1 {u}_w0
        s_waitcnt vmcnt(48)
        s_branch {u}_w1''')
        g.label(f'{u}_w0')
        g('s_waitcnt vmcnt(16)')
        g.label(f'{u}_w1')
        kread(4 * buf)
        for i in range(4):
            if i < 3:
                kread(4 * buf + i + 1)
                g('s_waitcnt lgkmcnt(4)')
            else:
                g('s_waitcnt lgkmcnt(0)')
            r0 = KST + 16 * (i & 1)
            sreg = BS + 4 * i
            for j in range(4):
                cc = '0' if j == 0 else f'v[{sreg}:{sreg+3}]'
                g(f'v_mfma_f32_16x16x32_bf16 v[{sreg}:{sreg+3}], v[{r0+4*j}:{r0+4*j+3}], v[{BQ+4*j}:{BQ+4*j+3}], {cc}')
        g(f'''s_mov_b32 s9, 0
        s_cmp_eq_u32 s6, 0
        s_cbranch_scc1 {u}_dyn
        s_mov_b32 s9, 1
        s_mov_b32 s10, s5
        s_add_u32 s5, s5, 65536
        s_sub_u32 s6, s6, 1
        s_branch {u}_got''')
        g.label(f'{u}_dyn')
        g(f'''s_cmp_eq_u32 s8, 0
        s_cbranch_scc1 {u}_got
        s_waitcnt vmcnt(32)
        v_readfirstlane_b32 s11, v255
        s_mov_b32 s8, 0
        s_cmp_ge_u32 s11, {NPOOL}
        s_cbranch_scc1 {u}_got
        s_mov_b32 s9, 1''')
        g(f'''s_and_b32 s10, s11, 127
        s_lshr_b32 s10, s10, 2
        s_lshl_b32 s10, s10, 18
        s_and_b32 s12, s11, 3
        s_lshl_b32 s12, s12, 14
        s_add_u32 s10, s10, s12
        s_lshr_b32 s12, s11, 7
        s_add_u32 s12, s12, {NSTAT}
        s_lshl_b32 s12, s12, 16
        s_add_u32 s10, s10, s12
        s_add_u32 s10, s10, s4''')
        g.label(f'{u}_got')
        g(f's_cmp_eq_u32 s9, 0\ns_cbranch_scc1 {u}_nok')
        g(f's_cmp_lg_u32 s6, 0\ns_cbranch_scc1 {u}_not')
        ticket_req()
        g('s_mov_b32 s8, 1')
        g.label(f'{u}_not')
        kload(buf, 's10')
        g.label(f'{u}_nok')
        g('s_nop 7')
        for i in range(8):
            a, b = f'v{BS+2*i}', f'v{BS+2*i+1}'
            bf16r_pair(g, a, b, 'v250')
            g(f'v_mul_f32 {a}, s61, {a}\nv_mul_f32 {b}, s61, {b}')
            bf16r_pair(g, a, b, 'v250')
        g(f'v_max3_f32 v250, v{BS}, v{BS+1}, v248')
        for i in range(1, 8):
            g(f'v_max3_f32 v250, v250, v{BS+2*i}, v{BS+2*i+1}')
        allred_x16(g, 'v_max_f32', 'v250', 'v251')
        allred_x32(g, 'v_max_f32', 'v250', 'v251')
        g('''v_sub_f32 v252, v248, v250
        v_mul_f32 v252, s60, v252
        v_exp_f32 v252, v252
        v_mov_b32 v248, v250
        v_mov_b32 v253, 0
        v_mov_b32 v254, 0''')
        for i in range(0, 16, 2):
            g(f'''v_sub_f32 v{BS+i}, v{BS+i}, v248
            v_sub_f32 v{BS+i+1}, v{BS+i+1}, v248
            v_mul_f32 v{BS+i}, s60, v{BS+i}
            v_mul_f32 v{BS+i+1}, s60, v{BS+i+1}
            v_exp_f32 v{BS+i}, v{BS+i}
            v_exp_f32 v{BS+i+1}, v{BS+i+1}
            s_nop 0
            v_add_f32 v253, v253, v{BS+i}
            v_add_f32 v254, v254, v{BS+i+1}
            v_cvt_pk_bf16_f32 v{BPK+i//2}, v{BS+i}, v{BS+i+1}''')
        g('v_add_f32 v253, v253, v254\nv_fma_f32 v249, v249, v252, v253')
        for i in range(32):
            g(f'v_mul_f32 v{BO+i}, v{BO+i}, v252')
        g(f'''s_lshl_b32 s12, s7, 1
        s_add_u32 s12, s12, s9
        s_cmp_eq_u32 s12, 3
        s_cbranch_scc1 {u}_v3
        s_cmp_eq_u32 s12, 2
        s_cbranch_scc1 {u}_v2
        s_cmp_eq_u32 s12, 1
        s_cbranch_scc1 {u}_v1
        s_waitcnt vmcnt(0)
        s_branch {u}_vd''')
        g.label(f'{u}_v3'); g(f's_waitcnt vmcnt(48)\ns_branch {u}_vd')
        g.label(f'{u}_v2'); g(f's_waitcnt vmcnt(32)\ns_branch {u}_vd')
        g.label(f'{u}_v1'); g('s_waitcnt vmcnt(16)')
        g.label(f'{u}_vd')
        for U in range(2):
            ra = VS + 16 * (4 * buf + 2 * U)
            rb = ra + 16
            for hf in range(2):
                for tt in range(4):
                    t = 4 * hf + tt
                    d = t >> 1
                    sel = 's58' if (t & 1) == 0 else 's59'
                    o = BS + 4 * tt
                    g(f'v_perm_b32 v{o}, v{ra+4+d}, v{ra+d}, {sel}')
                    g(f'v_perm_b32 v{o+1}, v{ra+12+d}, v{ra+8+d}, {sel}')
                    g(f'v_perm_b32 v{o+2}, v{rb+4+d}, v{rb+d}, {sel}')
                    g(f'v_perm_b32 v{o+3}, v{rb+12+d}, v{rb+8+d}, {sel}')
                g('s_nop 1')
                for tt in range(4):
                    t = 4 * hf + tt
                    o = BS + 4 * tt
                    acc = BO + 4 * t
                    g(f'v_mfma_f32_16x16x32_bf16 v[{acc}:{acc+3}], v[{o}:{o+3}], v[{BPK+4*U}:{BPK+4*U+3}], v[{acc}:{acc+3}]')
        g(f's_cmp_eq_u32 s9, 0\ns_cbranch_scc1 {u}_nov')
        vload(buf, 's10')
        g(f's_branch {u}_cont')
        g.label(f'{u}_nov')
        g(f's_cmp_eq_u32 s7, 0\ns_cbranch_scc1 {u}_cont')
        lds_signal(g, C_V, add=True)
        g.label(f'{u}_cont')
        g(f'''s_mov_b32 s12, s7
        s_mov_b32 s7, s9
        s_cmp_eq_u32 s12, 0
        s_cbranch_scc1 {exit_label}''')
        if nxt_label:
            g(f's_branch {nxt_label}')
    g.label('L_SLOOP')
    half(0, None, 'L_SEXIT')
    half(1, 'L_SLOOP', 'L_SEXIT')
    g.label('L_SEXIT')
    g('s_nop 7')
    g('v_mov_b32 v253, v249')
    allred_x16(g, 'v_add_f32', 'v253', 'v251')
    allred_x32(g, 'v_add_f32', 'v253', 'v251')
    g(f'''s_lshl_b32 s46, s44, 6
    v_lshlrev_b32 v3, 2, v0
    v_add_u32 v3, s46, v3
    s_mov_b64 exec, 0xff
    ds_write_b32 v3, v248 offset:{L_ST}
    ds_write_b32 v3, v253 offset:{L_ST+32}
    s_mov_b64 exec, -1''')
    lds_signal(g, C_ST, add=True)
    ts(g, 5)
    g(f'''s_lshl_b32 s46, s44, 12
    v_lshlrev_b32 v3, 9, v4
    v_lshl_add_u32 v3, v5, 7, v3
    v_add_u32 v3, s46, v3
    s_mov_b32 exec_lo, 0x00ff00ff
    s_mov_b32 exec_hi, 0x00ff00ff''')
    for t in range(8):
        acc = BO + 4 * t
        g(f'ds_write_b128 v3, v[{acc}:{acc+3}] offset:{L_OP + 16*t}')
    g('s_mov_b64 exec, -1')
    lds_signal(g, C_O, add=True)
    g(f'''s_lshr_b32 s46, s86, 6
    s_lshl_b32 s46, s46, 18
    s_lshl_b32 s49, s44, 16
    s_add_u32 s46, s46, s49
    s_bfe_u32 s49, s86, 0x10005
    s_lshl_b32 s49, s49, 14
    s_add_u32 s46, s46, s49
    s_and_b32 s49, s86, 31
    s_lshl_b32 s49, s49, 9
    s_add_u32 s46, s46, s49
    s_add_u32 s46, s46, {W_O}
    v_and_b32 v2, 31, v0
    v_lshlrev_b32 v2, 4, v2
    v_lshrrev_b32 v1, 5, v0
    v_lshl_add_u32 v2, v1, 15, v2
    s_lshl_b32 s49, s44, 10
    v_lshlrev_b32 v3, 4, v0
    v_add_u32 v3, s49, v3''')
    g(f'''s_lshl_b32 s49, s44, 3
    v_lshl_add_u32 v4, v1, 2, s49
    s_lshl_b32 s52, s86, 6
    s_add_u32 s52, s52, {W_ML}''')
    lds_wait(g, C_O, 4)
    for w in range(4):
        g(f'ds_read_b32 v{16+w}, v4 offset:{L_ST + 64*w}\nds_read_b32 v{20+w}, v4 offset:{L_ST + 64*w + 32}')
    for w in range(4):
        g(f'ds_read_b128 v[{88+4*w}:{91+4*w}], v3 offset:{L_OP + 4096*w}')
    g('''s_waitcnt lgkmcnt(4)
    v_max3_f32 v24, v16, v17, v18
    v_max_f32 v24, v24, v19''')
    for w in range(4):
        g(f'v_sub_f32 v{16+w}, v{16+w}, v24\nv_mul_f32 v{16+w}, s60, v{16+w}\nv_exp_f32 v{16+w}, v{16+w}')
    g('''s_nop 0
    v_mul_f32 v25, v20, v16
    v_fma_f32 v25, v21, v17, v25
    v_fma_f32 v25, v22, v18, v25
    v_fma_f32 v25, v23, v19, v25
    s_waitcnt lgkmcnt(0)''')
    for r in range(4):
        g(f'''v_mul_f32 v{8+r}, v{88+r}, v16
        v_mul_f32 v{12+r}, v{96+r}, v18
        v_fma_f32 v{8+r}, v{92+r}, v17, v{8+r}
        v_fma_f32 v{12+r}, v{100+r}, v19, v{12+r}
        v_add_f32 v{8+r}, v{8+r}, v{12+r}''')
    g('''buffer_store_dwordx4 v[8:11], v2, s[36:39], s46 offen sc1
    s_mov_b32 exec_lo, 1
    s_mov_b32 exec_hi, 1
    buffer_store_dword v24, v4, s[36:39], s52 offen sc1
    buffer_store_dword v25, v4, s[36:39], s52 offen offset:32 sc1
    s_mov_b64 exec, -1''')
    if args.omode >= 2:
        d = g.uniq('OA')
        g(f'''v_mov_b32 v6, {C_ST}
        v_mov_b32 v7, 1
        s_mov_b64 exec, 1
        ds_add_rtn_u32 v7, v6, v7
        s_waitcnt lgkmcnt(0)
        v_readfirstlane_b32 s49, v7
        s_mov_b64 exec, -1
        s_cmp_eq_u32 s49, 7
        s_cbranch_scc0 {d}''')
        read_nonce(g)
        g('s_lshr_b32 s48, s86, 6\ns_add_u32 s48, s48, 8\ns_andn2_b32 s49, s86, 63\ns_add_u32 s49, s49, 257')
        arrive(g, 's48', 64, sctr='s49', ack=False)
        g.label(d)
    ts(g, 6)
    ts_dump(g, 7)
    g('s_endpgm')

def gen_steal2(g, args):
    g.label('L_BULK')
    vm = VM(g)
    BQ, BS, BPK, BO, KST, VS = 8, 24, 40, 48, 80, 112
    KV_ = ['v240', 'v241', 'v242', 'v243']
    KR_ = ['v244', 'v245', 'v246', 'v247']
    TS = 16384
    srd(g, 28, 6, 64 * 1024 * 1024)
    srd(g, 32, 8, 64 * 1024 * 1024)
    g(f'''s_sub_u32 s44, s3, 4
    s_lshr_b32 s45, s86, 6
    s_bfe_u32 s46, s86, 0x10005
    s_lshl_b32 s46, s46, 2
    s_add_u32 s45, s45, s46
    s_lshl_b32 s45, s45, 23
    s_mov_b32 s4, s45
    s_and_b32 s46, s86, 31
    s_lshl_b32 s46, s46, 18
    s_add_u32 s45, s45, s46
    s_lshl_b32 s46, s44, 13
    s_add_u32 s45, s45, s46
    v_and_b32 v4, 15, v0
    v_lshrrev_b32 v5, 4, v0
    v_lshlrev_b32 v2, 4, v0
    s_lshl_b32 s48, s44, 15
    s_add_u32 s48, s48, {L_V}
    v_xor_b32 v6, v4, v5
    v_lshlrev_b32 v7, 8, v5
    v_lshl_add_u32 v240, v6, 4, v7
    v_xor_b32 v241, 64, v240
    v_add_u32 v241, 1024, v241
    v_xor_b32 v242, 128, v240
    v_add_u32 v242, 2048, v242
    v_xor_b32 v243, 192, v240
    v_add_u32 v243, 3072, v243
    v_and_b32 v6, 3, v4
    v_lshlrev_b32 v6, 2, v6
    v_lshrrev_b32 v7, 2, v4
    v_add_u32 v6, v6, v7
    v_xor_b32 v7, v6, v5
    v_lshlrev_b32 v6, 8, v6
    v_lshl_add_u32 v244, v7, 4, v6
    v_xor_b32 v245, 64, v244
    v_xor_b32 v246, 128, v244
    v_xor_b32 v247, 192, v244
    v_add_u32 v244, s48, v244
    v_add_u32 v245, s48, v245
    v_add_u32 v246, s48, v246
    v_add_u32 v247, s48, v247
    s_barrier''')
    CAP = 4 * args.infl
    NSP = args.nsp
    NPOOL = (8 - NSP) * 128
    cnt = [0]
    def hooks():
        if cnt[0] == args.pre:
            lds_wait(g, C_X, 1)
        if cnt[0] == args.ksig:
            lds_signal(g, C_K, add=True)
        cnt[0] += 1
    def kload(buf, soff, hook=False):
        for i in range(2):
            g(f's_waitcnt vmcnt({CAP - 4})')
            if hook:
                hooks()
            g(f's_add_u32 s46, {soff}, {4096*i}')
            for j in range(4):
                g(f's_add_u32 s49, s48, {4096*(2*buf+i) + 1024*j}\ns_mov_b32 m0, s49\ns_nop 0')
                g(f'buffer_load_dwordx4 {KV_[j]}, s[28:31], s46 offen nt lds')
    def vload(buf, soff, hook=False):
        for i in range(2):
            g(f's_waitcnt vmcnt({CAP - 4})')
            if hook:
                hooks()
            r0 = VS + 16 * (2 * buf + i)
            g(f's_add_u32 s46, {soff}, {4096*i}')
            for j in range(4):
                g(f'buffer_load_dwordx4 v[{r0+4*j}:{r0+4*j+3}], v2, s[32:35], s46 offen offset:{1024*j} nt')
    def kread(slot):
        r0 = KST + 16 * (slot & 1)
        for j in range(4):
            g(f'ds_read_b128 v[{r0+4*j}:{r0+4*j+3}], {KR_[j]} offset:{4096*slot}')
    def ticket_req():
        g('''v_mov_b32 v255, 1
        s_mov_b64 exec, 1
        buffer_atomic_add v255, v1, s[36:39], 0 offen sc0
        s_mov_b64 exec, -1''')
    def qk(buf):
        kread(2 * buf); kread(2 * buf + 1)
        for i in range(2):
            g(f's_waitcnt lgkmcnt({4 if i == 0 else 0})')
            r0 = KST + 16 * i
            sreg = BS + 4 * i
            for j in range(4):
                cc = '0' if j == 0 else f'v[{sreg}:{sreg+3}]'
                g(f'v_mfma_f32_16x16x32_bf16 v[{sreg}:{sreg+3}], v[{r0+4*j}:{r0+4*j+3}], v[{BQ+4*j}:{BQ+4*j+3}], {cc}')
    def softmax():
        g('s_nop 7')
        for i in range(4):
            a, b = f'v{BS+2*i}', f'v{BS+2*i+1}'
            bf16r_pair(g, a, b, 'v250')
            g(f'v_mul_f32 {a}, s61, {a}\nv_mul_f32 {b}, s61, {b}')
            bf16r_pair(g, a, b, 'v250')
        g(f'v_max3_f32 v250, v{BS}, v{BS+1}, v248')
        for i in range(1, 4):
            g(f'v_max3_f32 v250, v250, v{BS+2*i}, v{BS+2*i+1}')
        allred_x16(g, 'v_max_f32', 'v250', 'v251')
        allred_x32(g, 'v_max_f32', 'v250', 'v251')
        g('''v_sub_f32 v252, v248, v250
        v_mul_f32 v252, s60, v252
        v_exp_f32 v252, v252
        v_mov_b32 v248, v250
        v_mov_b32 v253, 0
        v_mov_b32 v254, 0''')
        for i in range(0, 8, 2):
            g(f'''v_sub_f32 v{BS+i}, v{BS+i}, v248
            v_sub_f32 v{BS+i+1}, v{BS+i+1}, v248
            v_mul_f32 v{BS+i}, s60, v{BS+i}
            v_mul_f32 v{BS+i+1}, s60, v{BS+i+1}
            v_exp_f32 v{BS+i}, v{BS+i}
            v_exp_f32 v{BS+i+1}, v{BS+i+1}
            s_nop 0
            v_add_f32 v253, v253, v{BS+i}
            v_add_f32 v254, v254, v{BS+i+1}
            v_cvt_pk_bf16_f32 v{BPK+i//2}, v{BS+i}, v{BS+i+1}''')
        g('v_add_f32 v253, v253, v254\nv_fma_f32 v249, v249, v252, v253')
        for i in range(32):
            g(f'v_mul_f32 v{BO+i}, v{BO+i}, v252')
    def pv(buf):
        ra = VS + 32 * buf
        rb = ra + 16
        for hf in range(2):
            for tt in range(4):
                t = 4 * hf + tt
                d = t >> 1
                sel = 's58' if (t & 1) == 0 else 's59'
                o = BS + 4 * tt
                g(f'v_perm_b32 v{o}, v{ra+4+d}, v{ra+d}, {sel}')
                g(f'v_perm_b32 v{o+1}, v{ra+12+d}, v{ra+8+d}, {sel}')
                g(f'v_perm_b32 v{o+2}, v{rb+4+d}, v{rb+d}, {sel}')
                g(f'v_perm_b32 v{o+3}, v{rb+12+d}, v{rb+8+d}, {sel}')
            g('s_nop 1')
            for tt in range(4):
                t = 4 * hf + tt
                o = BS + 4 * tt
                acc = BO + 4 * t
                g(f'v_mfma_f32_16x16x32_bf16 v[{acc}:{acc+3}], v[{o}:{o+3}], v[{BPK}:{BPK+3}], v[{acc}:{acc+3}]')
        g('s_nop 7')
    for p in range(4):
        g(f's_add_u32 s5, s45, {32768*p}')
        kload(p, 's5', True); vload(p, 's5', True)
        for _ in range(8): vm.issue(f'K{p}')
        for _ in range(8): vm.issue(f'V{p}')
    g(f'''s_andn2_b32 s46, s86, 31
    s_add_u32 s46, s46, 256
    s_lshl_b32 s46, s46, 7
    s_add_u32 s46, s46, {W_CT}
    v_mov_b32 v1, s46
    v_mov_b32 v248, 0xff800000
    v_mov_b32 v249, 0''')
    for i in range(32):
        g(f'v_mov_b32 v{BO+i}, 0')
    lds_wait(g, C_Q, 2)
    ts(g, 1)
    g('''v_and_b32 v3, 7, v0
    v_lshlrev_b32 v3, 8, v3
    v_lshl_add_u32 v3, v5, 4, v3''')
    for j in range(4):
        g(f'ds_read_b128 v[{BQ+4*j}:{BQ+4*j+3}], v3 offset:{L_Q + 64*j}')
    def tk_addr():
        g(f'''s_and_b32 s10, s11, 127
        s_lshr_b32 s10, s10, 2
        s_lshl_b32 s10, s10, 18
        s_and_b32 s12, s11, 3
        s_lshl_b32 s12, s12, 13
        s_add_u32 s10, s10, s12
        s_lshr_b32 s12, s11, 7
        s_add_u32 s12, s12, {NSP}
        s_lshl_b32 s12, s12, 15
        s_add_u32 s10, s10, s12
        s_add_u32 s5, s10, s4''')
    assert NSP in (4, 6)
    if NSP == 6:
        for p in range(4):
            vm.wait(f'K{p}')
            qk(p)
            if p < 2:
                g(f's_add_u32 s5, s45, {32768*(p+4)}')
                if p == 1:
                    ticket_req(); vm.issue('A')
                kload(p, 's5')
                for _ in range(8): vm.issue(f'K{p+4}')
            softmax()
            vm.wait(f'V{p}')
            pv(p)
            if p < 2:
                vload(p, 's5')
                for _ in range(8): vm.issue(f'V{p+4}')
        ts(g, 2)
        g('s_mov_b32 s7, 1\ns_mov_b32 s8, 1')
    else:
        ticket_req()
        g('s_waitcnt vmcnt(0)\ns_mov_b32 s8, 1')
        for p in range(4):
            qk(p)
            fl = 's13' if p == 0 else 's7'
            if p < 2:
                u = g.uniq('SP')
                g(f'''s_mov_b32 {fl}, 0
                s_cmp_eq_u32 s8, 0
                s_cbranch_scc1 {u}
                s_waitcnt vmcnt(16)
                v_readfirstlane_b32 s11, v255
                s_mov_b32 s8, 0
                s_cmp_ge_u32 s11, {NPOOL}
                s_cbranch_scc1 {u}
                s_mov_b32 {fl}, 1''')
                tk_addr()
                ticket_req()
                g('s_mov_b32 s8, 1')
                kload(p, 's5')
                g.label(u)
            softmax()
            pv(p)
            if p < 2:
                u = g.uniq('SV')
                g(f's_cmp_eq_u32 {fl}, 0\ns_cbranch_scc1 {u}')
                vload(p, 's5')
                g.label(u)
        ts(g, 2)
        u = g.uniq('SC')
        g(f's_cmp_lg_u32 s7, 0\ns_cbranch_scc1 {u}')
        lds_signal(g, C_V, add=True)
        g.label(u)
        g('s_cmp_eq_u32 s13, 0\ns_cbranch_scc1 L_SEXIT')
    def half(buf, nxt_label, exit_label):
        u = g.uniq('H')
        g(f'''s_cmp_eq_u32 s7, 0
        s_cbranch_scc1 {u}_w0
        s_waitcnt vmcnt(24)
        s_branch {u}_w1''')
        g.label(f'{u}_w0')
        g('s_waitcnt vmcnt(8)')
        g.label(f'{u}_w1')
        qk(buf)
        g(f'''s_mov_b32 s9, 0
        s_cmp_eq_u32 s8, 0
        s_cbranch_scc1 {u}_nok
        s_waitcnt vmcnt(16)
        v_readfirstlane_b32 s11, v255
        s_mov_b32 s8, 0
        s_cmp_ge_u32 s11, {NPOOL}
        s_cbranch_scc1 {u}_nok
        s_mov_b32 s9, 1
        s_and_b32 s10, s11, 127
        s_lshr_b32 s10, s10, 2
        s_lshl_b32 s10, s10, 18
        s_and_b32 s12, s11, 3
        s_lshl_b32 s12, s12, 13
        s_add_u32 s10, s10, s12
        s_lshr_b32 s12, s11, 7
        s_add_u32 s12, s12, {NSP}
        s_lshl_b32 s12, s12, 15
        s_add_u32 s10, s10, s12
        s_add_u32 s10, s10, s4''')
        ticket_req()
        g('s_mov_b32 s8, 1')
        kload(buf, 's10')
        g.label(f'{u}_nok')
        softmax()
        g(f'''s_lshl_b32 s12, s7, 1
        s_add_u32 s12, s12, s9
        s_cmp_eq_u32 s12, 3
        s_cbranch_scc1 {u}_v3
        s_cmp_eq_u32 s12, 2
        s_cbranch_scc1 {u}_v2
        s_cmp_eq_u32 s12, 1
        s_cbranch_scc1 {u}_v1
        s_waitcnt vmcnt(0)
        s_branch {u}_vd''')
        g.label(f'{u}_v3'); g(f's_waitcnt vmcnt(24)\ns_branch {u}_vd')
        g.label(f'{u}_v2'); g(f's_waitcnt vmcnt(16)\ns_branch {u}_vd')
        g.label(f'{u}_v1'); g('s_waitcnt vmcnt(8)')
        g.label(f'{u}_vd')
        pv(buf)
        g(f's_cmp_eq_u32 s9, 0\ns_cbranch_scc1 {u}_nov')
        vload(buf, 's10')
        g(f's_branch {u}_cont')
        g.label(f'{u}_nov')
        g(f's_cmp_eq_u32 s7, 0\ns_cbranch_scc1 {u}_cont')
        lds_signal(g, C_V, add=True)
        g.label(f'{u}_cont')
        g(f'''s_mov_b32 s12, s7
        s_mov_b32 s7, s9
        s_cmp_eq_u32 s12, 0
        s_cbranch_scc1 {exit_label}''')
        if nxt_label:
            g(f's_branch {nxt_label}')
    g.label('L_SLOOP')
    half(0, None, 'L_SEXIT')
    half(1, 'L_SLOOP', 'L_SEXIT')
    g.label('L_SEXIT')
    g('s_nop 7')
    g('v_mov_b32 v253, v249')
    allred_x16(g, 'v_add_f32', 'v253', 'v251')
    allred_x32(g, 'v_add_f32', 'v253', 'v251')
    g(f'''s_lshl_b32 s46, s44, 6
    v_lshlrev_b32 v3, 2, v0
    v_add_u32 v3, s46, v3
    s_mov_b64 exec, 0xff
    ds_write_b32 v3, v248 offset:{L_ST}
    ds_write_b32 v3, v253 offset:{L_ST+32}
    s_mov_b64 exec, -1''')
    lds_signal(g, C_ST, add=True)
    ts(g, 5)
    g(f'''s_lshl_b32 s46, s44, 12
    v_lshlrev_b32 v3, 9, v4
    v_lshl_add_u32 v3, v5, 7, v3
    v_add_u32 v3, s46, v3
    s_mov_b32 exec_lo, 0x00ff00ff
    s_mov_b32 exec_hi, 0x00ff00ff''')
    for t in range(8):
        acc = BO + 4 * t
        g(f'ds_write_b128 v3, v[{acc}:{acc+3}] offset:{L_OP + 16*t}')
    g('s_mov_b64 exec, -1')
    lds_signal(g, C_O, add=True)
    g(f'''s_lshr_b32 s46, s86, 6
    s_lshl_b32 s46, s46, 18
    s_lshl_b32 s49, s44, 16
    s_add_u32 s46, s46, s49
    s_bfe_u32 s49, s86, 0x10005
    s_lshl_b32 s49, s49, 14
    s_add_u32 s46, s46, s49
    s_and_b32 s49, s86, 31
    s_lshl_b32 s49, s49, 9
    s_add_u32 s46, s46, s49
    s_add_u32 s46, s46, {W_O}
    v_and_b32 v2, 31, v0
    v_lshlrev_b32 v2, 4, v2
    v_lshrrev_b32 v1, 5, v0
    v_lshl_add_u32 v2, v1, 15, v2
    s_lshl_b32 s49, s44, 10
    v_lshlrev_b32 v3, 4, v0
    v_add_u32 v3, s49, v3''')
    g(f'''s_lshl_b32 s49, s44, 3
    v_lshl_add_u32 v4, v1, 2, s49
    s_lshl_b32 s52, s86, 6
    s_add_u32 s52, s52, {W_ML}''')
    lds_wait(g, C_O, 4)
    for w in range(4):
        g(f'ds_read_b32 v{16+w}, v4 offset:{L_ST + 64*w}\nds_read_b32 v{20+w}, v4 offset:{L_ST + 64*w + 32}')
    for w in range(4):
        g(f'ds_read_b128 v[{88+4*w}:{91+4*w}], v3 offset:{L_OP + 4096*w}')
    g('''s_waitcnt lgkmcnt(4)
    v_max3_f32 v24, v16, v17, v18
    v_max_f32 v24, v24, v19''')
    for w in range(4):
        g(f'v_sub_f32 v{16+w}, v{16+w}, v24\nv_mul_f32 v{16+w}, s60, v{16+w}\nv_exp_f32 v{16+w}, v{16+w}')
    g('''s_nop 0
    v_mul_f32 v25, v20, v16
    v_fma_f32 v25, v21, v17, v25
    v_fma_f32 v25, v22, v18, v25
    v_fma_f32 v25, v23, v19, v25
    s_waitcnt lgkmcnt(0)''')
    for r in range(4):
        g(f'''v_mul_f32 v{8+r}, v{88+r}, v16
        v_mul_f32 v{12+r}, v{96+r}, v18
        v_fma_f32 v{8+r}, v{92+r}, v17, v{8+r}
        v_fma_f32 v{12+r}, v{100+r}, v19, v{12+r}
        v_add_f32 v{8+r}, v{8+r}, v{12+r}''')
    g('''buffer_store_dwordx4 v[8:11], v2, s[36:39], s46 offen sc1
    s_mov_b32 exec_lo, 1
    s_mov_b32 exec_hi, 1
    buffer_store_dword v24, v4, s[36:39], s52 offen sc1
    buffer_store_dword v25, v4, s[36:39], s52 offen offset:32 sc1
    s_mov_b64 exec, -1''')
    if args.omode >= 2:
        d = g.uniq('OA')
        g(f'''v_mov_b32 v6, {C_ST}
        v_mov_b32 v7, 1
        s_mov_b64 exec, 1
        ds_add_rtn_u32 v7, v6, v7
        s_waitcnt lgkmcnt(0)
        v_readfirstlane_b32 s49, v7
        s_mov_b64 exec, -1
        s_cmp_eq_u32 s49, 7
        s_cbranch_scc0 {d}''')
        read_nonce(g)
        g('s_lshr_b32 s48, s86, 6\ns_add_u32 s48, s48, 8\ns_andn2_b32 s49, s86, 63\ns_add_u32 s49, s49, 257')
        arrive(g, 's48', 64, sctr='s49', ack=False)
        g.label(d)
    ts(g, 6)
    ts_dump(g, 7)
    g('s_endpgm')

def gen(args):
    global PROF, NOHOP, NOLDS, PLAIN, QSH, QOFF
    QSH, QOFF = {0: (2, 0), 1: (2, 124), 2: (5, 96)}[args.qline]
    PLAIN = bool(args.plain)
    NOLDS = args.nolds
    PROF = args.prof
    NOHOP = args.nohop
    g = Gen()
    H = []
    H.append(f'; @launch grid=({NWG},1,1) block=(512,1,1) lds={LDS_BYTES + (4*8192 if args.flash else 0)}')
    H.append('.amdgcn_target "amdgcn-amd-amdhsa--gfx950"\n.text')
    H.append(f'.globl {KN}\n.p2align 8\n.type {KN},@function\n{KN}:')
    g(f'''s_cmp_ge_u32 s2, {NWG}
    s_cbranch_scc1 L_END
    s_load_dwordx16 s[4:19], s[0:1], 0
    s_load_dwordx8 s[20:27], s[0:1], 64
    v_lshrrev_b32 v1, 6, v0
    v_and_b32 v0, 63, v0
    s_mov_b32 s58, 0x05040100
    s_mov_b32 s59, 0x07060302
    v_readfirstlane_b32 s3, v1
    s_mov_b32 s60, {LOG2E}
    s_mov_b32 s61, {SCALE}
    s_waitcnt lgkmcnt(0)''')
    srd(g, 36, 26, 0x10000000)
    lane_masks(g)
    srd(g, 40, 24, 256)
    if args.remap:
        g('''s_and_b32 s90, s2, 7
        s_lshr_b32 s91, s2, 3
        s_lshl_b32 s86, s90, 5
        s_add_u32 s86, s86, s91
        s_lshr_b32 s92, s90, 1
        s_lshl_b32 s92, s92, 6
        s_and_b32 s93, s90, 1
        s_lshl_b32 s87, s91, 1
        s_add_u32 s87, s87, s93
        s_add_u32 s87, s87, s92
        s_lshl_b32 s88, s93, 2
        s_and_b32 s94, s91, 3
        s_add_u32 s88, s88, s94
        s_lshl_b32 s88, s88, 3
        s_lshr_b32 s94, s91, 2
        s_add_u32 s88, s88, s94
        s_add_u32 s88, s88, s92
        s_lshr_b32 s89, s91, 3
        s_lshl_b32 s89, s89, 3
        s_add_u32 s89, s89, s90
        s_cmp_lt_u32 s89, 28
        s_cselect_b32 s95, 1, 0
        s_lshl_b32 s89, s89, 3
        s_and_b32 s94, s91, 7
        s_add_u32 s89, s89, s94
        s_add_u32 s89, s89, 32
        s_mul_i32 s89, s89, s95''')
        if args.remap == 2:
            g('s_mov_b32 s86, s2\ns_mov_b32 s87, s2\ns_mov_b32 s88, s2')
    else:
        g('s_mov_b32 s86, s2\ns_mov_b32 s87, s2\ns_mov_b32 s88, s2\ns_mov_b32 s89, s2')
    g('''s_mov_b32 s90, 0x07060503
    s_mov_b32 s91, 0x07060502
    s_mov_b32 s92, 0x07060501
    s_mov_b32 s93, 0x04000c0c
    s_mov_b32 s94, 0x0706000c''')
    ts(g, 0)
    if args.noaux:
        g('s_cmp_ge_u32 s3, 4\ns_cbranch_scc1 L_BULK\ns_barrier\ns_endpgm')
    g('''s_cmp_ge_u32 s3, 4
    s_cbranch_scc1 L_BULK
    s_cmp_eq_u32 s3, 0
    s_cbranch_scc1 L_A0
    s_cmp_eq_u32 s3, 3
    s_cbranch_scc1 L_A3
    s_branch L_A12''')

    g.label('L_A3')
    srd(g, 28, 4, 4096)
    g('''v_lshlrev_b32 v1, 6, v0
    buffer_load_dwordx4 v[8:11], v1, s[28:31], 0 offen
    buffer_load_dwordx4 v[12:15], v1, s[28:31], 0 offen offset:16
    buffer_load_dwordx4 v[16:19], v1, s[28:31], 0 offen offset:32
    buffer_load_dwordx4 v[20:23], v1, s[28:31], 0 offen offset:48''')
    g(f'''v_mov_b32 v2, 0
    v_lshlrev_b32 v3, 2, v0
    v_add_u32 v3, {L_CT}, v3
    s_mov_b64 exec, 0xffff
    ds_write_b32 v3, v2
    s_mov_b64 exec, -1
    s_waitcnt lgkmcnt(0)
    s_barrier
    s_waitcnt vmcnt(0)''')
    for i in range(16):
        g(f'v_lshlrev_b32 v{24+2*i}, 16, v{8+i}\nv_and_b32 v{25+2*i}, 0xffff0000, v{8+i}')
    g('v_add_f32 v56, v24, v25')
    for i in range(26, 56):
        g(f'v_add_f32 v56, v56, v{i}')
    allred_row16(g, 'v_add_f32', 'v56', 'v57')
    allred_x16(g, 'v_add_f32', 'v56', 'v57')
    g('v_mul_f32 v56, 0x3a800000, v56')
    g('v_sub_f32 v58, v24, v56\nv_mul_f32 v59, v58, v58')
    for i in range(25, 56):
        g(f'v_sub_f32 v58, v{i}, v56\nv_fma_f32 v59, v58, v58, v59')
    allred_row16(g, 'v_add_f32', 'v59', 'v57')
    allred_x16(g, 'v_add_f32', 'v59', 'v57')
    g('v_mul_f32 v59, 0x3a800000, v59')
    bf16r(g, 'v56')
    bf16r(g, 'v59')
    g(f'v_add_f32 v59, {EPS}, v59')
    bf16r(g, 'v59')
    g('''v_sqrt_f32 v60, v59
    s_nop 0
    v_rcp_f32 v61, v60
    v_fma_f32 v62, -v60, v60, v59
    v_mul_f32 v61, 0.5, v61
    v_fma_f32 v60, v62, v61, v60''')
    bf16r(g, 'v60')
    g('v_rcp_f32 v61, v60')
    for i in range(16):
        a, b = f'v{24+2*i}', f'v{25+2*i}'
        g(f'v_sub_f32 {a}, {a}, v56\nv_sub_f32 {b}, {b}, v56')
        bf16r_pair(g, a, b, 'v62')
        for r in (a, b):
            g(f'''v_mul_f32 v62, {r}, v61
            v_fma_f32 v63, -v62, v60, {r}
            v_fma_f32 {r}, v63, v61, v62''')
        g(f'v_cvt_pk_bf16_f32 v{8+i}, {a}, {b}')
    g(f'''ds_write_b128 v1, v[8:11] offset:{L_XN}
    ds_write_b128 v1, v[12:15] offset:{L_XN+16}
    ds_write_b128 v1, v[16:19] offset:{L_XN+32}
    ds_write_b128 v1, v[20:23] offset:{L_XN+48}''')
    lds_signal(g, C_X)
    ts(g, 1)
    read_nonce(g)
    q_gather(g, args, 1)
    lds_wait(g, C_Q, 2)
    ts(g, 2)
    def ml_block():
        ts(g, 3)
        lds_wait(g, C_ST, 4)
        ts(g, 4)
        g(f'''v_and_b32 v1, 7, v0
        v_lshlrev_b32 v1, 2, v1''')
        for w in range(4):
            g(f'ds_read_b32 v{8+w}, v1 offset:{L_ST + 64*w}\nds_read_b32 v{16+w}, v1 offset:{L_ST + 64*w + 32}')
        g('s_waitcnt lgkmcnt(0)')
        g('v_max3_f32 v24, v8, v9, v10\nv_max_f32 v24, v24, v11')
        g('v_mov_b32 v25, 0')
        for w in range(4):
            g(f'''v_sub_f32 v26, v{8+w}, v24
            v_mul_f32 v26, s60, v26
            v_exp_f32 v26, v26
            s_nop 0
            v_fma_f32 v25, v26, v{16+w}, v25''')
        if args.noml:
            g(f'''v_and_b32 v2, 7, v0
            v_lshlrev_b32 v2, 2, v2
            v_mov_b32 v26, 1.0
            s_mov_b64 exec, 0xff
            ds_write_b32 v2, v24 offset:{L_ML}
            ds_write_b32 v2, v26 offset:{L_ML+32}
            s_mov_b64 exec, -1
            s_lshl_b32 s46, s86, 6
            s_add_u32 s46, s46, {W_ML}
            v_cndmask_b32 v24, v24, v25, s[84:85]
            v_lshlrev_b32 v1, 2, v0
            s_mov_b64 exec, 0xffff
            buffer_store_dword v24, v1, s[36:39], s46 offen sc1
            s_mov_b64 exec, -1''')
            ts(g, 5)
        else:
            g(f'''s_lshl_b32 s46, s86, 6
            s_add_u32 s46, s46, {W_ML}
            v_cndmask_b32 v24, v24, v25, s[84:85]
            v_lshlrev_b32 v1, 2, v0
            s_mov_b64 exec, 0xffff
            buffer_store_dword v24, v1, s[36:39], s46 offen sc1
            s_mov_b64 exec, -1
            s_lshr_b32 s48, s86, 5
            s_add_u32 s48, s48, 8''')
            g('s_andn2_b32 s49, s86, 31\ns_add_u32 s49, s49, 256')
            arrive(g, 's48', 32, sctr='s49', ack=False)
            flag_wait(g, 's48', 8)
            g(f'''s_andn2_b32 s44, s86, 31
            s_lshl_b32 s44, s44, 6
            s_add_u32 s44, s44, {W_ML}
            v_and_b32 v1, 31, v0
            v_lshlrev_b32 v1, 6, v1
            v_lshrrev_b32 v2, 5, v0
            v_lshl_add_u32 v1, v2, 4, v1''')
            def issue_ml():
                g('buffer_load_dwordx4 v[8:11], v1, s[36:39], s44 offen sc1')
                g('buffer_load_dwordx4 v[12:15], v1, s[36:39], s44 offen offset:32 sc1')
            poll_loop(g, issue_ml, range(8, 16), sleep=8)
            ts(g, 5)
            for r in range(4):
                g(f'v_mov_b32 v{16+r}, v{8+r}')
                allred_row16(g, 'v_max_f32', f'v{16+r}', 'v24')
                allred_x16(g, 'v_max_f32', f'v{16+r}', 'v24')
                g(f'''v_sub_f32 v24, v{8+r}, v{16+r}
                v_mul_f32 v24, s60, v24
                v_exp_f32 v24, v24
                s_nop 0
                v_mul_f32 v{12+r}, v{12+r}, v24''')
                allred_row16(g, 'v_add_f32', f'v{12+r}', 'v24')
                allred_x16(g, 'v_add_f32', f'v{12+r}', 'v24')
                g('v_mov_b32 v26, 1.0')
                precise_div(g, f'v{20+r}', 'v26', f'v{12+r}', 'v24', 'v25')
            g(f'''v_lshrrev_b32 v2, 5, v0
            v_lshlrev_b32 v2, 4, v2
            s_mov_b32 exec_lo, 1
            s_mov_b32 exec_hi, 1
            ds_write_b128 v2, v[16:19] offset:{L_ML}
            ds_write_b128 v2, v[20:23] offset:{L_ML+32}
            s_mov_b64 exec, -1''')
        lds_signal(g, C_ML)
    def h_block():
        g('s_cmp_lt_u32 s89, 32\ns_cbranch_scc1 L_A3_OG')
        g(f'''s_sub_u32 s44, s89, 32
        s_lshr_b32 s44, s44, 3
        s_lshl_b32 s44, s44, 14
        s_add_u32 s44, s44, {W_GU}
        s_lshr_b32 s45, s44, 1
        s_add_u32 s45, s45, {W_B}
        v_lshlrev_b32 v1, 4, v0
        v_lshlrev_b32 v2, 3, v0''')
        g('s_sub_u32 s48, s89, 32\ns_lshr_b32 s48, s48, 3\ns_add_u32 s48, s48, 16')
        flag_wait(g, 's48', 32)
        def issue_h():
            for ks in range(8):
                g(f's_add_u32 s46, s44, {ks*2048}')
                g(f'buffer_load_dwordx4 v[{72+4*ks}:{75+4*ks}], v1, s[36:39], s46 offen sc1')
                g(f'buffer_load_dwordx4 v[{104+4*ks}:{107+4*ks}], v1, s[36:39], s46 offen offset:1024 sc1')
        tags = [75 + 4 * k for k in range(16)]
        if 'h2' not in args.skip:
            tpoll_loop(g, issue_h, tags, sleep=16, plain=True)
        for k in range(16):
            unpack_d(g, 72 + 4 * k)
        for r in range(4):
            ga = (lambda ks: 72 + 4 * ks + r)
            ua = (lambda ks: 104 + 4 * ks + r)
            g(f'v_add_f32 v{8+r}, v{ga(0)}, v{ga(1)}\nv_add_f32 v{12+r}, v{ua(0)}, v{ua(1)}')
            for ks in range(2, 8):
                g(f'v_add_f32 v{8+r}, v{8+r}, v{ga(ks)}\nv_add_f32 v{12+r}, v{12+r}, v{ua(ks)}')
        bf16r_pair(g, 'v8', 'v9', 'v16'); bf16r_pair(g, 'v10', 'v11', 'v16')
        bf16r_pair(g, 'v12', 'v13', 'v16'); bf16r_pair(g, 'v14', 'v15', 'v16')
        for r in range(4):
            silu(g, f'v{8+r}', 'v16', 'v17', 'v18')
        bf16r_pair(g, 'v8', 'v9', 'v16'); bf16r_pair(g, 'v10', 'v11', 'v16')
        for r in range(4):
            g(f'v_mul_f32 v{8+r}, v{8+r}, v{12+r}')
        g('v_cvt_pk_bf16_f32 v8, v8, v9\nv_cvt_pk_bf16_f32 v10, v10, v11')
        g(f'''v_lshrrev_b32 v2, 5, v0
        v_lshlrev_b32 v2, 8, v2
        v_bfe_u32 v3, v0, 3, 2
        v_lshlrev_b32 v3, 6, v3
        v_and_b32 v4, 7, v0
        v_lshlrev_b32 v4, 1, v4
        v_add3_u32 v5, v2, v3, v4
        ds_write_b16 v5, v8 offset:{L_H}
        ds_write_b16_d16_hi v5, v8 offset:{L_H+16}
        ds_write_b16 v5, v10 offset:{L_H+32}
        ds_write_b16_d16_hi v5, v10 offset:{L_H+48}''')
        lds_signal(g, C_H)
        g.label('L_A3_OG')
    if args.flash:
        h_block()
    else:
        ml_block(); h_block()
    g(f'''s_lshr_b32 s44, s88, 3
    s_lshl_b32 s44, s44, 15
    s_bfe_u32 s45, s88, 0x10002
    s_lshl_b32 s45, s45, 8
    s_add_u32 s44, s44, s45
    s_add_u32 s44, s44, {W_O}
    v_bfe_u32 v2, v0, 4, 1
    v_lshlrev_b32 v2, 14, v2
    v_lshrrev_b32 v3, 5, v0
    v_lshl_add_u32 v2, v3, 13, v2
    v_and_b32 v1, 15, v0
    v_lshl_add_u32 v1, v1, 4, v2''')
    def issue_o():
        for sp in range(16):
            if sp % 8 == 0:
                g(f's_add_u32 s46, s44, {sp*512}')
            g(f'buffer_load_dwordx4 v[{40+4*sp}:{43+4*sp}], v1, s[36:39], s46 offen offset:{(sp%8)*512} sc1')
    assert args.noml
    g(f'''s_lshr_b32 s48, s88, 6
    s_lshl_b32 s48, s48, 12
    s_bfe_u32 s49, s88, 0x30003
    s_lshl_b32 s49, s49, 2
    s_add_u32 s48, s48, s49
    s_add_u32 s48, s48, {W_ML}
    v_lshlrev_b32 v2, 6, v0''')
    def issue_w():
        g('buffer_load_dword v8, v2, s[36:39], s48 offen sc1')
        g('buffer_load_dword v9, v2, s[36:39], s48 offen offset:32 sc1')
    def weights():
        g('v_mov_b32 v10, v8')
        allred_row16(g, 'v_max_f32', 'v10', 'v11')
        allred_x16(g, 'v_max_f32', 'v10', 'v11')
        g('''v_sub_f32 v8, v8, v10
        v_mul_f32 v8, s60, v8
        v_exp_f32 v8, v8
        s_nop 0
        v_mul_f32 v9, v9, v8''')
        allred_row16(g, 'v_add_f32', 'v9', 'v11')
        allred_x16(g, 'v_add_f32', 'v9', 'v11')
        precise_div(g, 'v10', 'v8', 'v9', 'v11', 'v12')
        g(f'''v_lshlrev_b32 v2, 2, v0
        ds_write_b32 v2, v10 offset:{L_W}
        v_bfe_u32 v2, v0, 4, 1
        v_lshlrev_b32 v2, 7, v2
        v_lshrrev_b32 v3, 5, v0
        v_lshl_add_u32 v2, v3, 6, v2
        s_waitcnt lgkmcnt(0)
        ds_read_b128 v[24:27], v2 offset:{L_W}
        ds_read_b128 v[28:31], v2 offset:{L_W+16}
        ds_read_b128 v[32:35], v2 offset:{L_W+32}
        ds_read_b128 v[36:39], v2 offset:{L_W+48}''')
    if args.flash:
        lds_wait(g, C_O, 4)
        def issue_both():
            issue_w(); issue_o()
        if args.omode == 0:
            poll_loop(g, issue_both, [8, 9] + list(range(40, 104)), sleep=args.osleep)
            weights()
        elif args.omode == 1:
            poll_loop(g, issue_w, [8, 9], sleep=args.osleep)
            weights()
            poll_loop(g, issue_o, range(40, 104), sleep=args.osleep)
        elif args.omode == 3:
            g(f's_andn2_b32 s53, s88, 63\ns_add_u32 s53, s53, 257\ns_lshl_b32 s53, s53, 7\ns_add_u32 s53, s53, {W_CT}')
            counter_wait(g, 36, 's53', 64, args.osleep)
            poll_loop(g, issue_both, [8, 9] + list(range(40, 104)), sleep=4)
            weights()
        else:
            g('s_lshr_b32 s49, s88, 6\ns_add_u32 s49, s49, 8')
            flag_wait(g, 's49', 2, stmp='s53')
            poll_loop(g, issue_both, [8, 9] + list(range(40, 104)), sleep=4)
            weights()
    else:
        lds_wait(g, C_V, 1)
        poll_loop(g, issue_w, [8, 9], sleep=8)
        weights()
        lds_wait(g, C_O, 4)
    if 'o2' not in args.skip and not args.flash:
        poll_loop(g, issue_o, range(40, 104), sleep=args.osleep)
    g('s_waitcnt lgkmcnt(0)')
    ts(g, 6)
    for r in range(4):
        if args.noml:
            g(f'v_mul_f32 v{8+r}, v{40+r}, v24\nv_mul_f32 v{12+r}, v{44+r}, v25')
            for sp in range(2, 16, 2):
                g(f'v_fma_f32 v{8+r}, v{40+4*sp+r}, v{24+sp}, v{8+r}\nv_fma_f32 v{12+r}, v{44+4*sp+r}, v{25+sp}, v{12+r}')
        else:
            g(f'v_add_f32 v{8+r}, v{40+r}, v{44+r}\nv_add_f32 v{12+r}, v{48+r}, v{52+r}')
            for sp in range(4, 16, 2):
                g(f'v_add_f32 v{8+r}, v{8+r}, v{40+4*sp+r}\nv_add_f32 v{12+r}, v{12+r}, v{44+4*sp+r}')
        g(f'v_add_f32 v{8+r}, v{8+r}, v{12+r}')
    for r in range(4):
        allred_x32(g, 'v_add_f32', f'v{8+r}', 'v12')
    g('v_cvt_pk_bf16_f32 v8, v8, v9\nv_cvt_pk_bf16_f32 v10, v10, v11')
    g(f'''v_bfe_u32 v2, v0, 4, 1
    v_lshlrev_b32 v2, 7, v2
    v_bfe_u32 v3, v0, 3, 1
    v_lshlrev_b32 v3, 6, v3
    v_and_b32 v4, 7, v0
    v_lshlrev_b32 v4, 1, v4
    v_add3_u32 v5, v2, v3, v4
    s_mov_b32 exec_hi, 0
    ds_write_b16 v5, v8 offset:{L_OB}
    ds_write_b16_d16_hi v5, v8 offset:{L_OB+16}
    ds_write_b16 v5, v10 offset:{L_OB+32}
    ds_write_b16_d16_hi v5, v10 offset:{L_OB+48}
    s_mov_b64 exec, -1''')
    lds_signal(g, C_OG)
    ts(g, 7)
    ts_dump(g, 8)
    g('s_endpgm')

    g.label('L_A0')
    vm = VM(g)
    srd(g, 40, 24, 256)
    g('''s_memrealtime s[54:55]
    v_mov_b32 v8, -1
    v_mov_b32 v9, -1
    v_mov_b32 v10, -1
    v_mov_b32 v11, -1
    v_lshlrev_b32 v3, 4, v0
    v_lshrrev_b32 v4, 5, v0
    v_and_b32 v5, 31, v0
    v_lshlrev_b32 v5, 4, v5
    v_mov_b32 v13, 0
    v_mov_b32 v14, 0
    s_waitcnt lgkmcnt(0)
    s_or_b32 s54, s54, 1
    v_mov_b32 v12, s54
    s_mov_b64 exec, 1
    buffer_atomic_cmpswap v[12:13], v14, s[40:43], 0 offen sc0
    s_mov_b64 exec, -1''')
    vm.issue('nonce')
    def clr(voff, off=0):
        g(f'buffer_store_dwordx4 v[8:11], {voff}, s[36:39], s46 offen offset:{off} sc1')
        vm.issue('clr')
    g(f'''s_sub_u32 s48, s89, 32
    s_and_b32 s48, s48, 255
    s_and_b32 s46, s48, 7
    s_lshl_b32 s46, s46, 15
    s_lshr_b32 s48, s48, 3
    s_lshl_b32 s48, s48, 9
    s_add_u32 s46, s46, s48
    s_add_u32 s56, s46, {W_F}
    s_mov_b32 s46, s56
    v_lshl_add_u32 v6, v4, 14, v5''')
    clr('v6')
    g(f'''s_and_b32 s46, s88, 3
    s_lshl_b32 s46, s46, 17
    s_lshr_b32 s48, s88, 2
    s_lshl_b32 s48, s48, 9
    s_add_u32 s46, s46, s48
    s_add_u32 s46, s46, {W_S}
    v_lshl_add_u32 v6, v4, 15, v5''')
    clr('v6')
    g('s_add_u32 s46, s46, 65536')
    clr('v6')
    g(f'''s_lshr_b32 s46, s86, 6
    s_lshl_b32 s46, s46, 18
    s_bfe_u32 s48, s86, 0x10005
    s_lshl_b32 s48, s48, 14
    s_add_u32 s46, s46, s48
    s_and_b32 s48, s86, 31
    s_lshl_b32 s48, s48, 9
    s_add_u32 s46, s46, s48
    s_add_u32 s46, s46, {W_O}
    v_lshl_add_u32 v6, v4, 15, v5''')
    for i in range(4):
        clr('v6')
        if i < 3:
            g('s_add_u32 s46, s46, 65536')
    g(f'''s_lshl_b32 s46, s86, 6
    s_add_u32 s46, s46, {W_ML}
    s_mov_b64 exec, 15''')
    clr('v3')
    g(f'''s_mov_b64 exec, 1
    s_lshl_b32 s46, s2, 7
    s_add_u32 s46, s46, {W_CT}
    buffer_store_dword v14, v14, s[36:39], s46 offen sc1
    s_lshl_b32 s46, s86, 7
    s_add_u32 s46, s46, {W_CT + 256*128}
    buffer_store_dword v14, v14, s[36:39], s46 offen sc1''')
    vm.issue('clr'); vm.issue('clr')
    g('s_mov_b64 exec, -1')
    g(f'''s_lshr_b32 s47, s87, 6
    s_lshl_b32 s47, s47, 16
    s_and_b32 s48, s87, 63
    s_lshl_b32 s48, s48, 9
    s_add_u32 s47, s47, s48
    s_add_u32 s47, s47, {W_Q}''')
    srd(g, 28, 10, 8 * 1024 * 1024)
    g('''s_and_b32 s44, s87, 7
    s_lshl_b32 s45, s44, 20
    s_lshr_b32 s46, s87, 3
    s_lshl_b32 s46, s46, 8
    s_add_u32 s45, s45, s46
    v_lshrrev_b32 v4, 4, v0
    v_and_b32 v5, 15, v0
    v_lshlrev_b32 v1, 16, v4
    v_lshl_add_u32 v1, v5, 4, v1''')
    for kk in range(4):
        for i in range(8):
            r = 40 + 32 * kk + 4 * i
            g(f's_add_u32 s46, s45, {(32 * kk + i) * 8192}')
            g(f'buffer_load_dwordx4 v[{r}:{r+3}], v1, s[28:31], s46 offen nt')
            vm.issue(f'wq{kk}')
    g(f'''v_and_b32 v2, 1, v0
    v_lshlrev_b32 v3, 11, v2
    v_lshl_add_u32 v3, v4, 4, v3
    s_lshl_b32 s46, s44, 8
    v_add_u32 v3, s46, v3
    v_lshlrev_b32 v2, 15, v2
    v_lshl_add_u32 v2, v4, 7, v2
    v_bfe_u32 v6, v0, 1, 3
    v_lshl_add_u32 v2, v6, 4, v2
    s_barrier''')
    lds_wait(g, C_X, 1)
    ts(g, 1)
    vm.wait('clr')
    g(f'''v_readfirstlane_b32 s55, v12
    s_cmp_eq_u32 s55, 0
    s_cselect_b32 s55, s54, s55
    v_mov_b32 v6, {C_N}
    v_mov_b32 v7, s55
    s_mov_b64 exec, 1
    ds_write_b32 v6, v7
    s_mov_b64 exec, -1''')
    for half in range(2):
        for kk in range(4):
            b = 8 + 4 * (kk & 1)
            g(f'ds_read_b128 v[{b}:{b+3}], v3 offset:{64*kk}')
            if half == 0:
                vm.wait(f'wq{kk}')
            base = 40 + 32 * kk
            for tt in range(4):
                t = 4 * half + tt
                d = t >> 1
                sel = 's58' if (t & 1) == 0 else 's59'
                o = 16 + 4 * (tt & 1)
                for p in range(4):
                    g(f'v_perm_b32 v{o+p}, v{base + 4*(2*p+1) + d}, v{base + 4*(2*p) + d}, {sel}')
                acc = 24 + 4 * tt
                c = '0' if kk == 0 else f'v[{acc}:{acc+3}]'
                g('s_waitcnt lgkmcnt(0)\ns_nop 0' if tt == 0 else 's_nop 1')
                g(f'v_mfma_f32_16x16x32_bf16 v[{acc}:{acc+3}], v[{o}:{o+3}], v[{b}:{b+3}], {c}')
        g('s_nop 7\ns_nop 1')
        r = select8(g, [24 + 4 * tt for tt in range(4)])
        g('s_mov_b64 exec, s[84:85]' if half == 1 else 's_not_b64 exec, s[84:85]')
        (tagged_store if args.qpack else tagged_store_ab)(g, vm, r, 's47', 'v2', x=16)
        g('s_mov_b64 exec, -1\ns_nop 1')
    srd(g, 32, 20, 3584 * 1024 * 2)
    g('s_lshr_b32 s48, s87, 6\ns_add_u32 s48, s48, 1')
    arrive(g, 's48', 64, ack=bool(args.qack))
    ts(g, 2)
    q_gather(g, args, 0, 3)
    vm.reset()
    ts(g, 4)
    g('s_cmp_lt_u32 s89, 32\ns_cbranch_scc1 L_A0_FIN')
    g('''s_sub_u32 s48, s89, 32
    s_lshr_b32 s49, s48, 3
    s_lshl_b32 s49, s49, 18
    s_and_b32 s48, s48, 7
    s_lshl_b32 s48, s48, 8
    s_add_u32 s48, s48, s49
    v_lshlrev_b32 v1, 14, v4
    v_lshl_add_u32 v1, v5, 4, v1''')
    if args.late:
        lds_wait(g, C_V, args.late)
    elif args.kfirst:
        lds_wait(g, C_K, 4)
    for kk in range(3):
        if kk >= args.ainfl and not args.late:
            vm.wait(f'wd{kk-args.ainfl}')
        tile_loads(g, vm, 32, 's48', 2048, kk, kk, f'wd{kk}')
    g(f'''v_and_b32 v3, 1, v0
    v_lshlrev_b32 v3, 8, v3
    v_lshl_add_u32 v3, v4, 4, v3
    v_add_u32 v3, {L_H}, v3''')
    gemv_tile(g, vm, 32, 's48', 2048, 'v3', True, 'wd', wait_fn=lambda: lds_wait(g, C_H, 1))
    g('v_and_b32 v2, 1, v0\nv_lshlrev_b32 v2, 14, v2\nv_lshl_add_u32 v2, v4, 7, v2\nv_bfe_u32 v6, v0, 1, 3\nv_lshl_add_u32 v2, v6, 4, v2')
    publish_acc(g, vm, 's56', tagged=False)
    g.label('L_A0_FIN')
    ts(g, 5)
    srd(g, 28, 4, 4096)
    srd(g, 32, 22, 4096)
    g(f'''s_lshr_b32 s44, s2, 5
    s_bfe_u32 s45, s2, 0x10004
    s_and_b32 s46, s2, 15
    ; S gather: W_S + ((c*2+b)*64 + hh*2 + half)*512 + o8*32 + q2*16
    s_lshr_b32 s48, s2, 4
    s_lshl_b32 s49, s48, 14
    s_lshl_b32 s48, s48, 15
    s_lshl_b32 s53, s46, 5
    s_add_u32 s48, s48, s53
    s_add_u32 s49, s49, s53
    s_add_u32 s48, s48, {W_S}
    s_add_u32 s49, s49, {W_F}
    v_lshrrev_b32 v2, 1, v0
    v_and_b32 v3, 1, v0
    v_lshlrev_b32 v1, 10, v2
    v_lshl_add_u32 v1, v3, 4, v1
    v_min_u32 v2, 27, v2
    v_lshlrev_b32 v2, 9, v2
    v_lshl_add_u32 v2, v3, 4, v2
    ; x / out element offset: (b*1024 + 128c + 32g + t)*2 , g=o8>>2, t=2*(o8&3)+q2 ; +16 bytes per r
    s_lshl_b32 s52, s45, 10
    s_lshl_b32 s53, s44, 7
    s_add_u32 s52, s52, s53
    s_lshr_b32 s53, s46, 2
    s_lshl_b32 s53, s53, 5
    s_add_u32 s52, s52, s53
    s_and_b32 s53, s46, 3
    s_lshl_b32 s53, s53, 1
    s_add_u32 s52, s52, s53
    v_add_u32 v4, s52, v3
    v_lshlrev_b32 v4, 1, v4
    buffer_load_ushort v24, v4, s[28:31], 0 offen
    buffer_load_ushort v25, v4, s[28:31], 0 offen offset:16
    buffer_load_ushort v26, v4, s[28:31], 0 offen offset:32
    buffer_load_ushort v27, v4, s[28:31], 0 offen offset:48''')
    g(f'v_lshlrev_b32 v3, 7, v0\ns_mov_b32 s46, {W_FL + 128}\ns_mov_b64 exec, 15')
    def issue_f4b():
        g('buffer_load_dword v9, v3, s[36:39], s46 offen sc1')
    tpoll_loop(g, issue_f4b, [9], sleep=16)
    g('s_mov_b64 exec, -1')
    lds_wait(g, C_S, 2)
    def issue_fin():
        g('buffer_load_dwordx4 v[8:11], v1, s[36:39], s48 offen sc1')
        g('buffer_load_dwordx4 v[12:15], v1, s[36:39], s48 offen offset:512 sc1')
        g('buffer_load_dwordx4 v[16:19], v2, s[36:39], s49 offen sc1')
    poll_loop(g, issue_fin, range(8, 20), sleep=args.finsleep)
    ts(g, 6)
    g('v_cmp_gt_u32 vcc, 56, v0\ns_nop 1')
    for r in range(4):
        g(f'v_add_f32 v{8+r}, v{8+r}, v{12+r}')
        g(f'v_cndmask_b32 v{16+r}, 0, v{16+r}, vcc')
    R = list(range(8, 12)) + list(range(16, 20))
    A = {r: r for r in R}
    Bk = {r: 40 + i for i, r in enumerate(R)}
    g('s_nop 1')
    for rr in (2, 4, 8):
        for r in R:
            g(f'v_add_f32_dpp v{Bk[r]}, v{A[r]}, v{A[r]} row_ror:{rr} row_mask:0xf bank_mask:0xf')
        A, Bk = Bk, A
    for swp in ('v_permlane16_swap_b32', 'v_permlane32_swap_b32'):
        for r in R:
            g(f'v_mov_b32 v{Bk[r]}, v{A[r]}')
        for r in R:
            g(f'{swp} v{A[r]}, v{Bk[r]}')
        for r in R:
            g(f'v_add_f32 v{A[r]}, v{A[r]}, v{Bk[r]}')
    for r in R:
        if A[r] != r:
            g(f'v_mov_b32 v{r}, v{A[r]}')
    bf16r_pair(g, 'v8', 'v9', 'v20'); bf16r_pair(g, 'v10', 'v11', 'v20')
    bf16r_pair(g, 'v16', 'v17', 'v20'); bf16r_pair(g, 'v18', 'v19', 'v20')
    for r in range(4):
        silu(g, f'v{16+r}', 'v20', 'v21', 'v22')
    bf16r_pair(g, 'v16', 'v17', 'v20'); bf16r_pair(g, 'v18', 'v19', 'v20')
    for r in range(4):
        g(f'v_mul_f32 v{8+r}, v{8+r}, v{16+r}')
    bf16r_pair(g, 'v8', 'v9', 'v20'); bf16r_pair(g, 'v10', 'v11', 'v20')
    for r in range(4):
        g(f'v_lshlrev_b32 v{24+r}, 16, v{24+r}\nv_add_f32 v{8+r}, v{8+r}, v{24+r}\nv_cvt_pk_bf16_f32 v{8+r}, v{8+r}, v{8+r}')
    g('''s_mov_b64 exec, 3
    buffer_store_short v8, v4, s[32:35], 0 offen
    buffer_store_short v9, v4, s[32:35], 0 offen offset:16
    buffer_store_short v10, v4, s[32:35], 0 offen offset:32
    buffer_store_short v11, v4, s[32:35], 0 offen offset:48''')
    ts(g, 7)
    ts_dump(g, 8)
    g('s_endpgm')

    g.label('L_A12')
    vm = VM(g)
    if args.cwarm:
        g(f'''s_cmp_ge_u32 s2, {args.cwarm}
        s_cbranch_scc1 L_CW_SKIP
        s_getpc_b64 s[44:45]''')
        g.label('L_CW_PC')
        g(f'''s_sub_u32 s44, s44, L_CW_PC-{KN}
        s_subb_u32 s45, s45, 0
        s_sub_u32 s46, s3, 1
        s_lshl_b32 s46, s46, 10
        v_lshlrev_b32 v8, 4, v0
        v_add_u32 v8, s46, v8
        v_mov_b32 v9, s45
        v_add_co_u32 v8, vcc, s44, v8
        s_nop 1
        v_addc_co_u32 v9, vcc, 0, v9, vcc
        s_mov_b32 s46, (L_CODE_END-{KN}+2047)/2048''')
        g.label('L_CW_LOOP')
        g('''global_load_dwordx4 v[12:15], v[8:9], off
        v_add_co_u32 v8, vcc, 0x800, v8
        s_nop 1
        v_addc_co_u32 v9, vcc, 0, v9, vcc
        s_sub_u32 s46, s46, 1
        s_cmp_lg_u32 s46, 0
        s_cbranch_scc1 L_CW_LOOP
        s_waitcnt vmcnt(0)''')
        g.label('L_CW_SKIP')
    g('''s_cmp_eq_u32 s3, 1
    s_cselect_b32 s28, s16, s18
    s_cselect_b32 s29, s17, s19
    s_mov_b32 s30, 7340032
    s_mov_b32 s31, 0x20000
    v_lshrrev_b32 v4, 4, v0
    v_and_b32 v5, 15, v0
    s_and_b32 s44, s2, 7
    s_mul_i32 s45, s44, 917504
    s_lshr_b32 s46, s2, 3
    s_lshl_b32 s46, s46, 8
    s_add_u32 s45, s45, s46
    v_mul_u32_u24 v1, 57344, v4
    v_lshl_add_u32 v1, v5, 4, v1
    v_and_b32 v2, 1, v0
    v_lshlrev_b32 v3, 11, v2
    v_lshl_add_u32 v3, v4, 4, v3
    s_lshl_b32 s46, s44, 8
    v_add_u32 v3, s46, v3
    v_lshlrev_b32 v2, 9, v2
    v_lshl_add_u32 v2, v4, 7, v2
    v_bfe_u32 v6, v0, 1, 3
    v_lshl_add_u32 v2, v6, 4, v2
    s_cmp_ge_u32 s2, 224
    s_cbranch_scc1 L_A12_SKIP''')
    g('s_barrier')
    if args.kfirst:
        lds_wait(g, C_K, 4)
    AI = args.ainfl
    for kk in range(AI):
        tile_loads(g, vm, 28, 's45', 7168, kk, kk, f'gu{kk}')
    lds_wait(g, C_X, 1)
    for kk in range(4):
        g(f'ds_read_b128 v[{A_B+4*kk}:{A_B+4*kk+3}], v3 offset:{64*kk}')
    g('s_waitcnt lgkmcnt(0)')
    for kk in range(4):
        vm.wait(f'gu{kk}')
        if kk + AI < 4:
            tile_loads(g, vm, 28, 's45', 7168, kk + AI, (kk + AI) % 3, f'gu{kk+AI}')
        tile_block_mfma(g, kk % 3, kk, kk == 0, A_B + 4 * kk)
    read_nonce(g)
    g(f'v_lshlrev_b32 v3, 7, v0\ns_mov_b32 s46, {W_FL + 128}\ns_mov_b64 exec, 15')
    def issue_f4():
        g('buffer_load_dword v9, v3, s[36:39], s46 offen sc1')
    tpoll_loop(g, issue_f4, [9], sleep=16)
    g('s_mov_b64 exec, -1')
    g(f's_lshl_b32 s46, s3, 10\ns_lshl_b32 s47, s2, 11\ns_add_u32 s46, s46, s47\ns_add_u32 s46, s46, {W_GU - 1024}')
    publish_acc(g, vm, 's46')
    g('s_lshr_b32 s48, s2, 3\ns_add_u32 s48, s48, 16')
    arrive(g, 's48', 16, sctr='s48', ack=False)
    g('s_branch L_A12_WO')
    g.label('L_A12_SKIP')
    g('s_barrier')
    if args.kfirst:
        lds_wait(g, C_K, 4)
    read_nonce(g)
    g.label('L_A12_WO')
    ts(g, 1)
    vm.reset()
    srd(g, 28, 12, 8 * 1024 * 1024)
    g('''s_and_b32 s44, s88, 3
    s_lshl_b32 s44, s44, 1
    s_add_u32 s44, s44, s3
    s_sub_u32 s44, s44, 1
    s_lshr_b32 s45, s88, 2
    s_lshl_b32 s45, s45, 17
    s_lshl_b32 s48, s44, 8
    s_add_u32 s45, s45, s48
    v_lshlrev_b32 v1, 14, v4
    v_lshl_add_u32 v1, v5, 4, v1''')
    if args.late:
        lds_wait(g, C_V, args.late)
    for kk in range(2):
        if kk == 1 and args.ainfl == 1:
            vm.wait('wo0')
        tile_loads(g, vm, 28, 's45', 2048, kk, kk, f'wo{kk}', stmp='s48')
    outs = [136, 8]
    for kk in range(2):
        vm.wait(f'wo{kk}')
        base = A_POOL + 32 * kk
        for t in range(8):
            d = t >> 1
            sel = 's58' if (t & 1) == 0 else 's59'
            for p in range(4):
                g(f'v_perm_b32 v{outs[kk] + 4*t + p}, v{base + 4*(2*p+1) + d}, v{base + 4*(2*p) + d}, {sel}')
    g(f'''v_and_b32 v3, 1, v0
    v_lshlrev_b32 v3, 7, v3
    v_lshl_add_u32 v3, v4, 4, v3
    v_add_u32 v3, {L_OB}, v3
    s_lshl_b32 s46, s44, 16
    s_lshr_b32 s48, s88, 2
    s_lshl_b32 s48, s48, 9
    s_add_u32 s46, s46, s48
    s_add_u32 s46, s46, {W_S}
    v_and_b32 v2, 1, v0
    v_lshlrev_b32 v2, 15, v2
    v_lshl_add_u32 v2, v4, 7, v2
    v_bfe_u32 v6, v0, 1, 3
    v_lshl_add_u32 v2, v6, 4, v2''')
    ts(g, 2)
    lds_wait(g, C_OG, 1)
    ts(g, 3)
    g('''ds_read_b128 v[72:75], v3
    ds_read_b128 v[76:79], v3 offset:64
    s_waitcnt lgkmcnt(0)''')
    for kk in range(2):
        for t in range(8):
            acc = A_ACC + 4 * t
            o = outs[kk] + 4 * t
            c = '0' if kk == 0 else f'v[{acc}:{acc+3}]'
            g(f'v_mfma_f32_16x16x32_bf16 v[{acc}:{acc+3}], v[{o}:{o+3}], v[{72+4*kk}:{75+4*kk}], {c}')
    publish_acc(g, vm, 's46', tagged=False)
    lds_signal(g, C_S, add=True)
    ts(g, 4)
    ts_dump(g, 5)
    g('s_endpgm')

    if args.flash == 3:
        gen_steal2(g, args)
    elif args.flash == 2:
        gen_steal(g, args)
    elif args.flash:
        gen_flash(g, args)
    else:
        g.label('L_BULK')
        vm = VM(g)
        BQ, BS, BO, BP = 8, 24, 56, 88
        NT, NS, NL = 16, 10, 6
        TS = 16384 if args.inter else 4096
        srd(g, 28, 6, 64 * 1024 * 1024)
        srd(g, 32, 8, 64 * 1024 * 1024)
        g(f'''s_sub_u32 s44, s3, 4
        s_lshr_b32 s45, s86, 6
        s_bfe_u32 s46, s86, 0x10005
        s_lshl_b32 s46, s46, 2
        s_add_u32 s45, s45, s46
        s_lshl_b32 s45, s45, 23
        s_and_b32 s46, s86, 31
        s_lshl_b32 s46, s46, 18
        s_add_u32 s45, s45, s46
        s_lshl_b32 s46, s44, {12 if args.inter else 16}
        s_add_u32 s45, s45, s46
        v_and_b32 v4, 15, v0
        v_lshrrev_b32 v5, 4, v0
        v_lshlrev_b32 v2, 4, v0
        s_mul_i32 s48, s44, 24576
        s_add_u32 s48, s48, {L_V}
        v_xor_b32 v6, v4, v5
        v_lshlrev_b32 v7, 8, v5
        v_lshl_add_u32 v1, v6, 4, v7
        v_xor_b32 v249, 64, v1
        v_add_u32 v249, 1024, v249
        v_xor_b32 v250, 128, v1
        v_add_u32 v250, 2048, v250
        v_xor_b32 v251, 192, v1
        v_add_u32 v251, 3072, v251
        v_and_b32 v6, 3, v4
        v_lshlrev_b32 v6, 2, v6
        v_lshrrev_b32 v7, 2, v4
        v_add_u32 v6, v6, v7
        v_xor_b32 v7, v6, v5
        v_lshlrev_b32 v6, 8, v6
        v_lshl_add_u32 v252, v7, 4, v6
        v_xor_b32 v253, 64, v252
        v_xor_b32 v254, 128, v252
        v_xor_b32 v255, 192, v252
        v_add_u32 v252, s48, v252
        v_add_u32 v253, s48, v253
        v_add_u32 v254, s48, v254
        v_add_u32 v255, s48, v255''')
        g('s_barrier')
        INFL = args.infl
        order = []
        KV_ = ['v1', 'v249', 'v250', 'v251']
        def ldsload(isK, T, k):
            for j in range(4):
                if isK:
                    g(f's_add_u32 s49, s48, {4096*k + 1024*j}\ns_mov_b32 m0, s49\ns_add_u32 s46, s45, {TS*T}')
                    g(f'buffer_load_dwordx4 {KV_[j]}, s[28:31], s46 offen nt lds')
                else:
                    g(f's_add_u32 s49, s48, {4096*k + 1024*j}\ns_mov_b32 m0, s49\ns_add_u32 s46, s45, {TS*T + 1024*j}')
                    g('buffer_load_dwordx4 v2, s[32:35], s46 offen nt lds')
                vm.issue(f'{"K" if isK else "V"}{T}')
        def rload(isK, T, slot):
            assert not isK
            r0 = BP + 16 * slot
            g(f's_add_u32 s46, s45, {TS*T}')
            for j in range(4):
                r = r0 + 4 * j
                g(f'buffer_load_dwordx4 v[{r}:{r+3}], v2, s[32:35], s46 offen offset:{1024*j} nt')
                vm.issue(f'V{T}')
        def ldsread(k, slot):
            r0 = BP + 16 * slot
            for j in range(4):
                g(f'ds_read_b128 v[{r0+4*j}:{r0+4*j+3}], v3 offset:{4096*k + 1024*j}')
        def kread(k, slot):
            r0 = BP + 16 * slot
            for j in range(4):
                g(f'ds_read_b128 v[{r0+4*j}:{r0+4*j+3}], v{252+j} offset:{4096*k}')
        def pace(tag):
            order.append(tag)
            n = args.vinfl if (tag[0] == 'V' and args.vinfl) else INFL
            if len(order) - 1 - n >= 0:
                vm.wait(order[len(order) - 1 - n])
        vslot = lambda T: (T + 6) % NS
        def stream(isK, t0=0):
            c = 'K' if isK else 'V'
            if isK:
                order.clear()
                assert INFL <= 4
            for T in range(t0, NT):
                if isK and T == args.pre:
                    lds_wait(g, C_X, 1)
                pace(f'{c}{T}')
                if T in (4, 8, 12, 15):
                    ts(g, (7 if isK else 11) + (T // 4 if T < 15 else 4) - 0)
                if T == args.ksig and isK:
                    lds_signal(g, C_K, add=True)
                if T == args.vsig and not isK:
                    lds_signal(g, C_V, add=True)
                if isK:
                    Tc = T - INFL
                    if 0 <= Tc < NS:
                        kread(Tc % NL, Tc)
                    if T >= NL:
                        later = [t for t in range(T - NL + 1, Tc + 1) if 0 <= t < NS]
                        g(f"s_waitcnt lgkmcnt({min(8, 4 * len(later))})")
                    ldsload(True, T, T % NL)
                elif T < NS:
                    rload(False, T, vslot(T))
                elif args.vpre and T >= NT - args.vpre:
                    order.pop()
                else:
                    ldsload(False, T, T - NS)
        stream(True)
        if args.ksig >= NT:
            lds_signal(g, C_K, add=True)
        for T in range(NT - args.vpre, NT):
            pace(f'V{T}')
            ldsload(False, T, T - NS + 2)
        lds_wait(g, C_Q, 2)
        ts(g, 1)
        g(f'''v_and_b32 v3, 7, v0
        v_lshlrev_b32 v3, 8, v3
        v_lshl_add_u32 v3, v5, 4, v3''')
        for j in range(4):
            g(f'ds_read_b128 v[{BQ+4*j}:{BQ+4*j+3}], v3 offset:{L_Q + 64*j}')
        g('s_waitcnt lgkmcnt(0)')
        for T in range(NT):
            if T >= NS:
                g(f's_waitcnt lgkmcnt({min(8, 4 * (NT - 1 - T))})')
            r0 = BP + 16 * (T % NS)
            s = BS + 4 * T
            for j in range(4):
                c = '0' if j == 0 else f'v[{s}:{s+3}]'
                g(f'v_mfma_f32_16x16x32_bf16 v[{s}:{s+3}], v[{r0+4*j}:{r0+4*j+3}], v[{BQ+4*j}:{BQ+4*j+3}], {c}')
            k = T - (NS - 3)
            if 0 <= k < NL:
                vm.wait(f'K{NS+k}')
                kread((NS + k) % NL, k)
            if 6 <= T < 6 + args.vearly:
                if T == 6:
                    order.clear()
                order.append(f'V{T-6}')
                rload(False, T - 6, vslot(T - 6))
        g('s_nop 7')
        ts(g, 2)
        for i in range(2 * NT):
            a, b = f'v{BS+2*i}', f'v{BS+2*i+1}'
            if 'sc1' not in args.skip:
                bf16r_pair(g, a, b, 'v8')
            g(f'v_mul_f32 {a}, s61, {a}\nv_mul_f32 {b}, s61, {b}')
            if 'sc2' not in args.skip:
                bf16r_pair(g, a, b, 'v8')
        g(f'v_max_f32 v9, v{BS}, v{BS+1}')
        for i in range(1, 2 * NT):
            g(f'v_max3_f32 v9, v9, v{BS+2*i}, v{BS+2*i+1}')
        allred_x16(g, 'v_max_f32', 'v9', 'v10')
        allred_x32(g, 'v_max_f32', 'v9', 'v10')
        g('v_mov_b32 v11, 0\nv_mov_b32 v16, 0')
        for i in range(0, 4 * NT, 2):
            g(f'''v_sub_f32 v{BS+i}, v{BS+i}, v9
            v_sub_f32 v{BS+i+1}, v{BS+i+1}, v9
            v_mul_f32 v{BS+i}, s60, v{BS+i}
            v_mul_f32 v{BS+i+1}, s60, v{BS+i+1}
            v_exp_f32 v{BS+i}, v{BS+i}
            v_exp_f32 v{BS+i+1}, v{BS+i+1}
            s_nop 0
            v_add_f32 v11, v11, v{BS+i}
            v_add_f32 v16, v16, v{BS+i+1}''')
        g('v_mov_b32 v248, v9')
        g('v_add_f32 v11, v11, v16')
        allred_x16(g, 'v_add_f32', 'v11', 'v10')
        allred_x32(g, 'v_add_f32', 'v11', 'v10')
        g(f'''s_lshl_b32 s46, s44, 6
        v_lshlrev_b32 v3, 2, v0
        v_add_u32 v3, s46, v3
        s_mov_b64 exec, 0xff
        ds_write_b32 v3, v9 offset:{L_ST}
        ds_write_b32 v3, v11 offset:{L_ST+32}
        s_mov_b64 exec, -1''')
        lds_signal(g, C_ST, add=True)
        ts(g, 3)
        if args.latec:
            for i in range(2 * NT):
                g(f'v_cvt_pk_bf16_f32 v{BS+i}, v{BS+2*i}, v{BS+2*i+1}')
        if args.vearly == 0:
            order.clear()
        stream(False, args.vearly)
        if args.noml and args.vsig >= NT:
            lds_signal(g, C_V, add=True)
        def get_c():
            lds_wait(g, C_ML, 1)
            g(f'''v_and_b32 v3, 7, v0
            v_lshlrev_b32 v3, 2, v3
            ds_read_b32 v9, v3 offset:{L_ML}
            ds_read_b32 v10, v3 offset:{L_ML+32}
            s_waitcnt lgkmcnt(0)
            v_sub_f32 v9, v248, v9
            v_mul_f32 v9, s60, v9
            v_exp_f32 v9, v9
            s_nop 0
            v_mul_f32 v10, v10, v9''')
        if not args.latec:
            get_c()
            ts(g, 4)
            for i in range(2 * NT):
                a, b = BS + 2 * i, BS + 2 * i + 1
                g(f'''v_mul_f32 v12, v{a}, v10
                v_mul_f32 v13, v{b}, v10
                v_cvt_pk_bf16_f32 v{BS+i}, v12, v13''')
        else:
            ts(g, 4)
        g('v_lshlrev_b32 v3, 4, v0\nv_add_u32 v3, s48, v3')
        for U in range(NT // 2):
            T0, T1 = 2 * U, 2 * U + 1
            if T1 < NS:
                vm.wait(f'V{T1}')
            else:
                g(f's_waitcnt lgkmcnt({min(8, 4 * (NT - 1 - T1))})')
            ra = BP + 16 * vslot(T0 % NS)
            rb = BP + 16 * vslot(T1 % NS)
            for half in range(2):
                for tt in range(4):
                    t = 4 * half + tt
                    d = t >> 1
                    sel = 's58' if (t & 1) == 0 else 's59'
                    o = BQ + 4 * tt
                    g(f'v_perm_b32 v{o}, v{ra+4+d}, v{ra+d}, {sel}')
                    g(f'v_perm_b32 v{o+1}, v{ra+12+d}, v{ra+8+d}, {sel}')
                    g(f'v_perm_b32 v{o+2}, v{rb+4+d}, v{rb+d}, {sel}')
                    g(f'v_perm_b32 v{o+3}, v{rb+12+d}, v{rb+8+d}, {sel}')
                g('s_nop 1')
                for tt in range(4):
                    t = 4 * half + tt
                    o = BQ + 4 * tt
                    acc = BO + 4 * t
                    c = '0' if U == 0 else f'v[{acc}:{acc+3}]'
                    g(f'v_mfma_f32_16x16x32_bf16 v[{acc}:{acc+3}], v[{o}:{o+3}], v[{BS+4*U}:{BS+4*U+3}], {c}')
            k = 2 * (U - 3)
            if 0 <= k < NL:
                vm.wait(f'V{NS+k+1}')
                lk = lambda kk: kk + 2 if (NS + kk >= NT - args.vpre) else kk
                ldsread(lk(k), vslot(k)); ldsread(lk(k + 1), vslot(k + 1))
        ts(g, 5)
        if args.latec:
            get_c()
            for i in range(32):
                g(f'v_mul_f32 v{BO+i}, v{BO+i}, v10')
        g(f'''s_lshl_b32 s46, s44, 12
        v_lshlrev_b32 v3, 9, v4
        v_lshl_add_u32 v3, v5, 7, v3
        v_add_u32 v3, s46, v3
        s_nop 7
        s_mov_b32 exec_lo, 0x00ff00ff
        s_mov_b32 exec_hi, 0x00ff00ff''')
        for t in range(8):
            acc = BO + 4 * t
            g(f'ds_write_b128 v3, v[{acc}:{acc+3}] offset:{L_OP + 16*t}')
        g('s_mov_b64 exec, -1')
        lds_signal(g, C_O, add=True)
        g(f'''s_lshr_b32 s46, s86, 6
        s_lshl_b32 s46, s46, 18
        s_lshl_b32 s49, s44, 16
        s_add_u32 s46, s46, s49
        s_bfe_u32 s49, s86, 0x10005
        s_lshl_b32 s49, s49, 14
        s_add_u32 s46, s46, s49
        s_and_b32 s49, s86, 31
        s_lshl_b32 s49, s49, 9
        s_add_u32 s46, s46, s49
        s_add_u32 s46, s46, {W_O}
        v_and_b32 v2, 31, v0
        v_lshlrev_b32 v2, 4, v2
        v_lshrrev_b32 v1, 5, v0
        v_lshl_add_u32 v2, v1, 15, v2
        s_lshl_b32 s49, s44, 10
        v_lshlrev_b32 v3, 4, v0
        v_add_u32 v3, s49, v3''')
        lds_wait(g, C_O, 4)
        for w in range(4):
            g(f'ds_read_b128 v[{88+4*w}:{91+4*w}], v3 offset:{L_OP + 4096*w}')
        g('s_waitcnt lgkmcnt(0)')
        for r in range(4):
            g(f'v_add_f32 v{8+r}, v{88+r}, v{92+r}\nv_add_f32 v{12+r}, v{96+r}, v{100+r}\nv_add_f32 v{8+r}, v{8+r}, v{12+r}')
        g('buffer_store_dwordx4 v[8:11], v2, s[36:39], s46 offen sc1')
        ts(g, 6)
        ts_dump(g, 7)
        g('s_endpgm')
    g.label('L_END')
    g('s_endpgm')
    g.label('L_CODE_END')
    g('.fill 1024, 4, 0xbf800000')
    T = f'''.section .rodata,"a"
.p2align 6
.amdhsa_kernel {KN}
  .amdhsa_next_free_vgpr 256
  .amdhsa_next_free_sgpr 100
  .amdhsa_accum_offset 256
  .amdhsa_group_segment_fixed_size 0
  .amdhsa_kernarg_size 96
  .amdhsa_user_sgpr_count 2
  .amdhsa_user_sgpr_kernarg_segment_ptr 1
  .amdhsa_system_sgpr_workgroup_id_x 1
  .amdhsa_float_denorm_mode_32 3
.end_amdhsa_kernel
'''
    return '\n'.join(H) + '\n' + '\n'.join(g.L) + '\n' + T

if __name__ == '__main__':
    ap = argparse.ArgumentParser()
    ap.add_argument('--prof', action='store_true')
    ap.add_argument('--cwarm', type=int, default=0)
    ap.add_argument('--qmode', type=int, default=0)
    ap.add_argument('--nsp', type=int, default=6)
    ap.add_argument('--nstat', type=int, default=3)
    ap.add_argument('--qline', type=int, default=0)
    ap.add_argument('--omode', type=int, default=0)
    ap.add_argument('--osleep', type=int, default=1)
    ap.add_argument('--flash', type=int, default=0)
    ap.add_argument('--qpack', type=int, default=0)
    ap.add_argument('--vpre', type=int, default=0)
    ap.add_argument('--late', type=int, default=0)
    ap.add_argument('--vsig', type=int, default=16)
    ap.add_argument('--finsleep', type=int, default=1)
    ap.add_argument('--vinfl', type=int, default=0)
    ap.add_argument('--inter', type=int, default=1)
    ap.add_argument('--noml', type=int, default=0)
    ap.add_argument('--qack', type=int, default=1)
    ap.add_argument('--latec', type=int, default=0)
    ap.add_argument('--vearly', type=int, default=4)
    ap.add_argument('--ksig', type=int, default=16)
    ap.add_argument('--ainfl', type=int, default=2)
    ap.add_argument('--skip', default='')
    ap.add_argument('--remap', type=int, default=1)
    ap.add_argument('--plain', type=int, default=1)
    ap.add_argument('--nodma', action='store_true')
    ap.add_argument('--noaux', action='store_true')
    ap.add_argument('--nolds', action='store_true')
    ap.add_argument('--kfirst', type=int, default=1)
    ap.add_argument('--nohop', action='store_true')
    ap.add_argument('--fsleep', type=int, default=16)
    ap.add_argument('--infl', type=int, default=2)
    ap.add_argument('--pre', type=int, default=0)
    ap.add_argument('-o', default='recurrent_scan__gqa_block_cached__swiglu_ffn__decode.s')
    args = ap.parse_args()
    open(args.o, 'w').write(gen(args))
```

```python
import struct, sys, argparse

def f32hex(x):
    return '0x%08x' % struct.unpack('<I', struct.pack('<f', x))[0]

KN = 'recurrent_scan__gqa_block_cached__swiglu_ffn__decode_kernel'
NWG = 256
W_Q = 0x000000
W_GU = 0x040000
W_S = 0x0C0000
W_F = 0x140000
W_O = 0x180000
W_ML = 0x280000
W_B = 0x300000
W_CT = 0x2E0000
W_FL = 0x2C0000
L_XN = 0x0000
L_Q = 0x1000
L_ST = 0x1800
L_ML = 0x1A00
L_CT = 0x1A40
C_Q, C_ST, C_ML, C_O, C_OG, C_H, C_N, C_K, C_X, C_V, C_S, C_P = [L_CT + 4 * i for i in range(12)]
L_W = 0x1F00
L_OB = 0x1B00
L_H = 0x1D00
L_OP = 0x2000
L_V = 0x6000
LDS_BYTES = 0x6000 + 4 * 24576
SCALE = f32hex(128 ** -0.5)
LOG2E = f32hex(1.4426950408889634)
EPS = f32hex(1e-5)
SPIN_LDS = 4000000
SPIN_GLB = 40000

NOLDS = False
GN = False
QSH, QOFF = 2, 0
class Gen:
    def __init__(self):
        self.L = []
        self.n = 0
    def __call__(self, s):
        for line in s.strip('\n').split('\n'):
            self.L.append('    ' + line.strip())
    def label(self, name):
        self.L.append(name + ':')
    def uniq(self, p):
        self.n += 1
        return f'{p}_{self.n}'

class VM:
    def __init__(self, g):
        self.g = g
        self.ops = []
    def issue(self, tag):
        self.ops.append(tag)
    def wait(self, tag):
        idx = max(i for i, t in enumerate(self.ops) if t == tag)
        n = len(self.ops) - 1 - idx
        assert n <= 63
        self.g(f's_waitcnt vmcnt({n})')
    def reset(self):
        self.ops = []

def srd(g, d, base, nbytes):
    g(f's_mov_b32 s{d}, s{base}\ns_mov_b32 s{d+1}, s{base+1}\ns_mov_b32 s{d+2}, {nbytes}\ns_mov_b32 s{d+3}, 0x20000')

def lds_wait(g, addr, target, vt='v7', va='v6', st='s50', sc='s51'):
    l = g.uniq('LW'); d = g.uniq('LWD')
    g(f'v_mov_b32 {va}, {addr}\ns_mov_b32 {sc}, {1 if NOLDS else SPIN_LDS}')
    g.label(l)
    g(f'''ds_read_b32 {vt}, {va}
    s_waitcnt lgkmcnt(0)
    v_readfirstlane_b32 {st}, {vt}
    s_cmp_ge_u32 {st}, {target}
    s_cbranch_scc1 {d}
    s_sleep 1
    s_sub_u32 {sc}, {sc}, 1
    s_cmp_lg_u32 {sc}, 0
    s_cbranch_scc1 {l}''')
    g.label(d)

def lds_signal(g, addr, add=False, vt='v7', va='v6'):
    g(f'''s_waitcnt lgkmcnt(0)
    v_mov_b32 {va}, {addr}
    v_mov_b32 {vt}, 1
    s_mov_b64 exec, 1''')
    g(f'ds_add_u32 {va}, {vt}' if add else f'ds_write_b32 {va}, {vt}')
    g('s_mov_b64 exec, -1')

def bf16r_pair(g, a, b, t):
    g(f'''v_cvt_pk_bf16_f32 {t}, {a}, {b}
    v_lshlrev_b32 {a}, 16, {t}
    v_and_b32 {b}, 0xffff0000, {t}''')

def bf16r(g, a):
    g(f'''v_cvt_pk_bf16_f32 {a}, {a}, {a}
    v_lshlrev_b32 {a}, 16, {a}''')

def allred_row16(g, op, v, t):
    for r in (1, 2, 4, 8):
        g(f's_nop 1\n{op}_dpp {t}, {v}, {v} row_ror:{r} row_mask:0xf bank_mask:0xf\nv_mov_b32 {v}, {t}')

def allred_x16(g, op, v, t):
    g(f'v_mov_b32 {t}, {v}\ns_nop 1\nv_permlane16_swap_b32 {v}, {t}\ns_nop 1\n{op} {v}, {v}, {t}')

def allred_x32(g, op, v, t):
    g(f'v_mov_b32 {t}, {v}\ns_nop 1\nv_permlane32_swap_b32 {v}, {t}\ns_nop 1\n{op} {v}, {v}, {t}')

def precise_div(g, d, num, den, t1, t2):
    g(f'''v_rcp_f32 {t1}, {den}
    s_nop 0
    v_mul_f32 {t2}, {num}, {t1}
    v_fma_f32 {d}, -{t2}, {den}, {num}
    v_fma_f32 {d}, {d}, {t1}, {t2}''')

def silu(g, x, t1, t2, t3):
    g(f'''v_mul_f32 {t1}, s60, {x}
    v_exp_f32 {t1}, -{t1}
    s_nop 0
    v_add_f32 {t1}, 1.0, {t1}''')
    g(f'''v_rcp_f32 {t2}, {t1}
    s_nop 0
    v_mul_f32 {t3}, {x}, {t2}
    v_fma_f32 {t1}, -{t3}, {t1}, {x}
    v_fma_f32 {t1}, {t1}, {t2}, {t3}
    v_cmp_eq_f32 vcc, 0, {t2}
    s_nop 1
    v_cndmask_b32 {x}, {t1}, {t3}, vcc''')

A_T = 8
A_B = 24
A_ACC = 40
A_POOL = 72

def tile_loads(g, vm, srdreg, sbase, rowbytes, kk, slot, tag, voff='v1', stmp='s46'):
    for i in range(8):
        r = A_POOL + 32 * slot + 4 * i
        g(f's_add_u32 {stmp}, {sbase}, {(32 * kk + i) * rowbytes}')
        g(f'buffer_load_dwordx4 v[{r}:{r+3}], {voff}, s[{srdreg}:{srdreg+3}], {stmp} offen nt')
        vm.issue(tag)

def tile_block_mfma(g, slot, kk, first, breg):
    base = A_POOL + 32 * slot
    for half in range(2):
        for tt in range(4):
            t = 4 * half + tt
            d = t >> 1
            sel = 's58' if (t & 1) == 0 else 's59'
            o = A_T + 4 * tt
            for p in range(4):
                g(f'v_perm_b32 v{o+p}, v{base + 4*(2*p+1) + d}, v{base + 4*(2*p) + d}, {sel}')
        g('s_nop 1')
        for tt in range(4):
            t = 4 * half + tt
            o = A_T + 4 * tt
            acc = A_ACC + 4 * t
            c = '0' if first else f'v[{acc}:{acc+3}]'
            g(f'v_mfma_f32_16x16x32_bf16 v[{acc}:{acc+3}], v[{o}:{o+3}], v[{breg}:{breg+3}], {c}')

def gemv_tile(g, vm, srdreg, sbase, rowbytes, ldsaddr_v, pre_issued, tagp, wait_fn=None):
    if wait_fn:
        wait_fn()
    for kk in range(4):
        g(f'ds_read_b128 v[{A_B+4*kk}:{A_B+4*kk+3}], {ldsaddr_v} offset:{64*kk}')
    g('s_waitcnt lgkmcnt(0)')
    for kk in range(4):
        vm.wait(f'{tagp}{kk}')
        tile_block_mfma(g, kk % 3, kk, kk == 0, A_B + 4 * kk)
        if kk == 0:
            tile_loads(g, vm, srdreg, sbase, rowbytes, 3, 0, f'{tagp}3')

def lane_masks(g):
    g('''s_mov_b32 s80, 0xcccccccc
    s_mov_b32 s81, 0xcccccccc
    s_mov_b32 s82, 0xf0f0f0f0
    s_mov_b32 s83, 0xf0f0f0f0
    s_mov_b32 s84, 0xff00ff00
    s_mov_b32 s85, 0xff00ff00''')

def select8(g, accs, levels=3):
    cur = list(accs)
    lv = 0
    while len(cur) > 1:
        nxt = []
        for i in range(0, len(cur), 2):
            a, b = cur[i], cur[i + 1]
            for r in range(4):
                g(f'v_cndmask_b32 v{a+r}, v{a+r}, v{b+r}, s[{80+2*lv}:{81+2*lv}]')
            nxt.append(a)
        cur = nxt
        lv += 1
    return cur[0]

def tagged_store(g, vm, r, soff, voff, x=8, stmp='s57', vtmp='v7'):
    g(f'''v_perm_b32 v{r}, v{r}, v{r+3}, s90
    v_perm_b32 v{r+1}, v{r+1}, v{r+3}, s91
    v_perm_b32 v{r+2}, v{r+2}, v{r+3}, s92
    v_mov_b32 v{r+3}, s55
    buffer_store_dwordx4 v[{r}:{r+3}], {voff}, s[36:39], {soff} offen sc1''')
    vm.issue('st')

def tagged_store_ab(g, vm, r, soff, voff, x=8, stmp='s57', vtmp='v7'):
    g(f'''v_mov_b32 v{x}, v{r+3}
    v_mov_b32 v{x+1}, s55
    v_mov_b32 v{r+3}, s55
    v_lshrrev_b32 {vtmp}, 1, {voff}
    s_lshr_b32 {stmp}, {soff}, 1
    s_add_u32 {stmp}, {stmp}, {W_B}
    buffer_store_dwordx4 v[{r}:{r+3}], {voff}, s[36:39], {soff} offen sc1
    buffer_store_dwordx2 v[{x}:{x+1}], {vtmp}, s[36:39], {stmp} offen sc1''')
    vm.issue('st'); vm.issue('st')

def unpack_d(g, r):
    g(f'v_perm_b32 v{r+3}, v{r}, v{r+1}, s93\nv_perm_b32 v{r+3}, v{r+3}, v{r+2}, s94')

def publish_acc(g, vm, soff, voff='v2', tagged=True):
    g('s_nop 7\ns_nop 1')
    r = select8(g, [A_ACC + 4 * t for t in range(8)])
    if tagged:
        tagged_store(g, vm, r, soff, voff)
    else:
        g(f'buffer_store_dwordx4 v[{r}:{r+3}], {voff}, s[36:39], {soff} offen sc1')
        vm.issue('st')

def tag_check(g, tags, acc='v7', tmp='v6'):
    tags = list(tags)
    g(f'v_xor_b32 {acc}, s55, v{tags[0]}')
    for t in tags[1:]:
        g(f'v_xor_b32 {tmp}, s55, v{t}\nv_or_b32 {acc}, {acc}, {tmp}')
    g(f'v_cmp_ne_u32 vcc, 0, {acc}')

NOHOP = False
PLAIN = True
def plain_first(g, issue_fn, check_fn, d):
    n0 = len(g.L)
    issue_fn()
    for i in range(n0, len(g.L)):
        g.L[i] = g.L[i].replace(' sc1', '')
    g('s_waitcnt vmcnt(0)')
    check_fn()
    g(f's_cbranch_vccz {d}')

def tpoll_loop(g, issue_fn, tags, sleep=2, sc='s51', acc='v7', tmp='v6', plain=False):
    l = g.uniq('TP'); d = g.uniq('TPD')
    if plain and PLAIN:
        plain_first(g, issue_fn, lambda: tag_check(g, tags, acc, tmp), d)
    g(f's_mov_b32 {sc}, {1 if NOHOP else SPIN_GLB}')
    g.label(l)
    issue_fn()
    g('s_waitcnt vmcnt(0)')
    tag_check(g, tags, acc, tmp)
    g(f'''s_cbranch_vccz {d}
    s_sleep {sleep}
    s_sub_u32 {sc}, {sc}, 1
    s_cmp_lg_u32 {sc}, 0
    s_cbranch_scc1 {l}''')
    g.label(d)

def read_nonce(g):
    lds_wait(g, C_N, 1)
    g('s_mov_b32 s55, s50')

def sentinel_check(g, regs, vmx):
    regs = list(regs)
    g(f'v_max_u32 {vmx}, v{regs[0]}, v{regs[1]}')
    i = 2
    while i < len(regs):
        if i + 1 < len(regs):
            g(f'v_max3_u32 {vmx}, {vmx}, v{regs[i]}, v{regs[i+1]}')
            i += 2
        else:
            g(f'v_max_u32 {vmx}, {vmx}, v{regs[i]}')
            i += 1
    g(f'v_cmp_eq_u32 vcc, -1, {vmx}')

def poll_loop(g, issue_fn, regs, vmx='v7', sc='s51', sleep=2, plain=False):
    l = g.uniq('PL'); d = g.uniq('PLD')
    if plain and PLAIN:
        plain_first(g, issue_fn, lambda: sentinel_check(g, regs, vmx), d)
    g(f's_mov_b32 {sc}, {1 if NOHOP else SPIN_GLB}')
    g.label(l)
    issue_fn()
    g('s_waitcnt vmcnt(0)')
    sentinel_check(g, regs, vmx)
    g(f'''s_cbranch_vccz {d}
    s_sleep {sleep}
    s_sub_u32 {sc}, {sc}, 1
    s_cmp_lg_u32 {sc}, 0
    s_cbranch_scc1 {l}''')
    g.label(d)

def arrive(g, sidx, n, stmp='s46', sctr=None, ack=True):
    d = g.uniq('ARR')
    if sctr is None:
        g(f's_lshl_b32 {stmp}, {sidx}, {QSH}\ns_add_u32 {stmp}, {stmp}, {QOFF}')
        srdn = 40
    else:
        g(f's_lshl_b32 {stmp}, {sctr}, 7\ns_add_u32 {stmp}, {stmp}, {W_CT}')
        srdn = 36
    g(f'''v_mov_b32 v6, {stmp}
    v_mov_b32 v7, 1
    {'s_waitcnt vmcnt(0)' if ack else 's_nop 0'}
    s_mov_b64 exec, 1
    buffer_atomic_add v7, v6, s[{srdn}:{srdn+3}], 0 offen sc0
    s_waitcnt vmcnt(0)
    v_readfirstlane_b32 {stmp}, v7
    s_cmp_eq_u32 {stmp}, {n-1}
    s_cbranch_scc0 {d}
    s_lshl_b32 {stmp}, {sidx}, 7
    s_add_u32 {stmp}, {stmp}, {W_FL}
    v_mov_b32 v6, 0
    v_mov_b32 v7, s55
    buffer_store_dword v7, v6, s[36:39], {stmp} offen sc1''')
    g.label(d)
    g('s_mov_b64 exec, -1')

def flag_wait(g, sidx, sleep, stmp='s46'):
    l = g.uniq('FW'); d = g.uniq('FWD')
    g(f'''s_lshl_b32 {stmp}, {sidx}, 7
    s_add_u32 {stmp}, {stmp}, {W_FL}
    v_mov_b32 v6, 0
    s_mov_b32 s51, {1 if NOHOP else SPIN_GLB}
    s_mov_b64 exec, 1''')
    g.label(l)
    g(f'''buffer_load_dword v7, v6, s[36:39], {stmp} offen sc1
    s_waitcnt vmcnt(0)
    v_readfirstlane_b32 s50, v7
    s_cmp_eq_u32 s50, s55
    s_cbranch_scc1 {d}
    s_sleep {sleep}
    s_sub_u32 s51, s51, 1
    s_cmp_lg_u32 s51, 0
    s_cbranch_scc1 {l}''')
    g.label(d)
    g('s_mov_b64 exec, -1')

def counter_wait(g, srdn, soff, n, sleep):
    l = g.uniq('CW'); d = g.uniq('CWD')
    g(f'''v_mov_b32 v6, 0
    s_mov_b32 s51, {1 if NOHOP else SPIN_GLB}
    s_mov_b64 exec, 1''')
    g.label(l)
    g(f'''buffer_load_dword v7, v6, s[{srdn}:{srdn+3}], {soff} offen sc1
    s_waitcnt vmcnt(0)
    v_readfirstlane_b32 s50, v7
    s_cmp_ge_u32 s50, {n}
    s_cbranch_scc1 {d}
    s_sleep {sleep}
    s_sub_u32 s51, s51, 1
    s_cmp_lg_u32 s51, 0
    s_cbranch_scc1 {l}''')
    g.label(d)
    g('s_mov_b64 exec, -1')

def read_gnonce(g):
    if not GN:
        return
    counter_wait(g, 40, '0', 1, 8)
    g('s_mov_b32 s55, s50')

def four_flags(g):
    l = g.uniq('F4'); d = g.uniq('F4D')
    g(f'''v_lshlrev_b32 v3, 7, v0
    v_lshlrev_b32 v6, {6 if GN else 31}, v0
    v_lshrrev_b32 v6, {0 if GN else 31}, v6
    {'s_nop 0' if GN else 'v_mov_b32 v6, 0'}
    s_mov_b32 s46, {W_FL + 128}
    s_mov_b32 s51, {1 if NOHOP else SPIN_GLB}
    s_mov_b64 exec, 15''')
    g.label(l)
    g(f'''buffer_load_dword v9, v3, s[36:39], s46 offen sc1
    buffer_load_dword v7, v6, s[40:43], 0 offen sc1
    s_waitcnt vmcnt(0)
    v_cmp_ne_u32 vcc, v9, v7
    v_cmp_eq_u32 s[52:53], 0, v7
    s_or_b64 vcc, vcc, s[52:53]
    s_cbranch_vccz {d}
    s_sleep 16
    s_sub_u32 s51, s51, 1
    s_cmp_lg_u32 s51, 0
    s_cbranch_scc1 {l}''')
    g.label(d)
    g('s_mov_b64 exec, -1')

def q_gather(g, args, rnd, tsa=None):
    g(f'''s_lshr_b32 s44, s86, 5
    s_lshl_b32 s44, s44, 15
    s_add_u32 s44, s44, {W_Q + rnd*16384}
    s_lshr_b32 s45, s44, 1
    s_add_u32 s45, s45, {W_B}
    s_lshr_b32 s48, s86, 6
    s_add_u32 s48, s48, 1''')
    if args.qmode == 1:
        g(f's_lshl_b32 s48, s48, {QSH}\ns_add_u32 s48, s48, {QOFF}')
        counter_wait(g, 40, 's48', 64, args.fsleep)
    else:
        flag_wait(g, 's48', args.fsleep)
    if tsa is not None:
        ts(g, tsa)
    g('''v_lshrrev_b32 v2, 5, v0
    v_lshlrev_b32 v2, 12, v2
    v_and_b32 v3, 31, v0
    v_lshl_add_u32 v2, v3, 4, v2
    v_lshrrev_b32 v3, 1, v2
    v_lshrrev_b32 v8, 5, v0
    v_lshlrev_b32 v8, 8, v8
    v_bfe_u32 v9, v0, 3, 2
    v_lshlrev_b32 v9, 6, v9
    v_and_b32 v10, 7, v0
    v_lshlrev_b32 v10, 1, v10
    v_add3_u32 v8, v8, v9, v10''')
    def issue_q2():
        for hh in range(2):
            g(f's_add_u32 s46, s44, {hh*8192}\ns_add_u32 s48, s45, {hh*4096}')
            for ks in range(8):
                r = 40 + 32 * hh + 4 * ks
                rb = 104 + 16 * hh + 2 * ks
                g(f'buffer_load_dwordx4 v[{r}:{r+3}], v2, s[36:39], s46 offen offset:{ks*512} sc1')
                if not args.qpack:
                    g(f'buffer_load_dwordx2 v[{rb}:{rb+1}], v3, s[36:39], s48 offen offset:{ks*256} sc1')
    tags = [43 + 4 * i for i in range(16)] + ([] if args.qpack else [105 + 2 * i for i in range(16)])
    if 'q2' not in args.skip:
        tpoll_loop(g, issue_q2, tags, sleep=4, plain=True)
    if args.qpack:
        for i in range(16):
            unpack_d(g, 40 + 4 * i)
    for hh in range(2):
        hp = 2 * rnd + hh
        for r in range(4):
            src = (lambda ks: 40 + 32 * hh + 4 * ks + r) if (r < 3 or args.qpack) else (lambda ks: 104 + 16 * hh + 2 * ks)
            g(f'v_add_f32 v{12+r}, v{src(0)}, v{src(1)}')
            for ks in range(2, 8):
                g(f'v_add_f32 v{12+r}, v{12+r}, v{src(ks)}')
        g(f'''v_cvt_pk_bf16_f32 v12, v12, v13
        v_cvt_pk_bf16_f32 v14, v14, v15
        ds_write_b16 v8, v12 offset:{L_Q + 512*hp}
        ds_write_b16_d16_hi v8, v12 offset:{L_Q + 512*hp + 16}
        ds_write_b16 v8, v14 offset:{L_Q + 512*hp + 32}
        ds_write_b16_d16_hi v8, v14 offset:{L_Q + 512*hp + 48}''')
    lds_signal(g, C_Q, add=True)

PROF = False
def ts(g, i):
    if PROF:
        g(f's_memrealtime s[96:97]\ns_waitcnt lgkmcnt(0)\ns_mov_b32 s{64+i}, s96')
def ts_dump(g, n):
    if not PROF:
        return
    g(f'''s_mul_i32 s62, s2, 12
    s_add_u32 s62, s62, s3
    s_lshl_b32 s62, s62, 6
    s_add_u32 s62, s62, 0x8000000
    s_mov_b64 exec, 1
    v_mov_b32 v6, 0''')
    for i in range(16):
        g(f'v_mov_b32 v7, s{64+i}\nbuffer_store_dword v7, v6, s[36:39], s62 offen offset:{4*i}')

def gen_flash(g, args):
    g.label('L_BULK')
    vm = VM(g)
    BQ, BS, BPK, BO, KST, VS = 8, 24, 40, 48, 80, 112
    KV_ = ['v240', 'v241', 'v242', 'v243']
    KR_ = ['v244', 'v245', 'v246', 'v247']
    TS = 16384
    srd(g, 28, 6, 64 * 1024 * 1024)
    srd(g, 32, 8, 64 * 1024 * 1024)
    g(f'''s_sub_u32 s44, s3, 4
    s_lshr_b32 s45, s86, 6
    s_bfe_u32 s46, s86, 0x10005
    s_lshl_b32 s46, s46, 2
    s_add_u32 s45, s45, s46
    s_lshl_b32 s45, s45, 23
    s_and_b32 s46, s86, 31
    s_lshl_b32 s46, s46, 18
    s_add_u32 s45, s45, s46
    s_lshl_b32 s46, s44, 12
    s_add_u32 s45, s45, s46
    v_and_b32 v4, 15, v0
    v_lshrrev_b32 v5, 4, v0
    v_lshlrev_b32 v2, 4, v0
    s_lshl_b32 s48, s44, 15
    s_add_u32 s48, s48, {L_V}
    v_xor_b32 v6, v4, v5
    v_lshlrev_b32 v7, 8, v5
    v_lshl_add_u32 v240, v6, 4, v7
    v_xor_b32 v241, 64, v240
    v_add_u32 v241, 1024, v241
    v_xor_b32 v242, 128, v240
    v_add_u32 v242, 2048, v242
    v_xor_b32 v243, 192, v240
    v_add_u32 v243, 3072, v243
    v_and_b32 v6, 3, v4
    v_lshlrev_b32 v6, 2, v6
    v_lshrrev_b32 v7, 2, v4
    v_add_u32 v6, v6, v7
    v_xor_b32 v7, v6, v5
    v_lshlrev_b32 v6, 8, v6
    v_lshl_add_u32 v244, v7, 4, v6
    v_xor_b32 v245, 64, v244
    v_xor_b32 v246, 128, v244
    v_xor_b32 v247, 192, v244
    v_add_u32 v244, s48, v244
    v_add_u32 v245, s48, v245
    v_add_u32 v246, s48, v246
    v_add_u32 v247, s48, v247
    s_barrier''')
    order = []
    cnt = [0]
    def pace(tag):
        order.append(tag)
        n = args.infl
        if len(order) - 1 - n >= 0:
            vm.wait(order[len(order) - 1 - n])
        if cnt[0] == args.pre:
            lds_wait(g, C_X, 1)
        if cnt[0] == args.ksig:
            lds_signal(g, C_K, add=True)
        if cnt[0] in (4, 8, 12, 15, 20, 24, 28, 31):
            ts(g, 8 + (4, 8, 12, 15, 20, 24, 28, 31).index(cnt[0]))
        cnt[0] += 1
    def kload(T):
        pace(f'K{T}')
        for j in range(4):
            g(f's_add_u32 s49, s48, {4096*(T % 8) + 1024*j}\ns_mov_b32 m0, s49\ns_add_u32 s46, s45, {TS*T}')
            g(f'buffer_load_dwordx4 {KV_[j]}, s[28:31], s46 offen nt lds')
            vm.issue(f'K{T}')
    def vload(T):
        pace(f'V{T}')
        r0 = VS + 16 * (T % 8)
        g(f's_add_u32 s46, s45, {TS*T}')
        for j in range(4):
            g(f'buffer_load_dwordx4 v[{r0+4*j}:{r0+4*j+3}], v2, s[32:35], s46 offen offset:{1024*j} nt')
            vm.issue(f'V{T}')
    def kread(T):
        r0 = KST + 16 * (T & 1)
        for j in range(4):
            g(f'ds_read_b128 v[{r0+4*j}:{r0+4*j+3}], {KR_[j]} offset:{4096*(T % 8)}')
    for c in range(2):
        for T in range(4 * c, 4 * c + 4):
            kload(T)
        for T in range(4 * c, 4 * c + 4):
            vload(T)
    lds_wait(g, C_Q, 2)
    ts(g, 1)
    g('''v_and_b32 v3, 7, v0
    v_lshlrev_b32 v3, 8, v3
    v_lshl_add_u32 v3, v5, 4, v3''')
    for j in range(4):
        g(f'ds_read_b128 v[{BQ+4*j}:{BQ+4*j+3}], v3 offset:{L_Q + 64*j}')
    for c in range(4):
        vm.wait(f'K{4*c+3}')
        kread(4 * c)
        for i in range(4):
            T = 4 * c + i
            if i < 3:
                kread(T + 1)
                g('s_waitcnt lgkmcnt(4)')
            else:
                g('s_waitcnt lgkmcnt(0)')
            r0 = KST + 16 * (T & 1)
            sreg = BS + 4 * i
            for j in range(4):
                cc = '0' if j == 0 else f'v[{sreg}:{sreg+3}]'
                g(f'v_mfma_f32_16x16x32_bf16 v[{sreg}:{sreg+3}], v[{r0+4*j}:{r0+4*j+3}], v[{BQ+4*j}:{BQ+4*j+3}], {cc}')
        if c == 0:
            ts(g, 2)
        if c < 2:
            for T in range(4 * c + 8, 4 * c + 12):
                kload(T)
        else:
            g('s_nop 7')
        for i in range(8):
            a, b = f'v{BS+2*i}', f'v{BS+2*i+1}'
            bf16r_pair(g, a, b, 'v250')
            g(f'v_mul_f32 {a}, s61, {a}\nv_mul_f32 {b}, s61, {b}')
            bf16r_pair(g, a, b, 'v250')
        g(f'v_max_f32 v250, v{BS}, v{BS+1}')
        for i in range(1, 8):
            g(f'v_max3_f32 v250, v250, v{BS+2*i}, v{BS+2*i+1}')
        allred_x16(g, 'v_max_f32', 'v250', 'v251')
        allred_x32(g, 'v_max_f32', 'v250', 'v251')
        if c > 0:
            g('''v_max_f32 v250, v250, v248
            v_sub_f32 v252, v248, v250
            v_mul_f32 v252, s60, v252
            v_exp_f32 v252, v252''')
        g('v_mov_b32 v248, v250\nv_mov_b32 v253, 0\nv_mov_b32 v254, 0')
        for i in range(0, 16, 2):
            g(f'''v_sub_f32 v{BS+i}, v{BS+i}, v248
            v_sub_f32 v{BS+i+1}, v{BS+i+1}, v248
            v_mul_f32 v{BS+i}, s60, v{BS+i}
            v_mul_f32 v{BS+i+1}, s60, v{BS+i+1}
            v_exp_f32 v{BS+i}, v{BS+i}
            v_exp_f32 v{BS+i+1}, v{BS+i+1}
            s_nop 0
            v_add_f32 v253, v253, v{BS+i}
            v_add_f32 v254, v254, v{BS+i+1}
            v_cvt_pk_bf16_f32 v{BPK+i//2}, v{BS+i}, v{BS+i+1}''')
        g('v_add_f32 v253, v253, v254')
        if c == 0:
            g('v_mov_b32 v249, v253')
        else:
            g('v_fma_f32 v249, v249, v252, v253')
            for i in range(32):
                g(f'v_mul_f32 v{BO+i}, v{BO+i}, v252')
        if c == 3:
            g('v_mov_b32 v253, v249')
            allred_x16(g, 'v_add_f32', 'v253', 'v251')
            allred_x32(g, 'v_add_f32', 'v253', 'v251')
            g(f'''s_lshl_b32 s46, s44, 6
            v_lshlrev_b32 v3, 2, v0
            v_add_u32 v3, s46, v3
            s_mov_b64 exec, 0xff
            ds_write_b32 v3, v248 offset:{L_ST}
            ds_write_b32 v3, v253 offset:{L_ST+32}
            s_mov_b64 exec, -1''')
            lds_signal(g, C_ST, add=True)
            ts(g, 3)
        for U in range(2):
            T0, T1 = 4 * c + 2 * U, 4 * c + 2 * U + 1
            vm.wait(f'V{T1}')
            ra = VS + 16 * (T0 % 8)
            rb = VS + 16 * (T1 % 8)
            for half in range(2):
                for tt in range(4):
                    t = 4 * half + tt
                    d = t >> 1
                    sel = 's58' if (t & 1) == 0 else 's59'
                    o = BS + 4 * tt
                    g(f'v_perm_b32 v{o}, v{ra+4+d}, v{ra+d}, {sel}')
                    g(f'v_perm_b32 v{o+1}, v{ra+12+d}, v{ra+8+d}, {sel}')
                    g(f'v_perm_b32 v{o+2}, v{rb+4+d}, v{rb+d}, {sel}')
                    g(f'v_perm_b32 v{o+3}, v{rb+12+d}, v{rb+8+d}, {sel}')
                g('s_nop 1')
                for tt in range(4):
                    t = 4 * half + tt
                    o = BS + 4 * tt
                    acc = BO + 4 * t
                    cc = '0' if (c == 0 and U == 0) else f'v[{acc}:{acc+3}]'
                    g(f'v_mfma_f32_16x16x32_bf16 v[{acc}:{acc+3}], v[{o}:{o+3}], v[{BPK+4*U}:{BPK+4*U+3}], {cc}')
        if c < 2:
            for T in range(4 * c + 8, 4 * c + 12):
                vload(T)
            if c == 1:
                lds_signal(g, C_V, add=True)
                ts(g, 4)
        g('s_nop 7')
    ts(g, 5)
    g(f'''s_lshl_b32 s46, s44, 12
    v_lshlrev_b32 v3, 9, v4
    v_lshl_add_u32 v3, v5, 7, v3
    v_add_u32 v3, s46, v3
    s_mov_b32 exec_lo, 0x00ff00ff
    s_mov_b32 exec_hi, 0x00ff00ff''')
    for t in range(8):
        acc = BO + 4 * t
        g(f'ds_write_b128 v3, v[{acc}:{acc+3}] offset:{L_OP + 16*t}')
    g('s_mov_b64 exec, -1')
    lds_signal(g, C_O, add=True)
    g(f'''s_lshr_b32 s46, s86, 6
    s_lshl_b32 s46, s46, 18
    s_lshl_b32 s49, s44, 16
    s_add_u32 s46, s46, s49
    s_bfe_u32 s49, s86, 0x10005
    s_lshl_b32 s49, s49, 14
    s_add_u32 s46, s46, s49
    s_and_b32 s49, s86, 31
    s_lshl_b32 s49, s49, 9
    s_add_u32 s46, s46, s49
    s_add_u32 s46, s46, {W_O}
    v_and_b32 v2, 31, v0
    v_lshlrev_b32 v2, 4, v2
    v_lshrrev_b32 v1, 5, v0
    v_lshl_add_u32 v2, v1, 15, v2
    s_lshl_b32 s49, s44, 10
    v_lshlrev_b32 v3, 4, v0
    v_add_u32 v3, s49, v3''')
    g(f'''s_lshl_b32 s49, s44, 3
    v_lshl_add_u32 v4, v1, 2, s49
    s_lshl_b32 s52, s86, 6
    s_add_u32 s52, s52, {W_ML}''')
    lds_wait(g, C_O, 4)
    for w in range(4):
        g(f'ds_read_b32 v{16+w}, v4 offset:{L_ST + 64*w}\nds_read_b32 v{20+w}, v4 offset:{L_ST + 64*w + 32}')
    for w in range(4):
        g(f'ds_read_b128 v[{88+4*w}:{91+4*w}], v3 offset:{L_OP + 4096*w}')
    g('''s_waitcnt lgkmcnt(4)
    v_max3_f32 v24, v16, v17, v18
    v_max_f32 v24, v24, v19''')
    for w in range(4):
        g(f'v_sub_f32 v{16+w}, v{16+w}, v24\nv_mul_f32 v{16+w}, s60, v{16+w}\nv_exp_f32 v{16+w}, v{16+w}')
    g('''s_nop 0
    v_mul_f32 v25, v20, v16
    v_fma_f32 v25, v21, v17, v25
    v_fma_f32 v25, v22, v18, v25
    v_fma_f32 v25, v23, v19, v25
    s_waitcnt lgkmcnt(0)''')
    for r in range(4):
        g(f'''v_mul_f32 v{8+r}, v{88+r}, v16
        v_mul_f32 v{12+r}, v{96+r}, v18
        v_fma_f32 v{8+r}, v{92+r}, v17, v{8+r}
        v_fma_f32 v{12+r}, v{100+r}, v19, v{12+r}
        v_add_f32 v{8+r}, v{8+r}, v{12+r}''')
    g('''buffer_store_dwordx4 v[8:11], v2, s[36:39], s46 offen sc1
    s_mov_b32 exec_lo, 1
    s_mov_b32 exec_hi, 1
    buffer_store_dword v24, v4, s[36:39], s52 offen sc1
    buffer_store_dword v25, v4, s[36:39], s52 offen offset:32 sc1
    s_mov_b64 exec, -1''')
    if args.omode >= 2:
        d = g.uniq('OA')
        g(f'''v_mov_b32 v6, {C_ST}
        v_mov_b32 v7, 1
        s_mov_b64 exec, 1
        ds_add_rtn_u32 v7, v6, v7
        s_waitcnt lgkmcnt(0)
        v_readfirstlane_b32 s49, v7
        s_mov_b64 exec, -1
        s_cmp_eq_u32 s49, 7
        s_cbranch_scc0 {d}''')
        read_nonce(g)
        g('s_lshr_b32 s48, s86, 6\ns_add_u32 s48, s48, 8\ns_andn2_b32 s49, s86, 63\ns_add_u32 s49, s49, 257')
        arrive(g, 's48', 64, sctr='s49', ack=False)
        g.label(d)
    ts(g, 6)
    ts_dump(g, 7)
    g('s_endpgm')

def gen_steal(g, args):
    g.label('L_BULK')
    vm = VM(g)
    BQ, BS, BPK, BO, KST, VS = 8, 24, 40, 48, 80, 112
    KV_ = ['v240', 'v241', 'v242', 'v243']
    KR_ = ['v244', 'v245', 'v246', 'v247']
    TS = 16384
    srd(g, 28, 6, 64 * 1024 * 1024)
    srd(g, 32, 8, 64 * 1024 * 1024)
    g(f'''s_sub_u32 s44, s3, 4
    s_lshr_b32 s45, s86, 6
    s_bfe_u32 s46, s86, 0x10005
    s_lshl_b32 s46, s46, 2
    s_add_u32 s45, s45, s46
    s_lshl_b32 s45, s45, 23
    s_mov_b32 s4, s45
    s_and_b32 s46, s86, 31
    s_lshl_b32 s46, s46, 18
    s_add_u32 s45, s45, s46
    s_lshl_b32 s46, s44, 14
    s_add_u32 s45, s45, s46
    v_and_b32 v4, 15, v0
    v_lshrrev_b32 v5, 4, v0
    v_lshlrev_b32 v2, 4, v0
    s_lshl_b32 s48, s44, 15
    s_add_u32 s48, s48, {L_V}
    v_xor_b32 v6, v4, v5
    v_lshlrev_b32 v7, 8, v5
    v_lshl_add_u32 v240, v6, 4, v7
    v_xor_b32 v241, 64, v240
    v_add_u32 v241, 1024, v241
    v_xor_b32 v242, 128, v240
    v_add_u32 v242, 2048, v242
    v_xor_b32 v243, 192, v240
    v_add_u32 v243, 3072, v243
    v_and_b32 v6, 3, v4
    v_lshlrev_b32 v6, 2, v6
    v_lshrrev_b32 v7, 2, v4
    v_add_u32 v6, v6, v7
    v_xor_b32 v7, v6, v5
    v_lshlrev_b32 v6, 8, v6
    v_lshl_add_u32 v244, v7, 4, v6
    v_xor_b32 v245, 64, v244
    v_xor_b32 v246, 128, v244
    v_xor_b32 v247, 192, v244
    v_add_u32 v244, s48, v244
    v_add_u32 v245, s48, v245
    v_add_u32 v246, s48, v246
    v_add_u32 v247, s48, v247
    s_barrier''')
    CAP = 4 * args.infl
    NSTAT = args.nstat
    NPOOL = (4 - NSTAT) * 128
    cnt = [0]
    def hooks():
        if cnt[0] == args.pre:
            lds_wait(g, C_X, 1)
        if cnt[0] == args.ksig:
            lds_signal(g, C_K, add=True)
        cnt[0] += 1
    def kload(buf, soff, hook=False):
        for i in range(4):
            g(f's_waitcnt vmcnt({CAP - 4})')
            if hook:
                hooks()
            g(f's_add_u32 s46, {soff}, {4096*i}')
            for j in range(4):
                g(f's_add_u32 s49, s48, {4096*(4*buf+i) + 1024*j}\ns_mov_b32 m0, s49\ns_nop 0')
                g(f'buffer_load_dwordx4 {KV_[j]}, s[28:31], s46 offen nt lds')
    def vload(buf, soff, hook=False):
        for i in range(4):
            g(f's_waitcnt vmcnt({CAP - 4})')
            if hook:
                hooks()
            r0 = VS + 16 * (4 * buf + i)
            g(f's_add_u32 s46, {soff}, {4096*i}')
            for j in range(4):
                g(f'buffer_load_dwordx4 v[{r0+4*j}:{r0+4*j+3}], v2, s[32:35], s46 offen offset:{1024*j} nt')
    def kread(slot):
        r0 = KST + 16 * (slot & 1)
        for j in range(4):
            g(f'ds_read_b128 v[{r0+4*j}:{r0+4*j+3}], {KR_[j]} offset:{4096*slot}')
    def ticket_req():
        g('''v_mov_b32 v255, 1
        s_mov_b64 exec, 1
        buffer_atomic_add v255, v1, s[36:39], 0 offen sc0
        s_mov_b64 exec, -1''')
    g('s_add_u32 s5, s45, 65536')
    kload(0, 's45', True); vload(0, 's45', True)
    kload(1, 's5', True); vload(1, 's5', True)
    g(f'''s_andn2_b32 s46, s86, 31
    s_add_u32 s46, s46, 256
    s_lshl_b32 s46, s46, 7
    s_add_u32 s46, s46, {W_CT}
    v_mov_b32 v1, s46
    v_mov_b32 v248, 0xff800000
    v_mov_b32 v249, 0''')
    for i in range(32):
        g(f'v_mov_b32 v{BO+i}, 0')
    lds_wait(g, C_Q, 2)
    ts(g, 1)
    g('''v_and_b32 v3, 7, v0
    v_lshlrev_b32 v3, 8, v3
    v_lshl_add_u32 v3, v5, 4, v3''')
    for j in range(4):
        g(f'ds_read_b128 v[{BQ+4*j}:{BQ+4*j+3}], v3 offset:{L_Q + 64*j}')
    g(f'''s_mov_b32 s6, {NSTAT - 2}
    s_add_u32 s5, s45, 131072
    s_mov_b32 s7, 1
    s_mov_b32 s8, 0''')
    assert NSTAT == 3
    def half(buf, nxt_label, exit_label):
        u = g.uniq('H')
        g(f'''s_cmp_eq_u32 s7, 0
        s_cbranch_scc1 {u}_w0
        s_waitcnt vmcnt(48)
        s_branch {u}_w1''')
        g.label(f'{u}_w0')
        g('s_waitcnt vmcnt(16)')
        g.label(f'{u}_w1')
        kread(4 * buf)
        for i in range(4):
            if i < 3:
                kread(4 * buf + i + 1)
                g('s_waitcnt lgkmcnt(4)')
            else:
                g('s_waitcnt lgkmcnt(0)')
            r0 = KST + 16 * (i & 1)
            sreg = BS + 4 * i
            for j in range(4):
                cc = '0' if j == 0 else f'v[{sreg}:{sreg+3}]'
                g(f'v_mfma_f32_16x16x32_bf16 v[{sreg}:{sreg+3}], v[{r0+4*j}:{r0+4*j+3}], v[{BQ+4*j}:{BQ+4*j+3}], {cc}')
        g(f'''s_mov_b32 s9, 0
        s_cmp_eq_u32 s6, 0
        s_cbranch_scc1 {u}_dyn
        s_mov_b32 s9, 1
        s_mov_b32 s10, s5
        s_add_u32 s5, s5, 65536
        s_sub_u32 s6, s6, 1
        s_branch {u}_got''')
        g.label(f'{u}_dyn')
        g(f'''s_cmp_eq_u32 s8, 0
        s_cbranch_scc1 {u}_got
        s_waitcnt vmcnt(32)
        v_readfirstlane_b32 s11, v255
        s_mov_b32 s8, 0
        s_cmp_ge_u32 s11, {NPOOL}
        s_cbranch_scc1 {u}_got
        s_mov_b32 s9, 1''')
        g(f'''s_and_b32 s10, s11, 127
        s_lshr_b32 s10, s10, 2
        s_lshl_b32 s10, s10, 18
        s_and_b32 s12, s11, 3
        s_lshl_b32 s12, s12, 14
        s_add_u32 s10, s10, s12
        s_lshr_b32 s12, s11, 7
        s_add_u32 s12, s12, {NSTAT}
        s_lshl_b32 s12, s12, 16
        s_add_u32 s10, s10, s12
        s_add_u32 s10, s10, s4''')
        g.label(f'{u}_got')
        g(f's_cmp_eq_u32 s9, 0\ns_cbranch_scc1 {u}_nok')
        g(f's_cmp_lg_u32 s6, 0\ns_cbranch_scc1 {u}_not')
        ticket_req()
        g('s_mov_b32 s8, 1')
        g.label(f'{u}_not')
        kload(buf, 's10')
        g.label(f'{u}_nok')
        g('s_nop 7')
        for i in range(8):
            a, b = f'v{BS+2*i}', f'v{BS+2*i+1}'
            bf16r_pair(g, a, b, 'v250')
            g(f'v_mul_f32 {a}, s61, {a}\nv_mul_f32 {b}, s61, {b}')
            bf16r_pair(g, a, b, 'v250')
        g(f'v_max3_f32 v250, v{BS}, v{BS+1}, v248')
        for i in range(1, 8):
            g(f'v_max3_f32 v250, v250, v{BS+2*i}, v{BS+2*i+1}')
        allred_x16(g, 'v_max_f32', 'v250', 'v251')
        allred_x32(g, 'v_max_f32', 'v250', 'v251')
        g('''v_sub_f32 v252, v248, v250
        v_mul_f32 v252, s60, v252
        v_exp_f32 v252, v252
        v_mov_b32 v248, v250
        v_mov_b32 v253, 0
        v_mov_b32 v254, 0''')
        for i in range(0, 16, 2):
            g(f'''v_sub_f32 v{BS+i}, v{BS+i}, v248
            v_sub_f32 v{BS+i+1}, v{BS+i+1}, v248
            v_mul_f32 v{BS+i}, s60, v{BS+i}
            v_mul_f32 v{BS+i+1}, s60, v{BS+i+1}
            v_exp_f32 v{BS+i}, v{BS+i}
            v_exp_f32 v{BS+i+1}, v{BS+i+1}
            s_nop 0
            v_add_f32 v253, v253, v{BS+i}
            v_add_f32 v254, v254, v{BS+i+1}
            v_cvt_pk_bf16_f32 v{BPK+i//2}, v{BS+i}, v{BS+i+1}''')
        g('v_add_f32 v253, v253, v254\nv_fma_f32 v249, v249, v252, v253')
        for i in range(32):
            g(f'v_mul_f32 v{BO+i}, v{BO+i}, v252')
        g(f'''s_lshl_b32 s12, s7, 1
        s_add_u32 s12, s12, s9
        s_cmp_eq_u32 s12, 3
        s_cbranch_scc1 {u}_v3
        s_cmp_eq_u32 s12, 2
        s_cbranch_scc1 {u}_v2
        s_cmp_eq_u32 s12, 1
        s_cbranch_scc1 {u}_v1
        s_waitcnt vmcnt(0)
        s_branch {u}_vd''')
        g.label(f'{u}_v3'); g(f's_waitcnt vmcnt(48)\ns_branch {u}_vd')
        g.label(f'{u}_v2'); g(f's_waitcnt vmcnt(32)\ns_branch {u}_vd')
        g.label(f'{u}_v1'); g('s_waitcnt vmcnt(16)')
        g.label(f'{u}_vd')
        for U in range(2):
            ra = VS + 16 * (4 * buf + 2 * U)
            rb = ra + 16
            for hf in range(2):
                for tt in range(4):
                    t = 4 * hf + tt
                    d = t >> 1
                    sel = 's58' if (t & 1) == 0 else 's59'
                    o = BS + 4 * tt
                    g(f'v_perm_b32 v{o}, v{ra+4+d}, v{ra+d}, {sel}')
                    g(f'v_perm_b32 v{o+1}, v{ra+12+d}, v{ra+8+d}, {sel}')
                    g(f'v_perm_b32 v{o+2}, v{rb+4+d}, v{rb+d}, {sel}')
                    g(f'v_perm_b32 v{o+3}, v{rb+12+d}, v{rb+8+d}, {sel}')
                g('s_nop 1')
                for tt in range(4):
                    t = 4 * hf + tt
                    o = BS + 4 * tt
                    acc = BO + 4 * t
                    g(f'v_mfma_f32_16x16x32_bf16 v[{acc}:{acc+3}], v[{o}:{o+3}], v[{BPK+4*U}:{BPK+4*U+3}], v[{acc}:{acc+3}]')
        g(f's_cmp_eq_u32 s9, 0\ns_cbranch_scc1 {u}_nov')
        vload(buf, 's10')
        g(f's_branch {u}_cont')
        g.label(f'{u}_nov')
        g(f's_cmp_eq_u32 s7, 0\ns_cbranch_scc1 {u}_cont')
        lds_signal(g, C_V, add=True)
        g.label(f'{u}_cont')
        g(f'''s_mov_b32 s12, s7
        s_mov_b32 s7, s9
        s_cmp_eq_u32 s12, 0
        s_cbranch_scc1 {exit_label}''')
        if nxt_label:
            g(f's_branch {nxt_label}')
    g.label('L_SLOOP')
    half(0, None, 'L_SEXIT')
    half(1, 'L_SLOOP', 'L_SEXIT')
    g.label('L_SEXIT')
    g('s_nop 7')
    g('v_mov_b32 v253, v249')
    allred_x16(g, 'v_add_f32', 'v253', 'v251')
    allred_x32(g, 'v_add_f32', 'v253', 'v251')
    g(f'''s_lshl_b32 s46, s44, 6
    v_lshlrev_b32 v3, 2, v0
    v_add_u32 v3, s46, v3
    s_mov_b64 exec, 0xff
    ds_write_b32 v3, v248 offset:{L_ST}
    ds_write_b32 v3, v253 offset:{L_ST+32}
    s_mov_b64 exec, -1''')
    lds_signal(g, C_ST, add=True)
    ts(g, 5)
    g(f'''s_lshl_b32 s46, s44, 12
    v_lshlrev_b32 v3, 9, v4
    v_lshl_add_u32 v3, v5, 7, v3
    v_add_u32 v3, s46, v3
    s_mov_b32 exec_lo, 0x00ff00ff
    s_mov_b32 exec_hi, 0x00ff00ff''')
    for t in range(8):
        acc = BO + 4 * t
        g(f'ds_write_b128 v3, v[{acc}:{acc+3}] offset:{L_OP + 16*t}')
    g('s_mov_b64 exec, -1')
    lds_signal(g, C_O, add=True)
    g(f'''s_lshr_b32 s46, s86, 6
    s_lshl_b32 s46, s46, 18
    s_lshl_b32 s49, s44, 16
    s_add_u32 s46, s46, s49
    s_bfe_u32 s49, s86, 0x10005
    s_lshl_b32 s49, s49, 14
    s_add_u32 s46, s46, s49
    s_and_b32 s49, s86, 31
    s_lshl_b32 s49, s49, 9
    s_add_u32 s46, s46, s49
    s_add_u32 s46, s46, {W_O}
    v_and_b32 v2, 31, v0
    v_lshlrev_b32 v2, 4, v2
    v_lshrrev_b32 v1, 5, v0
    v_lshl_add_u32 v2, v1, 15, v2
    s_lshl_b32 s49, s44, 10
    v_lshlrev_b32 v3, 4, v0
    v_add_u32 v3, s49, v3''')
    g(f'''s_lshl_b32 s49, s44, 3
    v_lshl_add_u32 v4, v1, 2, s49
    s_lshl_b32 s52, s86, 6
    s_add_u32 s52, s52, {W_ML}''')
    lds_wait(g, C_O, 4)
    for w in range(4):
        g(f'ds_read_b32 v{16+w}, v4 offset:{L_ST + 64*w}\nds_read_b32 v{20+w}, v4 offset:{L_ST + 64*w + 32}')
    for w in range(4):
        g(f'ds_read_b128 v[{88+4*w}:{91+4*w}], v3 offset:{L_OP + 4096*w}')
    g('''s_waitcnt lgkmcnt(4)
    v_max3_f32 v24, v16, v17, v18
    v_max_f32 v24, v24, v19''')
    for w in range(4):
        g(f'v_sub_f32 v{16+w}, v{16+w}, v24\nv_mul_f32 v{16+w}, s60, v{16+w}\nv_exp_f32 v{16+w}, v{16+w}')
    g('''s_nop 0
    v_mul_f32 v25, v20, v16
    v_fma_f32 v25, v21, v17, v25
    v_fma_f32 v25, v22, v18, v25
    v_fma_f32 v25, v23, v19, v25
    s_waitcnt lgkmcnt(0)''')
    for r in range(4):
        g(f'''v_mul_f32 v{8+r}, v{88+r}, v16
        v_mul_f32 v{12+r}, v{96+r}, v18
        v_fma_f32 v{8+r}, v{92+r}, v17, v{8+r}
        v_fma_f32 v{12+r}, v{100+r}, v19, v{12+r}
        v_add_f32 v{8+r}, v{8+r}, v{12+r}''')
    g('''buffer_store_dwordx4 v[8:11], v2, s[36:39], s46 offen sc1
    s_mov_b32 exec_lo, 1
    s_mov_b32 exec_hi, 1
    buffer_store_dword v24, v4, s[36:39], s52 offen sc1
    buffer_store_dword v25, v4, s[36:39], s52 offen offset:32 sc1
    s_mov_b64 exec, -1''')
    if args.omode >= 2:
        d = g.uniq('OA')
        g(f'''v_mov_b32 v6, {C_ST}
        v_mov_b32 v7, 1
        s_mov_b64 exec, 1
        ds_add_rtn_u32 v7, v6, v7
        s_waitcnt lgkmcnt(0)
        v_readfirstlane_b32 s49, v7
        s_mov_b64 exec, -1
        s_cmp_eq_u32 s49, 7
        s_cbranch_scc0 {d}''')
        read_nonce(g)
        g('s_lshr_b32 s48, s86, 6\ns_add_u32 s48, s48, 8\ns_andn2_b32 s49, s86, 63\ns_add_u32 s49, s49, 257')
        arrive(g, 's48', 64, sctr='s49', ack=False)
        g.label(d)
    ts(g, 6)
    ts_dump(g, 7)
    g('s_endpgm')

def gen_steal2(g, args):
    g.label('L_BULK')
    vm = VM(g)
    BQ, BS, BPK, BO, KST, VS = 8, 24, 40, 48, 80, 112
    KV_ = ['v240', 'v241', 'v242', 'v243']
    KR_ = ['v244', 'v245', 'v246', 'v247']
    TS = 16384
    srd(g, 28, 6, 64 * 1024 * 1024)
    srd(g, 32, 8, 64 * 1024 * 1024)
    g(f'''s_sub_u32 s44, s3, 4
    s_lshr_b32 s45, s86, 6
    s_bfe_u32 s46, s86, 0x10005
    s_lshl_b32 s46, s46, 2
    s_add_u32 s45, s45, s46
    s_lshl_b32 s45, s45, 23
    s_mov_b32 s4, s45
    s_and_b32 s46, s86, 31
    s_lshl_b32 s46, s46, 18
    s_add_u32 s45, s45, s46
    s_lshl_b32 s46, s44, 13
    s_add_u32 s45, s45, s46
    v_and_b32 v4, 15, v0
    v_lshrrev_b32 v5, 4, v0
    v_lshlrev_b32 v2, 4, v0
    s_lshl_b32 s48, s44, 15
    s_add_u32 s48, s48, {L_V}
    v_xor_b32 v6, v4, v5
    v_lshlrev_b32 v7, 8, v5
    v_lshl_add_u32 v240, v6, 4, v7
    v_xor_b32 v241, 64, v240
    v_add_u32 v241, 1024, v241
    v_xor_b32 v242, 128, v240
    v_add_u32 v242, 2048, v242
    v_xor_b32 v243, 192, v240
    v_add_u32 v243, 3072, v243
    v_and_b32 v6, 3, v4
    v_lshlrev_b32 v6, 2, v6
    v_lshrrev_b32 v7, 2, v4
    v_add_u32 v6, v6, v7
    v_xor_b32 v7, v6, v5
    v_lshlrev_b32 v6, 8, v6
    v_lshl_add_u32 v244, v7, 4, v6
    v_xor_b32 v245, 64, v244
    v_xor_b32 v246, 128, v244
    v_xor_b32 v247, 192, v244
    v_add_u32 v244, s48, v244
    v_add_u32 v245, s48, v245
    v_add_u32 v246, s48, v246
    v_add_u32 v247, s48, v247
    s_barrier''')
    CAP = 4 * args.infl
    NSP = args.nsp
    NPOOL = (8 - NSP) * 128
    cnt = [0]
    def hooks():
        if cnt[0] == args.pre:
            lds_wait(g, C_X, 1)
        if cnt[0] == args.pwait:
            lds_wait(g, C_P, 1)
        if cnt[0] == args.ksig:
            lds_signal(g, C_K, add=True)
        cnt[0] += 1
    def kload(buf, soff, hook=False):
        for i in range(2):
            g(f's_waitcnt vmcnt({CAP - 4})')
            if hook:
                hooks()
            g(f's_add_u32 s46, {soff}, {4096*i}')
            for j in range(4):
                g(f's_add_u32 s49, s48, {4096*(2*buf+i) + 1024*j}\ns_mov_b32 m0, s49\ns_nop 0')
                g(f'buffer_load_dwordx4 {KV_[j]}, s[28:31], s46 offen nt lds')
    def vload(buf, soff, hook=False):
        for i in range(2):
            g(f's_waitcnt vmcnt({CAP - 4})')
            if hook:
                hooks()
            r0 = VS + 16 * (2 * buf + i)
            g(f's_add_u32 s46, {soff}, {4096*i}')
            for j in range(4):
                g(f'buffer_load_dwordx4 v[{r0+4*j}:{r0+4*j+3}], v2, s[32:35], s46 offen offset:{1024*j} nt')
    def kread(slot):
        r0 = KST + 16 * (slot & 1)
        for j in range(4):
            g(f'ds_read_b128 v[{r0+4*j}:{r0+4*j+3}], {KR_[j]} offset:{4096*slot}')
    def ticket_req():
        g('''v_mov_b32 v255, 1
        s_mov_b64 exec, 1
        buffer_atomic_add v255, v1, s[36:39], 0 offen sc0
        s_mov_b64 exec, -1''')
    def qk(buf):
        kread(2 * buf); kread(2 * buf + 1)
        for i in range(2):
            g(f's_waitcnt lgkmcnt({4 if i == 0 else 0})')
            r0 = KST + 16 * i
            sreg = BS + 4 * i
            for j in range(4):
                cc = '0' if j == 0 else f'v[{sreg}:{sreg+3}]'
                g(f'v_mfma_f32_16x16x32_bf16 v[{sreg}:{sreg+3}], v[{r0+4*j}:{r0+4*j+3}], v[{BQ+4*j}:{BQ+4*j+3}], {cc}')
    def softmax():
        g('s_nop 7')
        for i in range(4):
            a, b = f'v{BS+2*i}', f'v{BS+2*i+1}'
            bf16r_pair(g, a, b, 'v250')
            g(f'v_mul_f32 {a}, s61, {a}\nv_mul_f32 {b}, s61, {b}')
            bf16r_pair(g, a, b, 'v250')
        g(f'v_max3_f32 v250, v{BS}, v{BS+1}, v248')
        for i in range(1, 4):
            g(f'v_max3_f32 v250, v250, v{BS+2*i}, v{BS+2*i+1}')
        allred_x16(g, 'v_max_f32', 'v250', 'v251')
        allred_x32(g, 'v_max_f32', 'v250', 'v251')
        g('''v_sub_f32 v252, v248, v250
        v_mul_f32 v252, s60, v252
        v_exp_f32 v252, v252
        v_mov_b32 v248, v250
        v_mov_b32 v253, 0
        v_mov_b32 v254, 0''')
        for i in range(0, 8, 2):
            g(f'''v_sub_f32 v{BS+i}, v{BS+i}, v248
            v_sub_f32 v{BS+i+1}, v{BS+i+1}, v248
            v_mul_f32 v{BS+i}, s60, v{BS+i}
            v_mul_f32 v{BS+i+1}, s60, v{BS+i+1}
            v_exp_f32 v{BS+i}, v{BS+i}
            v_exp_f32 v{BS+i+1}, v{BS+i+1}
            s_nop 0
            v_add_f32 v253, v253, v{BS+i}
            v_add_f32 v254, v254, v{BS+i+1}
            v_cvt_pk_bf16_f32 v{BPK+i//2}, v{BS+i}, v{BS+i+1}''')
        g('v_add_f32 v253, v253, v254\nv_fma_f32 v249, v249, v252, v253')
        for i in range(32):
            g(f'v_mul_f32 v{BO+i}, v{BO+i}, v252')
    def pv(buf):
        ra = VS + 32 * buf
        rb = ra + 16
        for hf in range(2):
            for tt in range(4):
                t = 4 * hf + tt
                d = t >> 1
                sel = 's58' if (t & 1) == 0 else 's59'
                o = BS + 4 * tt
                g(f'v_perm_b32 v{o}, v{ra+4+d}, v{ra+d}, {sel}')
                g(f'v_perm_b32 v{o+1}, v{ra+12+d}, v{ra+8+d}, {sel}')
                g(f'v_perm_b32 v{o+2}, v{rb+4+d}, v{rb+d}, {sel}')
                g(f'v_perm_b32 v{o+3}, v{rb+12+d}, v{rb+8+d}, {sel}')
            g('s_nop 1')
            for tt in range(4):
                t = 4 * hf + tt
                o = BS + 4 * tt
                acc = BO + 4 * t
                g(f'v_mfma_f32_16x16x32_bf16 v[{acc}:{acc+3}], v[{o}:{o+3}], v[{BPK}:{BPK+3}], v[{acc}:{acc+3}]')
        g('s_nop 7')
    for p in range(4):
        g(f's_add_u32 s5, s45, {32768*p}')
        kload(p, 's5', True); vload(p, 's5', True)
        for _ in range(8): vm.issue(f'K{p}')
        for _ in range(8): vm.issue(f'V{p}')
    g(f'''s_andn2_b32 s46, s86, 31
    s_add_u32 s46, s46, 256
    s_lshl_b32 s46, s46, 7
    s_add_u32 s46, s46, {W_CT}
    v_mov_b32 v1, s46
    v_mov_b32 v248, 0xff800000
    v_mov_b32 v249, 0''')
    for i in range(32):
        g(f'v_mov_b32 v{BO+i}, 0')
    lds_wait(g, C_Q, 2)
    ts(g, 1)
    g('''v_and_b32 v3, 7, v0
    v_lshlrev_b32 v3, 8, v3
    v_lshl_add_u32 v3, v5, 4, v3''')
    for j in range(4):
        g(f'ds_read_b128 v[{BQ+4*j}:{BQ+4*j+3}], v3 offset:{L_Q + 64*j}')
    def tk_addr():
        g(f'''s_and_b32 s10, s11, 127
        s_lshr_b32 s10, s10, 2
        s_lshl_b32 s10, s10, 18
        s_and_b32 s12, s11, 3
        s_lshl_b32 s12, s12, 13
        s_add_u32 s10, s10, s12
        s_lshr_b32 s12, s11, 7
        s_add_u32 s12, s12, {NSP}
        s_lshl_b32 s12, s12, 15
        s_add_u32 s10, s10, s12
        s_add_u32 s5, s10, s4''')
    assert NSP in (4, 6)
    if NSP == 6:
        for p in range(4):
            vm.wait(f'K{p}')
            qk(p)
            if p < 2:
                g(f's_add_u32 s5, s45, {32768*(p+4)}')
                if p == 1:
                    ticket_req(); vm.issue('A')
                kload(p, 's5')
                for _ in range(8): vm.issue(f'K{p+4}')
            softmax()
            vm.wait(f'V{p}')
            pv(p)
            if p < 2:
                vload(p, 's5')
                for _ in range(8): vm.issue(f'V{p+4}')
        ts(g, 2)
        g('s_mov_b32 s7, 1\ns_mov_b32 s8, 1')
    else:
        ticket_req()
        g('s_waitcnt vmcnt(0)\ns_mov_b32 s8, 1')
        for p in range(4):
            qk(p)
            fl = 's13' if p == 0 else 's7'
            if p < 2:
                u = g.uniq('SP')
                g(f'''s_mov_b32 {fl}, 0
                s_cmp_eq_u32 s8, 0
                s_cbranch_scc1 {u}
                s_waitcnt vmcnt(16)
                v_readfirstlane_b32 s11, v255
                s_mov_b32 s8, 0
                s_cmp_ge_u32 s11, {NPOOL}
                s_cbranch_scc1 {u}
                s_mov_b32 {fl}, 1''')
                tk_addr()
                ticket_req()
                g('s_mov_b32 s8, 1')
                kload(p, 's5')
                g.label(u)
            softmax()
            pv(p)
            if p < 2:
                u = g.uniq('SV')
                g(f's_cmp_eq_u32 {fl}, 0\ns_cbranch_scc1 {u}')
                vload(p, 's5')
                g.label(u)
        ts(g, 2)
        u = g.uniq('SC')
        g(f's_cmp_lg_u32 s7, 0\ns_cbranch_scc1 {u}')
        lds_signal(g, C_V, add=True)
        g.label(u)
        g('s_cmp_eq_u32 s13, 0\ns_cbranch_scc1 L_SEXIT')
    def half(buf, nxt_label, exit_label):
        u = g.uniq('H')
        g(f'''s_cmp_eq_u32 s7, 0
        s_cbranch_scc1 {u}_w0
        s_waitcnt vmcnt(24)
        s_branch {u}_w1''')
        g.label(f'{u}_w0')
        g('s_waitcnt vmcnt(8)')
        g.label(f'{u}_w1')
        qk(buf)
        g(f'''s_mov_b32 s9, 0
        s_cmp_eq_u32 s8, 0
        s_cbranch_scc1 {u}_nok
        s_waitcnt vmcnt(16)
        v_readfirstlane_b32 s11, v255
        s_mov_b32 s8, 0
        s_cmp_ge_u32 s11, {NPOOL}
        s_cbranch_scc1 {u}_nok
        s_mov_b32 s9, 1
        s_and_b32 s10, s11, 127
        s_lshr_b32 s10, s10, 2
        s_lshl_b32 s10, s10, 18
        s_and_b32 s12, s11, 3
        s_lshl_b32 s12, s12, 13
        s_add_u32 s10, s10, s12
        s_lshr_b32 s12, s11, 7
        s_add_u32 s12, s12, {NSP}
        s_lshl_b32 s12, s12, 15
        s_add_u32 s10, s10, s12
        s_add_u32 s10, s10, s4''')
        ticket_req()
        g('s_mov_b32 s8, 1')
        kload(buf, 's10')
        g.label(f'{u}_nok')
        softmax()
        g(f'''s_lshl_b32 s12, s7, 1
        s_add_u32 s12, s12, s9
        s_cmp_eq_u32 s12, 3
        s_cbranch_scc1 {u}_v3
        s_cmp_eq_u32 s12, 2
        s_cbranch_scc1 {u}_v2
        s_cmp_eq_u32 s12, 1
        s_cbranch_scc1 {u}_v1
        s_waitcnt vmcnt(0)
        s_branch {u}_vd''')
        g.label(f'{u}_v3'); g(f's_waitcnt vmcnt(24)\ns_branch {u}_vd')
        g.label(f'{u}_v2'); g(f's_waitcnt vmcnt(16)\ns_branch {u}_vd')
        g.label(f'{u}_v1'); g('s_waitcnt vmcnt(8)')
        g.label(f'{u}_vd')
        pv(buf)
        g(f's_cmp_eq_u32 s9, 0\ns_cbranch_scc1 {u}_nov')
        vload(buf, 's10')
        g(f's_branch {u}_cont')
        g.label(f'{u}_nov')
        g(f's_cmp_eq_u32 s7, 0\ns_cbranch_scc1 {u}_cont')
        lds_signal(g, C_V, add=True)
        g.label(f'{u}_cont')
        g(f'''s_mov_b32 s12, s7
        s_mov_b32 s7, s9
        s_cmp_eq_u32 s12, 0
        s_cbranch_scc1 {exit_label}''')
        if nxt_label:
            g(f's_branch {nxt_label}')
    g.label('L_SLOOP')
    half(0, None, 'L_SEXIT')
    half(1, 'L_SLOOP', 'L_SEXIT')
    g.label('L_SEXIT')
    g('s_nop 7')
    g('v_mov_b32 v253, v249')
    allred_x16(g, 'v_add_f32', 'v253', 'v251')
    allred_x32(g, 'v_add_f32', 'v253', 'v251')
    g(f'''s_lshl_b32 s46, s44, 6
    v_lshlrev_b32 v3, 2, v0
    v_add_u32 v3, s46, v3
    s_mov_b64 exec, 0xff
    ds_write_b32 v3, v248 offset:{L_ST}
    ds_write_b32 v3, v253 offset:{L_ST+32}
    s_mov_b64 exec, -1''')
    lds_signal(g, C_ST, add=True)
    ts(g, 5)
    g(f'''s_lshl_b32 s46, s44, 12
    v_lshlrev_b32 v3, 9, v4
    v_lshl_add_u32 v3, v5, 7, v3
    v_add_u32 v3, s46, v3
    s_mov_b32 exec_lo, 0x00ff00ff
    s_mov_b32 exec_hi, 0x00ff00ff''')
    for t in range(8):
        acc = BO + 4 * t
        g(f'ds_write_b128 v3, v[{acc}:{acc+3}] offset:{L_OP + 16*t}')
    g('s_mov_b64 exec, -1')
    lds_signal(g, C_O, add=True)
    g(f'''s_lshr_b32 s46, s86, 6
    s_lshl_b32 s46, s46, 18
    s_lshl_b32 s49, s44, 16
    s_add_u32 s46, s46, s49
    s_bfe_u32 s49, s86, 0x10005
    s_lshl_b32 s49, s49, 14
    s_add_u32 s46, s46, s49
    s_and_b32 s49, s86, 31
    s_lshl_b32 s49, s49, 9
    s_add_u32 s46, s46, s49
    s_add_u32 s46, s46, {W_O}
    v_and_b32 v2, 31, v0
    v_lshlrev_b32 v2, 4, v2
    v_lshrrev_b32 v1, 5, v0
    v_lshl_add_u32 v2, v1, 15, v2
    s_lshl_b32 s49, s44, 10
    v_lshlrev_b32 v3, 4, v0
    v_add_u32 v3, s49, v3''')
    g(f'''s_lshl_b32 s49, s44, 3
    v_lshl_add_u32 v4, v1, 2, s49
    s_lshl_b32 s52, s86, 6
    s_add_u32 s52, s52, {W_ML}''')
    lds_wait(g, C_O, 4)
    for w in range(4):
        g(f'ds_read_b32 v{16+w}, v4 offset:{L_ST + 64*w}\nds_read_b32 v{20+w}, v4 offset:{L_ST + 64*w + 32}')
    for w in range(4):
        g(f'ds_read_b128 v[{88+4*w}:{91+4*w}], v3 offset:{L_OP + 4096*w}')
    g('''s_waitcnt lgkmcnt(4)
    v_max3_f32 v24, v16, v17, v18
    v_max_f32 v24, v24, v19''')
    for w in range(4):
        g(f'v_sub_f32 v{16+w}, v{16+w}, v24\nv_mul_f32 v{16+w}, s60, v{16+w}\nv_exp_f32 v{16+w}, v{16+w}')
    g('''s_nop 0
    v_mul_f32 v25, v20, v16
    v_fma_f32 v25, v21, v17, v25
    v_fma_f32 v25, v22, v18, v25
    v_fma_f32 v25, v23, v19, v25
    s_waitcnt lgkmcnt(0)''')
    for r in range(4):
        g(f'''v_mul_f32 v{8+r}, v{88+r}, v16
        v_mul_f32 v{12+r}, v{96+r}, v18
        v_fma_f32 v{8+r}, v{92+r}, v17, v{8+r}
        v_fma_f32 v{12+r}, v{100+r}, v19, v{12+r}
        v_add_f32 v{8+r}, v{8+r}, v{12+r}''')
    g('''buffer_store_dwordx4 v[8:11], v2, s[36:39], s46 offen sc1
    s_mov_b32 exec_lo, 1
    s_mov_b32 exec_hi, 1
    buffer_store_dword v24, v4, s[36:39], s52 offen sc1
    buffer_store_dword v25, v4, s[36:39], s52 offen offset:32 sc1
    s_mov_b64 exec, -1''')
    if args.omode >= 2:
        d = g.uniq('OA')
        g(f'''v_mov_b32 v6, {C_ST}
        v_mov_b32 v7, 1
        s_mov_b64 exec, 1
        ds_add_rtn_u32 v7, v6, v7
        s_waitcnt lgkmcnt(0)
        v_readfirstlane_b32 s49, v7
        s_mov_b64 exec, -1
        s_cmp_eq_u32 s49, 7
        s_cbranch_scc0 {d}''')
        read_nonce(g)
        g('s_lshr_b32 s48, s86, 6\ns_add_u32 s48, s48, 8\ns_andn2_b32 s49, s86, 63\ns_add_u32 s49, s49, 257')
        arrive(g, 's48', 64, sctr='s49', ack=False)
        g.label(d)
    ts(g, 6)
    ts_dump(g, 7)
    g('s_endpgm')

def gen(args):
    global PROF, NOHOP, NOLDS, PLAIN, QSH, QOFF, GN
    QSH, QOFF = {0: (2, 0), 1: (2, 124), 2: (5, 96)}[args.qline]
    GN = bool(args.gn)
    if GN:
        QSH, QOFF = 6, -32
    PLAIN = bool(args.plain)
    NOLDS = args.nolds
    PROF = args.prof
    NOHOP = args.nohop
    g = Gen()
    H = []
    H.append(f'; @launch grid=({NWG},1,1) block=(512,1,1) lds={LDS_BYTES + (4*8192 if args.flash else 0)}')
    H.append('.amdgcn_target "amdgcn-amd-amdhsa--gfx950"\n.text')
    H.append(f'.globl {KN}\n.p2align 8\n.type {KN},@function\n{KN}:')
    g(f'''s_cmp_ge_u32 s2, {NWG}
    s_cbranch_scc1 L_END
    s_load_dwordx16 s[4:19], s[0:1], 0
    s_load_dwordx8 s[20:27], s[0:1], 64
    v_lshrrev_b32 v1, 6, v0
    v_and_b32 v0, 63, v0
    s_mov_b32 s58, 0x05040100
    s_mov_b32 s59, 0x07060302
    v_readfirstlane_b32 s3, v1
    s_mov_b32 s60, {LOG2E}
    s_mov_b32 s61, {SCALE}
    s_waitcnt lgkmcnt(0)''')
    srd(g, 36, 26, 0x10000000)
    lane_masks(g)
    srd(g, 40, 24, 256)
    if args.remap:
        g('''s_and_b32 s90, s2, 7
        s_lshr_b32 s91, s2, 3
        s_lshl_b32 s86, s90, 5
        s_add_u32 s86, s86, s91
        s_lshr_b32 s92, s90, 1
        s_lshl_b32 s92, s92, 6
        s_and_b32 s93, s90, 1
        s_lshl_b32 s87, s91, 1
        s_add_u32 s87, s87, s93
        s_add_u32 s87, s87, s92
        s_lshl_b32 s88, s93, 2
        s_and_b32 s94, s91, 3
        s_add_u32 s88, s88, s94
        s_lshl_b32 s88, s88, 3
        s_lshr_b32 s94, s91, 2
        s_add_u32 s88, s88, s94
        s_add_u32 s88, s88, s92
        s_lshr_b32 s89, s91, 3
        s_lshl_b32 s89, s89, 3
        s_add_u32 s89, s89, s90
        s_cmp_lt_u32 s89, 28
        s_cselect_b32 s95, 1, 0
        s_lshl_b32 s89, s89, 3
        s_and_b32 s94, s91, 7
        s_add_u32 s89, s89, s94
        s_add_u32 s89, s89, 32
        s_mul_i32 s89, s89, s95''')
        if args.remap == 2:
            g('s_mov_b32 s86, s2\ns_mov_b32 s87, s2\ns_mov_b32 s88, s2')
    else:
        g('s_mov_b32 s86, s2\ns_mov_b32 s87, s2\ns_mov_b32 s88, s2\ns_mov_b32 s89, s2')
    g('''s_mov_b32 s90, 0x07060503
    s_mov_b32 s91, 0x07060502
    s_mov_b32 s92, 0x07060501
    s_mov_b32 s93, 0x04000c0c
    s_mov_b32 s94, 0x0706000c''')
    ts(g, 0)
    if args.noaux:
        g('s_cmp_ge_u32 s3, 4\ns_cbranch_scc1 L_BULK\ns_barrier\ns_endpgm')
    g('''s_cmp_ge_u32 s3, 4
    s_cbranch_scc1 L_BULK
    s_cmp_eq_u32 s3, 0
    s_cbranch_scc1 L_A0
    s_cmp_eq_u32 s3, 3
    s_cbranch_scc1 L_A3
    s_branch L_A12''')

    g.label('L_A3')
    srd(g, 28, 4, 4096)
    g('''v_lshlrev_b32 v1, 6, v0
    buffer_load_dwordx4 v[8:11], v1, s[28:31], 0 offen
    buffer_load_dwordx4 v[12:15], v1, s[28:31], 0 offen offset:16
    buffer_load_dwordx4 v[16:19], v1, s[28:31], 0 offen offset:32
    buffer_load_dwordx4 v[20:23], v1, s[28:31], 0 offen offset:48''')
    g(f'''v_mov_b32 v2, 0
    v_lshlrev_b32 v3, 2, v0
    v_add_u32 v3, {L_CT}, v3
    s_mov_b64 exec, 0xffff
    ds_write_b32 v3, v2
    s_mov_b64 exec, -1
    s_waitcnt lgkmcnt(0)
    s_barrier
    s_waitcnt vmcnt(0)''')
    for i in range(16):
        g(f'v_lshlrev_b32 v{24+2*i}, 16, v{8+i}\nv_and_b32 v{25+2*i}, 0xffff0000, v{8+i}')
    g('v_add_f32 v56, v24, v25')
    for i in range(26, 56):
        g(f'v_add_f32 v56, v56, v{i}')
    allred_row16(g, 'v_add_f32', 'v56', 'v57')
    allred_x16(g, 'v_add_f32', 'v56', 'v57')
    g('v_mul_f32 v56, 0x3a800000, v56')
    g('v_sub_f32 v58, v24, v56\nv_mul_f32 v59, v58, v58')
    for i in range(25, 56):
        g(f'v_sub_f32 v58, v{i}, v56\nv_fma_f32 v59, v58, v58, v59')
    allred_row16(g, 'v_add_f32', 'v59', 'v57')
    allred_x16(g, 'v_add_f32', 'v59', 'v57')
    g('v_mul_f32 v59, 0x3a800000, v59')
    bf16r(g, 'v56')
    bf16r(g, 'v59')
    g(f'v_add_f32 v59, {EPS}, v59')
    bf16r(g, 'v59')
    g('''v_sqrt_f32 v60, v59
    s_nop 0
    v_rcp_f32 v61, v60
    v_fma_f32 v62, -v60, v60, v59
    v_mul_f32 v61, 0.5, v61
    v_fma_f32 v60, v62, v61, v60''')
    bf16r(g, 'v60')
    g('v_rcp_f32 v61, v60')
    for i in range(16):
        a, b = f'v{24+2*i}', f'v{25+2*i}'
        g(f'v_sub_f32 {a}, {a}, v56\nv_sub_f32 {b}, {b}, v56')
        bf16r_pair(g, a, b, 'v62')
        for r in (a, b):
            g(f'''v_mul_f32 v62, {r}, v61
            v_fma_f32 v63, -v62, v60, {r}
            v_fma_f32 {r}, v63, v61, v62''')
        g(f'v_cvt_pk_bf16_f32 v{8+i}, {a}, {b}')
    g(f'''ds_write_b128 v1, v[8:11] offset:{L_XN}
    ds_write_b128 v1, v[12:15] offset:{L_XN+16}
    ds_write_b128 v1, v[16:19] offset:{L_XN+32}
    ds_write_b128 v1, v[20:23] offset:{L_XN+48}''')
    lds_signal(g, C_X)
    ts(g, 1)
    read_nonce(g)
    q_gather(g, args, 1)
    lds_wait(g, C_Q, 2)
    ts(g, 2)
    def ml_block():
        ts(g, 3)
        lds_wait(g, C_ST, 4)
        ts(g, 4)
        g(f'''v_and_b32 v1, 7, v0
        v_lshlrev_b32 v1, 2, v1''')
        for w in range(4):
            g(f'ds_read_b32 v{8+w}, v1 offset:{L_ST + 64*w}\nds_read_b32 v{16+w}, v1 offset:{L_ST + 64*w + 32}')
        g('s_waitcnt lgkmcnt(0)')
        g('v_max3_f32 v24, v8, v9, v10\nv_max_f32 v24, v24, v11')
        g('v_mov_b32 v25, 0')
        for w in range(4):
            g(f'''v_sub_f32 v26, v{8+w}, v24
            v_mul_f32 v26, s60, v26
            v_exp_f32 v26, v26
            s_nop 0
            v_fma_f32 v25, v26, v{16+w}, v25''')
        if args.noml:
            g(f'''v_and_b32 v2, 7, v0
            v_lshlrev_b32 v2, 2, v2
            v_mov_b32 v26, 1.0
            s_mov_b64 exec, 0xff
            ds_write_b32 v2, v24 offset:{L_ML}
            ds_write_b32 v2, v26 offset:{L_ML+32}
            s_mov_b64 exec, -1
            s_lshl_b32 s46, s86, 6
            s_add_u32 s46, s46, {W_ML}
            v_cndmask_b32 v24, v24, v25, s[84:85]
            v_lshlrev_b32 v1, 2, v0
            s_mov_b64 exec, 0xffff
            buffer_store_dword v24, v1, s[36:39], s46 offen sc1
            s_mov_b64 exec, -1''')
            ts(g, 5)
        else:
            g(f'''s_lshl_b32 s46, s86, 6
            s_add_u32 s46, s46, {W_ML}
            v_cndmask_b32 v24, v24, v25, s[84:85]
            v_lshlrev_b32 v1, 2, v0
            s_mov_b64 exec, 0xffff
            buffer_store_dword v24, v1, s[36:39], s46 offen sc1
            s_mov_b64 exec, -1
            s_lshr_b32 s48, s86, 5
            s_add_u32 s48, s48, 8''')
            g('s_andn2_b32 s49, s86, 31\ns_add_u32 s49, s49, 256')
            arrive(g, 's48', 32, sctr='s49', ack=False)
            flag_wait(g, 's48', 8)
            g(f'''s_andn2_b32 s44, s86, 31
            s_lshl_b32 s44, s44, 6
            s_add_u32 s44, s44, {W_ML}
            v_and_b32 v1, 31, v0
            v_lshlrev_b32 v1, 6, v1
            v_lshrrev_b32 v2, 5, v0
            v_lshl_add_u32 v1, v2, 4, v1''')
            def issue_ml():
                g('buffer_load_dwordx4 v[8:11], v1, s[36:39], s44 offen sc1')
                g('buffer_load_dwordx4 v[12:15], v1, s[36:39], s44 offen offset:32 sc1')
            poll_loop(g, issue_ml, range(8, 16), sleep=8)
            ts(g, 5)
            for r in range(4):
                g(f'v_mov_b32 v{16+r}, v{8+r}')
                allred_row16(g, 'v_max_f32', f'v{16+r}', 'v24')
                allred_x16(g, 'v_max_f32', f'v{16+r}', 'v24')
                g(f'''v_sub_f32 v24, v{8+r}, v{16+r}
                v_mul_f32 v24, s60, v24
                v_exp_f32 v24, v24
                s_nop 0
                v_mul_f32 v{12+r}, v{12+r}, v24''')
                allred_row16(g, 'v_add_f32', f'v{12+r}', 'v24')
                allred_x16(g, 'v_add_f32', f'v{12+r}', 'v24')
                g('v_mov_b32 v26, 1.0')
                precise_div(g, f'v{20+r}', 'v26', f'v{12+r}', 'v24', 'v25')
            g(f'''v_lshrrev_b32 v2, 5, v0
            v_lshlrev_b32 v2, 4, v2
            s_mov_b32 exec_lo, 1
            s_mov_b32 exec_hi, 1
            ds_write_b128 v2, v[16:19] offset:{L_ML}
            ds_write_b128 v2, v[20:23] offset:{L_ML+32}
            s_mov_b64 exec, -1''')
        lds_signal(g, C_ML)
    def h_block():
        g('s_cmp_lt_u32 s89, 32\ns_cbranch_scc1 L_A3_OG')
        g(f'''s_sub_u32 s44, s89, 32
        s_lshr_b32 s44, s44, 3
        s_lshl_b32 s44, s44, 14
        s_add_u32 s44, s44, {W_GU}
        s_lshr_b32 s45, s44, 1
        s_add_u32 s45, s45, {W_B}
        v_lshlrev_b32 v1, 4, v0
        v_lshlrev_b32 v2, 3, v0''')
        g('s_sub_u32 s48, s89, 32\ns_lshr_b32 s48, s48, 3\ns_add_u32 s48, s48, 16')
        flag_wait(g, 's48', 32)
        def issue_h():
            for ks in range(8):
                g(f's_add_u32 s46, s44, {ks*2048}')
                g(f'buffer_load_dwordx4 v[{72+4*ks}:{75+4*ks}], v1, s[36:39], s46 offen sc1')
                g(f'buffer_load_dwordx4 v[{104+4*ks}:{107+4*ks}], v1, s[36:39], s46 offen offset:1024 sc1')
        tags = [75 + 4 * k for k in range(16)]
        if 'h2' not in args.skip:
            tpoll_loop(g, issue_h, tags, sleep=16, plain=True)
        for k in range(16):
            unpack_d(g, 72 + 4 * k)
        for r in range(4):
            ga = (lambda ks: 72 + 4 * ks + r)
            ua = (lambda ks: 104 + 4 * ks + r)
            g(f'v_add_f32 v{8+r}, v{ga(0)}, v{ga(1)}\nv_add_f32 v{12+r}, v{ua(0)}, v{ua(1)}')
            for ks in range(2, 8):
                g(f'v_add_f32 v{8+r}, v{8+r}, v{ga(ks)}\nv_add_f32 v{12+r}, v{12+r}, v{ua(ks)}')
        bf16r_pair(g, 'v8', 'v9', 'v16'); bf16r_pair(g, 'v10', 'v11', 'v16')
        bf16r_pair(g, 'v12', 'v13', 'v16'); bf16r_pair(g, 'v14', 'v15', 'v16')
        for r in range(4):
            silu(g, f'v{8+r}', 'v16', 'v17', 'v18')
        bf16r_pair(g, 'v8', 'v9', 'v16'); bf16r_pair(g, 'v10', 'v11', 'v16')
        for r in range(4):
            g(f'v_mul_f32 v{8+r}, v{8+r}, v{12+r}')
        g('v_cvt_pk_bf16_f32 v8, v8, v9\nv_cvt_pk_bf16_f32 v10, v10, v11')
        g(f'''v_lshrrev_b32 v2, 5, v0
        v_lshlrev_b32 v2, 8, v2
        v_bfe_u32 v3, v0, 3, 2
        v_lshlrev_b32 v3, 6, v3
        v_and_b32 v4, 7, v0
        v_lshlrev_b32 v4, 1, v4
        v_add3_u32 v5, v2, v3, v4
        ds_write_b16 v5, v8 offset:{L_H}
        ds_write_b16_d16_hi v5, v8 offset:{L_H+16}
        ds_write_b16 v5, v10 offset:{L_H+32}
        ds_write_b16_d16_hi v5, v10 offset:{L_H+48}''')
        lds_signal(g, C_H)
        g.label('L_A3_OG')
    if args.flash:
        g('s_mov_b32 s63, s55')
        read_gnonce(g)
        h_block()
        g('s_mov_b32 s55, s63')
    else:
        ml_block(); h_block()
    g(f'''s_lshr_b32 s44, s88, 3
    s_lshl_b32 s44, s44, 15
    s_bfe_u32 s45, s88, 0x10002
    s_lshl_b32 s45, s45, 8
    s_add_u32 s44, s44, s45
    s_add_u32 s44, s44, {W_O}
    v_bfe_u32 v2, v0, 4, 1
    v_lshlrev_b32 v2, 14, v2
    v_lshrrev_b32 v3, 5, v0
    v_lshl_add_u32 v2, v3, 13, v2
    v_and_b32 v1, 15, v0
    v_lshl_add_u32 v1, v1, 4, v2''')
    def issue_o():
        for sp in range(16):
            if sp % 8 == 0:
                g(f's_add_u32 s46, s44, {sp*512}')
            g(f'buffer_load_dwordx4 v[{40+4*sp}:{43+4*sp}], v1, s[36:39], s46 offen offset:{(sp%8)*512} sc1')
    assert args.noml
    g(f'''s_lshr_b32 s48, s88, 6
    s_lshl_b32 s48, s48, 12
    s_bfe_u32 s49, s88, 0x30003
    s_lshl_b32 s49, s49, 2
    s_add_u32 s48, s48, s49
    s_add_u32 s48, s48, {W_ML}
    v_lshlrev_b32 v2, 6, v0''')
    def issue_w():
        g('buffer_load_dword v8, v2, s[36:39], s48 offen sc1')
        g('buffer_load_dword v9, v2, s[36:39], s48 offen offset:32 sc1')
    def weights():
        g('v_mov_b32 v10, v8')
        allred_row16(g, 'v_max_f32', 'v10', 'v11')
        allred_x16(g, 'v_max_f32', 'v10', 'v11')
        g('''v_sub_f32 v8, v8, v10
        v_mul_f32 v8, s60, v8
        v_exp_f32 v8, v8
        s_nop 0
        v_mul_f32 v9, v9, v8''')
        allred_row16(g, 'v_add_f32', 'v9', 'v11')
        allred_x16(g, 'v_add_f32', 'v9', 'v11')
        precise_div(g, 'v10', 'v8', 'v9', 'v11', 'v12')
        g(f'''v_lshlrev_b32 v2, 2, v0
        ds_write_b32 v2, v10 offset:{L_W}
        v_bfe_u32 v2, v0, 4, 1
        v_lshlrev_b32 v2, 7, v2
        v_lshrrev_b32 v3, 5, v0
        v_lshl_add_u32 v2, v3, 6, v2
        s_waitcnt lgkmcnt(0)
        ds_read_b128 v[24:27], v2 offset:{L_W}
        ds_read_b128 v[28:31], v2 offset:{L_W+16}
        ds_read_b128 v[32:35], v2 offset:{L_W+32}
        ds_read_b128 v[36:39], v2 offset:{L_W+48}''')
    if args.flash:
        lds_wait(g, C_O, 4)
        def issue_both():
            issue_w(); issue_o()
        if args.omode == 0:
            poll_loop(g, issue_both, [8, 9] + list(range(40, 104)), sleep=args.osleep)
            weights()
        elif args.omode == 1:
            poll_loop(g, issue_w, [8, 9], sleep=args.osleep)
            weights()
            poll_loop(g, issue_o, range(40, 104), sleep=args.osleep)
        elif args.omode == 3:
            g(f's_andn2_b32 s53, s88, 63\ns_add_u32 s53, s53, 257\ns_lshl_b32 s53, s53, 7\ns_add_u32 s53, s53, {W_CT}')
            counter_wait(g, 36, 's53', 64, args.osleep)
            poll_loop(g, issue_both, [8, 9] + list(range(40, 104)), sleep=4)
            weights()
        else:
            g('s_lshr_b32 s49, s88, 6\ns_add_u32 s49, s49, 8')
            flag_wait(g, 's49', 2, stmp='s53')
            poll_loop(g, issue_both, [8, 9] + list(range(40, 104)), sleep=4)
            weights()
    else:
        lds_wait(g, C_V, 1)
        poll_loop(g, issue_w, [8, 9], sleep=8)
        weights()
        lds_wait(g, C_O, 4)
    if 'o2' not in args.skip and not args.flash:
        poll_loop(g, issue_o, range(40, 104), sleep=args.osleep)
    g('s_waitcnt lgkmcnt(0)')
    ts(g, 6)
    for r in range(4):
        if args.noml:
            g(f'v_mul_f32 v{8+r}, v{40+r}, v24\nv_mul_f32 v{12+r}, v{44+r}, v25')
            for sp in range(2, 16, 2):
                g(f'v_fma_f32 v{8+r}, v{40+4*sp+r}, v{24+sp}, v{8+r}\nv_fma_f32 v{12+r}, v{44+4*sp+r}, v{25+sp}, v{12+r}')
        else:
            g(f'v_add_f32 v{8+r}, v{40+r}, v{44+r}\nv_add_f32 v{12+r}, v{48+r}, v{52+r}')
            for sp in range(4, 16, 2):
                g(f'v_add_f32 v{8+r}, v{8+r}, v{40+4*sp+r}\nv_add_f32 v{12+r}, v{12+r}, v{44+4*sp+r}')
        g(f'v_add_f32 v{8+r}, v{8+r}, v{12+r}')
    for r in range(4):
        allred_x32(g, 'v_add_f32', f'v{8+r}', 'v12')
    g('v_cvt_pk_bf16_f32 v8, v8, v9\nv_cvt_pk_bf16_f32 v10, v10, v11')
    g(f'''v_bfe_u32 v2, v0, 4, 1
    v_lshlrev_b32 v2, 7, v2
    v_bfe_u32 v3, v0, 3, 1
    v_lshlrev_b32 v3, 6, v3
    v_and_b32 v4, 7, v0
    v_lshlrev_b32 v4, 1, v4
    v_add3_u32 v5, v2, v3, v4
    s_mov_b32 exec_hi, 0
    ds_write_b16 v5, v8 offset:{L_OB}
    ds_write_b16_d16_hi v5, v8 offset:{L_OB+16}
    ds_write_b16 v5, v10 offset:{L_OB+32}
    ds_write_b16_d16_hi v5, v10 offset:{L_OB+48}
    s_mov_b64 exec, -1''')
    lds_signal(g, C_OG)
    ts(g, 7)
    ts_dump(g, 8)
    g('s_endpgm')

    g.label('L_A0')
    vm = VM(g)
    srd(g, 40, 24, 256)
    g(f'''s_memrealtime s[54:55]
    v_mov_b32 v8, -1
    v_mov_b32 v9, -1
    v_mov_b32 v10, -1
    v_mov_b32 v11, -1
    v_lshlrev_b32 v3, 4, v0
    v_lshrrev_b32 v4, 5, v0
    v_and_b32 v5, 31, v0
    v_lshlrev_b32 v5, 4, v5
    v_mov_b32 v13, 0
    v_mov_b32 v14, 0
    s_waitcnt lgkmcnt(0)
    s_or_b32 s54, s54, 1
    v_mov_b32 v12, s54
    s_lshr_b32 s46, s87, 6
    s_lshl_b32 s46, s46, 6
    s_mul_i32 s46, s46, {1 if args.gn else 0}
    s_mov_b64 exec, 1
    buffer_atomic_cmpswap v[12:13], v14, s[40:43], s46 offen sc0
    s_mov_b64 exec, -1''')
    vm.issue('nonce')
    def clr(voff, off=0):
        g(f'buffer_store_dwordx4 v[8:11], {voff}, s[36:39], s46 offen offset:{off} sc1')
        vm.issue('clr')
    g(f'''s_sub_u32 s48, s89, 32
    s_and_b32 s48, s48, 255
    s_and_b32 s46, s48, 7
    s_lshl_b32 s46, s46, 15
    s_lshr_b32 s48, s48, 3
    s_lshl_b32 s48, s48, 9
    s_add_u32 s46, s46, s48
    s_add_u32 s56, s46, {W_F}
    s_mov_b32 s46, s56
    v_lshl_add_u32 v6, v4, 14, v5''')
    clr('v6')
    g(f'''s_and_b32 s46, s88, 3
    s_lshl_b32 s46, s46, 17
    s_lshr_b32 s48, s88, 2
    s_lshl_b32 s48, s48, 9
    s_add_u32 s46, s46, s48
    s_add_u32 s46, s46, {W_S}
    v_lshl_add_u32 v6, v4, 15, v5''')
    clr('v6')
    g('s_add_u32 s46, s46, 65536')
    clr('v6')
    g(f'''s_lshr_b32 s46, s86, 6
    s_lshl_b32 s46, s46, 18
    s_bfe_u32 s48, s86, 0x10005
    s_lshl_b32 s48, s48, 14
    s_add_u32 s46, s46, s48
    s_and_b32 s48, s86, 31
    s_lshl_b32 s48, s48, 9
    s_add_u32 s46, s46, s48
    s_add_u32 s46, s46, {W_O}
    v_lshl_add_u32 v6, v4, 15, v5''')
    for i in range(4):
        clr('v6')
        if i < 3:
            g('s_add_u32 s46, s46, 65536')
    g(f'''s_lshl_b32 s46, s86, 6
    s_add_u32 s46, s46, {W_ML}
    s_mov_b64 exec, 15''')
    clr('v3')
    g(f'''s_mov_b64 exec, 1
    s_lshl_b32 s46, s2, 7
    s_add_u32 s46, s46, {W_CT}
    buffer_store_dword v14, v14, s[36:39], s46 offen sc1
    s_lshl_b32 s46, s86, 7
    s_add_u32 s46, s46, {W_CT + 256*128}
    buffer_store_dword v14, v14, s[36:39], s46 offen sc1''')
    vm.issue('clr'); vm.issue('clr')
    g('s_mov_b64 exec, -1')
    g(f'''s_lshr_b32 s47, s87, 6
    s_lshl_b32 s47, s47, 16
    s_and_b32 s48, s87, 63
    s_lshl_b32 s48, s48, 9
    s_add_u32 s47, s47, s48
    s_add_u32 s47, s47, {W_Q}''')
    srd(g, 28, 10, 8 * 1024 * 1024)
    g('''s_and_b32 s44, s87, 7
    s_lshl_b32 s45, s44, 20
    s_lshr_b32 s46, s87, 3
    s_lshl_b32 s46, s46, 8
    s_add_u32 s45, s45, s46
    v_lshrrev_b32 v4, 4, v0
    v_and_b32 v5, 15, v0
    v_lshlrev_b32 v1, 16, v4
    v_lshl_add_u32 v1, v5, 4, v1''')
    for kk in range(4):
        for i in range(8):
            r = 40 + 32 * kk + 4 * i
            g(f's_add_u32 s46, s45, {(32 * kk + i) * 8192}')
            g(f'buffer_load_dwordx4 v[{r}:{r+3}], v1, s[28:31], s46 offen nt')
            vm.issue(f'wq{kk}')
    g(f'''v_and_b32 v2, 1, v0
    v_lshlrev_b32 v3, 11, v2
    v_lshl_add_u32 v3, v4, 4, v3
    s_lshl_b32 s46, s44, 8
    v_add_u32 v3, s46, v3
    v_lshlrev_b32 v2, 15, v2
    v_lshl_add_u32 v2, v4, 7, v2
    v_bfe_u32 v6, v0, 1, 3
    v_lshl_add_u32 v2, v6, 4, v2
    s_barrier''')
    lds_wait(g, C_X, 1)
    ts(g, 1)
    vm.wait('clr')
    g(f'''v_readfirstlane_b32 s55, v12
    s_cmp_eq_u32 s55, 0
    s_cselect_b32 s55, s54, s55
    v_mov_b32 v6, {C_N}
    v_mov_b32 v7, s55
    s_mov_b64 exec, 1
    ds_write_b32 v6, v7
    s_mov_b64 exec, -1''')
    for half in range(2):
        for kk in range(4):
            b = 8 + 4 * (kk & 1)
            g(f'ds_read_b128 v[{b}:{b+3}], v3 offset:{64*kk}')
            if half == 0:
                vm.wait(f'wq{kk}')
            base = 40 + 32 * kk
            for tt in range(4):
                t = 4 * half + tt
                d = t >> 1
                sel = 's58' if (t & 1) == 0 else 's59'
                o = 16 + 4 * (tt & 1)
                for p in range(4):
                    g(f'v_perm_b32 v{o+p}, v{base + 4*(2*p+1) + d}, v{base + 4*(2*p) + d}, {sel}')
                acc = 24 + 4 * tt
                c = '0' if kk == 0 else f'v[{acc}:{acc+3}]'
                g('s_waitcnt lgkmcnt(0)\ns_nop 0' if tt == 0 else 's_nop 1')
                g(f'v_mfma_f32_16x16x32_bf16 v[{acc}:{acc+3}], v[{o}:{o+3}], v[{b}:{b+3}], {c}')
        g('s_nop 7\ns_nop 1')
        r = select8(g, [24 + 4 * tt for tt in range(4)])
        g('s_mov_b64 exec, s[84:85]' if half == 1 else 's_not_b64 exec, s[84:85]')
        (tagged_store if args.qpack else tagged_store_ab)(g, vm, r, 's47', 'v2', x=16)
        g('s_mov_b64 exec, -1\ns_nop 1')
    srd(g, 32, 20, 3584 * 1024 * 2)
    g('s_lshr_b32 s48, s87, 6\ns_add_u32 s48, s48, 1')
    arrive(g, 's48', 64, ack=bool(args.qack))
    lds_signal(g, C_P)
    ts(g, 2)
    q_gather(g, args, 0, 3)
    vm.reset()
    ts(g, 4)
    g('s_cmp_lt_u32 s89, 32\ns_cbranch_scc1 L_A0_FIN')
    g('''s_sub_u32 s48, s89, 32
    s_lshr_b32 s49, s48, 3
    s_lshl_b32 s49, s49, 18
    s_and_b32 s48, s48, 7
    s_lshl_b32 s48, s48, 8
    s_add_u32 s48, s48, s49
    v_lshlrev_b32 v1, 14, v4
    v_lshl_add_u32 v1, v5, 4, v1''')
    if args.late:
        lds_wait(g, C_V, args.late)
    elif args.kfirst:
        lds_wait(g, C_K, 4)
    for kk in range(3):
        if kk >= args.ainfl and not args.late:
            vm.wait(f'wd{kk-args.ainfl}')
        tile_loads(g, vm, 32, 's48', 2048, kk, kk, f'wd{kk}')
    g(f'''v_and_b32 v3, 1, v0
    v_lshlrev_b32 v3, 8, v3
    v_lshl_add_u32 v3, v4, 4, v3
    v_add_u32 v3, {L_H}, v3''')
    gemv_tile(g, vm, 32, 's48', 2048, 'v3', True, 'wd', wait_fn=lambda: lds_wait(g, C_H, 1))
    g('v_and_b32 v2, 1, v0\nv_lshlrev_b32 v2, 14, v2\nv_lshl_add_u32 v2, v4, 7, v2\nv_bfe_u32 v6, v0, 1, 3\nv_lshl_add_u32 v2, v6, 4, v2')
    publish_acc(g, vm, 's56', tagged=False)
    g.label('L_A0_FIN')
    ts(g, 5)
    srd(g, 28, 4, 4096)
    srd(g, 32, 22, 4096)
    g(f'''s_lshr_b32 s44, s2, 5
    s_bfe_u32 s45, s2, 0x10004
    s_and_b32 s46, s2, 15
    ; S gather: W_S + ((c*2+b)*64 + hh*2 + half)*512 + o8*32 + q2*16
    s_lshr_b32 s48, s2, 4
    s_lshl_b32 s49, s48, 14
    s_lshl_b32 s48, s48, 15
    s_lshl_b32 s53, s46, 5
    s_add_u32 s48, s48, s53
    s_add_u32 s49, s49, s53
    s_add_u32 s48, s48, {W_S}
    s_add_u32 s49, s49, {W_F}
    v_lshrrev_b32 v2, 1, v0
    v_and_b32 v3, 1, v0
    v_lshlrev_b32 v1, 10, v2
    v_lshl_add_u32 v1, v3, 4, v1
    v_min_u32 v2, 27, v2
    v_lshlrev_b32 v2, 9, v2
    v_lshl_add_u32 v2, v3, 4, v2
    ; x / out element offset: (b*1024 + 128c + 32g + t)*2 , g=o8>>2, t=2*(o8&3)+q2 ; +16 bytes per r
    s_lshl_b32 s52, s45, 10
    s_lshl_b32 s53, s44, 7
    s_add_u32 s52, s52, s53
    s_lshr_b32 s53, s46, 2
    s_lshl_b32 s53, s53, 5
    s_add_u32 s52, s52, s53
    s_and_b32 s53, s46, 3
    s_lshl_b32 s53, s53, 1
    s_add_u32 s52, s52, s53
    v_add_u32 v4, s52, v3
    v_lshlrev_b32 v4, 1, v4
    buffer_load_ushort v24, v4, s[28:31], 0 offen
    buffer_load_ushort v25, v4, s[28:31], 0 offen offset:16
    buffer_load_ushort v26, v4, s[28:31], 0 offen offset:32
    buffer_load_ushort v27, v4, s[28:31], 0 offen offset:48''')
    four_flags(g)
    lds_wait(g, C_S, 2)
    def issue_fin():
        g('buffer_load_dwordx4 v[8:11], v1, s[36:39], s48 offen sc1')
        g('buffer_load_dwordx4 v[12:15], v1, s[36:39], s48 offen offset:512 sc1')
        g('buffer_load_dwordx4 v[16:19], v2, s[36:39], s49 offen sc1')
    poll_loop(g, issue_fin, range(8, 20), sleep=args.finsleep)
    ts(g, 6)
    g('v_cmp_gt_u32 vcc, 56, v0\ns_nop 1')
    for r in range(4):
        g(f'v_add_f32 v{8+r}, v{8+r}, v{12+r}')
        g(f'v_cndmask_b32 v{16+r}, 0, v{16+r}, vcc')
    R = list(range(8, 12)) + list(range(16, 20))
    A = {r: r for r in R}
    Bk = {r: 40 + i for i, r in enumerate(R)}
    g('s_nop 1')
    for rr in (2, 4, 8):
        for r in R:
            g(f'v_add_f32_dpp v{Bk[r]}, v{A[r]}, v{A[r]} row_ror:{rr} row_mask:0xf bank_mask:0xf')
        A, Bk = Bk, A
    for swp in ('v_permlane16_swap_b32', 'v_permlane32_swap_b32'):
        for r in R:
            g(f'v_mov_b32 v{Bk[r]}, v{A[r]}')
        for r in R:
            g(f'{swp} v{A[r]}, v{Bk[r]}')
        for r in R:
            g(f'v_add_f32 v{A[r]}, v{A[r]}, v{Bk[r]}')
    for r in R:
        if A[r] != r:
            g(f'v_mov_b32 v{r}, v{A[r]}')
    bf16r_pair(g, 'v8', 'v9', 'v20'); bf16r_pair(g, 'v10', 'v11', 'v20')
    bf16r_pair(g, 'v16', 'v17', 'v20'); bf16r_pair(g, 'v18', 'v19', 'v20')
    for r in range(4):
        silu(g, f'v{16+r}', 'v20', 'v21', 'v22')
    bf16r_pair(g, 'v16', 'v17', 'v20'); bf16r_pair(g, 'v18', 'v19', 'v20')
    for r in range(4):
        g(f'v_mul_f32 v{8+r}, v{8+r}, v{16+r}')
    bf16r_pair(g, 'v8', 'v9', 'v20'); bf16r_pair(g, 'v10', 'v11', 'v20')
    for r in range(4):
        g(f'v_lshlrev_b32 v{24+r}, 16, v{24+r}\nv_add_f32 v{8+r}, v{8+r}, v{24+r}\nv_cvt_pk_bf16_f32 v{8+r}, v{8+r}, v{8+r}')
    g('''s_mov_b64 exec, 3
    buffer_store_short v8, v4, s[32:35], 0 offen
    buffer_store_short v9, v4, s[32:35], 0 offen offset:16
    buffer_store_short v10, v4, s[32:35], 0 offen offset:32
    buffer_store_short v11, v4, s[32:35], 0 offen offset:48''')
    ts(g, 7)
    ts_dump(g, 8)
    g('s_endpgm')

    g.label('L_A12')
    vm = VM(g)
    if args.cwarm:
        g(f'''s_cmp_ge_u32 s2, {args.cwarm}
        s_cbranch_scc1 L_CW_SKIP
        s_getpc_b64 s[44:45]''')
        g.label('L_CW_PC')
        g(f'''s_sub_u32 s44, s44, L_CW_PC-{KN}
        s_subb_u32 s45, s45, 0
        s_sub_u32 s46, s3, 1
        s_lshl_b32 s46, s46, 10
        v_lshlrev_b32 v8, 4, v0
        v_add_u32 v8, s46, v8
        v_mov_b32 v9, s45
        v_add_co_u32 v8, vcc, s44, v8
        s_nop 1
        v_addc_co_u32 v9, vcc, 0, v9, vcc
        s_mov_b32 s46, (L_CODE_END-{KN}+2047)/2048''')
        g.label('L_CW_LOOP')
        g('''global_load_dwordx4 v[12:15], v[8:9], off
        v_add_co_u32 v8, vcc, 0x800, v8
        s_nop 1
        v_addc_co_u32 v9, vcc, 0, v9, vcc
        s_sub_u32 s46, s46, 1
        s_cmp_lg_u32 s46, 0
        s_cbranch_scc1 L_CW_LOOP
        s_waitcnt vmcnt(0)''')
        g.label('L_CW_SKIP')
    g('''s_cmp_eq_u32 s3, 1
    s_cselect_b32 s28, s16, s18
    s_cselect_b32 s29, s17, s19
    s_mov_b32 s30, 7340032
    s_mov_b32 s31, 0x20000
    v_lshrrev_b32 v4, 4, v0
    v_and_b32 v5, 15, v0
    s_and_b32 s44, s2, 7
    s_mul_i32 s45, s44, 917504
    s_lshr_b32 s46, s2, 3
    s_lshl_b32 s46, s46, 8
    s_add_u32 s45, s45, s46
    v_mul_u32_u24 v1, 57344, v4
    v_lshl_add_u32 v1, v5, 4, v1
    v_and_b32 v2, 1, v0
    v_lshlrev_b32 v3, 11, v2
    v_lshl_add_u32 v3, v4, 4, v3
    s_lshl_b32 s46, s44, 8
    v_add_u32 v3, s46, v3
    v_lshlrev_b32 v2, 9, v2
    v_lshl_add_u32 v2, v4, 7, v2
    v_bfe_u32 v6, v0, 1, 3
    v_lshl_add_u32 v2, v6, 4, v2
    s_cmp_ge_u32 s2, 224
    s_cbranch_scc1 L_A12_SKIP''')
    g('s_barrier')
    if args.kfirst:
        lds_wait(g, C_K, 4)
    AI = args.ainfl
    for kk in range(AI):
        tile_loads(g, vm, 28, 's45', 7168, kk, kk, f'gu{kk}')
    lds_wait(g, C_X, 1)
    for kk in range(4):
        g(f'ds_read_b128 v[{A_B+4*kk}:{A_B+4*kk+3}], v3 offset:{64*kk}')
    g('s_waitcnt lgkmcnt(0)')
    for kk in range(4):
        vm.wait(f'gu{kk}')
        if kk + AI < 4:
            tile_loads(g, vm, 28, 's45', 7168, kk + AI, (kk + AI) % 3, f'gu{kk+AI}')
        tile_block_mfma(g, kk % 3, kk, kk == 0, A_B + 4 * kk)
    read_nonce(g)
    read_gnonce(g)
    four_flags(g)
    g(f's_lshl_b32 s46, s3, 10\ns_lshl_b32 s47, s2, 11\ns_add_u32 s46, s46, s47\ns_add_u32 s46, s46, {W_GU - 1024}')
    publish_acc(g, vm, 's46')
    g('s_lshr_b32 s48, s2, 3\ns_add_u32 s48, s48, 16')
    arrive(g, 's48', 16, sctr='s48', ack=False)
    g('s_branch L_A12_WO')
    g.label('L_A12_SKIP')
    g('s_barrier')
    if args.kfirst:
        lds_wait(g, C_K, 4)
    read_nonce(g)
    g.label('L_A12_WO')
    ts(g, 1)
    vm.reset()
    srd(g, 28, 12, 8 * 1024 * 1024)
    g('''s_and_b32 s44, s88, 3
    s_lshl_b32 s44, s44, 1
    s_add_u32 s44, s44, s3
    s_sub_u32 s44, s44, 1
    s_lshr_b32 s45, s88, 2
    s_lshl_b32 s45, s45, 17
    s_lshl_b32 s48, s44, 8
    s_add_u32 s45, s45, s48
    v_lshlrev_b32 v1, 14, v4
    v_lshl_add_u32 v1, v5, 4, v1''')
    if args.late:
        lds_wait(g, C_V, args.late)
    for kk in range(2):
        if kk == 1 and args.ainfl == 1:
            vm.wait('wo0')
        tile_loads(g, vm, 28, 's45', 2048, kk, kk, f'wo{kk}', stmp='s48')
    outs = [136, 8]
    for kk in range(2):
        vm.wait(f'wo{kk}')
        base = A_POOL + 32 * kk
        for t in range(8):
            d = t >> 1
            sel = 's58' if (t & 1) == 0 else 's59'
            for p in range(4):
                g(f'v_perm_b32 v{outs[kk] + 4*t + p}, v{base + 4*(2*p+1) + d}, v{base + 4*(2*p) + d}, {sel}')
    g(f'''v_and_b32 v3, 1, v0
    v_lshlrev_b32 v3, 7, v3
    v_lshl_add_u32 v3, v4, 4, v3
    v_add_u32 v3, {L_OB}, v3
    s_lshl_b32 s46, s44, 16
    s_lshr_b32 s48, s88, 2
    s_lshl_b32 s48, s48, 9
    s_add_u32 s46, s46, s48
    s_add_u32 s46, s46, {W_S}
    v_and_b32 v2, 1, v0
    v_lshlrev_b32 v2, 15, v2
    v_lshl_add_u32 v2, v4, 7, v2
    v_bfe_u32 v6, v0, 1, 3
    v_lshl_add_u32 v2, v6, 4, v2''')
    ts(g, 2)
    lds_wait(g, C_OG, 1)
    ts(g, 3)
    g('''ds_read_b128 v[72:75], v3
    ds_read_b128 v[76:79], v3 offset:64
    s_waitcnt lgkmcnt(0)''')
    for kk in range(2):
        for t in range(8):
            acc = A_ACC + 4 * t
            o = outs[kk] + 4 * t
            c = '0' if kk == 0 else f'v[{acc}:{acc+3}]'
            g(f'v_mfma_f32_16x16x32_bf16 v[{acc}:{acc+3}], v[{o}:{o+3}], v[{72+4*kk}:{75+4*kk}], {c}')
    publish_acc(g, vm, 's46', tagged=False)
    lds_signal(g, C_S, add=True)
    ts(g, 4)
    ts_dump(g, 5)
    g('s_endpgm')

    if args.flash == 3:
        gen_steal2(g, args)
    elif args.flash == 2:
        gen_steal(g, args)
    elif args.flash:
        gen_flash(g, args)
    else:
        g.label('L_BULK')
        vm = VM(g)
        BQ, BS, BO, BP = 8, 24, 56, 88
        NT, NS, NL = 16, 10, 6
        TS = 16384 if args.inter else 4096
        srd(g, 28, 6, 64 * 1024 * 1024)
        srd(g, 32, 8, 64 * 1024 * 1024)
        g(f'''s_sub_u32 s44, s3, 4
        s_lshr_b32 s45, s86, 6
        s_bfe_u32 s46, s86, 0x10005
        s_lshl_b32 s46, s46, 2
        s_add_u32 s45, s45, s46
        s_lshl_b32 s45, s45, 23
        s_and_b32 s46, s86, 31
        s_lshl_b32 s46, s46, 18
        s_add_u32 s45, s45, s46
        s_lshl_b32 s46, s44, {12 if args.inter else 16}
        s_add_u32 s45, s45, s46
        v_and_b32 v4, 15, v0
        v_lshrrev_b32 v5, 4, v0
        v_lshlrev_b32 v2, 4, v0
        s_mul_i32 s48, s44, 24576
        s_add_u32 s48, s48, {L_V}
        v_xor_b32 v6, v4, v5
        v_lshlrev_b32 v7, 8, v5
        v_lshl_add_u32 v1, v6, 4, v7
        v_xor_b32 v249, 64, v1
        v_add_u32 v249, 1024, v249
        v_xor_b32 v250, 128, v1
        v_add_u32 v250, 2048, v250
        v_xor_b32 v251, 192, v1
        v_add_u32 v251, 3072, v251
        v_and_b32 v6, 3, v4
        v_lshlrev_b32 v6, 2, v6
        v_lshrrev_b32 v7, 2, v4
        v_add_u32 v6, v6, v7
        v_xor_b32 v7, v6, v5
        v_lshlrev_b32 v6, 8, v6
        v_lshl_add_u32 v252, v7, 4, v6
        v_xor_b32 v253, 64, v252
        v_xor_b32 v254, 128, v252
        v_xor_b32 v255, 192, v252
        v_add_u32 v252, s48, v252
        v_add_u32 v253, s48, v253
        v_add_u32 v254, s48, v254
        v_add_u32 v255, s48, v255''')
        g('s_barrier')
        INFL = args.infl
        order = []
        KV_ = ['v1', 'v249', 'v250', 'v251']
        def ldsload(isK, T, k):
            for j in range(4):
                if isK:
                    g(f's_add_u32 s49, s48, {4096*k + 1024*j}\ns_mov_b32 m0, s49\ns_add_u32 s46, s45, {TS*T}')
                    g(f'buffer_load_dwordx4 {KV_[j]}, s[28:31], s46 offen nt lds')
                else:
                    g(f's_add_u32 s49, s48, {4096*k + 1024*j}\ns_mov_b32 m0, s49\ns_add_u32 s46, s45, {TS*T + 1024*j}')
                    g('buffer_load_dwordx4 v2, s[32:35], s46 offen nt lds')
                vm.issue(f'{"K" if isK else "V"}{T}')
        def rload(isK, T, slot):
            assert not isK
            r0 = BP + 16 * slot
            g(f's_add_u32 s46, s45, {TS*T}')
            for j in range(4):
                r = r0 + 4 * j
                g(f'buffer_load_dwordx4 v[{r}:{r+3}], v2, s[32:35], s46 offen offset:{1024*j} nt')
                vm.issue(f'V{T}')
        def ldsread(k, slot):
            r0 = BP + 16 * slot
            for j in range(4):
                g(f'ds_read_b128 v[{r0+4*j}:{r0+4*j+3}], v3 offset:{4096*k + 1024*j}')
        def kread(k, slot):
            r0 = BP + 16 * slot
            for j in range(4):
                g(f'ds_read_b128 v[{r0+4*j}:{r0+4*j+3}], v{252+j} offset:{4096*k}')
        def pace(tag):
            order.append(tag)
            n = args.vinfl if (tag[0] == 'V' and args.vinfl) else INFL
            if len(order) - 1 - n >= 0:
                vm.wait(order[len(order) - 1 - n])
        vslot = lambda T: (T + 6) % NS
        def stream(isK, t0=0):
            c = 'K' if isK else 'V'
            if isK:
                order.clear()
                assert INFL <= 4
            for T in range(t0, NT):
                if isK and T == args.pre:
                    lds_wait(g, C_X, 1)
                pace(f'{c}{T}')
                if T in (4, 8, 12, 15):
                    ts(g, (7 if isK else 11) + (T // 4 if T < 15 else 4) - 0)
                if T == args.ksig and isK:
                    lds_signal(g, C_K, add=True)
                if T == args.vsig and not isK:
                    lds_signal(g, C_V, add=True)
                if isK:
                    Tc = T - INFL
                    if 0 <= Tc < NS:
                        kread(Tc % NL, Tc)
                    if T >= NL:
                        later = [t for t in range(T - NL + 1, Tc + 1) if 0 <= t < NS]
                        g(f"s_waitcnt lgkmcnt({min(8, 4 * len(later))})")
                    ldsload(True, T, T % NL)
                elif T < NS:
                    rload(False, T, vslot(T))
                elif args.vpre and T >= NT - args.vpre:
                    order.pop()
                else:
                    ldsload(False, T, T - NS)
        stream(True)
        if args.ksig >= NT:
            lds_signal(g, C_K, add=True)
        for T in range(NT - args.vpre, NT):
            pace(f'V{T}')
            ldsload(False, T, T - NS + 2)
        lds_wait(g, C_Q, 2)
        ts(g, 1)
        g(f'''v_and_b32 v3, 7, v0
        v_lshlrev_b32 v3, 8, v3
        v_lshl_add_u32 v3, v5, 4, v3''')
        for j in range(4):
            g(f'ds_read_b128 v[{BQ+4*j}:{BQ+4*j+3}], v3 offset:{L_Q + 64*j}')
        g('s_waitcnt lgkmcnt(0)')
        for T in range(NT):
            if T >= NS:
                g(f's_waitcnt lgkmcnt({min(8, 4 * (NT - 1 - T))})')
            r0 = BP + 16 * (T % NS)
            s = BS + 4 * T
            for j in range(4):
                c = '0' if j == 0 else f'v[{s}:{s+3}]'
                g(f'v_mfma_f32_16x16x32_bf16 v[{s}:{s+3}], v[{r0+4*j}:{r0+4*j+3}], v[{BQ+4*j}:{BQ+4*j+3}], {c}')
            k = T - (NS - 3)
            if 0 <= k < NL:
                vm.wait(f'K{NS+k}')
                kread((NS + k) % NL, k)
            if 6 <= T < 6 + args.vearly:
                if T == 6:
                    order.clear()
                order.append(f'V{T-6}')
                rload(False, T - 6, vslot(T - 6))
        g('s_nop 7')
        ts(g, 2)
        for i in range(2 * NT):
            a, b = f'v{BS+2*i}', f'v{BS+2*i+1}'
            if 'sc1' not in args.skip:
                bf16r_pair(g, a, b, 'v8')
            g(f'v_mul_f32 {a}, s61, {a}\nv_mul_f32 {b}, s61, {b}')
            if 'sc2' not in args.skip:
                bf16r_pair(g, a, b, 'v8')
        g(f'v_max_f32 v9, v{BS}, v{BS+1}')
        for i in range(1, 2 * NT):
            g(f'v_max3_f32 v9, v9, v{BS+2*i}, v{BS+2*i+1}')
        allred_x16(g, 'v_max_f32', 'v9', 'v10')
        allred_x32(g, 'v_max_f32', 'v9', 'v10')
        g('v_mov_b32 v11, 0\nv_mov_b32 v16, 0')
        for i in range(0, 4 * NT, 2):
            g(f'''v_sub_f32 v{BS+i}, v{BS+i}, v9
            v_sub_f32 v{BS+i+1}, v{BS+i+1}, v9
            v_mul_f32 v{BS+i}, s60, v{BS+i}
            v_mul_f32 v{BS+i+1}, s60, v{BS+i+1}
            v_exp_f32 v{BS+i}, v{BS+i}
            v_exp_f32 v{BS+i+1}, v{BS+i+1}
            s_nop 0
            v_add_f32 v11, v11, v{BS+i}
            v_add_f32 v16, v16, v{BS+i+1}''')
        g('v_mov_b32 v248, v9')
        g('v_add_f32 v11, v11, v16')
        allred_x16(g, 'v_add_f32', 'v11', 'v10')
        allred_x32(g, 'v_add_f32', 'v11', 'v10')
        g(f'''s_lshl_b32 s46, s44, 6
        v_lshlrev_b32 v3, 2, v0
        v_add_u32 v3, s46, v3
        s_mov_b64 exec, 0xff
        ds_write_b32 v3, v9 offset:{L_ST}
        ds_write_b32 v3, v11 offset:{L_ST+32}
        s_mov_b64 exec, -1''')
        lds_signal(g, C_ST, add=True)
        ts(g, 3)
        if args.latec:
            for i in range(2 * NT):
                g(f'v_cvt_pk_bf16_f32 v{BS+i}, v{BS+2*i}, v{BS+2*i+1}')
        if args.vearly == 0:
            order.clear()
        stream(False, args.vearly)
        if args.noml and args.vsig >= NT:
            lds_signal(g, C_V, add=True)
        def get_c():
            lds_wait(g, C_ML, 1)
            g(f'''v_and_b32 v3, 7, v0
            v_lshlrev_b32 v3, 2, v3
            ds_read_b32 v9, v3 offset:{L_ML}
            ds_read_b32 v10, v3 offset:{L_ML+32}
            s_waitcnt lgkmcnt(0)
            v_sub_f32 v9, v248, v9
            v_mul_f32 v9, s60, v9
            v_exp_f32 v9, v9
            s_nop 0
            v_mul_f32 v10, v10, v9''')
        if not args.latec:
            get_c()
            ts(g, 4)
            for i in range(2 * NT):
                a, b = BS + 2 * i, BS + 2 * i + 1
                g(f'''v_mul_f32 v12, v{a}, v10
                v_mul_f32 v13, v{b}, v10
                v_cvt_pk_bf16_f32 v{BS+i}, v12, v13''')
        else:
            ts(g, 4)
        g('v_lshlrev_b32 v3, 4, v0\nv_add_u32 v3, s48, v3')
        for U in range(NT // 2):
            T0, T1 = 2 * U, 2 * U + 1
            if T1 < NS:
                vm.wait(f'V{T1}')
            else:
                g(f's_waitcnt lgkmcnt({min(8, 4 * (NT - 1 - T1))})')
            ra = BP + 16 * vslot(T0 % NS)
            rb = BP + 16 * vslot(T1 % NS)
            for half in range(2):
                for tt in range(4):
                    t = 4 * half + tt
                    d = t >> 1
                    sel = 's58' if (t & 1) == 0 else 's59'
                    o = BQ + 4 * tt
                    g(f'v_perm_b32 v{o}, v{ra+4+d}, v{ra+d}, {sel}')
                    g(f'v_perm_b32 v{o+1}, v{ra+12+d}, v{ra+8+d}, {sel}')
                    g(f'v_perm_b32 v{o+2}, v{rb+4+d}, v{rb+d}, {sel}')
                    g(f'v_perm_b32 v{o+3}, v{rb+12+d}, v{rb+8+d}, {sel}')
                g('s_nop 1')
                for tt in range(4):
                    t = 4 * half + tt
                    o = BQ + 4 * tt
                    acc = BO + 4 * t
                    c = '0' if U == 0 else f'v[{acc}:{acc+3}]'
                    g(f'v_mfma_f32_16x16x32_bf16 v[{acc}:{acc+3}], v[{o}:{o+3}], v[{BS+4*U}:{BS+4*U+3}], {c}')
            k = 2 * (U - 3)
            if 0 <= k < NL:
                vm.wait(f'V{NS+k+1}')
                lk = lambda kk: kk + 2 if (NS + kk >= NT - args.vpre) else kk
                ldsread(lk(k), vslot(k)); ldsread(lk(k + 1), vslot(k + 1))
        ts(g, 5)
        if args.latec:
            get_c()
            for i in range(32):
                g(f'v_mul_f32 v{BO+i}, v{BO+i}, v10')
        g(f'''s_lshl_b32 s46, s44, 12
        v_lshlrev_b32 v3, 9, v4
        v_lshl_add_u32 v3, v5, 7, v3
        v_add_u32 v3, s46, v3
        s_nop 7
        s_mov_b32 exec_lo, 0x00ff00ff
        s_mov_b32 exec_hi, 0x00ff00ff''')
        for t in range(8):
            acc = BO + 4 * t
            g(f'ds_write_b128 v3, v[{acc}:{acc+3}] offset:{L_OP + 16*t}')
        g('s_mov_b64 exec, -1')
        lds_signal(g, C_O, add=True)
        g(f'''s_lshr_b32 s46, s86, 6
        s_lshl_b32 s46, s46, 18
        s_lshl_b32 s49, s44, 16
        s_add_u32 s46, s46, s49
        s_bfe_u32 s49, s86, 0x10005
        s_lshl_b32 s49, s49, 14
        s_add_u32 s46, s46, s49
        s_and_b32 s49, s86, 31
        s_lshl_b32 s49, s49, 9
        s_add_u32 s46, s46, s49
        s_add_u32 s46, s46, {W_O}
        v_and_b32 v2, 31, v0
        v_lshlrev_b32 v2, 4, v2
        v_lshrrev_b32 v1, 5, v0
        v_lshl_add_u32 v2, v1, 15, v2
        s_lshl_b32 s49, s44, 10
        v_lshlrev_b32 v3, 4, v0
        v_add_u32 v3, s49, v3''')
        lds_wait(g, C_O, 4)
        for w in range(4):
            g(f'ds_read_b128 v[{88+4*w}:{91+4*w}], v3 offset:{L_OP + 4096*w}')
        g('s_waitcnt lgkmcnt(0)')
        for r in range(4):
            g(f'v_add_f32 v{8+r}, v{88+r}, v{92+r}\nv_add_f32 v{12+r}, v{96+r}, v{100+r}\nv_add_f32 v{8+r}, v{8+r}, v{12+r}')
        g('buffer_store_dwordx4 v[8:11], v2, s[36:39], s46 offen sc1')
        ts(g, 6)
        ts_dump(g, 7)
        g('s_endpgm')
    g.label('L_END')
    g('s_endpgm')
    g.label('L_CODE_END')
    g('.fill 1024, 4, 0xbf800000')
    T = f'''.section .rodata,"a"
.p2align 6
.amdhsa_kernel {KN}
  .amdhsa_next_free_vgpr 256
  .amdhsa_next_free_sgpr 100
  .amdhsa_accum_offset 256
  .amdhsa_group_segment_fixed_size 0
  .amdhsa_kernarg_size 96
  .amdhsa_user_sgpr_count 2
  .amdhsa_user_sgpr_kernarg_segment_ptr 1
  .amdhsa_system_sgpr_workgroup_id_x 1
  .amdhsa_float_denorm_mode_32 3
.end_amdhsa_kernel
'''
    return '\n'.join(H) + '\n' + '\n'.join(g.L) + '\n' + T

if __name__ == '__main__':
    ap = argparse.ArgumentParser()
    ap.add_argument('--prof', action='store_true')
    ap.add_argument('--gn', type=int, default=0)
    ap.add_argument('--pwait', type=int, default=99)
    ap.add_argument('--cwarm', type=int, default=0)
    ap.add_argument('--qmode', type=int, default=0)
    ap.add_argument('--nsp', type=int, default=6)
    ap.add_argument('--nstat', type=int, default=3)
    ap.add_argument('--qline', type=int, default=0)
    ap.add_argument('--omode', type=int, default=0)
    ap.add_argument('--osleep', type=int, default=1)
    ap.add_argument('--flash', type=int, default=0)
    ap.add_argument('--qpack', type=int, default=0)
    ap.add_argument('--vpre', type=int, default=0)
    ap.add_argument('--late', type=int, default=0)
    ap.add_argument('--vsig', type=int, default=16)
    ap.add_argument('--finsleep', type=int, default=1)
    ap.add_argument('--vinfl', type=int, default=0)
    ap.add_argument('--inter', type=int, default=1)
    ap.add_argument('--noml', type=int, default=0)
    ap.add_argument('--qack', type=int, default=1)
    ap.add_argument('--latec', type=int, default=0)
    ap.add_argument('--vearly', type=int, default=4)
    ap.add_argument('--ksig', type=int, default=16)
    ap.add_argument('--ainfl', type=int, default=2)
    ap.add_argument('--skip', default='')
    ap.add_argument('--remap', type=int, default=1)
    ap.add_argument('--plain', type=int, default=1)
    ap.add_argument('--nodma', action='store_true')
    ap.add_argument('--noaux', action='store_true')
    ap.add_argument('--nolds', action='store_true')
    ap.add_argument('--kfirst', type=int, default=1)
    ap.add_argument('--nohop', action='store_true')
    ap.add_argument('--fsleep', type=int, default=16)
    ap.add_argument('--infl', type=int, default=2)
    ap.add_argument('--pre', type=int, default=0)
    ap.add_argument('-o', default='recurrent_scan__gqa_block_cached__swiglu_ffn__decode.s')
    args = ap.parse_args()
    open(args.o, 'w').write(gen(args))
```
